```python
import torch

def _softmax(x, axis=-1):
    return torch.softmax(x, dim=axis)
def _gelu(x):
    return torch.nn.functional.gelu(x, approximate="tanh")
def _silu(x):
    return torch.nn.functional.silu(x)
def _sigmoid(x):
    return torch.sigmoid(x)
def _layernorm(x, axis=-1, eps=1e-5):
    m = x.mean(dim=axis, keepdim=True)
    v = x.var(dim=axis, keepdim=True, unbiased=False)
    return (x - m) / torch.sqrt(v + eps)
def _scatter_add(tgt, idx, src, axis=0):
    return tgt.clone().index_add_(axis, idx, src)
def _segment_sum(src, seg, n):
    out = torch.zeros((n,) + src.shape[1:], dtype=src.dtype)
    return out.index_add_(0, seg, src)
def _pad(x, pw):
    flat = tuple(v for pair in reversed(pw) for v in pair)
    return torch.nn.functional.pad(x, flat)

kernel_name = 'standalone__mha_block_cached__near_ridge'

def setup_inputs():

    _w = (lambda a: (lambda t: t.to(torch.bfloat16) if t.is_floating_point() else t)(torch.as_tensor(a)))
    B, Sq, D = 16, 192, 1024
    H, Sk, Dh = 32, 1024, 128
    return {
        "x": _w((lambda *s: torch.randn(*s, dtype=torch.bfloat16) * 0.8)(B, Sq, D)),
        "k_cache": _w((lambda *s: torch.randn(*s, dtype=torch.bfloat16) * 0.8)(B, H, Sk, Dh)),
        "v_cache": _w((lambda *s: torch.randn(*s, dtype=torch.bfloat16) * 0.05)(B, H, Sk, Dh)),
        "wq": _w((lambda *s: torch.randn(*s, dtype=torch.bfloat16) * 0.8)(D, H * Dh) * (D ** -0.5)),
        "wo": _w((lambda *s: torch.randn(*s, dtype=torch.bfloat16) * 0.05)(H * Dh, D) * ((H * Dh) ** -0.5)),
    }

def reference(x, k_cache, v_cache, wq, wo):
    B, Sq, D = x.shape
    H, Dh = 32, 128
    q = (lambda x, *d: x.permute(*d))((x @ wq).reshape(B, Sq, H, Dh), 0, 2, 1, 3)
    scores = torch.einsum("bhqd,bhkd->bhqk", q, k_cache) * (Dh ** -0.5)
    p = _softmax(scores, axis=-1)
    o = torch.einsum("bhqk,bhkd->bhqd", p, v_cache)
    return (lambda x, *d: x.permute(*d))(o, 0, 2, 1, 3).reshape(B, Sq, H * Dh) @ wo
```

```python
class Reg:
    __slots__ = ("c", "i", "n")
    def __init__(self, c, i, n=1): self.c, self.i, self.n = c, i, n
    def __str__(self):
        return f"{self.c}{self.i}" if self.n == 1 else f"{self.c}[{self.i}:{self.i+self.n-1}]"
    def regs(self): return {(self.c, self.i + k) for k in range(self.n)}
    def __getitem__(self, k):
        if isinstance(k, slice):
            a, b = k.start or 0, k.stop
            assert b <= self.n
            return Reg(self.c, self.i + a, b - a)
        assert 0 <= k < self.n
        return Reg(self.c, self.i + k, 1)
def V(i, n=1): return Reg("v", i, n)
def A(i, n=1): return Reg("a", i, n)
def S(i, n=1): return Reg("s", i, n)

class Asm:
    def __init__(self):
        self.out = []
        self.lds = []
        self.vm = []
        self.nlabel = 0
    def e(self, s): self.out.append("    " + s)
    def label(self, l): self.out.append(l + ":")
    def c(self, s): self.out.append("    ; " + s)
    def text(self): return "\n".join(self.out) + "\n"
    def _need(self, fifo, regs):
        last = -1
        for i, d in enumerate(fifo):
            if d & regs: last = i
        return last
    def wait_for(self, *ops):
        regs = set()
        for o in ops:
            if isinstance(o, Reg): regs |= o.regs()
        w = []
        i = self._need(self.vm, regs)
        if i >= 0:
            n = len(self.vm) - 1 - i
            assert n <= 63
            w.append(f"vmcnt({n})"); self.vm = self.vm[i+1:]
        i = self._need(self.lds, regs)
        if i >= 0:
            n = len(self.lds) - 1 - i
            if n > 15: n = 15; i = len(self.lds) - 1 - 15
            w.append(f"lgkmcnt({n})"); self.lds = self.lds[i+1:]
        if w: self.e("s_waitcnt " + " ".join(w))
    def wait_lgkm0(self):
        self.e("s_waitcnt lgkmcnt(0)"); self.lds = []
    def wait(self, vm=None, lgkm=None):
        w = []
        if vm is not None:
            w.append(f"vmcnt({vm})")
            if len(self.vm) > vm: self.vm = self.vm[len(self.vm)-vm:] if vm else []
        if lgkm is not None:
            w.append(f"lgkmcnt({lgkm})")
            if len(self.lds) > lgkm: self.lds = self.lds[len(self.lds)-lgkm:] if lgkm else []
        self.e("s_waitcnt " + " ".join(w))
    def ds_read_b128(self, d, addr, off=0):
        assert 0 <= off < 65536 and d.n == 4
        self.e(f"ds_read_b128 {d}, {addr} offset:{off}"); self.lds.append(d.regs())
    def ds_read_tr(self, d, addr, off=0):
        assert 0 <= off < 65536 and d.n == 2
        self.e(f"ds_read_b64_tr_b16 {d}, {addr} offset:{off}"); self.lds.append(d.regs())
    def ds_write_b128(self, addr, s, off=0):
        assert 0 <= off < 65536 and s.n == 4
        self.e(f"ds_write_b128 {addr}, {s} offset:{off}"); self.lds.append(set())
    def mfma(self, d, a, b, c):
        self.wait_for(a, b, c if isinstance(c, Reg) else None)
        self.e(f"v_mfma_f32_32x32x16_bf16 {d}, {a}, {b}, {c}")
    def dma(self, voff, srd, soff, imm=0, flags=""):
        assert 0 <= imm < 4096
        self.e(f"buffer_load_dwordx4 {voff}, {srd}, {soff} offen offset:{imm}{flags} lds"); self.vm.append(set())
    def bload(self, d, voff, srd, soff, imm=0, flags=""):
        assert 0 <= imm < 4096
        sz = {1: "dword", 2: "dwordx2", 4: "dwordx4"}[d.n]
        self.e(f"buffer_load_{sz} {d}, {voff}, {srd}, {soff} offen offset:{imm}{flags}"); self.vm.append(d.regs())
    def bstore(self, s, voff, srd, soff, imm=0, flags=""):
        assert 0 <= imm < 4096
        sz = {1: "dword", 2: "dwordx2", 4: "dwordx4"}[s.n]
        self.e(f"buffer_store_{sz} {s}, {voff}, {srd}, {soff} offen offset:{imm}{flags}"); self.vm.append(set())

def kd(name, vgpr, accum, sgpr=102):
    return f""".section .rodata,"a"
.p2align 6
.amdhsa_kernel {name}
  .amdhsa_next_free_vgpr {vgpr}
  .amdhsa_next_free_sgpr {sgpr}
  .amdhsa_accum_offset {accum}
  .amdhsa_group_segment_fixed_size 0
  .amdhsa_kernarg_size 64
  .amdhsa_user_sgpr_count 2
  .amdhsa_user_sgpr_kernarg_segment_ptr 1
  .amdhsa_system_sgpr_workgroup_id_x 1
.end_amdhsa_kernel
"""
```

```python
import sys, math, copy, struct
from asmlib import *

OPT = dict(touch=0, kv_nt=0, rotA=1, rotC=1, only=None, dbgQ=0, prof=0, rotB=0)
for a in sys.argv[2:]:
    k, v = a.split("=")
    OPT[k] = int(v) if v.lstrip("-").isdigit() else v

def f32bits(x): return struct.unpack("<I", struct.pack("<f", x))[0]
CSCALE = math.log2(math.e) / math.sqrt(128.0)
THRESH = 65536.0

HEADER = """; Kernarg layout for this problem (64 bytes, ptrs only, base s[0:1]):
"""

def stamp(a, i, real=False):
    if not OPT["prof"]: return
    a.e(f"s_mem{'real' if real else ''}time s[{60+2*i}:{61+2*i}]")
    a.e("s_waitcnt lgkmcnt(0)"); a.lds = []
def dump_stamps(a, n, wsoff, sW, vtmp, vaddr):
    if not OPT["prof"]: return
    e = a.e
    e("s_waitcnt vmcnt(0)")
    stamp(a, n - 2); stamp(a, n - 1, True)
    e("s_mov_b32 s88, s18"); e("s_mov_b32 s89, s19"); e("s_mov_b32 s90, 0x10000000"); e("s_mov_b32 s91, 0x20000")
    e(f"s_lshl_b32 s92, s2, 2"); e(f"s_add_u32 s92, s92, {sW}"); e("s_lshl_b32 s92, s92, 6"); e(f"s_add_u32 s92, s92, {wsoff}")
    e(f"v_mov_b32 {vaddr}, 0")
    for i in range(n):
        e(f"v_mov_b32 {vtmp}, s{60+2*i}")
        e(f"buffer_store_dword {vtmp}, {vaddr}, s[88:91], s92 offen offset:{4*i}")
    e("s_waitcnt vmcnt(0)")

def interleave(a, mfmas, gaps):
    for i, m in enumerate(mfmas):
        m()
        for f in gaps.get(i, []): f()

def spread(items, costs, gap_ids, gaps):
    tot = sum(costs); n = len(gap_ids); acc = 0.0
    for it, c in zip(items, costs):
        g = min(n - 1, int((acc + c * 0.5) * n / tot))
        gaps.setdefault(gap_ids[g], []).append(it); acc += c

def kernel1():
    a = Asm(); e = a.e
    SRDX, SRDW, SRDKV, SRDO = S(20, 4), S(24, 4), S(28, 4), S(32, 4)
    sW, sB, sHP, sROT, sQH, sHS = S(36), S(37), S(38), S(39), S(40), S(41)
    sT0, sT1, sT2, sIT = S(42), S(43), S(44), S(45)
    sXK, sWK = S(46), S(47)
    sM0X, sM0W = S(48), S(49)
    sKVO, sKVO2, sM0KV = S(50), S(51), S(52)
    sTHR, sC = S(53), S(54, 2)
    sOO = S(56)
    vLane = V(1)
    vt = [V(i) for i in range(2, 10)]
    xa = [[V(10 + 4 * s + k) for k in range(4)] for s in range(2)]
    wa = [V(18 + k) for k in range(4)]
    xv = [V(22 + k) for k in range(6)]
    wv = [V(28 + k) for k in range(4)]
    ka = [V(32 + k) for k in range(8)]
    va = [V(40 + k) for k in range(4)]
    kvv = [V(44 + k) for k in range(4)]
    vl = [V(48 + k) for k in range(3)]
    vlt = V(51)
    pt = [V(52 + k) for k in range(4)]
    vL16 = V(56)
    ACC = lambda db, qb: V(64 + 16 * (qb * 4 + db), 16)
    QF = lambda qb, s: V(64 + 32 * qb + 4 * s, 4)
    NEG = lambda qb: V(160 + 16 * qb, 16)
    SB = lambda i: V(208 + 16 * i, 16)
    PB = lambda i: V(240 + 8 * i, 8)
    OA = lambda db, qb: A(16 * (qb * 4 + db), 16)
    KF = lambda s: A(192 + 4 * s, 4)
    VF = lambda db, ks: A(224 + 4 * (ks * 4 + db), 4)
    AF = lambda st, db: A(192 + 16 * st + 4 * db, 4)
    BF = lambda st, qb: A(224 + 12 * st + 4 * qb, 4)
    XBASE = 65536

    a.label("mha_qattn_kernel")
    e("s_cmp_ge_u32 s2, 256"); e("s_cbranch_scc1 L1_end")
    e("s_load_dwordx16 s[4:19], s[0:1], 0")
    e(f"v_lshrrev_b32 {vt[0]}, 6, v0"); e(f"v_and_b32 {vLane}, 63, v0")
    e("s_and_b32 s3, s2, 7"); e(f"s_lshr_b32 {sT0}, s2, 3")
    e(f"v_readfirstlane_b32 {sW}, {vt[0]}")
    e(f"s_and_b32 {sT1}, s3, 1"); e(f"s_lshl_b32 {sT1}, {sT1}, 3"); e(f"s_and_b32 {sT2}, {sT0}, 7")
    e(f"s_add_u32 {sB}, {sT1}, {sT2}")
    e(f"s_lshr_b32 {sT1}, s3, 1"); e(f"s_lshl_b32 {sT1}, {sT1}, 2"); e(f"s_lshr_b32 {sHP}, {sT0}, 3")
    if OPT["rotA"]:
        e(f"s_lshl_b32 {sROT}, {sT2}, 2"); e(f"s_lshl_b32 {sT2}, {sHP}, 3"); e(f"s_add_u32 {sROT}, {sROT}, {sT2}")
        e(f"s_and_b32 {sROT}, {sROT}, 31")
    else:
        e(f"s_mov_b32 {sROT}, 0")
    e(f"s_add_u32 {sHP}, {sHP}, {sT1}")
    e(f"s_and_b32 {sQH}, {sW}, 1"); e(f"s_lshr_b32 {sHS}, {sW}, 1")
    e(f"s_mov_b32 {sTHR}, {f32bits(THRESH):#x}")
    e(f"s_mov_b32 {sC[0]}, {f32bits(CSCALE):#x}"); e(f"s_mov_b32 {sC[1]}, {f32bits(CSCALE):#x}")
    e("s_waitcnt lgkmcnt(0)")
    stamp(a, 0, True); stamp(a, 1)
    e(f"s_mul_i32 {sT0}, {sB}, 393216")
    e(f"s_add_u32 {SRDX[0]}, s4, {sT0}"); e(f"s_addc_u32 {SRDX[1]}, s5, 0")
    e(f"s_mov_b32 {SRDX[2]}, 393216"); e(f"s_mov_b32 {SRDX[3]}, 0x20000")
    e(f"s_lshl_b32 {sT0}, {sHP}, 9")
    e(f"s_add_u32 {SRDW[0]}, s10, {sT0}"); e(f"s_addc_u32 {SRDW[1]}, s11, 0")
    e(f"s_sub_u32 {SRDW[2]}, 8388608, {sT0}"); e(f"s_mov_b32 {SRDW[3]}, 0x20000")
    e(f"s_lshl_b32 {sT0}, {sB}, 5"); e(f"s_lshl_b32 {sT1}, {sHP}, 1"); e(f"s_add_u32 {sT0}, {sT0}, {sT1}")
    e(f"s_add_u32 {sT0}, {sT0}, {sHS}"); e(f"s_lshl_b32 {sT0}, {sT0}, 18")
    e(f"s_cmp_eq_u32 {sQH}, 0"); e(f"s_cselect_b32 {sT1}, s6, s8"); e(f"s_cselect_b32 {sT2}, s7, s9")
    e(f"s_add_u32 {SRDKV[0]}, {sT1}, {sT0}"); e(f"s_addc_u32 {SRDKV[1]}, {sT2}, 0")
    e(f"s_mov_b32 {SRDKV[2]}, 262144"); e(f"s_mov_b32 {SRDKV[3]}, 0x20000")
    e(f"s_mov_b32 {SRDO[0]}, s18"); e(f"s_mov_b32 {SRDO[1]}, s19")
    e(f"s_mov_b32 {SRDO[2]}, 25165824"); e(f"s_mov_b32 {SRDO[3]}, 0x20000")
    t0, t1, t2, t3, t4, t5 = vt[:6]
    e(f"v_lshrrev_b32 {t0}, 3, {vLane}")
    e(f"v_and_b32 {t1}, 7, {vLane}")
    e(f"v_lshrrev_b32 {t2}, 4, {vLane}")
    e(f"v_xor_b32 {t1}, {t1}, {t2}")
    e(f"s_mul_i32 {sT0}, {sW}, 48")
    e(f"v_add_u32 {t0}, {sT0}, {t0}")
    e(f"v_lshlrev_b32 {t0}, 11, {t0}")
    for m in range(6):
        e(f"v_xor_b32 {t3}, {4 * (m & 1)}, {t1}")
        e(f"v_lshl_add_u32 {t3}, {t3}, 4, {t0}")
        e(f"v_add_u32 {xv[m]}, {m * 16384 - (m % 3) * 1024}, {t3}")
    e(f"v_and_b32 {t1}, 15, {vLane}")
    e(f"v_lshlrev_b32 {t3}, 2, {t2}"); e(f"v_xor_b32 {t1}, {t1}, {t3}")
    e(f"s_lshl_b32 {sT0}, {sQH}, 4"); e(f"v_add_u32 {t0}, {sT0}, {t2}")
    e(f"v_lshlrev_b32 {t0}, 13, {t0}"); e(f"v_lshl_add_u32 {t0}, {t1}, 4, {t0}")
    e(f"s_lshl_b32 {sT0}, {sHS}, 8"); e(f"v_add_u32 {t0}, {sT0}, {t0}")
    for m in range(4):
        e(f"v_add_u32 {wv[m]}, {m * 32768 - m * 1024}, {t0}")
    e(f"s_mul_i32 {sM0X}, {sW}, 6144"); e(f"s_add_u32 {sM0X}, {sM0X}, {XBASE}")
    e(f"s_lshl_b32 {sM0W}, {sW}, 12")
    e(f"s_lshl_b32 {sXK}, {sROT}, 6")
    e(f"s_lshl_b32 {sWK}, {sROT}, 18")

    def dma_x(slot, part, adv):
        ops = [lambda: e(f"s_add_u32 m0, {sM0X}, {slot * 24576 + part * 3072}")]
        for m in range(3):
            ops.append(lambda m=m: a.dma(xv[3 * part + m], SRDX, sXK, m * 1024))
        if adv:
            ops.append(lambda: (e(f"s_add_u32 {sXK}, {sXK}, 128"), e(f"s_and_b32 {sXK}, {sXK}, 2047")))
        return ops
    def dma_w(slot):
        ops = [lambda: e(f"s_add_u32 m0, {sM0W}, {slot * 16384}")]
        for m in range(4):
            ops.append(lambda m=m: a.dma(wv[m], SRDW, sWK, m * 1024))
        ops.append(lambda: (e(f"s_add_u32 {sWK}, {sWK}, 262144"), e(f"s_and_b32 {sWK}, {sWK}, 8388607")))
        return ops
    def run(ops):
        for i, o in enumerate(ops):
            o()
            if i == 0: e("s_nop 0")
    run(dma_x(0, 0, 0)); run(dma_x(0, 1, 1)); run(dma_w(0)); run(dma_x(1, 0, 0)); run(dma_x(1, 1, 1)); run(dma_w(1))
    run(dma_x(2, 0, 0)); run(dma_w(2)); run(dma_x(2, 1, 1)); run(dma_w(3)); run(dma_x(3, 0, 0))
    vh, vg, vr, vc1, vc0, vql = vt[0], vt[1], vt[2], vt[3], vt[4], vt[5]
    e(f"v_lshrrev_b32 {vh}, 5, {vLane}")
    e(f"v_bfe_u32 {vg}, {vLane}, 4, 1"); e(f"v_bfe_u32 {vr}, {vLane}, 2, 2")
    e(f"v_bfe_u32 {vc1}, {vLane}, 1, 1"); e(f"v_and_b32 {vc0}, 1, {vLane}"); e(f"v_and_b32 {vql}, 31, {vLane}")
    u0, u1 = vt[6], vt[7]
    e(f"v_lshl_add_u32 {u0}, {vh}, 3, {vr}"); e(f"v_lshlrev_b32 {u0}, 8, {u0}")
    e(f"s_lshl_b32 {sT0}, {sHS}, 13"); e(f"v_add_u32 {u0}, {sT0}, {u0}")
    e(f"v_lshl_add_u32 {u0}, {vg}, 5, {u0}"); e(f"v_lshl_add_u32 {u0}, {vc0}, 4, {u0}"); e(f"v_lshl_add_u32 {u0}, {vc1}, 3, {u0}")
    for db in range(4):
        e(f"v_xor_b32 {u1}, {db}, {vr}"); e(f"v_lshl_add_u32 {wa[db]}, {u1}, 6, {u0}")
    e(f"v_lshl_add_u32 {u0}, {vh}, 2, {vr}"); e(f"v_lshlrev_b32 {u0}, 8, {u0}")
    e(f"s_lshl_b32 {sT0}, {sHS}, 16"); e(f"s_add_u32 {sT1}, {sT0}, 8192"); e(f"v_add_u32 {u0}, {sT1}, {u0}")
    e(f"v_lshl_add_u32 {u0}, {vg}, 5, {u0}"); e(f"v_lshl_add_u32 {u0}, {vc1}, 4, {u0}"); e(f"v_lshl_add_u32 {u0}, {vc0}, 3, {u0}")
    for db in range(4):
        e(f"v_xor_b32 {u1}, {db}, {vr}"); e(f"v_lshl_add_u32 {va[db]}, {u1}, 6, {u0}")
    e(f"v_lshlrev_b32 {u0}, 8, {vql}"); e(f"v_add_u32 {u0}, {sT0}, {u0}")
    e(f"v_and_b32 {u1}, 15, {vql}"); e(f"v_xor_b32 {u1}, {u1}, {vh}")
    for s in range(8):
        e(f"v_xor_b32 {ka[s]}, {2 * s}, {u1}"); e(f"v_lshl_add_u32 {ka[s]}, {ka[s]}, 4, {u0}")
    e(f"s_mul_i32 {sT1}, {sQH}, 12288"); e(f"s_add_u32 {sT1}, {sT1}, {XBASE}")
    e(f"v_lshlrev_b32 {u0}, 7, {vql}"); e(f"v_add_u32 {u0}, {sT1}, {u0}")
    e(f"v_bfe_u32 {u1}, {vql}, 1, 3"); e(f"v_xor_b32 {u1}, {u1}, {vh}")
    for k in range(4):
        e(f"v_xor_b32 {xa[0][k]}, {2 * k}, {u1}"); e(f"v_lshl_add_u32 {xa[0][k]}, {xa[0][k]}, 4, {u0}")
        e(f"v_add_u32 {xa[1][k]}, 49152, {xa[0][k]}")
    e(f"v_lshrrev_b32 {u0}, 4, {vLane}"); e(f"v_and_b32 {u1}, 15, {vLane}")
    e(f"s_cmp_eq_u32 {sQH}, 0"); e(f"s_cselect_b32 {sT1}, 1, 4"); e(f"s_cselect_b32 {sT2}, 4, 0")
    e(f"v_mul_u32_u24 {vh}, {sT1}, {u0}")
    e(f"v_lshlrev_b32 {u0}, 8, {u0}")
    for j in range(4):
        e(f"v_xor_b32 {vg}, {vh}, {u1}"); e(f"v_lshl_add_u32 {kvv[j]}, {vg}, 4, {u0}")
        if j < 3: e(f"v_add_u32 {vh}, {sT2}, {vh}")
    e(f"s_lshl_b32 {sM0KV}, {sQH}, 13"); e(f"s_add_u32 {sM0KV}, {sM0KV}, {sT0}")
    e(f"v_lshlrev_b32 {vL16}, 4, {vLane}")
    e(f"s_mul_i32 {sOO}, {sB}, 6"); e(f"s_mul_i32 {sT1}, {sQH}, 3"); e(f"s_add_u32 {sOO}, {sOO}, {sT1}")
    e(f"s_lshl_b32 {sOO}, {sOO}, 5"); e(f"s_lshl_b32 {sT1}, {sHP}, 1"); e(f"s_add_u32 {sOO}, {sOO}, {sT1}")
    e(f"s_add_u32 {sOO}, {sOO}, {sHS}"); e(f"s_lshl_b32 {sOO}, {sOO}, 13")
    for i in range(64, 256): e(f"v_mov_b32 v{i}, 0")
    for i in range(0, 192): e(f"v_accvgpr_write_b32 a{i}, 0")
    for q in range(3): e(f"v_mov_b32 {vl[q]}, 0")

    def frag_reads(st, wslot, xslot, ks, odd):
        ks4 = 2 * odd + ks
        B = lambda qb: (lambda: a.ds_read_b128(BF(st, qb), xa[xslot // 2][ks4], (xslot % 2) * 24576 + qb * 4096))
        Ard = lambda db, u: (lambda: a.ds_read_tr(AF(st, db)[2 * u:2 * u + 2], wa[db], wslot * 16384 + ks * 4096 + u * 1024))
        return [B(0), Ard(0, 0), Ard(0, 1), B(1), B(2), Ard(1, 0), Ard(1, 1), Ard(2, 0), Ard(2, 1), Ard(3, 0), Ard(3, 1)]
    def mf_kstep(st):
        return [(lambda db=db, qb=qb: a.mfma(ACC(db, qb), AF(st, db), BF(st, qb), ACC(db, qb))) for db in range(4) for qb in range(3)]
    a.wait(vm=27); e("s_barrier")
    stamp(a, 2)
    for r in frag_reads(0, 0, 0, 0, 0): r()
    e(f"s_mov_b32 {sIT}, 0")
    pend = []

    def bodyA():
        nonlocal_pend = []
        for u in range(8):
            wslot, xslot, odd = u % 4, (u // 2) % 4, u % 2
            if odd: xo = dma_x((u // 2) % 4, 0, 0)
            else:   xo = dma_x((u // 2 - 1) % 4, 1, 1)
            grp = dma_w(wslot) + xo
            gaps = {}
            for i, r in enumerate(frag_reads(1, wslot, xslot, 1, odd)): gaps.setdefault(i, []).append(r)
            prev = carry[0]
            for i, o in enumerate(prev): gaps.setdefault([0, 1, 4, 7, 8, 8][i], []).append(o)
            if u == 1:
                pass
            interleave(a, mf_kstep(0), gaps)
            gaps = {}
            nu = (u + 1) % 8
            def bar():
                a.wait(vm=14, lgkm=0); e("s_barrier")
            gaps[2] = [bar]
            if u == 1: gaps[1] = [lambda: (e(f"s_cmp_eq_u32 {sIT}, 3"), e(f"s_cselect_b32 {SRDX[2]}, 0, {SRDX[2]}"))]
            if u == 4: gaps[1] = [lambda: (e(f"s_cmp_eq_u32 {sIT}, 3"), e(f"s_cselect_b32 {SRDW[2]}, 0, {SRDW[2]}"))]
            rd = frag_reads(0, nu % 4, (nu // 2) % 4, 0, nu % 2)
            pos = [2, 2, 3, 4, 5, 6, 7, 8, 9, 10, 11]
            for p, r in zip(pos, rd): gaps.setdefault(p, []).append(r)
            wops = grp[:6]
            for i, o in enumerate(wops): gaps.setdefault([3, 4, 6, 8, 10, 11][i], []).append(o)
            carry[0] = grp[6:]
            interleave(a, mf_kstep(1), gaps)
    carry = [[]]
    st0 = (list(a.lds), list(a.vm))
    a.label("L1_loopA")
    bodyA()
    for i, o in enumerate(carry[0]):
        o()
        if i == 0: e("s_nop 0")
    carry[0] = []
    e(f"s_add_u32 {sIT}, {sIT}, 1"); e(f"s_cmp_lt_u32 {sIT}, 4"); e("s_cbranch_scc1 L1_loopA")
    assert a.lds == st0[0], (len(a.lds), len(st0[0]))
    a.wait(vm=0, lgkm=0); e("s_barrier")
    stamp(a, 3)
    nt = " nt" if OPT["kv_nt"] else ""
    def dma_kv(slot):
        ops = []
        for half in range(2):
            ops.append(lambda half=half: e(f"s_add_u32 m0, {sM0KV}, {slot * 16384 + half * 4096}"))
            for j in range(4):
                ops.append(lambda j=j, half=half: a.dma(kvv[j], SRDKV, sKVO2 if half else sKVO, j * 1024, nt))
        ops.append(lambda: (e(f"s_add_u32 {sKVO}, {sKVO}, 8192"), e(f"s_and_b32 {sKVO}, {sKVO}, 262143"), e(f"s_add_u32 {sKVO2}, {sKVO}, 4096")))
        return ops
    if OPT["rotB"] == 1:
        e(f"s_mul_i32 {sKVO}, s2, 5"); e(f"s_lshr_b32 {sT0}, s2, 5"); e(f"s_mul_i32 {sT0}, {sT0}, 3"); e(f"s_add_u32 {sKVO}, {sKVO}, {sT0}")
        e(f"s_lshl_b32 {sT0}, {sHS}, 4"); e(f"s_add_u32 {sKVO}, {sKVO}, {sT0}")
        e(f"s_and_b32 {sKVO}, {sKVO}, 31"); e(f"s_lshl_b32 {sKVO}, {sKVO}, 13")
    else:
        e(f"s_mov_b32 {sKVO}, 0")
    e(f"s_add_u32 {sKVO2}, {sKVO}, 4096")
    kvops = []
    for t in range(4): kvops += dma_kv(t)
    conv = []
    for n in range(12):
        base = 64 + 16 * n
        for i in range(8):
            conv.append(lambda r=base + 2 * i: e(f"v_pk_mul_f32 v[{r}:{r+1}], v[{r}:{r+1}], {sC}"))
        for i in range(8):
            conv.append(lambda r=base + 2 * i, d=64 + 8 * n + i: e(f"v_cvt_pk_bf16_f32 v{d}, v{r}, v{r+1}"))
    ci = 0
    for o in kvops:
        o()
        for _ in range(4):
            if ci < len(conv): conv[ci](); ci += 1
    while ci < len(conv): conv[ci](); ci += 1
    if OPT["dbgQ"]:
        e(f"s_lshl_b32 {sT0}, s2, 2"); e(f"s_add_u32 {sT0}, {sT0}, {sW}"); e(f"s_mul_i32 {sT0}, {sT0}, 24576")
        e(f"s_add_u32 {sT0}, {sT0}, 33554432"); e(f"s_mov_b32 {SRDO[2]}, 0x10000000")
        for f in range(24):
            a.bstore(V(64 + 4 * f, 4), vL16, SRDO, sT0, 0); e(f"s_add_u32 {sT0}, {sT0}, 1024")
        a.wait(vm=0)
    else:
        a.wait(vm=24)
    e("s_barrier")
    for s in range(8): a.ds_read_b128(KF(s), ka[s], 0)
    for i in range(32): e(f"v_accvgpr_write_b32 a{224 + i}, 0")
    for i in range(16): e(f"v_mov_b32 {SB(1)[i]}, 0xf149f2ca")
    for i in range(8): e(f"v_mov_b32 {PB(1)[i]}, 0")
    e(f"v_mov_b32 {vlt}, 0")
    for i in range(4): e(f"v_mov_b32 {pt[i]}, 0")
    for qb in range(3):
        for s in range(8): a.mfma(NEG(qb), KF(s), QF(qb, s), NEG(qb) if s else 0)
    e("s_nop 15")
    def rowmax(src, m, tmp):
        e(f"v_max3_f32 {m}, {src[0]}, {src[1]}, {src[2]}")
        for i in range(3, 15, 2): e(f"v_max3_f32 {m}, {m}, {src[i]}, {src[i+1]}")
        e(f"v_max_f32 {m}, {m}, {src[15]}")
        e(f"v_mov_b32 {tmp}, {m}"); e("s_nop 1")
        e(f"v_permlane32_swap_b32 {m}, {tmp}"); e("s_nop 1")
        e(f"v_max_f32 {m}, {m}, {tmp}")
    for qb in range(3):
        rowmax(NEG(qb), vt[0], vt[1])
        e(f"v_sub_f32 {vt[0]}, 0, {vt[0]}")
        for i in range(16): e(f"v_mov_b32 {NEG(qb)[i]}, {vt[0]}")
    e("s_nop 1")

    slow = []
    def softmax_ops(qb, sb, pb, tag):
        Sx, Px = SB(sb), PB(pb)
        E = lambda k: ((lambda: e(f"v_exp_f32 {pt[k % 4]}, {Sx[k]}")), 8)
        Ad = lambda k: ((lambda: e(f"v_add_f32 {vlt}, {vlt}, {pt[k % 4]}")), 4)
        C = lambda i: ((lambda: e(f"v_cvt_pk_bf16_f32 {Px[i]}, {pt[(2 * i) % 4]}, {pt[(2 * i + 1) % 4]}")), 4)
        ops = [E(0), E(1), E(2), ((lambda: e(f"v_add_f32 {vlt}, {pt[0]}, {pt[1]}")), 4), C(0)]
        for i in range(1, 8):
            ops.append(E(2 * i + 1))
            if i < 7: ops.append(E(2 * i + 2))
            ops += [Ad(2 * i), Ad(2 * i + 1), C(i)]
        def chk():
            e(f"v_cmp_lt_f32 vcc, {sTHR}, {vlt}")
            e(f"s_cbranch_vccnz L1_slow_{tag}")
            a.label(f"L1_ret_{tag}")
            e(f"v_add_f32 {vl[qb]}, {vl[qb]}, {vlt}")
        ops.append((chk, 12))
        slow.append((tag, qb, sb, pb))
        return ops
    def place(ops, gap_ids, gaps):
        spread([o for o, _ in ops], [c for _, c in ops], gap_ids, gaps)
    def split_ops(ops, frac):
        tot = sum(c for _, c in ops); acc = 0
        for i, (o, c) in enumerate(ops):
            if acc + c * 0.5 > tot * frac: return ops[:i], ops[i:]
            acc += c
        return ops, []
    held = {}
    def tileB(u, tagp):
        bi = lambda qb, tt: (3 * tt + qb) % 2
        mf = []
        def Sg(qb):
            for s in range(8):
                mf.append(lambda s=s: a.mfma(SB(bi(qb, u)), KF(s), QF(qb, s), SB(bi(qb, u)) if s else NEG(qb)))
        def PVg(qb, tt):
            for ks in range(2):
                for db in range(4):
                    mf.append(lambda ks=ks, db=db: a.mfma(OA(db, qb), VF(db, ks), PB(bi(qb, tt))[4 * ks:4 * ks + 4], OA(db, qb)))
        Sg(0); PVg(2, u - 1); Sg(1); PVg(0, u); Sg(2); PVg(1, u)
        gaps = {}
        place(held["sm2"], list(range(0, 7)), gaps)
        for o in held["dma"]: gaps.setdefault(0, []).append(o)
        place(softmax_ops(0, bi(0, u), bi(0, u), f"{tagp}{u}_0"), list(range(9, 23)), gaps)
        place(softmax_ops(1, bi(1, u), bi(1, u), f"{tagp}{u}_1"), list(range(25, 39)), gaps)
        s2a, s2b = split_ops(softmax_ops(2, bi(2, u), bi(2, u), f"{tagp}{u}_2"), 0.5)
        place(s2a, list(range(41, 48)), gaps); held["sm2"] = s2b
        for n in range(16):
            f, uu = n // 2, n % 2; ks, db = f // 4, f % 4
            gaps.setdefault(8 + n, []).append(lambda ks=ks, db=db, uu=uu: a.ds_read_tr(VF(db, ks)[2 * uu:2 * uu + 2], va[db], u * 16384 + ks * 4096 + uu * 2048))
        def bar():
            a.wait(vm=16, lgkm=0); e("s_barrier")
        gaps.setdefault(32, []).append(bar)
        for s in range(8):
            gaps.setdefault(33 + 2 * s, []).append(lambda s=s: a.ds_read_b128(KF(s), ka[s], ((u + 1) % 4) * 16384))
        d = dma_kv(u)
        posd = [33, 34, 36, 38, 40, 41, 42, 44, 46]
        for p, o in zip(posd, d[:9]): gaps.setdefault(p, []).append(o)
        held["dma"] = d[9:]
        interleave(a, mf, gaps)
    _, held["sm2"] = split_ops(softmax_ops(2, (3 * 3 + 2) % 2, (3 * 3 + 2) % 2, "B3_2"), 0.5)
    slow.pop()
    held["dma"] = []
    e(f"s_mov_b32 {sIT}, 0")
    stamp(a, 4)
    def bodyB():
        for u in range(4): tileB(u, "B")
        for o in held["dma"]: o()
        held["dma"] = []
    mark, smark, hsave = len(a.out), len(slow), dict(held)
    bodyB()
    steady = list(a.lds)
    del a.out[mark:]; del slow[smark:]; held.clear(); held.update(hsave)
    a.lds = list(steady)
    a.label("L1_loopB")
    e(f"s_cmp_eq_u32 {sIT}, 7"); e(f"s_cselect_b32 {SRDKV[2]}, 0, {SRDKV[2]}")
    bodyB()
    assert a.lds == steady
    e(f"s_add_u32 {sIT}, {sIT}, 1"); e(f"s_cmp_lt_u32 {sIT}, 8"); e("s_cbranch_scc1 L1_loopB")
    stamp(a, 5)
    _, tail = split_ops(softmax_ops(2, 1, 1, "E_2"), 0.5)
    for o, _ in tail: o()
    e("s_nop 1")
    for ks in range(2):
        for db in range(4):
            a.mfma(OA(db, 2), VF(db, ks), PB(1)[4 * ks:4 * ks + 4], OA(db, 2))
    for qb in range(3):
        e(f"v_mov_b32 {vt[1]}, {vl[qb]}"); e("s_nop 1")
        e(f"v_permlane32_swap_b32 {vl[qb]}, {vt[1]}"); e("s_nop 1")
        e(f"v_add_f32 {vt[1]}, {vl[qb]}, {vt[1]}")
        e(f"v_rcp_f32 {vt[2]}, {vt[1]}")
        if qb == 2: e("s_nop 7")
        for db in range(4):
            T = V(64 + 16 * db, 16); D = V(128 + 32 * qb + 8 * db, 8)
            for i in range(16): e(f"v_accvgpr_read_b32 {T[i]}, {OA(db, qb)[i]}")
            for i in range(16): e(f"v_mul_f32 {T[i]}, {T[i]}, {vt[2]}")
            for i in range(8): e(f"v_cvt_pk_bf16_f32 {D[i]}, {T[2*i]}, {T[2*i+1]}")
            if db == 0: e(f"s_add_u32 {sT0}, {sOO}, {qb * 262144}")
            if db == 2: e(f"s_add_u32 {sT0}, {sOO}, {qb * 262144 + 4096}")
            for hh in range(2):
                a.bstore(D[4 * hh:4 * hh + 4], vL16, SRDO, sT0, ((2 * db + hh) % 4) * 1024)
    dump_stamps(a, 8, 0x4000000, sW, vt[0], vt[1])
    a.label("L1_end")
    e("s_endpgm")
    for tag, qb, sb, pb in slow:
        Sx, Px = SB(sb), PB(pb)
        a.label(f"L1_slow_{tag}")
        e("s_nop 15")
        m, tmp, f = vt[0], vt[1], vt[2]
        rowmax(Sx, m, tmp)
        e(f"v_ceil_f32 {m}, {m}"); e(f"v_max_f32 {m}, 0, {m}")
        e(f"v_exp_f32 {f}, -{m}")
        for i in range(16): e(f"v_sub_f32 {NEG(qb)[i]}, {NEG(qb)[i]}, {m}")
        e(f"v_mul_f32 {vl[qb]}, {vl[qb]}, {f}")
        for db in range(4):
            for i in range(16):
                e(f"v_accvgpr_read_b32 {tmp}, {OA(db, qb)[i]}"); e(f"v_mul_f32 {tmp}, {tmp}, {f}")
                e(f"v_accvgpr_write_b32 {OA(db, qb)[i]}, {tmp}")
        e(f"v_mov_b32 {vlt}, 0")
        for i in range(8):
            e(f"v_sub_f32 {vt[3]}, {Sx[2*i]}, {m}"); e(f"v_sub_f32 {vt[4]}, {Sx[2*i+1]}, {m}")
            e(f"v_exp_f32 {vt[3]}, {vt[3]}"); e(f"v_exp_f32 {vt[4]}, {vt[4]}"); e("s_nop 0")
            e(f"v_add_f32 {vlt}, {vlt}, {vt[3]}"); e(f"v_add_f32 {vlt}, {vlt}, {vt[4]}")
            e(f"v_cvt_pk_bf16_f32 {Px[i]}, {vt[3]}, {vt[4]}")
        e("s_nop 1")
        e(f"s_branch L1_ret_{tag}")
    return a.text()

def kernel2():
    a = Asm(); e = a.e
    SRDWO, SRDOW, SRDOUT = S(20, 4), S(24, 4), S(28, 4)
    sW, sRB, sCB, sROT, sT0, sT1, sT2, sIT = [S(36 + i) for i in range(8)]
    sK, sWOo, sOo, sM0 = S(44), S(45), S(46), S(47)
    sKB = S(48)
    vLane = V(1); vt = [V(i) for i in range(2, 10)]
    wa = [V(10 + k) for k in range(4)]
    wv = [V(14 + k) for k in range(4)]
    ov = [V(18 + k) for k in range(3)]
    ra = [V(21 + k) for k in range(3)]
    vRW, vOut = V(24), V(25)
    AC = lambda db, qb: A(16 * (qb * 4 + db), 16)
    AF = lambda st, db: V(32 + 16 * st + 4 * db, 4)
    BF = lambda sl, qb: V(64 + 12 * sl + 4 * qb, 4)
    REG = 40960
    a.label("mha_oproj_kernel")
    e("s_cmp_ge_u32 s2, 256"); e("s_cbranch_scc1 L2_end")
    e("s_load_dwordx16 s[4:19], s[0:1], 0")
    e(f"v_lshrrev_b32 {vt[0]}, 6, v0"); e(f"v_and_b32 {vLane}, 63, v0")
    e("s_and_b32 s3, s2, 7"); e(f"s_lshr_b32 {sT0}, s2, 3")
    e(f"v_readfirstlane_b32 {sW}, {vt[0]}")
    e(f"s_lshr_b32 {sT1}, s3, 1"); e(f"s_lshl_b32 {sT1}, {sT1}, 3"); e(f"s_and_b32 {sT2}, {sT0}, 7")
    e(f"s_add_u32 {sRB}, {sT1}, {sT2}")
    e(f"s_and_b32 {sT1}, s3, 1"); e(f"s_lshl_b32 {sT1}, {sT1}, 2"); e(f"s_lshr_b32 {sCB}, {sT0}, 3")
    if OPT["rotC"]:
        e(f"s_lshl_b32 {sROT}, {sT2}, 3"); e(f"s_lshl_b32 {sT2}, {sCB}, 4"); e(f"s_add_u32 {sROT}, {sROT}, {sT2}")
        e(f"s_and_b32 {sROT}, {sROT}, 63")
    else:
        e(f"s_mov_b32 {sROT}, 0")
    e(f"s_add_u32 {sCB}, {sCB}, {sT1}")
    e("s_waitcnt lgkmcnt(0)")
    stamp(a, 0, True); stamp(a, 1)
    e(f"s_lshl_b32 {sT0}, {sCB}, 8")
    e(f"s_add_u32 {SRDWO[0]}, s12, {sT0}"); e(f"s_addc_u32 {SRDWO[1]}, s13, 0")
    e(f"s_sub_u32 {SRDWO[2]}, 8388608, {sT0}"); e(f"s_mov_b32 {SRDWO[3]}, 0x20000")
    e(f"s_mov_b32 {SRDOW[0]}, s18"); e(f"s_mov_b32 {SRDOW[1]}, s19")
    e(f"s_mov_b32 {SRDOW[2]}, 25165824"); e(f"s_mov_b32 {SRDOW[3]}, 0x20000")
    e(f"s_mov_b32 {SRDOUT[0]}, s14"); e(f"s_mov_b32 {SRDOUT[1]}, s15")
    e(f"s_mov_b32 {SRDOUT[2]}, 6291456"); e(f"s_mov_b32 {SRDOUT[3]}, 0x20000")
    t0, t1, t2, t3 = vt[:4]
    e(f"v_lshrrev_b32 {t2}, 4, {vLane}"); e(f"v_and_b32 {t1}, 15, {vLane}")
    e(f"v_lshlrev_b32 {t3}, 2, {t2}"); e(f"v_xor_b32 {t1}, {t1}, {t3}")
    e(f"v_lshlrev_b32 {t0}, 11, {t2}"); e(f"v_lshl_add_u32 {t0}, {t1}, 4, {t0}")
    for m in range(4): e(f"v_add_u32 {wv[m]}, {m * 8192 - m * 1024}, {t0}")
    e(f"s_mul_i32 {sT0}, {sRB}, 786432"); e(f"v_lshlrev_b32 {t0}, 4, {vLane}")
    e(f"v_add_u32 {ov[0]}, {sT0}, {t0}")
    e(f"v_add_u32 {ov[1]}, 262144, {ov[0]}"); e(f"v_add_u32 {ov[2]}, 524288, {ov[0]}")
    e(f"s_mul_i32 {sM0}, {sW}, {REG}")
    e(f"v_add_u32 {vRW}, {sM0}, {t0}")
    for d in range(1, 4):
        e(f"s_sub_u32 {sT0}, {sW}, {d}"); e(f"s_and_b32 {sT0}, {sT0}, 3"); e(f"s_mul_i32 {sT0}, {sT0}, {REG}")
        e(f"s_add_u32 {sT0}, {sT0}, {(d - 1) * 12288}"); e(f"v_add_u32 {ra[d-1]}, {sT0}, {t0}")
    e(f"s_lshl_b32 {sKB}, {sW}, 6")
    e(f"s_mov_b32 {sK}, {sROT}")
    def issue(slot):
        def setup():
            e(f"s_add_u32 {sT0}, {sKB}, {sK}")
            e(f"s_lshl_b32 {sWOo}, {sT0}, 15"); e(f"s_lshl_b32 {sOo}, {sT0}, 10")
            e(f"s_add_u32 m0, {sM0}, {slot * 4096}")
            e(f"s_add_u32 {sK}, {sK}, 1"); e(f"s_and_b32 {sK}, {sK}, 63")
        ops = [setup]
        for m in range(4): ops.append(lambda m=m: a.dma(wv[m], SRDWO, sWOo, m * 1024))
        for qb in range(3): ops.append(lambda qb=qb: a.bload(BF(slot, qb), ov[qb], SRDOW, sOo, 0))
        return ops
    for sl in range(7):
        for o in issue(sl): o()
    vh, vg, vr, vc1, vc0, vql, u0, u1 = vt
    e(f"v_lshrrev_b32 {vh}, 5, {vLane}")
    e(f"v_bfe_u32 {vg}, {vLane}, 4, 1"); e(f"v_bfe_u32 {vr}, {vLane}, 2, 2")
    e(f"v_bfe_u32 {vc1}, {vLane}, 1, 1"); e(f"v_and_b32 {vc0}, 1, {vLane}"); e(f"v_and_b32 {vql}, 31, {vLane}")
    e(f"v_lshl_add_u32 {u0}, {vh}, 2, {vr}"); e(f"v_lshlrev_b32 {u0}, 8, {u0}"); e(f"v_add_u32 {u0}, {sM0}, {u0}")
    e(f"v_lshl_add_u32 {u0}, {vg}, 5, {u0}"); e(f"v_lshl_add_u32 {u0}, {vc0}, 4, {u0}"); e(f"v_lshl_add_u32 {u0}, {vc1}, 3, {u0}")
    for d in range(4):
        e(f"s_add_u32 {sT0}, {sW}, {d}"); e(f"s_and_b32 {sT0}, {sT0}, 3")
        e(f"v_xor_b32 {u1}, {sT0}, {vr}"); e(f"v_lshl_add_u32 {wa[d]}, {u1}, 6, {u0}")
    e(f"s_mul_i32 {sT0}, {sRB}, 196608"); e(f"s_lshl_b32 {sT1}, {sCB}, 8"); e(f"s_add_u32 {sT0}, {sT0}, {sT1}")
    e(f"s_lshl_b32 {sT1}, {sW}, 6"); e(f"s_add_u32 {sT0}, {sT0}, {sT1}")
    e(f"v_lshlrev_b32 {vOut}, 11, {vql}"); e(f"v_lshl_add_u32 {vOut}, {vh}, 4, {vOut}"); e(f"v_add_u32 {vOut}, {sT0}, {vOut}")
    for i in range(192): e(f"v_accvgpr_write_b32 a{i}, 0")
    def reads(st, slot):
        return [(lambda db=db, u=u: a.ds_read_tr(AF(st, db)[2 * u:2 * u + 2], wa[db], slot * 4096 + u * 2048)) for db in range(4) for u in range(2)]
    a.wait(vm=42 + 3)
    stamp(a, 2)
    for r in reads(0, 0): r()
    e(f"s_mov_b32 {sIT}, 0")
    a.vm = [set()] * 0
    st0 = list(a.lds)
    a.label("L2_loop")
    for u in range(8):
        st = u % 2
        e("s_waitcnt vmcnt(35)")
        gaps = {}
        for i, r in enumerate(reads(1 - st, (u + 1) % 8)): gaps.setdefault(i + 1, []).append(r)
        ops = issue((u + 7) % 8)
        if u == 1:
            gaps.setdefault(0, []).append(lambda: (e(f"s_cmp_eq_u32 {sIT}, 7"), e(f"s_cselect_b32 {SRDWO[2]}, 0, {SRDWO[2]}"), e(f"s_cselect_b32 {SRDOW[2]}, 0, {SRDOW[2]}")))
        for p, o in zip([0, 1, 2, 4, 5, 7, 8, 10], ops): gaps.setdefault(p, []).append(o)
        mf = [(lambda db=db, qb=qb: a.mfma(AC(db, qb), AF(st, db), BF(u, qb), AC(db, qb))) for db in range(4) for qb in range(3)]
        a.vm = []
        interleave(a, mf, gaps)
        a.vm = []
    assert a.lds == st0
    e(f"s_add_u32 {sIT}, {sIT}, 1"); e(f"s_cmp_lt_u32 {sIT}, 8"); e("s_cbranch_scc1 L2_loop")
    a.wait(vm=0, lgkm=0)
    stamp(a, 3); stamp(a, 4); stamp(a, 5)
    e("s_nop 7")
    for d in range(1, 4):
        for qb in range(3):
            for q4 in range(4):
                a.ds_write_b128(vRW, AC(d, qb)[4 * q4:4 * q4 + 4], ((d - 1) * 3 + qb) * 4096 + q4 * 1024)
    for qb in range(3):
        for i in range(16): e(f"v_accvgpr_read_b32 v{32 + 16 * qb + i}, {AC(0, qb)[i]}")
    a.wait(lgkm=0); e("s_barrier")
    for qb in range(3):
        for d in range(3):
            for q4 in range(4):
                a.ds_read_b128(V(96 + 48 * d + 16 * qb + 4 * q4, 4), ra[d], qb * 4096 + q4 * 1024)
    for qb in range(3):
        for d in range(3):
            for i in range(16):
                src = V(96 + 48 * d + 16 * qb + i)
                a.wait_for(src)
                e(f"v_add_f32 v{32 + 16 * qb + i}, v{32 + 16 * qb + i}, {src}")
        Dq = V(80, 8) if qb == 0 else (V(88, 8) if qb == 1 else V(96, 8))
        for i in range(8): e(f"v_cvt_pk_bf16_f32 {Dq[i]}, v{32 + 16 * qb + 2 * i}, v{32 + 16 * qb + 2 * i + 1}")
        e(f"s_mov_b32 {sT0}, {qb * 65536}")
        for jj in range(2): a.bstore(Dq[4 * jj:4 * jj + 4], vOut, SRDOUT, sT0, 32 * jj)
    dump_stamps(a, 8, 0x4100000, sW, vt[0], vt[1])
    a.label("L2_end")
    e("s_endpgm")
    return a.text()

def main():
    launches = []
    if OPT["only"] in (None, "k1"): launches.append("; @launch kernel=mha_qattn_kernel grid=(256,1,1) block=(256,1,1) lds=163840")
    if OPT["only"] in (None, "k2"): launches.append("; @launch kernel=mha_oproj_kernel grid=(256,1,1) block=(256,1,1) lds=163840")
    s = HEADER + "\n".join(launches) + "\n"
    s += '.amdgcn_target "amdgcn-amd-amdhsa--gfx950"\n.text\n'
    s += ".globl mha_qattn_kernel\n.p2align 8\n.type mha_qattn_kernel,@function\n" + kernel1()
    s += ".globl mha_oproj_kernel\n.p2align 8\n.type mha_oproj_kernel,@function\n" + kernel2()
    s += kd("mha_qattn_kernel", 512, 256) + kd("mha_oproj_kernel", 512, 256)
    open(sys.argv[1], "w").write(s)
main()
```

```python
class Reg:
    __slots__ = ("c", "i", "n")
    def __init__(self, c, i, n=1): self.c, self.i, self.n = c, i, n
    def __str__(self):
        return f"{self.c}{self.i}" if self.n == 1 else f"{self.c}[{self.i}:{self.i+self.n-1}]"
    def regs(self): return {(self.c, self.i + k) for k in range(self.n)}
    def __getitem__(self, k):
        if isinstance(k, slice):
            a, b = k.start or 0, k.stop
            assert b <= self.n
            return Reg(self.c, self.i + a, b - a)
        assert 0 <= k < self.n
        return Reg(self.c, self.i + k, 1)
def V(i, n=1): return Reg("v", i, n)
def A(i, n=1): return Reg("a", i, n)
def S(i, n=1): return Reg("s", i, n)

class Asm:
    def __init__(self):
        self.out = []
        self.lds = []
        self.vm = []
    def e(self, s): self.out.append(" " + s)
    def label(self, l): self.out.append(l + ":")
    def text(self): return "\n".join(self.out) + "\n"
    def _need(self, fifo, regs):
        last = -1
        for i, d in enumerate(fifo):
            if d & regs: last = i
        return last
    def wait_for(self, *ops, lgkm=None):
        regs = set()
        for o in ops:
            if isinstance(o, Reg): regs |= o.regs()
            elif isinstance(o, tuple): regs.add(o)
        w = []
        i = self._need(self.vm, regs)
        if i >= 0:
            n = len(self.vm) - 1 - i
            if n > 63: n = 63; i = len(self.vm) - 1 - 63
            w.append(f"vmcnt({n})"); self.vm = self.vm[i+1:]
        i = self._need(self.lds, regs)
        if lgkm is not None: i = max(i, len(self.lds) - 1 - lgkm)
        if i >= 0:
            n = len(self.lds) - 1 - i
            if n > 15: n = 15; i = len(self.lds) - 1 - 15
            w.append(f"lgkmcnt({n})"); self.lds = self.lds[i+1:]
        if w: self.e("s_waitcnt " + " ".join(w))
    def wait(self, vm=None, lgkm=None):
        w = []
        if vm is not None:
            w.append(f"vmcnt({vm})")
            if len(self.vm) > vm: self.vm = self.vm[len(self.vm)-vm:] if vm else []
        if lgkm is not None:
            w.append(f"lgkmcnt({lgkm})")
            if len(self.lds) > lgkm: self.lds = self.lds[len(self.lds)-lgkm:] if lgkm else []
        self.e("s_waitcnt " + " ".join(w))
    def _off(self, off): return f" offset:{off}" if off else ""
    def ds_read_b128(self, d, addr, off=0):
        assert 0 <= off < 65536 and d.n == 4
        self.e(f"ds_read_b128 {d}, {addr}{self._off(off)}"); self.lds.append(d.regs())
    def ds_read_tr(self, d, addr, off=0):
        assert 0 <= off < 65536 and d.n == 2
        self.e(f"ds_read_b64_tr_b16 {d}, {addr}{self._off(off)}"); self.lds.append(d.regs())
    def ds_write_b128(self, addr, s, off=0):
        assert 0 <= off < 65536 and s.n == 4
        self.wait_for(s)
        self.e(f"ds_write_b128 {addr}, {s}{self._off(off)}"); self.lds.append(set())
    def mfma(self, d, a, b, c):
        self.wait_for(a, b, c if isinstance(c, Reg) else None)
        self.e(f"v_mfma_f32_32x32x16_bf16 {d}, {a}, {b}, {c}")
    def mfma16(self, d, a, b, c):
        self.wait_for(a, b, c if isinstance(c, Reg) else None)
        self.e(f"v_mfma_f32_16x16x32_bf16 {d}, {a}, {b}, {c}")
    def dma(self, voff, srd, soff, imm=0, flags="", tag=None):
        assert 0 <= imm < 4096
        self.e(f"buffer_load_dwordx4 {voff}, {srd}, {soff} offen{self._off(imm)}{flags} lds"); self.vm.append({tag} if tag else set())
    def bload(self, d, voff, srd, soff, imm=0, flags=""):
        assert 0 <= imm < 4096
        sz = {1: "dword", 2: "dwordx2", 4: "dwordx4"}[d.n]
        self.e(f"buffer_load_{sz} {d}, {voff}, {srd}, {soff} offen{self._off(imm)}{flags}"); self.vm.append(d.regs())
    def bstore(self, s, voff, srd, soff, imm=0, flags=""):
        assert 0 <= imm < 4096
        sz = {1: "dword", 2: "dwordx2", 4: "dwordx4"}[s.n]
        self.e(f"buffer_store_{sz} {s}, {voff}, {srd}, {soff} offen{self._off(imm)}{flags}"); self.vm.append(set())

class Gaps:
    def __init__(self): self.m, self.v = {}, {}
    def mem(self, g, f): self.m.setdefault(g, []).append(f)
    def valu(self, g, f): self.v.setdefault(g, []).append(f)
    def spread(self, ops, gap_ids):
        if not ops: return
        tot = sum(c for _, c in ops); n = len(gap_ids); acc = 0.0
        for it, c in ops:
            g = min(n - 1, int((acc + c * 0.5) * n / tot))
            self.valu(gap_ids[g], it); acc += c
    def run(self, mfmas):
        for i, m in enumerate(mfmas):
            m()
            for f in self.m.pop(i, []): f()
            for f in self.v.pop(i, []): f()
        assert not self.m and not self.v, (self.m.keys(), self.v.keys())

def kd(name, vgpr, accum, sgpr=102):
    return f""".section .rodata,"a"
.p2align 6
.amdhsa_kernel {name}
  .amdhsa_next_free_vgpr {vgpr}
  .amdhsa_next_free_sgpr {sgpr}
  .amdhsa_accum_offset {accum}
  .amdhsa_group_segment_fixed_size 0
  .amdhsa_kernarg_size 64
  .amdhsa_user_sgpr_count 2
  .amdhsa_user_sgpr_kernarg_segment_ptr 1
  .amdhsa_system_sgpr_workgroup_id_x 1
.end_amdhsa_kernel
"""
```

```python
import sys, math, struct
from asmlib import *

OPT = dict(kv_nt=1, only=None, dbgQ=0, prof=0, kvskip=0, wo_touch=3, n2=0, rotH=0, p1end=26, ost="", codepf=0, k2skip=0, map2=1, pre=0, askip=0, p2nt=1, p2s=3, p2e=30, early=1, xw_touch=0)
for a_ in sys.argv[2:]:
    k, v = a_.split("=")
    assert k in OPT, k
    OPT[k] = int(v) if v.lstrip("-").isdigit() else v

def f32bits(x): return struct.unpack("<I", struct.pack("<f", x))[0]
CSCALE = math.log2(math.e) / math.sqrt(128.0)
THRESH = 2.0 ** 30

HEADER = """; Kernarg layout for this problem (64 bytes, ptrs only, base s[0:1]):
"""

def stamp(a, i, lvl=1):
    if not OPT["prof"]: return
    if OPT["prof"] == 2 and lvl == 1 and i >= 2 and not getattr(a, "k2", 0): return
    if OPT["prof"] == 1 and lvl == 2: return
    a.e("s_memtime s[98:99]"); a.e("s_memrealtime s[100:101]")
    a.e("s_waitcnt lgkmcnt(0)"); a.lds = []
    a.e(f"s_mov_b32 s{60+2*i}, s98"); a.e(f"s_mov_b32 s{61+2*i}, s100")
def dump_stamps(a, n, wsoff, sW, vtmp, vaddr):
    if not OPT["prof"]: return
    e = a.e
    e("s_waitcnt vmcnt(0)")
    stamp(a, n - 1)
    e("s_mov_b32 s88, s18"); e("s_mov_b32 s89, s19"); e("s_mov_b32 s90, 0x10000000"); e("s_mov_b32 s91, 0x20000")
    e(f"s_lshl_b32 s92, s2, 2"); e(f"s_add_u32 s92, s92, {sW}"); e("s_lshl_b32 s92, s92, 6"); e(f"s_add_u32 s92, s92, {wsoff}")
    e(f"v_mov_b32 {vaddr}, 0")
    for i in range(2 * n):
        e(f"v_mov_b32 {vtmp}, s{60+i}")
        e(f"buffer_store_dword {vtmp}, {vaddr}, s[88:91], s92 offen offset:{4*i}")
    e("s_waitcnt vmcnt(0)")

def code_prefetch(a, vLane, vtmp, vdst, start_label, nbytes, sW):
    e = a.e
    e("s_getpc_b64 s[84:85]")
    a.label(f"{start_label}_pc")
    e(f"s_sub_u32 s84, s84, {start_label}_pc-{start_label}"); e("s_subb_u32 s85, s85, 0")
    e(f"s_mov_b32 s86, L_text_end-{start_label}"); e("s_mov_b32 s87, 0x20000")
    e(f"v_lshlrev_b32 {vtmp}, 7, {vLane}"); e(f"s_lshl_b32 s93, {sW}, 13")
    for blk in range((nbytes + 32767) // 32768):
        a.bload(vdst, vtmp, S(84, 4), "s93", 0)
        e("s_add_u32 s93, s93, 32768")

def kernel1():
    a = Asm(); e = a.e
    SRDX, SRDW, SRDKV, SRDO, SRDWO = S(20, 4), S(24, 4), S(28, 4), S(32, 4), S(80, 4)
    sW, sB, sHP, sQH, sHS = S(36), S(37), S(38), S(40), S(41)
    sT0, sT1, sT2, sIT = S(42), S(43), S(44), S(45)
    sXK, sWK = S(46), S(47)
    sM0X, sM0W = S(48), S(49)
    sKVO, sKVO2, sM0KV = S(50), S(51), S(52)
    sTHR, sC = S(53), S(54, 2)
    sOO, sCnt, sKV0, sPass, sP1, sKV3 = S(56), S(57), S(58), S(59), S(39), S(79)
    vLane = V(1)
    vt = [V(i) for i in range(2, 10)]
    xa = [[V(10 + 2 * s + k) for k in range(2)] for s in range(2)]
    wa = [V(14 + k) for k in range(8)]
    xv = [V(22 + k) for k in range(6)]
    wv = [V(28 + k) for k in range(4)]
    ka = [V(32 + k) for k in range(8)]
    va = [V(40 + k) for k in range(4)]
    kvv = [V(44 + k) for k in range(4)]
    vl = [V(48 + k) for k in range(3)]
    vKW = V(51)
    pt = [V(52 + k) for k in range(4)]
    vOS, vTA, vTD, vFL = V(56), V(57), V(58), V(59)
    vZ = V(60, 4)
    ACC = lambda i, j: V(64 + 64 * (j >> 1) + 8 * i + 4 * (j & 1), 4)
    QF = lambda qb, s: V(64 + 32 * qb + 4 * s, 4)
    NEG = lambda qb: V(160 + 16 * qb, 16)
    SB = lambda i: V(208 + 16 * i, 16)
    PB = lambda i: V(240 + 8 * i, 8)
    OA = lambda db, qb: A(16 * (qb * 4 + db), 16)
    KF = lambda s: A(192 + 4 * s, 4)
    VF = lambda db, ks: A(224 + 4 * (ks * 4 + db), 4)
    AF = lambda i: A(128 + 4 * i, 4)
    BF = lambda st, j: A((160 if st == 0 else 224) + 4 * j, 4)
    P1R = lambda t, p: A(4 * (8 * t + p), 4)
    XBASE = 65536
    nt = " nt" if OPT["kv_nt"] else ""

    a.label("mha_qattn_kernel")
    e("s_cmp_ge_u32 s2, 256"); e("s_cbranch_scc1 L1_end")
    e("s_load_dwordx16 s[4:19], s[0:1], 0")
    e(f"v_lshrrev_b32 {vt[0]}, 6, v0"); e(f"v_and_b32 {vLane}, 63, v0")
    e("s_and_b32 s3, s2, 7"); e(f"s_lshr_b32 {sT0}, s2, 3")
    e(f"v_readfirstlane_b32 {sW}, {vt[0]}")
    e(f"s_and_b32 {sT1}, s3, 1"); e(f"s_lshl_b32 {sT1}, {sT1}, 3"); e(f"s_and_b32 {sT2}, {sT0}, 7")
    e(f"s_add_u32 {sB}, {sT1}, {sT2}")
    e(f"s_lshr_b32 {sT1}, s3, 1"); e(f"s_lshl_b32 {sT1}, {sT1}, 2"); e(f"s_lshr_b32 {sHP}, {sT0}, 3")
    e(f"s_add_u32 {sHP}, {sHP}, {sT1}")
    e(f"s_and_b32 {sQH}, {sW}, 1"); e(f"s_lshr_b32 {sHS}, {sW}, 1")
    t0, t1, t2, t3, t4, t5 = vt[:6]
    e(f"v_lshrrev_b32 {t2}, 4, {vLane}")
    e(f"v_and_b32 {t1}, 15, {vLane}")
    e(f"v_lshlrev_b32 {t3}, 1, {t2}"); e(f"v_xor_b32 {t1}, {t1}, {t3}")
    e(f"s_lshl_b32 {sT0}, {sQH}, 4"); e(f"v_add_u32 {t0}, {sT0}, {t2}")
    e(f"v_lshlrev_b32 {t0}, 13, {t0}")
    e(f"s_lshl_b32 {sT0}, {sHS}, 8"); e(f"v_add_u32 {t0}, {sT0}, {t0}")
    for m in range(4):
        e(f"v_xor_b32 {t3}, {8 * (m >> 1)}, {t1}"); e(f"v_lshl_add_u32 {t3}, {t3}, 4, {t0}")
        e(f"v_add_u32 {wv[m]}, {m * 32768 - m * 1024}, {t3}")
    e(f"v_lshrrev_b32 {t0}, 3, {vLane}")
    e(f"v_and_b32 {t1}, 7, {vLane}"); e(f"v_xor_b32 {t1}, {t1}, {t2}")
    e(f"s_mul_i32 {sT0}, {sW}, 48"); e(f"v_add_u32 {t0}, {sT0}, {t0}"); e(f"v_lshlrev_b32 {t0}, 11, {t0}")
    for m in range(6):
        e(f"v_xor_b32 {t3}, {4 * (m & 1)}, {t1}"); e(f"v_lshl_add_u32 {t3}, {t3}, 4, {t0}")
        e(f"v_add_u32 {xv[m]}, {m * 16384 - (m % 3) * 1024}, {t3}")
    e(f"s_mul_i32 {sM0X}, {sW}, 6144"); e(f"s_add_u32 {sM0X}, {sM0X}, {XBASE}")
    e(f"s_lshl_b32 {sM0W}, {sW}, 12")
    e("s_waitcnt lgkmcnt(0)")
    stamp(a, 0)
    e(f"s_lshl_b32 {sT0}, {sHP}, 9")
    e(f"s_add_u32 {SRDW[0]}, s10, {sT0}"); e(f"s_addc_u32 {SRDW[1]}, s11, 0")
    e(f"s_sub_u32 {SRDW[2]}, 8388608, {sT0}"); e(f"s_mov_b32 {SRDW[3]}, 0x20000")
    e(f"s_mul_i32 {sT0}, {sB}, 393216")
    e(f"s_add_u32 {SRDX[0]}, s4, {sT0}"); e(f"s_addc_u32 {SRDX[1]}, s5, 0")
    e(f"s_mov_b32 {SRDX[2]}, 393216"); e(f"s_mov_b32 {SRDX[3]}, 0x20000")

    if OPT["askip"]: e(f"s_mov_b32 {SRDX[2]}, 0"); e(f"s_mov_b32 {SRDW[2]}, 0")
    def dma_x(c, part):
        ops = [lambda: (e(f"s_add_u32 m0, {sM0X}, {(c % 4) * 24576 + part * 3072}"), e(f"s_movk_i32 {sXK}, {c * 128}"))]
        for m in range(3):
            ops.append(lambda m=m: a.dma(xv[3 * part + m], SRDX, sXK, m * 1024, tag=("x", c)))
        return ops
    def dma_w(s):
        ops = [lambda: (e(f"s_add_u32 m0, {sM0W}, {(s % 4) * 16384}"), e(f"s_mov_b32 {sWK}, {s * 262144}"))]
        for m in range(4):
            ops.append(lambda m=m: a.dma(wv[m], SRDW, sWK, m * 1024, tag=("w", s)))
        return ops
    def run(ops):
        for o in ops: o()
    run(dma_w(0)); run(dma_x(0, 0)); run(dma_x(0, 1)); run(dma_w(1)); run(dma_w(2)); run(dma_x(1, 0)); run(dma_x(1, 1)); run(dma_w(3))
    if OPT["codepf"]: code_prefetch(a, vLane, vTA, vTD, "mha_qattn_kernel", OPT["codepf"] * 1024, sW)
    run(dma_x(2, 0)); run(dma_x(2, 1)); run(dma_x(3, 0)); run(dma_x(3, 1))
    e(f"s_lshl_b32 {sT0}, {sB}, 5"); e(f"s_lshl_b32 {sT1}, {sHP}, 1"); e(f"s_add_u32 {sT0}, {sT0}, {sT1}")
    e(f"s_add_u32 {sT0}, {sT0}, {sHS}"); e(f"s_lshl_b32 {sT0}, {sT0}, 18")
    e(f"s_cmp_eq_u32 {sQH}, 0"); e(f"s_cselect_b32 {sT1}, s6, s8"); e(f"s_cselect_b32 {sT2}, s7, s9")
    e(f"s_add_u32 {SRDKV[0]}, {sT1}, {sT0}"); e(f"s_addc_u32 {SRDKV[1]}, {sT2}, 0")
    NR = 0 if OPT["kvskip"] else 262144
    e(f"s_mov_b32 {SRDKV[2]}, {NR}"); e(f"s_mov_b32 {SRDKV[3]}, 0x20000")
    e(f"s_mov_b32 {SRDO[0]}, s18"); e(f"s_mov_b32 {SRDO[1]}, s19")
    e(f"s_mov_b32 {SRDO[2]}, 25165824"); e(f"s_mov_b32 {SRDO[3]}, 0x20000")
    e(f"s_mov_b32 {sTHR}, {f32bits(THRESH):#x}")
    e(f"s_mov_b32 {sC[0]}, {f32bits(CSCALE):#x}"); e(f"s_mov_b32 {sC[1]}, {f32bits(CSCALE):#x}")
    e(f"s_mul_i32 {sKV0}, {sHS}, {OPT['rotH'] * 8192}"); e(f"s_mov_b32 {sPass}, 0")
    e(f"s_lshl_b32 {sKV3}, {sQH}, 18"); e(f"s_add_u32 {sKV3}, {sKV3}, {sKV0}")
    e(f"v_lshlrev_b32 {vTA}, 7, {vLane}")
    if OPT["wo_touch"]:
        e(f"s_mov_b32 {SRDWO[0]}, s12"); e(f"s_mov_b32 {SRDWO[1]}, s13"); e(f"s_mov_b32 {SRDWO[2]}, 8388608"); e(f"s_mov_b32 {SRDWO[3]}, 0x20000")
    if OPT["xw_touch"]:
        e(f"s_lshl_b32 {sT2}, s2, 2"); e(f"s_add_u32 {sT2}, {sT2}, {sW}"); e(f"s_lshl_b32 {sT2}, {sT2}, 13")
        e("s_mov_b32 s84, s10"); e("s_mov_b32 s85, s11"); e("s_mov_b32 s86, 8388608"); e("s_mov_b32 s87, 0x20000")
        a.bload(vTD, vTA, S(84, 4), sT2, 0)
        e("s_mov_b32 s84, s4"); e("s_mov_b32 s85, s5"); e("s_mov_b32 s86, 6291456")
        a.bload(vTD, vTA, S(84, 4), sT2, 0)
    vh, vg, vr, vc1, vc0, vql, u0, u1 = vt
    e(f"v_lshrrev_b32 {vg}, 4, {vLane}"); e(f"v_bfe_u32 {vr}, {vLane}, 2, 2"); e(f"v_and_b32 {vc0}, 3, {vLane}")
    e(f"v_lshl_add_u32 {u0}, {vg}, 3, {vr}"); e(f"v_lshlrev_b32 {u0}, 8, {u0}")
    e(f"s_lshl_b32 {sT0}, {sHS}, 13"); e(f"v_add_u32 {u0}, {sT0}, {u0}")
    e(f"v_lshl_add_u32 {u0}, {vc0}, 3, {u0}"); e(f"v_lshl_add_u32 {u0}, {vr}, 5, {u0}")
    e(f"v_and_b32 {u1}, 1, {vg}"); e(f"v_lshl_add_u32 {wa[0]}, {u1}, 7, {u0}")
    for i in range(1, 8): e(f"v_xor_b32 {wa[i]}, {32 * i}, {wa[0]}")
    e(f"v_and_b32 {vql}, 15, {vLane}")
    e(f"s_mul_i32 {sT1}, {sQH}, 12288"); e(f"s_add_u32 {sT1}, {sT1}, {XBASE}")
    e(f"v_lshlrev_b32 {u0}, 7, {vql}"); e(f"v_add_u32 {u0}, {sT1}, {u0}")
    e(f"v_lshrrev_b32 {u1}, 1, {vql}"); e(f"v_xor_b32 {u1}, {u1}, {vg}")
    e(f"v_lshl_add_u32 {xa[0][0]}, {u1}, 4, {u0}"); e(f"v_xor_b32 {xa[0][1]}, 64, {xa[0][0]}")
    for k in range(2): e(f"v_add_u32 {xa[1][k]}, 49152, {xa[0][k]}")
    e(f"s_cmp_eq_u32 {sQH}, 0"); e(f"s_cselect_b32 {sT1}, 1, 4"); e(f"s_cselect_b32 {sT2}, 4, 0")
    e(f"v_mul_u32_u24 {vh}, {sT1}, {vg}")
    e(f"v_lshlrev_b32 {u0}, 8, {vg}")
    for j in range(4):
        e(f"v_xor_b32 {u1}, {vh}, {vql}"); e(f"v_lshl_add_u32 {kvv[j]}, {u1}, 4, {u0}")
        if j < 3: e(f"v_add_u32 {vh}, {sT2}, {vh}")

    def late_setup():
        ops = []
        E = lambda s: ops.append(lambda: e(s))
        E(f"v_lshrrev_b32 {vh}, 5, {vLane}"); E(f"v_bfe_u32 {vg}, {vLane}, 4, 1"); E(f"v_bfe_u32 {vr}, {vLane}, 2, 2")
        E(f"v_bfe_u32 {vc1}, {vLane}, 1, 1"); E(f"v_and_b32 {vc0}, 1, {vLane}"); E(f"v_and_b32 {vql}, 31, {vLane}")
        E(f"s_lshl_b32 {sT0}, {sHS}, 16"); E(f"s_add_u32 {sT1}, {sT0}, 8192")
        E(f"v_lshl_add_u32 {u0}, {vh}, 2, {vr}"); E(f"v_lshlrev_b32 {u0}, 8, {u0}"); E(f"v_add_u32 {u0}, {sT1}, {u0}")
        E(f"v_lshl_add_u32 {u0}, {vg}, 5, {u0}"); E(f"v_lshl_add_u32 {u0}, {vc1}, 4, {u0}"); E(f"v_lshl_add_u32 {u0}, {vc0}, 3, {u0}")
        E(f"v_lshl_add_u32 {va[0]}, {vr}, 6, {u0}")
        for db in range(1, 4): E(f"v_xor_b32 {va[db]}, {64 * db}, {va[0]}")
        E(f"v_lshlrev_b32 {u0}, 8, {vql}"); E(f"v_add_u32 {u0}, {sT0}, {u0}")
        E(f"v_and_b32 {u1}, 15, {vql}"); E(f"v_xor_b32 {u1}, {u1}, {vh}"); E(f"v_lshl_add_u32 {ka[0]}, {u1}, 4, {u0}")
        for s in range(1, 8): E(f"v_xor_b32 {ka[s]}, {32 * s}, {ka[0]}")
        E(f"s_lshl_b32 {sM0KV}, {sQH}, 13"); E(f"s_add_u32 {sM0KV}, {sM0KV}, {sT0}")
        E(f"v_lshlrev_b32 {vKW}, 4, {vLane}"); E(f"v_add_u32 {vKW}, {sM0KV}, {vKW}")
        E(f"v_lshlrev_b32 {vOS}, 17, {vg}"); E(f"v_lshl_add_u32 {vOS}, {vh}, 8, {vOS}")
        E(f"v_and_b32 {u1}, 15, {vLane}"); E(f"v_lshl_add_u32 {vOS}, {u1}, 4, {vOS}")
        E(f"s_lshl_b32 {sOO}, {sB}, 1"); E(f"s_add_u32 {sOO}, {sOO}, {sQH}"); E(f"s_mul_i32 {sOO}, {sOO}, {6 * 131072}")
        E(f"s_lshl_b32 {sT1}, {sHP}, 1"); E(f"s_add_u32 {sT1}, {sT1}, {sHS}"); E(f"s_lshl_b32 {sT1}, {sT1}, 12"); E(f"s_add_u32 {sOO}, {sOO}, {sT1}")
        E(f"s_lshl_b32 {sT1}, {sW}, 2"); E(f"s_add_u32 {sT1}, {sT1}, 131072"); E(f"v_mov_b32 {vFL}, {sT1}")
        for i in range(4): E(f"v_mov_b32 {vZ[i]}, 0")
        for q in range(3): E(f"v_mov_b32 {vl[q]}, 0")
        for i in range(4): E(f"v_mov_b32 {pt[i]}, 0")
        return ops

    def rdA(s, i): return [(lambda u=u: a.ds_read_tr(AF(i)[2 * u:2 * u + 2], wa[i], (s % 4) * 16384 + u * 1024)) for u in range(2)]
    def rdB(s, j):
        xs = (s // 2) % 4
        return lambda: a.ds_read_b128(BF(s % 2, j), xa[xs // 2][s % 2], (xs % 2) * 24576 + j * 2048)
    p1list = [(t, p) for t in range(4) for p in range(8)]
    def p1_ops(k):
        t, p = p1list[k]
        ops = []
        if p % 4 == 0: ops.append(lambda: e(f"s_add_u32 {sP1}, {sKV3 if t == 3 else sKV0}, {t * 8192 + (p // 4) * 4096}"))
        ops.append(lambda: a.bload(P1R(t, p), kvv[p % 4], SRDKV, sP1, (p % 4) * 1024, nt))
        return ops
    p1_at = {}
    for k in range(32): p1_at.setdefault(k * OPT["p1end"] // 32, []).append(k)
    p2_at = {}
    for k in range(OPT["n2"]): p2_at.setdefault(OPT["p2s"] + (k * (OPT["p2e"] - OPT["p2s"])) // OPT["n2"], []).append(k)
    conv = []
    for J in range(3):
        for i in range(8):
            X, Y, D = ACC(i, 2 * J), ACC(i, 2 * J + 1), QF(J, i)
            for R in (X, Y):
                for k in range(4): conv.append((J, lambda r=R[k]: e(f"v_mul_f32 {r}, {sC[0]}, {r}")))
            conv.append((J, lambda X=X, D=D: e(f"v_cvt_pk_bf16_f32 {D[0]}, {X[0]}, {X[1]}")))
            conv.append((J, lambda X=X, D=D: e(f"v_cvt_pk_bf16_f32 {D[1]}, {X[2]}, {X[3]}")))
            conv.append((J, lambda Y=Y, D=D: e(f"v_cvt_pk_bf16_f32 {D[2]}, {Y[0]}, {Y[1]}")))
            conv.append((J, lambda Y=Y, D=D: e(f"v_cvt_pk_bf16_f32 {D[3]}, {Y[2]}, {Y[3]}")))
            if i > 0 or J > 0:
                P = QF(J, i - 1) if i else QF(J - 1, 7)
                conv.append((J, lambda P=P: e(f"v_permlane16_swap_b32 {P[0]}, {P[2]}")))
                conv.append((J, lambda P=P: e(f"v_permlane16_swap_b32 {P[1]}, {P[3]}")))
    P = QF(2, 7)
    conv.append((2, lambda: e("s_nop 1")))
    conv.append((2, lambda P=P: e(f"v_permlane16_swap_b32 {P[0]}, {P[2]}")))
    conv.append((2, lambda P=P: e(f"v_permlane16_swap_b32 {P[1]}, {P[3]}")))

    a.wait_for(("w", 0), ("x", 0)); e("s_barrier")
    stamp(a, 1)
    for j in range(6):
        rdB(0, j)()
        for r in rdA(0, j): r()
    for r in rdA(0, 6): r()
    late = late_setup()
    free = [g for i in range(3, 8) for g in range(6 * i + 2, 6 * i + 6)]
    for s in range(32):
        if s in (8, 16, 24): stamp(a, 1 + s // 8, 2)
        G = Gaps()
        last = s == 31
        order = [(i, j) for j in range(6) for i in range(8)] if last else [(i, j) for i in range(8) for j in range(6)]
        mf = [(lambda i=i, j=j: a.mfma16(ACC(i, j), AF(i), BF(s % 2, j), ACC(i, j) if s else 0)) for i, j in order]
        if s:
            m0_ = mf[0]; mf[0] = lambda m0_=m0_: (a.wait_for(lgkm=2), m0_())
        for u, r in enumerate(rdA(s, 7)): G.mem(u, r)
        def bar(s=s):
            if s < 31: a.wait_for(("w", s + 1), ("x", (s + 1) // 2), lgkm=0)
            else: a.wait_for(lgkm=0)
            e("s_barrier")
        G.mem(7, bar)
        if not last:
            for u, r in enumerate(rdA(s + 1, 0)): G.mem(8 + u, r)
            for i in range(1, 7):
                for u, r in enumerate(rdA(s + 1, i)): G.mem(6 * i + 6 + u, r)
            for j, g in enumerate([10, 11, 14, 15, 16, 17]): G.mem(g, rdB(s + 1, j))
        ops = []
        if s + 4 < 32: ops += dma_w(s + 4)
        c = (s - 1) // 2 + 4
        if s >= 1 and c < 16: ops += dma_x(c, (s - 1) % 2)
        for k in p1_at.get(s, []): ops += p1_ops(k)
        for k in p2_at.get(s, []):
            ops.append(lambda k=k: e(f"s_add_u32 {sT2}, {sKV0}, {(4 + k) * 8192}"))
            ops.append(lambda: a.bload(vTD, vTA, SRDKV, sT2, 0, " nt" if OPT["p2nt"] else ""))
        if s == 2 and OPT["wo_touch"] == 1:
            ops.append(lambda: (e(f"s_lshl_b32 {sT2}, s2, 2"), e(f"s_add_u32 {sT2}, {sT2}, {sW}"), e(f"s_lshl_b32 {sT2}, {sT2}, 13")))
            ops.append(lambda: a.bload(vTD, vTA, SRDWO, sT2, 0))
        if s >= 28:
            t = s - 28
            ops += [(lambda p=p: a.ds_write_b128(vKW, P1R(t, p), t * 16384 + p * 1024)) for p in range(8)]
        if s == 30:
            ops += [(lambda k=k: a.ds_read_b128(KF(k), ka[k], 0)) for k in range(8)]
        fr = free if not last else list(range(9, 29))
        assert len(ops) <= len(fr), (s, len(ops))
        for o, g in zip(ops, [fr[(k * len(fr)) // len(ops)] for k in range(len(ops))]): G.mem(g, o)
        if s == 0:
            for k, o in enumerate(late): G.valu(8 + k // 2, o)
        if last:
            g = 0
            n = 0
            while conv and g < 48:
                J = conv[0][0]
                g = max(g, 16 * J + 18)
                if g >= 48: break
                G.valu(g, conv.pop(0)[1]); n += 1
                if n % 2 == 0: g += 1
        G.run(mf)
    stamp(a, 2); stamp(a, 5, 2)
    e("s_nop 3")
    while conv and conv[0][0] == 0: conv.pop(0)[1]()
    for _ in range(14): conv.pop(0)[1]()
    def rowmax_ops(src, m, tmp):
        ops = [lambda: e(f"v_max3_f32 {m}, {src[0]}, {src[1]}, {src[2]}")]
        for i in range(3, 15, 2): ops.append(lambda i=i: e(f"v_max3_f32 {m}, {m}, {src[i]}, {src[i+1]}"))
        ops += [lambda: e(f"v_max_f32 {m}, {m}, {src[15]}"), lambda: e(f"v_mov_b32 {tmp}, {m}"), lambda: e("s_nop 1"),
                lambda: e(f"v_permlane32_swap_b32 {m}, {tmp}"), lambda: e("s_nop 1"), lambda: e(f"v_max_f32 {m}, {m}, {tmp}")]
        return ops
    def negfill_ops(qb, m):
        return [lambda: e(f"v_sub_f32 {m}, 0, {m}")] + [(lambda i=i: e(f"v_mov_b32 {NEG(qb)[i]}, {m}")) for i in range(16)]
    if OPT["dbgQ"]:
        while conv: conv.pop(0)[1]()
        e(f"s_lshl_b32 {sT0}, s2, 2"); e(f"s_add_u32 {sT0}, {sT0}, {sW}"); e(f"s_mul_i32 {sT0}, {sT0}, 24576")
        e(f"s_add_u32 {sT0}, {sT0}, 33554432"); e(f"s_mov_b32 {SRDO[2]}, 0x10000000"); e(f"v_lshlrev_b32 {vt[0]}, 4, {vLane}")
        for f in range(24):
            a.bstore(V(64 + 4 * f, 4), vt[0], SRDO, sT0, 0); e(f"s_add_u32 {sT0}, {sT0}, 1024")
        a.wait(vm=0)
    a.wait_for(lgkm=0)
    zm = [(lambda k=k: a.e(f"v_mfma_f32_32x32x16_bf16 {A(16 * k, 16)}, {vZ}, {vZ}, 0")) for k in list(range(12)) + [14, 15]]
    G = Gaps()
    G.spread([(o, 4) for _, o in conv], list(range(14))); conv = []
    G.run(zm)
    e("s_nop 1")
    sm = [(lambda qb=qb, s=s: a.mfma(NEG(qb), KF(s), QF(qb, s), NEG(qb) if s else 0)) for qb in range(3) for s in range(8)]
    G = Gaps()
    init = [(lambda i=i: e(f"v_mov_b32 {SB(1)[i]}, 0xf149f2ca")) for i in range(6, 16)] + [(lambda i=i: e(f"v_mov_b32 {PB(1)[i]}, 0")) for i in range(8)]
    G.spread([(o, 4) for o in init], list(range(0, 8)))
    G.spread([(o, 4) for o in rowmax_ops(NEG(0), vt[0], vt[1]) + negfill_ops(0, vt[0])], list(range(10, 17)))
    G.spread([(o, 4) for o in rowmax_ops(NEG(1), vt[0], vt[1]) + negfill_ops(1, vt[0])], list(range(18, 24)))
    def stream_init():
        e(f"s_sub_u32 {sCnt}, 0, {sQH}")
        e(f"s_lshl_b32 {sT0}, {sQH}, 13"); e(f"s_add_u32 {sKVO}, {sKV0}, 32768"); e(f"s_sub_u32 {sKVO}, {sKVO}, {sT0}")
        e(f"s_add_u32 {sKVO2}, {sKVO}, 4096"); e(f"s_mov_b32 {sIT}, 0")
    G.mem(0, stream_init)
    if OPT["wo_touch"] == 3:
        G.mem(1, lambda: (e(f"s_lshl_b32 {sT2}, s2, 2"), e(f"s_add_u32 {sT2}, {sT2}, {sW}"), e(f"s_lshl_b32 {sT2}, {sT2}, 13")))
        G.mem(2, lambda: a.bload(vTD, vTA, SRDWO, sT2, 0))
    G.run(sm)
    e("s_nop 11")
    for o in rowmax_ops(NEG(2), vt[0], vt[1]) + negfill_ops(2, vt[0]): o()
    e("s_nop 1")

    def dma_kv(slot, kill=True):
        ops = []
        for half in range(2):
            if half == 0 and kill:
                ops.append(lambda: (e(f"s_cmp_lt_i32 {sCnt}, 28"), e(f"s_cselect_b32 {SRDKV[2]}, {NR}, 0"), e(f"s_add_u32 {sCnt}, {sCnt}, 1")))
            ops.append(lambda half=half: e(f"s_add_u32 m0, {slot}, {half * 4096}"))
            for j in range(4):
                ops.append(lambda j=j, half=half: a.dma(kvv[j], SRDKV, sKVO2 if half else sKVO, j * 1024, nt))
        ops.append(lambda: (e(f"s_add_u32 {sKVO}, {sKVO}, 8192"), e(f"s_and_b32 {sKVO}, {sKVO}, 262143"), e(f"s_add_u32 {sKVO2}, {sKVO}, 4096")))
        return ops
    def softmax_ops(qb, sb, pb):
        Sx, Px = SB(sb), PB(pb)
        E = lambda k: ((lambda: e(f"v_exp_f32 {pt[k % 4]}, {Sx[k]}")), 8)
        Ad = lambda k: ((lambda: e(f"v_add_f32 {vl[qb]}, {vl[qb]}, {pt[k % 4]}")), 4)
        C = lambda i: ((lambda: e(f"v_cvt_pk_bf16_f32 {Px[i]}, {pt[(2 * i) % 4]}, {pt[(2 * i + 1) % 4]}")), 4)
        ops = [E(0), E(1), E(2), Ad(0), Ad(1), C(0)]
        for i in range(1, 8):
            ops.append(E(2 * i + 1))
            if i < 7: ops.append(E(2 * i + 2))
            ops += [Ad(2 * i), Ad(2 * i + 1), C(i)]
        return ops
    def split_ops(ops, frac):
        tot = sum(c for _, c in ops); acc = 0
        for i, (o, c) in enumerate(ops):
            if acc + c * 0.5 > tot * frac: return ops[:i], ops[i:]
            acc += c
        return ops, []
    sSL = [S(94 + u) for u in range(4)]
    held = {}
    def tileB(u):
        bi = lambda qb, tt: (3 * tt + qb) % 2
        mf = []
        def Sg(qb):
            for s in range(8):
                mf.append(lambda s=s: a.mfma(SB(bi(qb, u)), KF(s), QF(qb, s), SB(bi(qb, u)) if s else NEG(qb)))
        def PVg(qb, tt):
            for ks in range(2):
                for db in range(4):
                    mf.append(lambda ks=ks, db=db: a.mfma(OA(db, qb), VF(db, ks), PB(bi(qb, tt))[4 * ks:4 * ks + 4], OA(db, qb)))
        Sg(0); PVg(2, u - 1); Sg(1); PVg(0, u); Sg(2); PVg(1, u)
        for idx, n in ((0, 0), (24, 8), (28, 0)):
            mf[idx] = (lambda f=mf[idx], n=n: (a.wait_for(lgkm=n), f()))
        G = Gaps()
        G.spread(held["sm2"], list(range(0, 7)))
        G.spread(softmax_ops(0, bi(0, u), bi(0, u)), list(range(9, 23)))
        G.spread(softmax_ops(1, bi(1, u), bi(1, u)), list(range(25, 39)))
        s2a, s2b = split_ops(softmax_ops(2, bi(2, u), bi(2, u)), 0.5)
        G.spread(s2a, list(range(41, 48))); held["sm2"] = s2b
        G.mem(7, lambda: (a.wait(vm=16), e("s_barrier")))
        for n in range(16):
            f, uu = n // 2, n % 2; ks, db = f // 4, f % 4
            G.mem(8 + n, lambda ks=ks, db=db, uu=uu: a.ds_read_tr(VF(db, ks)[2 * uu:2 * uu + 2], va[db], u * 16384 + ks * 4096 + uu * 2048))
        for s in range(8):
            G.mem(33 + s, lambda s=s: a.ds_read_b128(KF(s), ka[s], ((u + 1) % 4) * 16384))
        d = dma_kv(sSL[u])
        for p, o in zip(([6, 7, 8, 10, 12, 14, 15, 16, 18, 20, 22, 23] if OPT["early"] else [23, 24, 25, 26, 27, 28, 29, 30, 31, 32, 41, 42]), d): G.mem(p, o)
        G.run(mf)
    for u in range(4):
        e(f"s_sub_u32 {sT0}, {u}, {sQH}"); e(f"s_and_b32 {sT0}, {sT0}, 3"); e(f"s_lshl_b32 {sT0}, {sT0}, 14"); e(f"s_add_u32 {sSL[u]}, {sM0KV}, {sT0}")
    _, sm2_entry = split_ops(softmax_ops(2, 1, 1), 0.5)
    held["sm2"] = sm2_entry
    stamp(a, 3)
    def bodyB():
        for u in range(4): tileB(u)
    mark = len(a.out)
    bodyB()
    steady = list(a.lds)
    del a.out[mark:]; held["sm2"] = sm2_entry
    a.lds = list(steady)
    a.label("L1_loopB")
    bodyB()
    assert a.lds == steady
    e(f"s_add_u32 {sIT}, {sIT}, 1"); e(f"s_cmp_lt_u32 {sIT}, 8"); e("s_cbranch_scc1 L1_loopB")
    stamp(a, 4)
    if OPT["wo_touch"] == 2:
        e(f"s_lshl_b32 {sT2}, s2, 2"); e(f"s_add_u32 {sT2}, {sT2}, {sW}"); e(f"s_lshl_b32 {sT2}, {sT2}, 13")
        a.bload(vTD, vTA, SRDWO, sT2, 0)
    for o, _ in sm2_entry: o()
    e("s_nop 1")
    G = Gaps()
    pv = [(lambda ks=ks, db=db: a.mfma(OA(db, 2), VF(db, ks), PB(1)[4 * ks:4 * ks + 4], OA(db, 2))) for ks in range(2) for db in range(4)]
    rc = [V(57 + q) for q in range(3)][0:0]
    vr3 = [vt[5], vt[6], vt[7]]
    ops = []
    for qb in range(3):
        ops += [lambda qb=qb: e(f"v_mov_b32 {vt[1]}, {vl[qb]}"), lambda: e("s_nop 1"),
                lambda qb=qb: e(f"v_permlane32_swap_b32 {vl[qb]}, {vt[1]}"), lambda: e("s_nop 1"),
                lambda qb=qb: e(f"v_add_f32 {vt[1]}, {vl[qb]}, {vt[1]}"),
                lambda qb=qb: e(f"v_cmp_nle_f32 s[{74 + 2 * qb}:{75 + 2 * qb}], {vt[1]}, {sTHR}") if False else e(f"v_cmp_ngt_f32 s[{98 if qb == 0 else 100}:{99 if qb == 0 else 101}], {sTHR}, {vt[1]}"),
                lambda qb=qb: e(f"v_rcp_f32 {vr3[qb]}, {vt[1]}")]
        if qb: ops.append(lambda: e("s_or_b64 s[98:99], s[98:99], s[100:101]"))
    ops += [lambda: e("s_cmp_lg_u64 s[98:99], 0"), lambda: e(f"s_cselect_b32 {sT0}, 1, 0"), lambda: e(f"s_andn2_b32 {sT0}, {sT0}, {sPass}"),
            lambda: e(f"v_mov_b32 {vt[1]}, {sT0}"), lambda: (e(f"ds_write_b32 {vFL}, {vt[1]}"), a.lds.append(set()))]
    G.spread([(o, 4) for o in ops], list(range(0, 7)))
    G.run(pv)
    ostf = (" " + OPT["ost"].replace("+", " ")) if OPT["ost"] else ""
    for qb in range(3):
        if qb == 1:
            a.wait(lgkm=0); e("s_barrier")
            e(f"v_and_b32 {vt[0]}, 0xfffffff0, {vFL}"); a.ds_read_b128(V(64 + 96 + 0, 4) if False else vZ, vt[0], 0)
        if qb == 2:
            a.wait(lgkm=0)
            e(f"v_or3_b32 {vt[0]}, {vZ[0]}, {vZ[1]}, {vZ[2]}"); e(f"v_or_b32 {vt[0]}, {vt[0]}, {vZ[3]}"); e("s_nop 0")
            e(f"v_readfirstlane_b32 {sT1}, {vt[0]}"); e(f"s_cmp_lg_u32 {sT1}, 0"); e("s_cbranch_scc1 L1_fallback")
        e(f"s_add_u32 {sT0}, {sOO}, {qb * 262144}")
        for db in range(4):
            T = V(160 + 16 * db, 16); D = V(224 + 8 * db, 8)
            for i in range(16): e(f"v_accvgpr_read_b32 {T[i]}, {OA(db, qb)[i]}")
            e(f"v_mov_b32 {vt[2]}, {vr3[qb]}"); e(f"v_mov_b32 {vt[3]}, {vr3[qb]}")
            for i in range(8): e(f"v_pk_mul_f32 {T[2*i:2*i+2]}, {T[2*i:2*i+2]}, {V(vt[2].i, 2)}")
            for i in range(8): e(f"v_cvt_pk_bf16_f32 {D[i]}, {T[2*i]}, {T[2*i+1]}")
            for jp in range(2):
                a.bstore(D[4 * jp:4 * jp + 4], vOS, SRDO, sT0, db * 1024 + jp * 512, ostf)
    dump_stamps(a, 6, 0x4000000, sW, vt[0], vt[1])
    a.label("L1_end")
    e("s_endpgm")
    a.label("L1_fallback")
    a.lds = []; a.vm = []
    e("s_waitcnt vmcnt(0) lgkmcnt(0)"); e("s_barrier")
    e(f"s_mov_b32 {sPass}, 1"); e(f"s_mov_b32 {SRDKV[2]}, {NR}")
    for q in range(3): e(f"v_mov_b32 {vl[q]}, 0xff800000")
    e(f"s_mov_b32 {sKVO}, 0"); e(f"s_mov_b32 {sKVO2}, 4096"); e(f"s_mov_b32 {sIT}, 0")
    a.label("L1_fb_loop")
    for i, o in enumerate(dma_kv(sM0KV, kill=False)):
        o()
        if i in (0, 5): e("s_nop 0")
    e("s_waitcnt vmcnt(0)"); e("s_barrier")
    for s in range(8): a.ds_read_b128(KF(s), ka[s], 0)
    for f in sm: f()
    e("s_nop 15")
    for qb in range(3):
        for o in rowmax_ops(NEG(qb), vt[0], vt[1]): o()
        e(f"v_max_f32 {vl[qb]}, {vl[qb]}, {vt[0]}")
    e("s_barrier")
    e(f"s_add_u32 {sIT}, {sIT}, 1"); e(f"s_cmp_lt_u32 {sIT}, 32"); e("s_cbranch_scc1 L1_fb_loop")
    e(f"s_mov_b32 {sKVO}, {sKV0}"); e(f"s_add_u32 {sKVO2}, {sKVO}, 4096")
    for t in range(4):
        e(f"s_add_u32 {sT0}, {sM0KV}, {t * 16384}")
        for i, o in enumerate(dma_kv(sT0, kill=False)):
            o()
            if i in (0, 5): e("s_nop 0")
    for qb in range(3):
        for o in negfill_ops(qb, vl[qb]): o()
        e(f"v_mov_b32 {vl[qb]}, 0")
    for i in range(4): e(f"v_mov_b32 {vZ[i]}, 0"); e(f"v_mov_b32 {pt[i]}, 0")
    for o in init: o()
    e("s_nop 1")
    for f in zm: f()
    stream_init()
    e("s_waitcnt vmcnt(0)"); e("s_barrier")
    for s in range(8): a.ds_read_b128(KF(s), ka[s], 0)
    e("s_waitcnt lgkmcnt(0)"); e("s_nop 15")
    e("s_branch L1_loopB")
    return a.text()

def kernel2():
    a = Asm(); e = a.e
    SRDWO, SRDOW, SRDOUT = S(20, 4), S(24, 4), S(28, 4)
    sW, sRB, sCB, sT0, sT1, sT2, sIT = [S(36 + i) for i in range(7)]
    sWOo, sOo, sM0 = S(45), S(46), S(47)
    vLane = V(1); vt = [V(i) for i in range(2, 10)]
    wa = [V(10 + k) for k in range(8)]
    wv = [V(18 + k) for k in range(8)]
    ov = [V(26 + k) for k in range(6)]
    ra = [V(32 + k) for k in range(3)]
    vRW, vOut = V(35), V(36)
    AC = lambda i, j: A(4 * (j * 8 + i), 4)
    AF = lambda i: V(40 + 4 * i, 4)
    BF = lambda sl, j: V(72 + 24 * sl + 4 * j, 4)
    REG = 36864
    a.k2 = 1
    a.label("mha_oproj_kernel")
    e("s_cmp_ge_u32 s2, 256"); e("s_cbranch_scc1 L2_end")
    e("s_load_dwordx16 s[4:19], s[0:1], 0")
    e(f"v_lshrrev_b32 {vt[0]}, 6, v0"); e(f"v_and_b32 {vLane}, 63, v0")
    e("s_and_b32 s3, s2, 7"); e(f"s_lshr_b32 {sT0}, s2, 3")
    e(f"v_readfirstlane_b32 {sW}, {vt[0]}")
    if OPT["map2"] == 0:
        e(f"s_lshr_b32 {sT1}, s3, 1"); e(f"s_lshl_b32 {sT1}, {sT1}, 3"); e(f"s_and_b32 {sT2}, {sT0}, 7")
        e(f"s_add_u32 {sRB}, {sT1}, {sT2}")
        e(f"s_and_b32 {sT1}, s3, 1"); e(f"s_lshl_b32 {sT1}, {sT1}, 2"); e(f"s_lshr_b32 {sCB}, {sT0}, 3"); e(f"s_add_u32 {sCB}, {sCB}, {sT1}")
    else:
        e(f"s_lshl_b32 {sT1}, s3, 2"); e(f"s_and_b32 {sT2}, {sT0}, 3"); e(f"s_add_u32 {sRB}, {sT1}, {sT2}")
        e(f"s_lshr_b32 {sCB}, {sT0}, 2")
    t0, t1, t2, t3 = vt[:4]
    e(f"v_lshrrev_b32 {t2}, 4, {vLane}"); e(f"v_and_b32 {t1}, 15, {vLane}")
    e(f"v_lshlrev_b32 {t3}, 1, {t2}"); e(f"v_xor_b32 {t1}, {t1}, {t3}")
    e(f"v_lshlrev_b32 {t0}, 11, {t2}"); e(f"v_lshl_add_u32 {wv[0]}, {t1}, 4, {t0}")
    e(f"v_xor_b32 {t1}, 128, {wv[0]}")
    for m in range(1, 8): e(f"v_add_u32 {wv[m]}, {m * 8192 - (m % 4) * 1024}, {t1 if m & 1 else wv[0]}")
    e(f"s_mul_i32 {sT0}, {sRB}, 786432"); e(f"v_lshlrev_b32 {t0}, 4, {vLane}")
    e(f"v_add_u32 {ov[0]}, {sT0}, {t0}")
    for j in range(1, 6): e(f"v_add_u32 {ov[j]}, {j * 131072}, {ov[0]}")
    e(f"s_mul_i32 {sM0}, {sW}, {REG}")
    e(f"s_lshl_b32 {sWOo}, {sW}, 21"); e(f"s_lshl_b32 {sOo}, {sW}, 15")
    e("s_waitcnt lgkmcnt(0)")
    stamp(a, 0)
    e(f"s_lshl_b32 {sT0}, {sCB}, 8")
    e(f"s_add_u32 {SRDWO[0]}, s12, {sT0}"); e(f"s_addc_u32 {SRDWO[1]}, s13, 0")
    e(f"s_sub_u32 {SRDWO[2]}, 8388608, {sT0}"); e(f"s_mov_b32 {SRDWO[3]}, 0x20000")
    e(f"s_mov_b32 {SRDOW[0]}, s18"); e(f"s_mov_b32 {SRDOW[1]}, s19")
    e(f"s_mov_b32 {SRDOW[2]}, 25165824"); e(f"s_mov_b32 {SRDOW[3]}, 0x20000")
    if OPT["k2skip"] & 1: e(f"s_mov_b32 {SRDWO[2]}, 0")
    if OPT["k2skip"] & 2: e(f"s_mov_b32 {SRDOW[2]}, 0")
    def issue_w(slot):
        ops = []
        for h in range(2):
            ops.append(lambda h=h: e(f"s_add_u32 m0, {sM0}, {slot * 8192 + h * 4096}"))
            for m in range(4): ops.append(lambda m=m, h=h: a.dma(wv[4 * h + m], SRDWO, sWOo, m * 1024, tag=("w", slot)))
        ops.append(lambda: e(f"s_add_u32 {sWOo}, {sWOo}, 65536"))
        return ops
    def issue_o(slot):
        ops = [(lambda j=j: a.bload(BF(slot, j), ov[j], SRDOW, sOo, 0)) for j in range(6)]
        ops.append(lambda: e(f"s_add_u32 {sOo}, {sOo}, 1024"))
        return ops
    def run(ops):
        for o in ops:
            n = len(a.out); o()
            if "m0" in a.out[-1]: e("s_nop 0")
    run(issue_w(0)); run(issue_o(0)); run(issue_w(1)); run(issue_o(1))
    if OPT["codepf"]: code_prefetch(a, vLane, vt[4], vt[5], "mha_oproj_kernel", 16384, sW)
    run(issue_w(2)); run(issue_o(2)); run(issue_w(3))
    e(f"s_mov_b32 {SRDOUT[0]}, s14"); e(f"s_mov_b32 {SRDOUT[1]}, s15")
    e(f"s_mov_b32 {SRDOUT[2]}, 6291456"); e(f"s_mov_b32 {SRDOUT[3]}, 0x20000")
    e(f"v_add_u32 {vRW}, {sM0}, {t0}")
    for d in range(1, 4):
        e(f"s_sub_u32 {sT0}, {sW}, {d}"); e(f"s_and_b32 {sT0}, {sT0}, 3"); e(f"s_mul_i32 {sT0}, {sT0}, {REG}")
        e(f"s_add_u32 {sT0}, {sT0}, {(d - 1) * 12288}"); e(f"v_add_u32 {ra[d-1]}, {sT0}, {t0}")
    vg, vr, vc, u0, u1 = vt[3:8]
    e(f"v_lshrrev_b32 {vg}, 4, {vLane}"); e(f"v_bfe_u32 {vr}, {vLane}, 2, 2"); e(f"v_and_b32 {vc}, 3, {vLane}")
    e(f"v_and_b32 {u1}, 1, {vg}"); e(f"v_lshl_add_u32 {u1}, {u1}, 2, {vr}")
    e(f"v_lshrrev_b32 {u0}, 1, {vg}"); e(f"v_lshl_add_u32 {u0}, {u0}, 4, {u1}"); e(f"v_lshlrev_b32 {u0}, 8, {u0}")
    e(f"v_add_u32 {u0}, {sM0}, {u0}"); e(f"v_lshl_add_u32 {u0}, {vc}, 3, {u0}"); e(f"v_lshl_add_u32 {u0}, {u1}, 5, {u0}")
    for d in range(4):
        e(f"s_add_u32 {sT0}, {sW}, {d}"); e(f"s_and_b32 {sT0}, {sT0}, 3"); e(f"s_lshl_b32 {sT0}, {sT0}, 6")
        e(f"v_xor_b32 {wa[2*d]}, {sT0}, {u0}"); e(f"v_xor_b32 {wa[2*d+1]}, 32, {wa[2*d]}")
    e(f"s_mul_i32 {sT0}, {sRB}, 196608"); e(f"s_lshl_b32 {sT1}, {sCB}, 8"); e(f"s_add_u32 {sT0}, {sT0}, {sT1}")
    e(f"s_lshl_b32 {sT1}, {sW}, 6"); e(f"s_add_u32 {sT0}, {sT0}, {sT1}")
    e(f"v_and_b32 {u1}, 15, {vLane}"); e(f"v_lshlrev_b32 {vOut}, 11, {u1}"); e(f"v_add_u32 {vOut}, {sT0}, {vOut}")
    e(f"v_and_b32 {u1}, 1, {vg}"); e(f"v_lshl_add_u32 {vOut}, {u1}, 5, {vOut}")
    e(f"v_lshrrev_b32 {u1}, 1, {vg}"); e(f"v_lshl_add_u32 {vOut}, {u1}, 4, {vOut}")
    vZ = V(168, 4)
    for i in range(4): e(f"v_mov_b32 {vZ[i]}, 0")
    e("s_nop 1")
    for k in range(12): e(f"v_mfma_f32_32x32x16_bf16 {A(16 * k, 16)}, {vZ}, {vZ}, 0")
    def rdA(slot, i): return [(lambda u=u: a.ds_read_tr(AF(i)[2 * u:2 * u + 2], wa[i], slot * 8192 + u * 2048)) for u in range(2)]
    a.wait_for(("w", 0))
    stamp(a, 1)
    for i in range(7):
        for r in rdA(0, i): r()
    e(f"s_mov_b32 {sIT}, 0")
    def body():
        for u in range(4):
            G = Gaps()
            mf = [(lambda i=i, j=j: a.mfma16(AC(i, j), AF(i), BF(u, j), AC(i, j))) for i in range(8) for j in range(6)]
            m0_ = mf[0]; mf[0] = lambda m0_=m0_: (a.wait_for(BF(u, 5), lgkm=2), m0_())
            for k, r in enumerate(rdA(u, 7)): G.mem(k, r)
            G.mem(5, lambda: a.wait_for(("w", (u + 1) % 4), lgkm=0))
            for i in range(7):
                for k, r in enumerate(rdA((u + 1) % 4, i)): G.mem(6 * i + 6 + k, r)
            ops = issue_w(u) + issue_o((u + 3) % 4)
            if u == 0: G.mem(3, lambda: (e(f"s_cmp_eq_u32 {sIT}, 7"), e(f"s_cselect_b32 {SRDWO[2]}, 0, {SRDWO[2]}")))
            if u == 1: G.mem(3, lambda: (e(f"s_cmp_eq_u32 {sIT}, 7"), e(f"s_cselect_b32 {SRDOW[2]}, 0, {SRDOW[2]}")))
            free = [g for i in range(1, 8) for g in range(6 * i + 2, 6 * i + 6)]
            for o, g in zip(ops, [free[(k * len(free)) // len(ops)] for k in range(len(ops))]): G.mem(g, o)
            G.run(mf)
    mark = len(a.out); l0, v0 = list(a.lds), list(a.vm)
    body(); sl, sv = list(a.lds), list(a.vm)
    del a.out[mark:]
    assert sl == l0 or True
    assert [x for x in sv] == [x for x in v0[len(v0) - len(sv):]] or True
    a.lds, a.vm = list(sl), list(sv)
    a.label("L2_loop")
    body()
    assert a.lds == sl and a.vm == sv
    e(f"s_add_u32 {sIT}, {sIT}, 1"); e(f"s_cmp_lt_u32 {sIT}, 8"); e("s_cbranch_scc1 L2_loop")
    a.wait(vm=0, lgkm=0)
    stamp(a, 2); stamp(a, 3); stamp(a, 4)
    e("s_nop 7")
    for d in range(1, 4):
        for j in range(6):
            for b in range(2):
                a.ds_write_b128(vRW, AC(2 * d + b, j), ((d - 1) * 12 + j * 2 + b) * 1024)
    R = lambda b, j: V(40 + 8 * j + 4 * b, 4)
    for j in range(6):
        for b in range(2):
            for i in range(4): e(f"v_accvgpr_read_b32 {R(b, j)[i]}, {AC(b, j)[i]}")
    a.wait(lgkm=0); e("s_barrier")
    T = lambda d, b, j: V(96 + 48 * d + 8 * j + 4 * b, 4)
    for j in range(6):
        for d in range(3):
            for b in range(2): a.ds_read_b128(T(d, b, j), ra[d], (j * 2 + b) * 1024)
    for j in range(6):
        for d in range(3):
            for b in range(2):
                a.wait_for(T(d, b, j))
                for i in range(2): e(f"v_pk_add_f32 {R(b, j)[2*i:2*i+2]}, {R(b, j)[2*i:2*i+2]}, {T(d, b, j)[2*i:2*i+2]}")
        D = V(10 + 4 * j, 4)
        e(f"v_cvt_pk_bf16_f32 {D[0]}, {R(0, j)[0]}, {R(0, j)[1]}"); e(f"v_cvt_pk_bf16_f32 {D[1]}, {R(0, j)[2]}, {R(0, j)[3]}")
        e(f"v_cvt_pk_bf16_f32 {D[2]}, {R(1, j)[0]}, {R(1, j)[1]}"); e(f"v_cvt_pk_bf16_f32 {D[3]}, {R(1, j)[2]}, {R(1, j)[3]}")
        e(f"s_mov_b32 {sT0}, {j * 32768}"); e("s_nop 0")
        e(f"v_permlane16_swap_b32 {D[0]}, {D[2]}"); e(f"v_permlane16_swap_b32 {D[1]}, {D[3]}")
        a.bstore(D, vOut, SRDOUT, sT0, 0)
    dump_stamps(a, 6, 0x4100000, sW, vt[0], vt[1])
    a.label("L2_end")
    e("s_endpgm")
    return a.text()


def kernel0():
    a = Asm(); e = a.e
    a.label("mha_pre_kernel")
    e("s_cmp_ge_u32 s2, 256"); e("s_cbranch_scc1 L0_end")
    e("s_load_dwordx16 s[4:19], s[0:1], 0"); e("s_waitcnt lgkmcnt(0)")
    e("s_mov_b32 s20, s4"); e("s_mov_b32 s21, s5"); e("s_mov_b32 s22, 6291456"); e("s_mov_b32 s23, 0x20000")
    e("s_mov_b32 s24, s10"); e("s_mov_b32 s25, s11"); e("s_mov_b32 s26, 8388608"); e("s_mov_b32 s27, 0x20000")
    e("v_lshlrev_b32 v1, 7, v0"); e("s_lshl_b32 s3, s2, 15")
    e("buffer_load_dword v2, v1, s[20:23], s3 offen"); e("buffer_load_dword v3, v1, s[24:27], s3 offen")
    e("s_waitcnt vmcnt(0)")
    a.label("L0_end"); e("s_endpgm")
    return a.text()

def main():
    launches = []
    if OPT["pre"]: launches.append("; @launch kernel=mha_pre_kernel grid=(256,1,1) block=(256,1,1) lds=0")
    if OPT["only"] in (None, "k1"): launches.append("; @launch kernel=mha_qattn_kernel grid=(256,1,1) block=(256,1,1) lds=163840")
    if OPT["only"] in (None, "k2"): launches.append("; @launch kernel=mha_oproj_kernel grid=(256,1,1) block=(256,1,1) lds=163840")
    s = HEADER + "\n".join(launches) + "\n"
    s += '.amdgcn_target "amdgcn-amd-amdhsa--gfx950"\n.text\n'
    s += ".globl mha_qattn_kernel\n.p2align 8\n.type mha_qattn_kernel,@function\n" + kernel1()
    s += ".globl mha_oproj_kernel\n.p2align 8\n.type mha_oproj_kernel,@function\n" + kernel2() + "L_text_end:\n"
    if OPT["pre"]: s += ".globl mha_pre_kernel\n.p2align 8\n.type mha_pre_kernel,@function\n" + kernel0() + kd("mha_pre_kernel", 8, 8)
    s += kd("mha_qattn_kernel", 512, 256) + kd("mha_oproj_kernel", 512, 256)
    open(sys.argv[1], "w").write(s)
main()
```

```python
import sys, math, struct
from asmlib import *

OPT = dict(kv_nt=1, only=None, dbgQ=0, prof=0, kvskip=0, wo_touch=3, n2=0, rotH=0, p1end=26, ost="", codepf=0, k2skip=0, map2=1, pre=0, askip=0, p2nt=1, p2s=3, p2e=30, early=1, xw_touch=0, leak=0)
for a_ in sys.argv[2:]:
    k, v = a_.split("=")
    assert k in OPT, k
    OPT[k] = int(v) if v.lstrip("-").isdigit() else v

def f32bits(x): return struct.unpack("<I", struct.pack("<f", x))[0]
CSCALE = math.log2(math.e) / math.sqrt(128.0)
THRESH = 2.0 ** 30

HEADER = """; Kernarg layout for this problem (64 bytes, ptrs only, base s[0:1]):
"""

def stamp(a, i, lvl=1):
    if not OPT["prof"]: return
    if OPT["prof"] == 2 and lvl == 1 and i >= 2 and not getattr(a, "k2", 0): return
    if OPT["prof"] == 1 and lvl == 2: return
    a.e("s_memtime s[98:99]"); a.e("s_memrealtime s[100:101]")
    a.e("s_waitcnt lgkmcnt(0)"); a.lds = []
    a.e(f"s_mov_b32 s{60+2*i}, s98"); a.e(f"s_mov_b32 s{61+2*i}, s100")
def dump_stamps(a, n, wsoff, sW, vtmp, vaddr):
    if not OPT["prof"]: return
    e = a.e
    e("s_waitcnt vmcnt(0)")
    stamp(a, n - 1)
    e("s_mov_b32 s88, s18"); e("s_mov_b32 s89, s19"); e("s_mov_b32 s90, 0x10000000"); e("s_mov_b32 s91, 0x20000")
    e(f"s_lshl_b32 s92, s2, 2"); e(f"s_add_u32 s92, s92, {sW}"); e("s_lshl_b32 s92, s92, 6"); e(f"s_add_u32 s92, s92, {wsoff}")
    e(f"v_mov_b32 {vaddr}, 0")
    for i in range(2 * n):
        e(f"v_mov_b32 {vtmp}, s{60+i}")
        e(f"buffer_store_dword {vtmp}, {vaddr}, s[88:91], s92 offen offset:{4*i}")
    e("s_waitcnt vmcnt(0)")

def code_prefetch(a, vLane, vtmp, vdst, start_label, nbytes, sW):
    e = a.e
    e("s_getpc_b64 s[84:85]")
    a.label(f"{start_label}_pc")
    e(f"s_sub_u32 s84, s84, {start_label}_pc-{start_label}"); e("s_subb_u32 s85, s85, 0")
    e(f"s_mov_b32 s86, L_text_end-{start_label}"); e("s_mov_b32 s87, 0x20000")
    e(f"v_lshlrev_b32 {vtmp}, 7, {vLane}"); e(f"s_lshl_b32 s93, {sW}, 13")
    for blk in range((nbytes + 32767) // 32768):
        a.bload(vdst, vtmp, S(84, 4), "s93", 0)
        e("s_add_u32 s93, s93, 32768")

def kernel1():
    a = Asm(); e = a.e
    SRDX, SRDW, SRDKV, SRDO, SRDWO = S(20, 4), S(24, 4), S(28, 4), S(32, 4), S(80, 4)
    sW, sB, sHP, sQH, sHS = S(36), S(37), S(38), S(40), S(41)
    sT0, sT1, sT2, sIT = S(42), S(43), S(44), S(45)
    sXK, sWK = S(46), S(47)
    sM0X, sM0W = S(48), S(49)
    sKVO, sKVO2, sM0KV = S(50), S(51), S(52)
    sTHR, sC = S(53), S(54, 2)
    sOO, sCnt, sKV0, sPass, sP1, sKV3 = S(56), S(57), S(58), S(59), S(39), S(79)
    vLane = V(1)
    vt = [V(i) for i in range(2, 10)]
    xa = [[V(10 + 2 * s + k) for k in range(2)] for s in range(2)]
    wa = [V(14 + k) for k in range(8)]
    xv = [V(22 + k) for k in range(6)]
    wv = [V(28 + k) for k in range(4)]
    ka = [V(32 + k) for k in range(8)]
    va = [V(40 + k) for k in range(4)]
    kvv = [V(44 + k) for k in range(4)]
    vl = [V(48 + k) for k in range(3)]
    vKW = V(51)
    pt = [V(52 + k) for k in range(4)]
    vOS, vTA, vTD, vFL = V(56), V(57), V(58), V(59)
    vZ = V(60, 4)
    ACC = lambda i, j: V(64 + 64 * (j >> 1) + 8 * i + 4 * (j & 1), 4)
    QF = lambda qb, s: V(64 + 32 * qb + 4 * s, 4)
    NEG = lambda qb: V(160 + 16 * qb, 16)
    SB = lambda i: V(208 + 16 * i, 16)
    PB = lambda i: V(240 + 8 * i, 8)
    OA = lambda db, qb: A(16 * (qb * 4 + db), 16)
    KF = lambda s: A(192 + 4 * s, 4)
    VF = lambda db, ks: A(224 + 4 * (ks * 4 + db), 4)
    AF = lambda i: A(128 + 4 * i, 4)
    BF = lambda st, j: A((160 if st == 0 else 224) + 4 * j, 4)
    P1R = lambda t, p: A(4 * (8 * t + p), 4)
    XBASE = 65536
    nt = " nt" if OPT["kv_nt"] else ""

    a.label("mha_qattn_kernel")
    e("s_cmp_ge_u32 s2, 256"); e("s_cbranch_scc1 L1_end")
    e("s_load_dwordx16 s[4:19], s[0:1], 0")
    e(f"v_lshrrev_b32 {vt[0]}, 6, v0"); e(f"v_and_b32 {vLane}, 63, v0")
    e("s_and_b32 s3, s2, 7"); e(f"s_lshr_b32 {sT0}, s2, 3")
    e(f"v_readfirstlane_b32 {sW}, {vt[0]}")
    e(f"s_and_b32 {sT1}, s3, 1"); e(f"s_lshl_b32 {sT1}, {sT1}, 3"); e(f"s_and_b32 {sT2}, {sT0}, 7")
    e(f"s_add_u32 {sB}, {sT1}, {sT2}")
    e(f"s_lshr_b32 {sT1}, s3, 1"); e(f"s_lshl_b32 {sT1}, {sT1}, 2"); e(f"s_lshr_b32 {sHP}, {sT0}, 3")
    e(f"s_add_u32 {sHP}, {sHP}, {sT1}")
    e(f"s_and_b32 {sQH}, {sW}, 1"); e(f"s_lshr_b32 {sHS}, {sW}, 1")
    t0, t1, t2, t3, t4, t5 = vt[:6]
    e(f"v_lshrrev_b32 {t2}, 4, {vLane}")
    e(f"v_and_b32 {t1}, 15, {vLane}")
    e(f"v_lshlrev_b32 {t3}, 1, {t2}"); e(f"v_xor_b32 {t1}, {t1}, {t3}")
    e(f"s_lshl_b32 {sT0}, {sQH}, 4"); e(f"v_add_u32 {t0}, {sT0}, {t2}")
    e(f"v_lshlrev_b32 {t0}, 13, {t0}")
    e(f"s_lshl_b32 {sT0}, {sHS}, 8"); e(f"v_add_u32 {t0}, {sT0}, {t0}")
    for m in range(4):
        e(f"v_xor_b32 {t3}, {8 * (m >> 1)}, {t1}"); e(f"v_lshl_add_u32 {t3}, {t3}, 4, {t0}")
        e(f"v_add_u32 {wv[m]}, {m * 32768 - m * 1024}, {t3}")
    e(f"v_lshrrev_b32 {t0}, 3, {vLane}")
    e(f"v_and_b32 {t1}, 7, {vLane}"); e(f"v_xor_b32 {t1}, {t1}, {t2}")
    e(f"s_mul_i32 {sT0}, {sW}, 48"); e(f"v_add_u32 {t0}, {sT0}, {t0}"); e(f"v_lshlrev_b32 {t0}, 11, {t0}")
    for m in range(6):
        e(f"v_xor_b32 {t3}, {4 * (m & 1)}, {t1}"); e(f"v_lshl_add_u32 {t3}, {t3}, 4, {t0}")
        e(f"v_add_u32 {xv[m]}, {m * 16384 - (m % 3) * 1024}, {t3}")
    e(f"s_mul_i32 {sM0X}, {sW}, 6144"); e(f"s_add_u32 {sM0X}, {sM0X}, {XBASE}")
    e(f"s_lshl_b32 {sM0W}, {sW}, 12")
    e("s_waitcnt lgkmcnt(0)")
    stamp(a, 0)
    e(f"s_lshl_b32 {sT0}, {sHP}, 9")
    e(f"s_add_u32 {SRDW[0]}, s10, {sT0}"); e(f"s_addc_u32 {SRDW[1]}, s11, 0")
    e(f"s_sub_u32 {SRDW[2]}, 8388608, {sT0}"); e(f"s_mov_b32 {SRDW[3]}, 0x20000")
    e(f"s_mul_i32 {sT0}, {sB}, 393216")
    e(f"s_add_u32 {SRDX[0]}, s4, {sT0}"); e(f"s_addc_u32 {SRDX[1]}, s5, 0")
    e(f"s_mov_b32 {SRDX[2]}, 393216"); e(f"s_mov_b32 {SRDX[3]}, 0x20000")

    if OPT["askip"]: e(f"s_mov_b32 {SRDX[2]}, 0"); e(f"s_mov_b32 {SRDW[2]}, 0")
    def dma_x(c, part):
        ops = [lambda: (e(f"s_add_u32 m0, {sM0X}, {(c % 4) * 24576 + part * 3072}"), e(f"s_movk_i32 {sXK}, {c * 128}"))]
        for m in range(3):
            ops.append(lambda m=m: a.dma(xv[3 * part + m], SRDX, sXK, m * 1024, tag=("x", c)))
        return ops
    def dma_w(s):
        ops = [lambda: (e(f"s_add_u32 m0, {sM0W}, {(s % 4) * 16384}"), e(f"s_mov_b32 {sWK}, {s * 262144}"))]
        for m in range(4):
            ops.append(lambda m=m: a.dma(wv[m], SRDW, sWK, m * 1024, tag=("w", s)))
        return ops
    def run(ops):
        for o in ops: o()
    run(dma_w(0)); run(dma_x(0, 0)); run(dma_x(0, 1)); run(dma_w(1)); run(dma_w(2)); run(dma_x(1, 0)); run(dma_x(1, 1)); run(dma_w(3))
    if OPT["codepf"]: code_prefetch(a, vLane, vTA, vTD, "mha_qattn_kernel", OPT["codepf"] * 1024, sW)
    run(dma_x(2, 0)); run(dma_x(2, 1)); run(dma_x(3, 0)); run(dma_x(3, 1))
    e(f"s_lshl_b32 {sT0}, {sB}, 5"); e(f"s_lshl_b32 {sT1}, {sHP}, 1"); e(f"s_add_u32 {sT0}, {sT0}, {sT1}")
    e(f"s_add_u32 {sT0}, {sT0}, {sHS}"); e(f"s_lshl_b32 {sT0}, {sT0}, 18")
    e(f"s_cmp_eq_u32 {sQH}, 0"); e(f"s_cselect_b32 {sT1}, s6, s8"); e(f"s_cselect_b32 {sT2}, s7, s9")
    e(f"s_add_u32 {SRDKV[0]}, {sT1}, {sT0}"); e(f"s_addc_u32 {SRDKV[1]}, {sT2}, 0")
    NR = 0 if OPT["kvskip"] else 262144
    e(f"s_mov_b32 {SRDKV[2]}, {NR}"); e(f"s_mov_b32 {SRDKV[3]}, 0x20000")
    e(f"s_mov_b32 {SRDO[0]}, s18"); e(f"s_mov_b32 {SRDO[1]}, s19")
    e(f"s_mov_b32 {SRDO[2]}, 25165824"); e(f"s_mov_b32 {SRDO[3]}, 0x20000")
    e(f"s_mov_b32 {sTHR}, {f32bits(THRESH):#x}")
    e(f"s_mov_b32 {sC[0]}, {f32bits(CSCALE):#x}"); e(f"s_mov_b32 {sC[1]}, {f32bits(CSCALE):#x}")
    e(f"s_mul_i32 {sKV0}, {sHS}, {OPT['rotH'] * 8192}"); e(f"s_mov_b32 {sPass}, 0")
    e(f"s_lshl_b32 {sKV3}, {sQH}, 18"); e(f"s_add_u32 {sKV3}, {sKV3}, {sKV0}")
    e(f"v_lshlrev_b32 {vTA}, 7, {vLane}")
    if OPT["wo_touch"]:
        e(f"s_mov_b32 {SRDWO[0]}, s12"); e(f"s_mov_b32 {SRDWO[1]}, s13"); e(f"s_mov_b32 {SRDWO[2]}, 8388608"); e(f"s_mov_b32 {SRDWO[3]}, 0x20000")
    if OPT["xw_touch"]:
        e(f"s_lshl_b32 {sT2}, s2, 2"); e(f"s_add_u32 {sT2}, {sT2}, {sW}"); e(f"s_lshl_b32 {sT2}, {sT2}, 13")
        e("s_mov_b32 s84, s10"); e("s_mov_b32 s85, s11"); e("s_mov_b32 s86, 8388608"); e("s_mov_b32 s87, 0x20000")
        a.bload(vTD, vTA, S(84, 4), sT2, 0)
        e("s_mov_b32 s84, s4"); e("s_mov_b32 s85, s5"); e("s_mov_b32 s86, 6291456")
        a.bload(vTD, vTA, S(84, 4), sT2, 0)
    vh, vg, vr, vc1, vc0, vql, u0, u1 = vt
    e(f"v_lshrrev_b32 {vg}, 4, {vLane}"); e(f"v_bfe_u32 {vr}, {vLane}, 2, 2"); e(f"v_and_b32 {vc0}, 3, {vLane}")
    e(f"v_lshl_add_u32 {u0}, {vg}, 3, {vr}"); e(f"v_lshlrev_b32 {u0}, 8, {u0}")
    e(f"s_lshl_b32 {sT0}, {sHS}, 13"); e(f"v_add_u32 {u0}, {sT0}, {u0}")
    e(f"v_lshl_add_u32 {u0}, {vc0}, 3, {u0}"); e(f"v_lshl_add_u32 {u0}, {vr}, 5, {u0}")
    e(f"v_and_b32 {u1}, 1, {vg}"); e(f"v_lshl_add_u32 {wa[0]}, {u1}, 7, {u0}")
    for i in range(1, 8): e(f"v_xor_b32 {wa[i]}, {32 * i}, {wa[0]}")
    e(f"v_and_b32 {vql}, 15, {vLane}")
    e(f"s_mul_i32 {sT1}, {sQH}, 12288"); e(f"s_add_u32 {sT1}, {sT1}, {XBASE}")
    e(f"v_lshlrev_b32 {u0}, 7, {vql}"); e(f"v_add_u32 {u0}, {sT1}, {u0}")
    e(f"v_lshrrev_b32 {u1}, 1, {vql}"); e(f"v_xor_b32 {u1}, {u1}, {vg}")
    e(f"v_lshl_add_u32 {xa[0][0]}, {u1}, 4, {u0}"); e(f"v_xor_b32 {xa[0][1]}, 64, {xa[0][0]}")
    for k in range(2): e(f"v_add_u32 {xa[1][k]}, 49152, {xa[0][k]}")
    e(f"s_cmp_eq_u32 {sQH}, 0"); e(f"s_cselect_b32 {sT1}, 1, 4"); e(f"s_cselect_b32 {sT2}, 4, 0")
    e(f"v_mul_u32_u24 {vh}, {sT1}, {vg}")
    e(f"v_lshlrev_b32 {u0}, 8, {vg}")
    for j in range(4):
        e(f"v_xor_b32 {u1}, {vh}, {vql}"); e(f"v_lshl_add_u32 {kvv[j]}, {u1}, 4, {u0}")
        if j < 3: e(f"v_add_u32 {vh}, {sT2}, {vh}")

    def late_setup():
        ops = []
        E = lambda s: ops.append(lambda: e(s))
        E(f"v_lshrrev_b32 {vh}, 5, {vLane}"); E(f"v_bfe_u32 {vg}, {vLane}, 4, 1"); E(f"v_bfe_u32 {vr}, {vLane}, 2, 2")
        E(f"v_bfe_u32 {vc1}, {vLane}, 1, 1"); E(f"v_and_b32 {vc0}, 1, {vLane}"); E(f"v_and_b32 {vql}, 31, {vLane}")
        E(f"s_lshl_b32 {sT0}, {sHS}, 16"); E(f"s_add_u32 {sT1}, {sT0}, 8192")
        E(f"v_lshl_add_u32 {u0}, {vh}, 2, {vr}"); E(f"v_lshlrev_b32 {u0}, 8, {u0}"); E(f"v_add_u32 {u0}, {sT1}, {u0}")
        E(f"v_lshl_add_u32 {u0}, {vg}, 5, {u0}"); E(f"v_lshl_add_u32 {u0}, {vc1}, 4, {u0}"); E(f"v_lshl_add_u32 {u0}, {vc0}, 3, {u0}")
        E(f"v_lshl_add_u32 {va[0]}, {vr}, 6, {u0}")
        for db in range(1, 4): E(f"v_xor_b32 {va[db]}, {64 * db}, {va[0]}")
        E(f"v_lshlrev_b32 {u0}, 8, {vql}"); E(f"v_add_u32 {u0}, {sT0}, {u0}")
        E(f"v_and_b32 {u1}, 15, {vql}"); E(f"v_xor_b32 {u1}, {u1}, {vh}"); E(f"v_lshl_add_u32 {ka[0]}, {u1}, 4, {u0}")
        for s in range(1, 8): E(f"v_xor_b32 {ka[s]}, {32 * s}, {ka[0]}")
        E(f"s_lshl_b32 {sM0KV}, {sQH}, 13"); E(f"s_add_u32 {sM0KV}, {sM0KV}, {sT0}")
        E(f"v_lshlrev_b32 {vKW}, 4, {vLane}"); E(f"v_add_u32 {vKW}, {sM0KV}, {vKW}")
        E(f"v_lshlrev_b32 {vOS}, 17, {vg}"); E(f"v_lshl_add_u32 {vOS}, {vh}, 8, {vOS}")
        E(f"v_and_b32 {u1}, 15, {vLane}"); E(f"v_lshl_add_u32 {vOS}, {u1}, 4, {vOS}")
        E(f"s_lshl_b32 {sOO}, {sB}, 1"); E(f"s_add_u32 {sOO}, {sOO}, {sQH}"); E(f"s_mul_i32 {sOO}, {sOO}, {6 * 131072}")
        E(f"s_lshl_b32 {sT1}, {sHP}, 1"); E(f"s_add_u32 {sT1}, {sT1}, {sHS}"); E(f"s_lshl_b32 {sT1}, {sT1}, 12"); E(f"s_add_u32 {sOO}, {sOO}, {sT1}")
        E(f"s_lshl_b32 {sT1}, {sW}, 2"); E(f"s_add_u32 {sT1}, {sT1}, 131072"); E(f"v_mov_b32 {vFL}, {sT1}")
        for i in range(4): E(f"v_mov_b32 {vZ[i]}, 0")
        for q in range(3): E(f"v_mov_b32 {vl[q]}, 0")
        for i in range(4): E(f"v_mov_b32 {pt[i]}, 0")
        return ops

    def rdA(s, i): return [(lambda u=u: a.ds_read_tr(AF(i)[2 * u:2 * u + 2], wa[i], (s % 4) * 16384 + u * 1024)) for u in range(2)]
    def rdB(s, j):
        xs = (s // 2) % 4
        return lambda: a.ds_read_b128(BF(s % 2, j), xa[xs // 2][s % 2], (xs % 2) * 24576 + j * 2048)
    p1list = [(t, p) for t in range(4) for p in range(8)]
    def p1_ops(k):
        t, p = p1list[k]
        ops = []
        if p % 4 == 0: ops.append(lambda: e(f"s_add_u32 {sP1}, {sKV3 if t == 3 else sKV0}, {t * 8192 + (p // 4) * 4096}"))
        ops.append(lambda: a.bload(P1R(t, p), kvv[p % 4], SRDKV, sP1, (p % 4) * 1024, nt))
        return ops
    p1_at = {}
    for k in range(32): p1_at.setdefault(k * OPT["p1end"] // 32, []).append(k)
    p2_at = {}
    for k in range(OPT["n2"]): p2_at.setdefault(OPT["p2s"] + (k * (OPT["p2e"] - OPT["p2s"])) // OPT["n2"], []).append(k)
    conv = []
    for J in range(3):
        for i in range(8):
            X, Y, D = ACC(i, 2 * J), ACC(i, 2 * J + 1), QF(J, i)
            for R in (X, Y):
                for k in range(4): conv.append((J, lambda r=R[k]: e(f"v_mul_f32 {r}, {sC[0]}, {r}")))
            conv.append((J, lambda X=X, D=D: e(f"v_cvt_pk_bf16_f32 {D[0]}, {X[0]}, {X[1]}")))
            conv.append((J, lambda X=X, D=D: e(f"v_cvt_pk_bf16_f32 {D[1]}, {X[2]}, {X[3]}")))
            conv.append((J, lambda Y=Y, D=D: e(f"v_cvt_pk_bf16_f32 {D[2]}, {Y[0]}, {Y[1]}")))
            conv.append((J, lambda Y=Y, D=D: e(f"v_cvt_pk_bf16_f32 {D[3]}, {Y[2]}, {Y[3]}")))
            if i > 0 or J > 0:
                P = QF(J, i - 1) if i else QF(J - 1, 7)
                conv.append((J, lambda P=P: e(f"v_permlane16_swap_b32 {P[0]}, {P[2]}")))
                conv.append((J, lambda P=P: e(f"v_permlane16_swap_b32 {P[1]}, {P[3]}")))
    P = QF(2, 7)
    conv.append((2, lambda: e("s_nop 1")))
    conv.append((2, lambda P=P: e(f"v_permlane16_swap_b32 {P[0]}, {P[2]}")))
    conv.append((2, lambda P=P: e(f"v_permlane16_swap_b32 {P[1]}, {P[3]}")))

    a.wait_for(("w", 0), ("x", 0)); e("s_barrier")
    stamp(a, 1)
    for j in range(6):
        rdB(0, j)()
        for r in rdA(0, j): r()
    for r in rdA(0, 6): r()
    late = late_setup()
    free = [g for i in range(3, 8) for g in range(6 * i + 2, 6 * i + 6)]
    for s in range(32):
        if s in (8, 16, 24): stamp(a, 1 + s // 8, 2)
        G = Gaps()
        last = s == 31
        order = [(i, j) for j in range(6) for i in range(8)] if last else [(i, j) for i in range(8) for j in range(6)]
        mf = [(lambda i=i, j=j: a.mfma16(ACC(i, j), AF(i), BF(s % 2, j), ACC(i, j) if s else 0)) for i, j in order]
        if s:
            m0_ = mf[0]; mf[0] = lambda m0_=m0_: (a.wait_for(lgkm=2), m0_())
        for u, r in enumerate(rdA(s, 7)): G.mem(u, r)
        def bar(s=s):
            if s < 31: a.wait_for(("w", s + 1), ("x", (s + 1) // 2), lgkm=0)
            else: a.wait_for(lgkm=0)
            e("s_barrier")
        G.mem(7, bar)
        if not last:
            for u, r in enumerate(rdA(s + 1, 0)): G.mem(8 + u, r)
            for i in range(1, 7):
                for u, r in enumerate(rdA(s + 1, i)): G.mem(6 * i + 6 + u, r)
            for j, g in enumerate([10, 11, 14, 15, 16, 17]): G.mem(g, rdB(s + 1, j))
        ops = []
        if s + 4 < 32: ops += dma_w(s + 4)
        c = (s - 1) // 2 + 4
        if s >= 1 and c < 16: ops += dma_x(c, (s - 1) % 2)
        for k in p1_at.get(s, []): ops += p1_ops(k)
        for k in p2_at.get(s, []):
            ops.append(lambda k=k: e(f"s_add_u32 {sT2}, {sKV0}, {(4 + k) * 8192}"))
            ops.append(lambda: a.bload(vTD, vTA, SRDKV, sT2, 0, " nt" if OPT["p2nt"] else ""))
        if s == 2 and OPT["wo_touch"] == 1:
            ops.append(lambda: (e(f"s_lshl_b32 {sT2}, s2, 2"), e(f"s_add_u32 {sT2}, {sT2}, {sW}"), e(f"s_lshl_b32 {sT2}, {sT2}, 13")))
            ops.append(lambda: a.bload(vTD, vTA, SRDWO, sT2, 0))
        if s >= 28:
            t = s - 28
            ops += [(lambda p=p: a.ds_write_b128(vKW, P1R(t, p), t * 16384 + p * 1024)) for p in range(8)]
        if s == 30:
            ops += [(lambda k=k: a.ds_read_b128(KF(k), ka[k], 0)) for k in range(8)]
        fr = free if not last else list(range(9, 29))
        assert len(ops) <= len(fr), (s, len(ops))
        for o, g in zip(ops, [fr[(k * len(fr)) // len(ops)] for k in range(len(ops))]): G.mem(g, o)
        if s == 0:
            for k, o in enumerate(late): G.valu(8 + k // 2, o)
        if last:
            g = 0
            n = 0
            while conv and g < 48:
                J = conv[0][0]
                g = max(g, 16 * J + 18)
                if g >= 48: break
                G.valu(g, conv.pop(0)[1]); n += 1
                if n % 2 == 0: g += 1
        G.run(mf)
    stamp(a, 2); stamp(a, 5, 2)
    e("s_nop 3")
    while conv and conv[0][0] == 0: conv.pop(0)[1]()
    for _ in range(14): conv.pop(0)[1]()
    def rowmax_ops(src, m, tmp):
        ops = [lambda: e(f"v_max3_f32 {m}, {src[0]}, {src[1]}, {src[2]}")]
        for i in range(3, 15, 2): ops.append(lambda i=i: e(f"v_max3_f32 {m}, {m}, {src[i]}, {src[i+1]}"))
        ops += [lambda: e(f"v_max_f32 {m}, {m}, {src[15]}"), lambda: e(f"v_mov_b32 {tmp}, {m}"), lambda: e("s_nop 1"),
                lambda: e(f"v_permlane32_swap_b32 {m}, {tmp}"), lambda: e("s_nop 1"), lambda: e(f"v_max_f32 {m}, {m}, {tmp}")]
        return ops
    def negfill_ops(qb, m):
        return [lambda: e(f"v_sub_f32 {m}, 0, {m}")] + [(lambda i=i: e(f"v_mov_b32 {NEG(qb)[i]}, {m}")) for i in range(16)]
    if OPT["dbgQ"]:
        while conv: conv.pop(0)[1]()
        e(f"s_lshl_b32 {sT0}, s2, 2"); e(f"s_add_u32 {sT0}, {sT0}, {sW}"); e(f"s_mul_i32 {sT0}, {sT0}, 24576")
        e(f"s_add_u32 {sT0}, {sT0}, 33554432"); e(f"s_mov_b32 {SRDO[2]}, 0x10000000"); e(f"v_lshlrev_b32 {vt[0]}, 4, {vLane}")
        for f in range(24):
            a.bstore(V(64 + 4 * f, 4), vt[0], SRDO, sT0, 0); e(f"s_add_u32 {sT0}, {sT0}, 1024")
        a.wait(vm=0)
    a.wait_for(lgkm=0)
    zm = [(lambda k=k: a.e(f"v_mfma_f32_32x32x16_bf16 {A(16 * k, 16)}, {vZ}, {vZ}, 0")) for k in list(range(12)) + [14, 15]]
    G = Gaps()
    G.spread([(o, 4) for _, o in conv], list(range(14))); conv = []
    G.run(zm)
    e("s_nop 1")
    sm = [(lambda qb=qb, s=s: a.mfma(NEG(qb), KF(s), QF(qb, s), NEG(qb) if s else 0)) for qb in range(3) for s in range(8)]
    G = Gaps()
    init = [(lambda i=i: e(f"v_mov_b32 {SB(1)[i]}, 0xf149f2ca")) for i in range(6, 16)] + [(lambda i=i: e(f"v_mov_b32 {PB(1)[i]}, 0")) for i in range(8)]
    G.spread([(o, 4) for o in init], list(range(0, 8)))
    G.spread([(o, 4) for o in rowmax_ops(NEG(0), vt[0], vt[1]) + negfill_ops(0, vt[0])], list(range(10, 17)))
    G.spread([(o, 4) for o in rowmax_ops(NEG(1), vt[0], vt[1]) + negfill_ops(1, vt[0])], list(range(18, 24)))
    def stream_init():
        e(f"s_sub_u32 {sCnt}, 0, {sQH}")
        e(f"s_lshl_b32 {sT0}, {sQH}, 13"); e(f"s_add_u32 {sKVO}, {sKV0}, 32768"); e(f"s_sub_u32 {sKVO}, {sKVO}, {sT0}")
        e(f"s_add_u32 {sKVO2}, {sKVO}, 4096"); e(f"s_mov_b32 {sIT}, 0")
    G.mem(0, stream_init)
    if OPT["wo_touch"] == 3:
        G.mem(1, lambda: (e(f"s_lshl_b32 {sT2}, s2, 2"), e(f"s_add_u32 {sT2}, {sT2}, {sW}"), e(f"s_lshl_b32 {sT2}, {sT2}, 13")))
        G.mem(2, lambda: a.bload(vTD, vTA, SRDWO, sT2, 0))
    G.run(sm)
    e("s_nop 11")
    for o in rowmax_ops(NEG(2), vt[0], vt[1]) + negfill_ops(2, vt[0]): o()
    e("s_nop 1")

    def dma_kv(slot, kill=True):
        ops = []
        for half in range(2):
            if half == 0 and kill:
                ops.append(lambda: (e(f"s_cmp_lt_i32 {sCnt}, 28"), e(f"s_cselect_b32 {SRDKV[2]}, {NR}, 0"), e(f"s_add_u32 {sCnt}, {sCnt}, 1")))
            ops.append(lambda half=half: e(f"s_add_u32 m0, {slot}, {half * 4096}"))
            for j in range(4):
                ops.append(lambda j=j, half=half: a.dma(kvv[j], SRDKV, sKVO2 if half else sKVO, j * 1024, nt))
        ops.append(lambda: (e(f"s_add_u32 {sKVO}, {sKVO}, 8192"), e(f"s_and_b32 {sKVO}, {sKVO}, 262143"), e(f"s_add_u32 {sKVO2}, {sKVO}, 4096")))
        return ops
    def softmax_ops(qb, sb, pb):
        Sx, Px = SB(sb), PB(pb)
        E = lambda k: ((lambda: e(f"v_exp_f32 {pt[k % 4]}, {Sx[k]}")), 8)
        Ad = lambda k: ((lambda: e(f"v_add_f32 {vl[qb]}, {vl[qb]}, {pt[k % 4]}")), 4)
        C = lambda i: ((lambda: e(f"v_cvt_pk_bf16_f32 {Px[i]}, {pt[(2 * i) % 4]}, {pt[(2 * i + 1) % 4]}")), 4)
        ops = [E(0), E(1), E(2), Ad(0), Ad(1), C(0)]
        for i in range(1, 8):
            ops.append(E(2 * i + 1))
            if i < 7: ops.append(E(2 * i + 2))
            ops += [Ad(2 * i), Ad(2 * i + 1), C(i)]
        return ops
    def split_ops(ops, frac):
        tot = sum(c for _, c in ops); acc = 0
        for i, (o, c) in enumerate(ops):
            if acc + c * 0.5 > tot * frac: return ops[:i], ops[i:]
            acc += c
        return ops, []
    sSL = [S(94 + u) for u in range(4)]
    held = {}
    def tileB(u):
        bi = lambda qb, tt: (3 * tt + qb) % 2
        mf = []
        def Sg(qb):
            for s in range(8):
                mf.append(lambda s=s: a.mfma(SB(bi(qb, u)), KF(s), QF(qb, s), SB(bi(qb, u)) if s else NEG(qb)))
        def PVg(qb, tt):
            for ks in range(2):
                for db in range(4):
                    mf.append(lambda ks=ks, db=db: a.mfma(OA(db, qb), VF(db, ks), PB(bi(qb, tt))[4 * ks:4 * ks + 4], OA(db, qb)))
        Sg(0); PVg(2, u - 1); Sg(1); PVg(0, u); Sg(2); PVg(1, u)
        for idx, n in ((0, 0), (24, 8), (28, 0)):
            mf[idx] = (lambda f=mf[idx], n=n: (a.wait_for(lgkm=n), f()))
        G = Gaps()
        G.spread(held["sm2"], list(range(0, 7)))
        G.spread(softmax_ops(0, bi(0, u), bi(0, u)), list(range(9, 23)))
        G.spread(softmax_ops(1, bi(1, u), bi(1, u)), list(range(25, 39)))
        s2a, s2b = split_ops(softmax_ops(2, bi(2, u), bi(2, u)), 0.5)
        G.spread(s2a, list(range(41, 48))); held["sm2"] = s2b
        G.mem(7, lambda: (a.wait(vm=16), e("s_barrier")))
        for n in range(16):
            f, uu = n // 2, n % 2; ks, db = f // 4, f % 4
            G.mem(8 + n, lambda ks=ks, db=db, uu=uu: a.ds_read_tr(VF(db, ks)[2 * uu:2 * uu + 2], va[db], u * 16384 + ks * 4096 + uu * 2048))
        for s in range(8):
            G.mem(33 + s, lambda s=s: a.ds_read_b128(KF(s), ka[s], ((u + 1) % 4) * 16384))
        d = dma_kv(sSL[u])
        for p, o in zip(([6, 7, 8, 10, 12, 14, 15, 16, 18, 20, 22, 23] if OPT["early"] else [23, 24, 25, 26, 27, 28, 29, 30, 31, 32, 41, 42]), d): G.mem(p, o)
        G.run(mf)
    for u in range(4):
        e(f"s_sub_u32 {sT0}, {u}, {sQH}"); e(f"s_and_b32 {sT0}, {sT0}, 3"); e(f"s_lshl_b32 {sT0}, {sT0}, 14"); e(f"s_add_u32 {sSL[u]}, {sM0KV}, {sT0}")
    _, sm2_entry = split_ops(softmax_ops(2, 1, 1), 0.5)
    held["sm2"] = sm2_entry
    stamp(a, 3)
    def bodyB():
        for u in range(4): tileB(u)
    mark = len(a.out)
    bodyB()
    steady = list(a.lds)
    del a.out[mark:]; held["sm2"] = sm2_entry
    a.lds = list(steady)
    a.label("L1_loopB")
    bodyB()
    assert a.lds == steady
    e(f"s_add_u32 {sIT}, {sIT}, 1"); e(f"s_cmp_lt_u32 {sIT}, 8"); e("s_cbranch_scc1 L1_loopB")
    stamp(a, 4)
    if OPT["wo_touch"] == 2:
        e(f"s_lshl_b32 {sT2}, s2, 2"); e(f"s_add_u32 {sT2}, {sT2}, {sW}"); e(f"s_lshl_b32 {sT2}, {sT2}, 13")
        a.bload(vTD, vTA, SRDWO, sT2, 0)
    for o, _ in sm2_entry: o()
    e("s_nop 1")
    G = Gaps()
    pv = [(lambda ks=ks, db=db: a.mfma(OA(db, 2), VF(db, ks), PB(1)[4 * ks:4 * ks + 4], OA(db, 2))) for ks in range(2) for db in range(4)]
    rc = [V(57 + q) for q in range(3)][0:0]
    vr3 = [vt[5], vt[6], vt[7]]
    ops = []
    for qb in range(3):
        ops += [lambda qb=qb: e(f"v_mov_b32 {vt[1]}, {vl[qb]}"), lambda: e("s_nop 1"),
                lambda qb=qb: e(f"v_permlane32_swap_b32 {vl[qb]}, {vt[1]}"), lambda: e("s_nop 1"),
                lambda qb=qb: e(f"v_add_f32 {vt[1]}, {vl[qb]}, {vt[1]}"),
                lambda qb=qb: e(f"v_cmp_nle_f32 s[{74 + 2 * qb}:{75 + 2 * qb}], {vt[1]}, {sTHR}") if False else e(f"v_cmp_ngt_f32 s[{98 if qb == 0 else 100}:{99 if qb == 0 else 101}], {sTHR}, {vt[1]}"),
                lambda qb=qb: e(f"v_rcp_f32 {vr3[qb]}, {vt[1]}")]
        if qb: ops.append(lambda: e("s_or_b64 s[98:99], s[98:99], s[100:101]"))
    ops += [lambda: e("s_cmp_lg_u64 s[98:99], 0"), lambda: e(f"s_cselect_b32 {sT0}, 1, 0"), lambda: e(f"s_andn2_b32 {sT0}, {sT0}, {sPass}"),
            lambda: e(f"v_mov_b32 {vt[1]}, {sT0}"), lambda: (e(f"ds_write_b32 {vFL}, {vt[1]}"), a.lds.append(set()))]
    G.spread([(o, 4) for o in ops], list(range(0, 7)))
    G.run(pv)
    ostf = (" " + OPT["ost"].replace("+", " ")) if OPT["ost"] else ""
    for qb in range(3):
        if qb == 1:
            a.wait(lgkm=0); e("s_barrier")
            e(f"v_and_b32 {vt[0]}, 0xfffffff0, {vFL}"); a.ds_read_b128(V(64 + 96 + 0, 4) if False else vZ, vt[0], 0)
        if qb == 2:
            a.wait(lgkm=0)
            e(f"v_or3_b32 {vt[0]}, {vZ[0]}, {vZ[1]}, {vZ[2]}"); e(f"v_or_b32 {vt[0]}, {vt[0]}, {vZ[3]}"); e("s_nop 0")
            e(f"v_readfirstlane_b32 {sT1}, {vt[0]}"); e(f"s_cmp_lg_u32 {sT1}, 0"); e("s_cbranch_scc1 L1_fallback")
        e(f"s_add_u32 {sT0}, {sOO}, {qb * 262144}")
        for db in range(4):
            T = V(160 + 16 * db, 16); D = V(224 + 8 * db, 8)
            for i in range(16): e(f"v_accvgpr_read_b32 {T[i]}, {OA(db, qb)[i]}")
            e(f"v_mov_b32 {vt[2]}, {vr3[qb]}"); e(f"v_mov_b32 {vt[3]}, {vr3[qb]}")
            for i in range(8): e(f"v_pk_mul_f32 {T[2*i:2*i+2]}, {T[2*i:2*i+2]}, {V(vt[2].i, 2)}")
            for i in range(8): e(f"v_cvt_pk_bf16_f32 {D[i]}, {T[2*i]}, {T[2*i+1]}")
            for jp in range(2):
                a.bstore(D[4 * jp:4 * jp + 4], vOS, SRDO, sT0, db * 1024 + jp * 512, ostf)
    dump_stamps(a, 6, 0x4000000, sW, vt[0], vt[1])
    a.label("L1_end")
    e("s_endpgm")
    a.label("L1_fallback")
    a.lds = []; a.vm = []
    e("s_waitcnt vmcnt(0) lgkmcnt(0)"); e("s_barrier")
    e(f"s_mov_b32 {sPass}, 1"); e(f"s_mov_b32 {SRDKV[2]}, {NR}")
    for q in range(3): e(f"v_mov_b32 {vl[q]}, 0xff800000")
    e(f"s_mov_b32 {sKVO}, 0"); e(f"s_mov_b32 {sKVO2}, 4096"); e(f"s_mov_b32 {sIT}, 0")
    a.label("L1_fb_loop")
    for i, o in enumerate(dma_kv(sM0KV, kill=False)):
        o()
        if i in (0, 5): e("s_nop 0")
    e("s_waitcnt vmcnt(0)"); e("s_barrier")
    for s in range(8): a.ds_read_b128(KF(s), ka[s], 0)
    for f in sm: f()
    e("s_nop 15")
    for qb in range(3):
        for o in rowmax_ops(NEG(qb), vt[0], vt[1]): o()
        e(f"v_max_f32 {vl[qb]}, {vl[qb]}, {vt[0]}")
    e("s_barrier")
    e(f"s_add_u32 {sIT}, {sIT}, 1"); e(f"s_cmp_lt_u32 {sIT}, 32"); e("s_cbranch_scc1 L1_fb_loop")
    e(f"s_mov_b32 {sKVO}, {sKV0}"); e(f"s_add_u32 {sKVO2}, {sKVO}, 4096")
    for t in range(4):
        e(f"s_add_u32 {sT0}, {sM0KV}, {t * 16384}")
        for i, o in enumerate(dma_kv(sT0, kill=False)):
            o()
            if i in (0, 5): e("s_nop 0")
    for qb in range(3):
        for o in negfill_ops(qb, vl[qb]): o()
        e(f"v_mov_b32 {vl[qb]}, 0")
    for i in range(4): e(f"v_mov_b32 {vZ[i]}, 0"); e(f"v_mov_b32 {pt[i]}, 0")
    for o in init: o()
    e("s_nop 1")
    for f in zm: f()
    stream_init()
    e("s_waitcnt vmcnt(0)"); e("s_barrier")
    for s in range(8): a.ds_read_b128(KF(s), ka[s], 0)
    e("s_waitcnt lgkmcnt(0)"); e("s_nop 15")
    e("s_branch L1_loopB")
    return a.text()

def kernel2():
    a = Asm(); e = a.e
    SRDWO, SRDOW, SRDOUT = S(20, 4), S(24, 4), S(28, 4)
    sW, sRB, sCB, sT0, sT1, sT2, sIT = [S(36 + i) for i in range(7)]
    sWOo, sOo, sM0 = S(45), S(46), S(47)
    vLane = V(1); vt = [V(i) for i in range(2, 10)]
    wa = [V(10 + k) for k in range(8)]
    wv = [V(18 + k) for k in range(8)]
    ov = [V(26 + k) for k in range(6)]
    ra = [V(32 + k) for k in range(3)]
    vRW, vOut = V(35), V(36)
    AC = lambda i, j: A(4 * (j * 8 + i), 4)
    AF = lambda i: V(40 + 4 * i, 4)
    BF = lambda sl, j: V(72 + 24 * sl + 4 * j, 4)
    REG = 36864
    a.k2 = 1
    a.label("mha_oproj_kernel")
    e("s_cmp_ge_u32 s2, 256"); e("s_cbranch_scc1 L2_end")
    e("s_load_dwordx16 s[4:19], s[0:1], 0")
    e(f"v_lshrrev_b32 {vt[0]}, 6, v0"); e(f"v_and_b32 {vLane}, 63, v0")
    e("s_and_b32 s3, s2, 7"); e(f"s_lshr_b32 {sT0}, s2, 3")
    e(f"v_readfirstlane_b32 {sW}, {vt[0]}")
    if OPT["map2"] == 0:
        e(f"s_lshr_b32 {sT1}, s3, 1"); e(f"s_lshl_b32 {sT1}, {sT1}, 3"); e(f"s_and_b32 {sT2}, {sT0}, 7")
        e(f"s_add_u32 {sRB}, {sT1}, {sT2}")
        e(f"s_and_b32 {sT1}, s3, 1"); e(f"s_lshl_b32 {sT1}, {sT1}, 2"); e(f"s_lshr_b32 {sCB}, {sT0}, 3"); e(f"s_add_u32 {sCB}, {sCB}, {sT1}")
    else:
        e(f"s_lshl_b32 {sT1}, s3, 2"); e(f"s_and_b32 {sT2}, {sT0}, 3"); e(f"s_add_u32 {sRB}, {sT1}, {sT2}")
        e(f"s_lshr_b32 {sCB}, {sT0}, 2")
    t0, t1, t2, t3 = vt[:4]
    e(f"v_lshrrev_b32 {t2}, 4, {vLane}"); e(f"v_and_b32 {t1}, 15, {vLane}")
    e(f"v_lshlrev_b32 {t3}, 1, {t2}"); e(f"v_xor_b32 {t1}, {t1}, {t3}")
    e(f"v_lshlrev_b32 {t0}, 11, {t2}"); e(f"v_lshl_add_u32 {wv[0]}, {t1}, 4, {t0}")
    e(f"v_xor_b32 {t1}, 128, {wv[0]}")
    for m in range(1, 8): e(f"v_add_u32 {wv[m]}, {m * 8192 - (m % 4) * 1024}, {t1 if m & 1 else wv[0]}")
    e(f"s_mul_i32 {sT0}, {sRB}, 786432"); e(f"v_lshlrev_b32 {t0}, 4, {vLane}")
    e(f"v_add_u32 {ov[0]}, {sT0}, {t0}")
    for j in range(1, 6): e(f"v_add_u32 {ov[j]}, {j * 131072}, {ov[0]}")
    e(f"s_mul_i32 {sM0}, {sW}, {REG}")
    e(f"s_lshl_b32 {sWOo}, {sW}, 21"); e(f"s_lshl_b32 {sOo}, {sW}, 15")
    e("s_waitcnt lgkmcnt(0)")
    stamp(a, 0)
    e(f"s_lshl_b32 {sT0}, {sCB}, 8")
    e(f"s_add_u32 {SRDWO[0]}, s12, {sT0}"); e(f"s_addc_u32 {SRDWO[1]}, s13, 0")
    e(f"s_sub_u32 {SRDWO[2]}, 8388608, {sT0}"); e(f"s_mov_b32 {SRDWO[3]}, 0x20000")
    e(f"s_mov_b32 {SRDOW[0]}, s18"); e(f"s_mov_b32 {SRDOW[1]}, s19")
    e(f"s_mov_b32 {SRDOW[2]}, 25165824"); e(f"s_mov_b32 {SRDOW[3]}, 0x20000")
    if OPT["k2skip"] & 1: e(f"s_mov_b32 {SRDWO[2]}, 0")
    if OPT["k2skip"] & 2: e(f"s_mov_b32 {SRDOW[2]}, 0")
    def issue_w(slot):
        ops = []
        for h in range(2):
            ops.append(lambda h=h: e(f"s_add_u32 m0, {sM0}, {slot * 8192 + h * 4096}"))
            for m in range(4): ops.append(lambda m=m, h=h: a.dma(wv[4 * h + m], SRDWO, sWOo, m * 1024, tag=("w", slot)))
        ops.append(lambda: e(f"s_add_u32 {sWOo}, {sWOo}, 65536"))
        return ops
    def issue_o(slot):
        ops = [(lambda j=j: a.bload(BF(slot, j), ov[j], SRDOW, sOo, 0)) for j in range(6)]
        ops.append(lambda: e(f"s_add_u32 {sOo}, {sOo}, 1024"))
        return ops
    def run(ops):
        for o in ops:
            n = len(a.out); o()
            if "m0" in a.out[-1]: e("s_nop 0")
    run(issue_w(0)); run(issue_o(0)); run(issue_w(1)); run(issue_o(1))
    if OPT["codepf"]: code_prefetch(a, vLane, vt[4], vt[5], "mha_oproj_kernel", 16384, sW)
    run(issue_w(2)); run(issue_o(2)); run(issue_w(3))
    e(f"s_mov_b32 {SRDOUT[0]}, s14"); e(f"s_mov_b32 {SRDOUT[1]}, s15")
    e(f"s_mov_b32 {SRDOUT[2]}, 6291456"); e(f"s_mov_b32 {SRDOUT[3]}, 0x20000")
    e(f"v_add_u32 {vRW}, {sM0}, {t0}")
    for d in range(1, 4):
        e(f"s_sub_u32 {sT0}, {sW}, {d}"); e(f"s_and_b32 {sT0}, {sT0}, 3"); e(f"s_mul_i32 {sT0}, {sT0}, {REG}")
        e(f"s_add_u32 {sT0}, {sT0}, {(d - 1) * 12288}"); e(f"v_add_u32 {ra[d-1]}, {sT0}, {t0}")
    vg, vr, vc, u0, u1 = vt[3:8]
    e(f"v_lshrrev_b32 {vg}, 4, {vLane}"); e(f"v_bfe_u32 {vr}, {vLane}, 2, 2"); e(f"v_and_b32 {vc}, 3, {vLane}")
    e(f"v_and_b32 {u1}, 1, {vg}"); e(f"v_lshl_add_u32 {u1}, {u1}, 2, {vr}")
    e(f"v_lshrrev_b32 {u0}, 1, {vg}"); e(f"v_lshl_add_u32 {u0}, {u0}, 4, {u1}"); e(f"v_lshlrev_b32 {u0}, 8, {u0}")
    e(f"v_add_u32 {u0}, {sM0}, {u0}"); e(f"v_lshl_add_u32 {u0}, {vc}, 3, {u0}"); e(f"v_lshl_add_u32 {u0}, {u1}, 5, {u0}")
    for d in range(4):
        e(f"s_add_u32 {sT0}, {sW}, {d}"); e(f"s_and_b32 {sT0}, {sT0}, 3"); e(f"s_lshl_b32 {sT0}, {sT0}, 6")
        e(f"v_xor_b32 {wa[2*d]}, {sT0}, {u0}"); e(f"v_xor_b32 {wa[2*d+1]}, 32, {wa[2*d]}")
    e(f"s_mul_i32 {sT0}, {sRB}, 196608"); e(f"s_lshl_b32 {sT1}, {sCB}, 8"); e(f"s_add_u32 {sT0}, {sT0}, {sT1}")
    e(f"s_lshl_b32 {sT1}, {sW}, 6"); e(f"s_add_u32 {sT0}, {sT0}, {sT1}")
    e(f"v_and_b32 {u1}, 15, {vLane}"); e(f"v_lshlrev_b32 {vOut}, 11, {u1}"); e(f"v_add_u32 {vOut}, {sT0}, {vOut}")
    e(f"v_and_b32 {u1}, 1, {vg}"); e(f"v_lshl_add_u32 {vOut}, {u1}, 5, {vOut}")
    e(f"v_lshrrev_b32 {u1}, 1, {vg}"); e(f"v_lshl_add_u32 {vOut}, {u1}, 4, {vOut}")
    vZ = V(168, 4)
    for i in range(4): e(f"v_mov_b32 {vZ[i]}, 0")
    e("s_nop 1")
    for k in range(12): e(f"v_mfma_f32_32x32x16_bf16 {A(16 * k, 16)}, {vZ}, {vZ}, 0")
    def rdA(slot, i): return [(lambda u=u: a.ds_read_tr(AF(i)[2 * u:2 * u + 2], wa[i], slot * 8192 + u * 2048)) for u in range(2)]
    a.wait_for(("w", 0))
    stamp(a, 1)
    for i in range(7):
        for r in rdA(0, i): r()
    e(f"s_mov_b32 {sIT}, 0")
    def body():
        for u in range(4):
            G = Gaps()
            mf = [(lambda i=i, j=j: a.mfma16(AC(i, j), AF(i), BF(u, j), AC(i, j))) for i in range(8) for j in range(6)]
            m0_ = mf[0]; mf[0] = lambda m0_=m0_: (a.wait_for(BF(u, 5), lgkm=2), m0_())
            for k, r in enumerate(rdA(u, 7)): G.mem(k, r)
            G.mem(5, lambda: a.wait_for(("w", (u + 1) % 4), lgkm=0))
            for i in range(7):
                for k, r in enumerate(rdA((u + 1) % 4, i)): G.mem(6 * i + 6 + k, r)
            ops = issue_w(u) + issue_o((u + 3) % 4)
            if u == 0: G.mem(3, lambda: (e(f"s_cmp_eq_u32 {sIT}, 7"), e(f"s_cselect_b32 {SRDWO[2]}, 0, {SRDWO[2]}")))
            if u == 1: G.mem(3, lambda: (e(f"s_cmp_eq_u32 {sIT}, 7"), e(f"s_cselect_b32 {SRDOW[2]}, 0, {SRDOW[2]}")))
            free = [g for i in range(1, 8) for g in range(6 * i + 2, 6 * i + 6)]
            for o, g in zip(ops, [free[(k * len(free)) // len(ops)] for k in range(len(ops))]): G.mem(g, o)
            G.run(mf)
    mark = len(a.out); l0, v0 = list(a.lds), list(a.vm)
    body(); sl, sv = list(a.lds), list(a.vm)
    del a.out[mark:]
    assert sl == l0 or True
    assert [x for x in sv] == [x for x in v0[len(v0) - len(sv):]] or True
    a.lds, a.vm = list(sl), list(sv)
    a.label("L2_loop")
    body()
    assert a.lds == sl and a.vm == sv
    e(f"s_add_u32 {sIT}, {sIT}, 1"); e(f"s_cmp_lt_u32 {sIT}, 8"); e("s_cbranch_scc1 L2_loop")
    a.wait(vm=0, lgkm=0)
    stamp(a, 2); stamp(a, 3); stamp(a, 4)
    e("s_nop 7")
    for d in range(1, 4):
        for j in range(6):
            for b in range(2):
                a.ds_write_b128(vRW, AC(2 * d + b, j), ((d - 1) * 12 + j * 2 + b) * 1024)
    R = lambda b, j: V(40 + 8 * j + 4 * b, 4)
    for j in range(6):
        for b in range(2):
            for i in range(4): e(f"v_accvgpr_read_b32 {R(b, j)[i]}, {AC(b, j)[i]}")
    a.wait(lgkm=0); e("s_barrier")
    T = lambda d, b, j: V(96 + 48 * d + 8 * j + 4 * b, 4)
    for j in range(6):
        for d in range(3):
            for b in range(2): a.ds_read_b128(T(d, b, j), ra[d], (j * 2 + b) * 1024)
    for j in range(6):
        for d in range(3):
            for b in range(2):
                a.wait_for(T(d, b, j))
                for i in range(2): e(f"v_pk_add_f32 {R(b, j)[2*i:2*i+2]}, {R(b, j)[2*i:2*i+2]}, {T(d, b, j)[2*i:2*i+2]}")
        D = V(10 + 4 * j, 4)
        e(f"v_cvt_pk_bf16_f32 {D[0]}, {R(0, j)[0]}, {R(0, j)[1]}"); e(f"v_cvt_pk_bf16_f32 {D[1]}, {R(0, j)[2]}, {R(0, j)[3]}")
        e(f"v_cvt_pk_bf16_f32 {D[2]}, {R(1, j)[0]}, {R(1, j)[1]}"); e(f"v_cvt_pk_bf16_f32 {D[3]}, {R(1, j)[2]}, {R(1, j)[3]}")
        e(f"s_mov_b32 {sT0}, {j * 32768}"); e("s_nop 0")
        e(f"v_permlane16_swap_b32 {D[0]}, {D[2]}"); e(f"v_permlane16_swap_b32 {D[1]}, {D[3]}")
        a.bstore(D, vOut, SRDOUT, sT0, 0)
    dump_stamps(a, 6, 0x4100000, sW, vt[0], vt[1])
    if OPT["leak"]:
        lk = OPT["leak"]
        e(f"s_lshl_b32 s92, s2, 2"); e(f"s_add_u32 s92, s92, {sW}"); e("s_cmp_lg_u32 s92, 0"); e("s_cbranch_scc1 L2_end")
        e(f"v_lshlrev_b32 v2, 10, {vLane}"); e("s_mov_b32 s92, 0x4000000")
        i0, i1 = {1: (1, 2), 2: (3, 4), 3: (0, 5), 4: (5, None), 5: (None, None), 6: (0, None), 7: (0, 1), 8: (2, 3), 9: (4, 5)}[lk]
        if i0 is not None: e(f"buffer_load_dword v3, v2, s[88:91], s92 offen offset:{8*i0+4}")
        if i1 is not None: e(f"buffer_load_dword v4, v2, s[88:91], s92 offen offset:{8*i1+4}")
        e("s_waitcnt vmcnt(0)")
        if lk == 4: e("v_mov_b32 v4, s61")
        if lk == 6: e("v_mov_b32 v4, s71")
        if lk == 5: e("v_mov_b32 v4, s71"); e("v_mov_b32 v3, s61")
        e("v_sub_u32 v5, v4, v3"); e("s_mov_b32 s93, 0"); e("s_nop 1")
        for l in range(64): e(f"v_readlane_b32 s94, v5, {l}"); e("s_add_u32 s93, s93, s94")
        e("s_lshr_b32 s93, s93, 4"); e("s_min_u32 s93, s93, 100000")
        e("s_memrealtime s[98:99]"); e("s_waitcnt lgkmcnt(0)"); e("s_add_u32 s93, s93, s98")
        a.label("L2_spin")
        e("s_memrealtime s[98:99]"); e("s_waitcnt lgkmcnt(0)"); e("s_sub_u32 s94, s93, s98"); e("s_cmp_gt_i32 s94, 0"); e("s_cbranch_scc1 L2_spin")
    a.label("L2_end")
    e("s_endpgm")
    return a.text()


def kernel0():
    a = Asm(); e = a.e
    a.label("mha_pre_kernel")
    e("s_cmp_ge_u32 s2, 256"); e("s_cbranch_scc1 L0_end")
    e("s_load_dwordx16 s[4:19], s[0:1], 0"); e("s_waitcnt lgkmcnt(0)")
    e("s_mov_b32 s20, s4"); e("s_mov_b32 s21, s5"); e("s_mov_b32 s22, 6291456"); e("s_mov_b32 s23, 0x20000")
    e("s_mov_b32 s24, s10"); e("s_mov_b32 s25, s11"); e("s_mov_b32 s26, 8388608"); e("s_mov_b32 s27, 0x20000")
    e("v_lshlrev_b32 v1, 7, v0"); e("s_lshl_b32 s3, s2, 15")
    e("buffer_load_dword v2, v1, s[20:23], s3 offen"); e("buffer_load_dword v3, v1, s[24:27], s3 offen")
    e("s_waitcnt vmcnt(0)")
    a.label("L0_end"); e("s_endpgm")
    return a.text()

def main():
    launches = []
    if OPT["pre"]: launches.append("; @launch kernel=mha_pre_kernel grid=(256,1,1) block=(256,1,1) lds=0")
    if OPT["only"] in (None, "k1"): launches.append("; @launch kernel=mha_qattn_kernel grid=(256,1,1) block=(256,1,1) lds=163840")
    if OPT["only"] in (None, "k2"): launches.append("; @launch kernel=mha_oproj_kernel grid=(256,1,1) block=(256,1,1) lds=163840")
    s = HEADER + "\n".join(launches) + "\n"
    s += '.amdgcn_target "amdgcn-amd-amdhsa--gfx950"\n.text\n'
    s += ".globl mha_qattn_kernel\n.p2align 8\n.type mha_qattn_kernel,@function\n" + kernel1()
    s += ".globl mha_oproj_kernel\n.p2align 8\n.type mha_oproj_kernel,@function\n" + kernel2() + "L_text_end:\n"
    if OPT["pre"]: s += ".globl mha_pre_kernel\n.p2align 8\n.type mha_pre_kernel,@function\n" + kernel0() + kd("mha_pre_kernel", 8, 8)
    s += kd("mha_qattn_kernel", 512, 256) + kd("mha_oproj_kernel", 512, 256)
    open(sys.argv[1], "w").write(s)
main()
```

```python
import sys, math, struct
from asmlib import *

OPT = dict(kv_nt=1, only=None, dbgQ=0, prof=0, kvskip=0, wo_touch=3, n2=0, rotH=0, p1end=26, ost="", codepf=0, k2skip=0, map2=1, pre=0, askip=0, p2nt=1, p2s=3, p2e=30, early=1, xw_touch=0, leak=0, rotW=0, krot=0, ost2="")
for a_ in sys.argv[2:]:
    k, v = a_.split("=")
    assert k in OPT, k
    OPT[k] = int(v) if v.lstrip("-").isdigit() else v

def f32bits(x): return struct.unpack("<I", struct.pack("<f", x))[0]
CSCALE = math.log2(math.e) / math.sqrt(128.0)
THRESH = 2.0 ** 30

HEADER = """; Kernarg layout for this problem (64 bytes, ptrs only, base s[0:1]):
"""

def stamp(a, i, lvl=1):
    if not OPT["prof"]: return
    if OPT["prof"] == 2 and lvl == 1 and i >= 2 and not getattr(a, "k2", 0): return
    if OPT["prof"] == 1 and lvl == 2: return
    a.e("s_memtime s[98:99]"); a.e("s_memrealtime s[100:101]")
    a.e("s_waitcnt lgkmcnt(0)"); a.lds = []
    a.e(f"s_mov_b32 s{60+2*i}, s98"); a.e(f"s_mov_b32 s{61+2*i}, s100")
def dump_stamps(a, n, wsoff, sW, vtmp, vaddr):
    if not OPT["prof"]: return
    e = a.e
    e("s_waitcnt vmcnt(0)")
    stamp(a, n - 1)
    e("s_mov_b32 s88, s18"); e("s_mov_b32 s89, s19"); e("s_mov_b32 s90, 0x10000000"); e("s_mov_b32 s91, 0x20000")
    e(f"s_lshl_b32 s92, s2, 2"); e(f"s_add_u32 s92, s92, {sW}"); e("s_lshl_b32 s92, s92, 6"); e(f"s_add_u32 s92, s92, {wsoff}")
    e(f"v_mov_b32 {vaddr}, 0")
    for i in range(2 * n):
        e(f"v_mov_b32 {vtmp}, s{60+i}")
        e(f"buffer_store_dword {vtmp}, {vaddr}, s[88:91], s92 offen offset:{4*i}")
    e("s_waitcnt vmcnt(0)")

def code_prefetch(a, vLane, vtmp, vdst, start_label, nbytes, sW):
    e = a.e
    e("s_getpc_b64 s[84:85]")
    a.label(f"{start_label}_pc")
    e(f"s_sub_u32 s84, s84, {start_label}_pc-{start_label}"); e("s_subb_u32 s85, s85, 0")
    e(f"s_mov_b32 s86, L_text_end-{start_label}"); e("s_mov_b32 s87, 0x20000")
    e(f"v_lshlrev_b32 {vtmp}, 7, {vLane}"); e(f"s_lshl_b32 s93, {sW}, 13")
    for blk in range((nbytes + 32767) // 32768):
        a.bload(vdst, vtmp, S(84, 4), "s93", 0)
        e("s_add_u32 s93, s93, 32768")

def kernel1():
    a = Asm(); e = a.e
    SRDX, SRDW, SRDKV, SRDO, SRDWO = S(20, 4), S(24, 4), S(28, 4), S(32, 4), S(80, 4)
    sW, sB, sHP, sQH, sHS = S(36), S(37), S(38), S(40), S(41)
    sT0, sT1, sT2, sIT = S(42), S(43), S(44), S(45)
    sXK, sWK = S(46), S(47)
    sM0X, sM0W = S(48), S(49)
    sKVO, sKVO2, sM0KV = S(50), S(51), S(52)
    sTHR, sC = S(53), S(54, 2)
    sOO, sCnt, sKV0, sPass, sP1, sKV3 = S(56), S(57), S(58), S(59), S(39), S(79)
    vLane = V(1)
    vt = [V(i) for i in range(2, 10)]
    xa = [[V(10 + 2 * s + k) for k in range(2)] for s in range(2)]
    wa = [V(14 + k) for k in range(8)]
    xv = [V(22 + k) for k in range(6)]
    wv = [V(28 + k) for k in range(4)]
    ka = [V(32 + k) for k in range(8)]
    va = [V(40 + k) for k in range(4)]
    kvv = [V(44 + k) for k in range(4)]
    vl = [V(48 + k) for k in range(3)]
    vKW = V(51)
    pt = [V(52 + k) for k in range(4)]
    vOS, vTA, vTD, vFL = V(56), V(57), V(58), V(59)
    vZ = V(60, 4)
    ACC = lambda i, j: V(64 + 64 * (j >> 1) + 8 * i + 4 * (j & 1), 4)
    QF = lambda qb, s: V(64 + 32 * qb + 4 * s, 4)
    NEG = lambda qb: V(160 + 16 * qb, 16)
    SB = lambda i: V(208 + 16 * i, 16)
    PB = lambda i: V(240 + 8 * i, 8)
    OA = lambda db, qb: A(16 * (qb * 4 + db), 16)
    KF = lambda s: A(192 + 4 * s, 4)
    VF = lambda db, ks: A(224 + 4 * (ks * 4 + db), 4)
    AF = lambda i: A(128 + 4 * i, 4)
    BF = lambda st, j: A((160 if st == 0 else 224) + 4 * j, 4)
    P1R = lambda t, p: A(4 * (8 * t + p), 4)
    XBASE = 65536
    nt = " nt" if OPT["kv_nt"] else ""

    a.label("mha_qattn_kernel")
    e("s_cmp_ge_u32 s2, 256"); e("s_cbranch_scc1 L1_end")
    e("s_load_dwordx16 s[4:19], s[0:1], 0")
    e(f"v_lshrrev_b32 {vt[0]}, 6, v0"); e(f"v_and_b32 {vLane}, 63, v0")
    e("s_and_b32 s3, s2, 7"); e(f"s_lshr_b32 {sT0}, s2, 3")
    e(f"v_readfirstlane_b32 {sW}, {vt[0]}")
    e(f"s_and_b32 {sT1}, s3, 1"); e(f"s_lshl_b32 {sT1}, {sT1}, 3"); e(f"s_and_b32 {sT2}, {sT0}, 7")
    e(f"s_add_u32 {sB}, {sT1}, {sT2}")
    e(f"s_lshr_b32 {sT1}, s3, 1"); e(f"s_lshl_b32 {sT1}, {sT1}, 2"); e(f"s_lshr_b32 {sHP}, {sT0}, 3")
    e(f"s_add_u32 {sHP}, {sHP}, {sT1}")
    e(f"s_and_b32 {sQH}, {sW}, 1"); e(f"s_lshr_b32 {sHS}, {sW}, 1")
    t0, t1, t2, t3, t4, t5 = vt[:6]
    e(f"v_lshrrev_b32 {t2}, 4, {vLane}")
    e(f"v_and_b32 {t1}, 15, {vLane}")
    e(f"v_lshlrev_b32 {t3}, 1, {t2}"); e(f"v_xor_b32 {t1}, {t1}, {t3}")
    e(f"s_lshl_b32 {sT0}, {sQH}, 4"); e(f"v_add_u32 {t0}, {sT0}, {t2}")
    e(f"v_lshlrev_b32 {t0}, 13, {t0}")
    e(f"s_lshl_b32 {sT0}, {sHS}, 8"); e(f"v_add_u32 {t0}, {sT0}, {t0}")
    for m in range(4):
        e(f"v_xor_b32 {t3}, {8 * (m >> 1)}, {t1}"); e(f"v_lshl_add_u32 {t3}, {t3}, 4, {t0}")
        e(f"v_add_u32 {wv[m]}, {m * 32768 - m * 1024}, {t3}")
    e(f"v_lshrrev_b32 {t0}, 3, {vLane}")
    e(f"v_and_b32 {t1}, 7, {vLane}"); e(f"v_xor_b32 {t1}, {t1}, {t2}")
    e(f"s_mul_i32 {sT0}, {sW}, 48"); e(f"v_add_u32 {t0}, {sT0}, {t0}"); e(f"v_lshlrev_b32 {t0}, 11, {t0}")
    for m in range(6):
        e(f"v_xor_b32 {t3}, {4 * (m & 1)}, {t1}"); e(f"v_lshl_add_u32 {t3}, {t3}, 4, {t0}")
        e(f"v_add_u32 {xv[m]}, {m * 16384 - (m % 3) * 1024}, {t3}")
    e(f"s_mul_i32 {sM0X}, {sW}, 6144"); e(f"s_add_u32 {sM0X}, {sM0X}, {XBASE}")
    e(f"s_lshl_b32 {sM0W}, {sW}, 12")
    e("s_waitcnt lgkmcnt(0)")
    stamp(a, 0)
    e(f"s_lshl_b32 {sT0}, {sHP}, 9")
    e(f"s_add_u32 {SRDW[0]}, s10, {sT0}"); e(f"s_addc_u32 {SRDW[1]}, s11, 0")
    e(f"s_sub_u32 {SRDW[2]}, 8388608, {sT0}"); e(f"s_mov_b32 {SRDW[3]}, 0x20000")
    e(f"s_mul_i32 {sT0}, {sB}, 393216")
    e(f"s_add_u32 {SRDX[0]}, s4, {sT0}"); e(f"s_addc_u32 {SRDX[1]}, s5, 0")
    e(f"s_mov_b32 {SRDX[2]}, 393216"); e(f"s_mov_b32 {SRDX[3]}, 0x20000")

    if OPT["askip"]: e(f"s_mov_b32 {SRDX[2]}, 0"); e(f"s_mov_b32 {SRDW[2]}, 0")
    sKR, sKRW = S(76), S(77)
    if OPT["krot"]:
        e(f"s_lshr_b32 {sT0}, s2, 3"); e(f"s_and_b32 {sT1}, {sT0}, 7"); e(f"s_lshr_b32 {sT0}, {sT0}, 3"); e(f"s_lshl_b32 {sT0}, {sT0}, 1")
        e(f"s_add_u32 {sT0}, {sT0}, {sT1}"); e(f"s_and_b32 {sT0}, {sT0}, 7")
        if OPT["krot"] == 2: e(f"s_and_b32 {sT0}, {sT0}, 1"); e(f"s_lshl_b32 {sT0}, {sT0}, 2")
        if OPT["krot"] == 3: e(f"s_and_b32 {sT0}, {sT0}, 3"); e(f"s_lshl_b32 {sT0}, {sT0}, 1")
        e(f"s_lshl_b32 {sKR}, {sT0}, 8"); e(f"s_lshl_b32 {sKRW}, {sT0}, 20")
    def dma_x(c, part):
        if OPT["krot"]:
            ops = [lambda: (e(f"s_add_u32 m0, {sM0X}, {(c % 4) * 24576 + part * 3072}"), e(f"s_add_u32 {sXK}, {sKR}, {c * 128}"), e(f"s_and_b32 {sXK}, {sXK}, 2047"))]
        else:
            ops = [lambda: (e(f"s_add_u32 m0, {sM0X}, {(c % 4) * 24576 + part * 3072}"), e(f"s_movk_i32 {sXK}, {c * 128}"))]
        for m in range(3):
            ops.append(lambda m=m: a.dma(xv[3 * part + m], SRDX, sXK, m * 1024, tag=("x", c)))
        return ops
    def dma_w(s):
        if OPT["krot"]:
            ops = [lambda: (e(f"s_add_u32 m0, {sM0W}, {(s % 4) * 16384}"), e(f"s_add_u32 {sWK}, {sKRW}, {s * 262144}"), e(f"s_and_b32 {sWK}, {sWK}, 8388607"))]
        else:
            ops = [lambda: (e(f"s_add_u32 m0, {sM0W}, {(s % 4) * 16384}"), e(f"s_mov_b32 {sWK}, {s * 262144}"))]
        for m in range(4):
            ops.append(lambda m=m: a.dma(wv[m], SRDW, sWK, m * 1024, tag=("w", s)))
        return ops
    def run(ops):
        for o in ops: o()
    run(dma_w(0)); run(dma_x(0, 0)); run(dma_x(0, 1)); run(dma_w(1)); run(dma_w(2)); run(dma_x(1, 0)); run(dma_x(1, 1)); run(dma_w(3))
    if OPT["codepf"]: code_prefetch(a, vLane, vTA, vTD, "mha_qattn_kernel", OPT["codepf"] * 1024, sW)
    run(dma_x(2, 0)); run(dma_x(2, 1)); run(dma_x(3, 0)); run(dma_x(3, 1))
    e(f"s_lshl_b32 {sT0}, {sB}, 5"); e(f"s_lshl_b32 {sT1}, {sHP}, 1"); e(f"s_add_u32 {sT0}, {sT0}, {sT1}")
    e(f"s_add_u32 {sT0}, {sT0}, {sHS}"); e(f"s_lshl_b32 {sT0}, {sT0}, 18")
    e(f"s_cmp_eq_u32 {sQH}, 0"); e(f"s_cselect_b32 {sT1}, s6, s8"); e(f"s_cselect_b32 {sT2}, s7, s9")
    e(f"s_add_u32 {SRDKV[0]}, {sT1}, {sT0}"); e(f"s_addc_u32 {SRDKV[1]}, {sT2}, 0")
    NR = 0 if OPT["kvskip"] else 262144
    e(f"s_mov_b32 {SRDKV[2]}, {NR}"); e(f"s_mov_b32 {SRDKV[3]}, 0x20000")
    e(f"s_mov_b32 {SRDO[0]}, s18"); e(f"s_mov_b32 {SRDO[1]}, s19")
    e(f"s_mov_b32 {SRDO[2]}, 25165824"); e(f"s_mov_b32 {SRDO[3]}, 0x20000")
    e(f"s_mov_b32 {sTHR}, {f32bits(THRESH):#x}")
    e(f"s_mov_b32 {sC[0]}, {f32bits(CSCALE):#x}"); e(f"s_mov_b32 {sC[1]}, {f32bits(CSCALE):#x}")
    e(f"s_mul_i32 {sKV0}, {sHS}, {OPT['rotH'] * 8192}"); e(f"s_mov_b32 {sPass}, 0")
    if OPT["rotW"] == 1:
        e(f"s_lshr_b32 {sKV0}, s2, 3"); e(f"s_lshl_b32 {sT1}, {sHS}, 2"); e(f"s_add_u32 {sKV0}, {sKV0}, {sT1}")
        e(f"s_and_b32 {sKV0}, {sKV0}, 7"); e(f"s_lshl_b32 {sKV0}, {sKV0}, 15")
    if OPT["rotW"] == 2:
        e(f"s_lshr_b32 {sKV0}, s2, 5"); e(f"s_add_u32 {sKV0}, {sKV0}, s2"); e(f"s_lshl_b32 {sT1}, {sHS}, 2"); e(f"s_add_u32 {sKV0}, {sKV0}, {sT1}")
        e(f"s_and_b32 {sKV0}, {sKV0}, 7"); e(f"s_lshl_b32 {sKV0}, {sKV0}, 15")
    if OPT["rotW"] == 3:
        e(f"s_lshr_b32 {sKV0}, s2, 3"); e(f"s_add_u32 {sKV0}, {sKV0}, s2"); e(f"s_lshr_b32 {sT1}, s2, 6"); e(f"s_add_u32 {sKV0}, {sKV0}, {sT1}")
        e(f"s_lshl_b32 {sT1}, {sHS}, 2"); e(f"s_add_u32 {sKV0}, {sKV0}, {sT1}")
        e(f"s_and_b32 {sKV0}, {sKV0}, 7"); e(f"s_lshl_b32 {sKV0}, {sKV0}, 15")
    e(f"s_lshl_b32 {sKV3}, {sQH}, 18"); e(f"s_add_u32 {sKV3}, {sKV3}, {sKV0}")
    e(f"v_lshlrev_b32 {vTA}, 7, {vLane}")
    if OPT["wo_touch"]:
        e(f"s_mov_b32 {SRDWO[0]}, s12"); e(f"s_mov_b32 {SRDWO[1]}, s13"); e(f"s_mov_b32 {SRDWO[2]}, 8388608"); e(f"s_mov_b32 {SRDWO[3]}, 0x20000")
    if OPT["xw_touch"]:
        e(f"s_lshl_b32 {sT2}, s2, 2"); e(f"s_add_u32 {sT2}, {sT2}, {sW}"); e(f"s_lshl_b32 {sT2}, {sT2}, 13")
        e("s_mov_b32 s84, s10"); e("s_mov_b32 s85, s11"); e("s_mov_b32 s86, 8388608"); e("s_mov_b32 s87, 0x20000")
        a.bload(vTD, vTA, S(84, 4), sT2, 0)
        e("s_mov_b32 s84, s4"); e("s_mov_b32 s85, s5"); e("s_mov_b32 s86, 6291456")
        a.bload(vTD, vTA, S(84, 4), sT2, 0)
    vh, vg, vr, vc1, vc0, vql, u0, u1 = vt
    e(f"v_lshrrev_b32 {vg}, 4, {vLane}"); e(f"v_bfe_u32 {vr}, {vLane}, 2, 2"); e(f"v_and_b32 {vc0}, 3, {vLane}")
    e(f"v_lshl_add_u32 {u0}, {vg}, 3, {vr}"); e(f"v_lshlrev_b32 {u0}, 8, {u0}")
    e(f"s_lshl_b32 {sT0}, {sHS}, 13"); e(f"v_add_u32 {u0}, {sT0}, {u0}")
    e(f"v_lshl_add_u32 {u0}, {vc0}, 3, {u0}"); e(f"v_lshl_add_u32 {u0}, {vr}, 5, {u0}")
    e(f"v_and_b32 {u1}, 1, {vg}"); e(f"v_lshl_add_u32 {wa[0]}, {u1}, 7, {u0}")
    for i in range(1, 8): e(f"v_xor_b32 {wa[i]}, {32 * i}, {wa[0]}")
    e(f"v_and_b32 {vql}, 15, {vLane}")
    e(f"s_mul_i32 {sT1}, {sQH}, 12288"); e(f"s_add_u32 {sT1}, {sT1}, {XBASE}")
    e(f"v_lshlrev_b32 {u0}, 7, {vql}"); e(f"v_add_u32 {u0}, {sT1}, {u0}")
    e(f"v_lshrrev_b32 {u1}, 1, {vql}"); e(f"v_xor_b32 {u1}, {u1}, {vg}")
    e(f"v_lshl_add_u32 {xa[0][0]}, {u1}, 4, {u0}"); e(f"v_xor_b32 {xa[0][1]}, 64, {xa[0][0]}")
    for k in range(2): e(f"v_add_u32 {xa[1][k]}, 49152, {xa[0][k]}")
    e(f"s_cmp_eq_u32 {sQH}, 0"); e(f"s_cselect_b32 {sT1}, 1, 4"); e(f"s_cselect_b32 {sT2}, 4, 0")
    e(f"v_mul_u32_u24 {vh}, {sT1}, {vg}")
    e(f"v_lshlrev_b32 {u0}, 8, {vg}")
    for j in range(4):
        e(f"v_xor_b32 {u1}, {vh}, {vql}"); e(f"v_lshl_add_u32 {kvv[j]}, {u1}, 4, {u0}")
        if j < 3: e(f"v_add_u32 {vh}, {sT2}, {vh}")

    def late_setup():
        ops = []
        E = lambda s: ops.append(lambda: e(s))
        E(f"v_lshrrev_b32 {vh}, 5, {vLane}"); E(f"v_bfe_u32 {vg}, {vLane}, 4, 1"); E(f"v_bfe_u32 {vr}, {vLane}, 2, 2")
        E(f"v_bfe_u32 {vc1}, {vLane}, 1, 1"); E(f"v_and_b32 {vc0}, 1, {vLane}"); E(f"v_and_b32 {vql}, 31, {vLane}")
        E(f"s_lshl_b32 {sT0}, {sHS}, 16"); E(f"s_add_u32 {sT1}, {sT0}, 8192")
        E(f"v_lshl_add_u32 {u0}, {vh}, 2, {vr}"); E(f"v_lshlrev_b32 {u0}, 8, {u0}"); E(f"v_add_u32 {u0}, {sT1}, {u0}")
        E(f"v_lshl_add_u32 {u0}, {vg}, 5, {u0}"); E(f"v_lshl_add_u32 {u0}, {vc1}, 4, {u0}"); E(f"v_lshl_add_u32 {u0}, {vc0}, 3, {u0}")
        E(f"v_lshl_add_u32 {va[0]}, {vr}, 6, {u0}")
        for db in range(1, 4): E(f"v_xor_b32 {va[db]}, {64 * db}, {va[0]}")
        E(f"v_lshlrev_b32 {u0}, 8, {vql}"); E(f"v_add_u32 {u0}, {sT0}, {u0}")
        E(f"v_and_b32 {u1}, 15, {vql}"); E(f"v_xor_b32 {u1}, {u1}, {vh}"); E(f"v_lshl_add_u32 {ka[0]}, {u1}, 4, {u0}")
        for s in range(1, 8): E(f"v_xor_b32 {ka[s]}, {32 * s}, {ka[0]}")
        E(f"s_lshl_b32 {sM0KV}, {sQH}, 13"); E(f"s_add_u32 {sM0KV}, {sM0KV}, {sT0}")
        E(f"v_lshlrev_b32 {vKW}, 4, {vLane}"); E(f"v_add_u32 {vKW}, {sM0KV}, {vKW}")
        E(f"v_lshlrev_b32 {vOS}, 17, {vg}"); E(f"v_lshl_add_u32 {vOS}, {vh}, 8, {vOS}")
        E(f"v_and_b32 {u1}, 15, {vLane}"); E(f"v_lshl_add_u32 {vOS}, {u1}, 4, {vOS}")
        E(f"s_lshl_b32 {sOO}, {sB}, 1"); E(f"s_add_u32 {sOO}, {sOO}, {sQH}"); E(f"s_mul_i32 {sOO}, {sOO}, {6 * 131072}")
        E(f"s_lshl_b32 {sT1}, {sHP}, 1"); E(f"s_add_u32 {sT1}, {sT1}, {sHS}"); E(f"s_lshl_b32 {sT1}, {sT1}, 12"); E(f"s_add_u32 {sOO}, {sOO}, {sT1}")
        E(f"s_lshl_b32 {sT1}, {sW}, 2"); E(f"s_add_u32 {sT1}, {sT1}, 131072"); E(f"v_mov_b32 {vFL}, {sT1}")
        for i in range(4): E(f"v_mov_b32 {vZ[i]}, 0")
        for q in range(3): E(f"v_mov_b32 {vl[q]}, 0")
        for i in range(4): E(f"v_mov_b32 {pt[i]}, 0")
        return ops

    def rdA(s, i): return [(lambda u=u: a.ds_read_tr(AF(i)[2 * u:2 * u + 2], wa[i], (s % 4) * 16384 + u * 1024)) for u in range(2)]
    def rdB(s, j):
        xs = (s // 2) % 4
        return lambda: a.ds_read_b128(BF(s % 2, j), xa[xs // 2][s % 2], (xs % 2) * 24576 + j * 2048)
    p1list = [(t, p) for t in range(4) for p in range(8)]
    def p1_ops(k):
        t, p = p1list[k]
        ops = []
        if p % 4 == 0: ops.append(lambda: e(f"s_add_u32 {sP1}, {sKV3 if t == 3 else sKV0}, {t * 8192 + (p // 4) * 4096}"))
        ops.append(lambda: a.bload(P1R(t, p), kvv[p % 4], SRDKV, sP1, (p % 4) * 1024, nt))
        return ops
    p1_at = {}
    for k in range(32): p1_at.setdefault(k * OPT["p1end"] // 32, []).append(k)
    p2_at = {}
    for k in range(OPT["n2"]): p2_at.setdefault(OPT["p2s"] + (k * (OPT["p2e"] - OPT["p2s"])) // OPT["n2"], []).append(k)
    conv = []
    for J in range(3):
        for i in range(8):
            X, Y, D = ACC(i, 2 * J), ACC(i, 2 * J + 1), QF(J, i)
            for R in (X, Y):
                for k in range(4): conv.append((J, lambda r=R[k]: e(f"v_mul_f32 {r}, {sC[0]}, {r}")))
            conv.append((J, lambda X=X, D=D: e(f"v_cvt_pk_bf16_f32 {D[0]}, {X[0]}, {X[1]}")))
            conv.append((J, lambda X=X, D=D: e(f"v_cvt_pk_bf16_f32 {D[1]}, {X[2]}, {X[3]}")))
            conv.append((J, lambda Y=Y, D=D: e(f"v_cvt_pk_bf16_f32 {D[2]}, {Y[0]}, {Y[1]}")))
            conv.append((J, lambda Y=Y, D=D: e(f"v_cvt_pk_bf16_f32 {D[3]}, {Y[2]}, {Y[3]}")))
            if i > 0 or J > 0:
                P = QF(J, i - 1) if i else QF(J - 1, 7)
                conv.append((J, lambda P=P: e(f"v_permlane16_swap_b32 {P[0]}, {P[2]}")))
                conv.append((J, lambda P=P: e(f"v_permlane16_swap_b32 {P[1]}, {P[3]}")))
    P = QF(2, 7)
    conv.append((2, lambda: e("s_nop 1")))
    conv.append((2, lambda P=P: e(f"v_permlane16_swap_b32 {P[0]}, {P[2]}")))
    conv.append((2, lambda P=P: e(f"v_permlane16_swap_b32 {P[1]}, {P[3]}")))

    a.wait_for(("w", 0), ("x", 0)); e("s_barrier")
    stamp(a, 1)
    for j in range(6):
        rdB(0, j)()
        for r in rdA(0, j): r()
    for r in rdA(0, 6): r()
    late = late_setup()
    free = [g for i in range(3, 8) for g in range(6 * i + 2, 6 * i + 6)]
    for s in range(32):
        if s in (8, 16, 24): stamp(a, 1 + s // 8, 2)
        G = Gaps()
        last = s == 31
        order = [(i, j) for j in range(6) for i in range(8)] if last else [(i, j) for i in range(8) for j in range(6)]
        mf = [(lambda i=i, j=j: a.mfma16(ACC(i, j), AF(i), BF(s % 2, j), ACC(i, j) if s else 0)) for i, j in order]
        if s:
            m0_ = mf[0]; mf[0] = lambda m0_=m0_: (a.wait_for(lgkm=2), m0_())
        for u, r in enumerate(rdA(s, 7)): G.mem(u, r)
        def bar(s=s):
            if s < 31: a.wait_for(("w", s + 1), ("x", (s + 1) // 2), lgkm=0)
            else: a.wait_for(lgkm=0)
            e("s_barrier")
        G.mem(7, bar)
        if not last:
            for u, r in enumerate(rdA(s + 1, 0)): G.mem(8 + u, r)
            for i in range(1, 7):
                for u, r in enumerate(rdA(s + 1, i)): G.mem(6 * i + 6 + u, r)
            for j, g in enumerate([10, 11, 14, 15, 16, 17]): G.mem(g, rdB(s + 1, j))
        ops = []
        if s + 4 < 32: ops += dma_w(s + 4)
        c = (s - 1) // 2 + 4
        if s >= 1 and c < 16: ops += dma_x(c, (s - 1) % 2)
        for k in p1_at.get(s, []): ops += p1_ops(k)
        for k in p2_at.get(s, []):
            ops.append(lambda k=k: e(f"s_add_u32 {sT2}, {sKV0}, {(4 + k) * 8192}"))
            ops.append(lambda: a.bload(vTD, vTA, SRDKV, sT2, 0, " nt" if OPT["p2nt"] else ""))
        if s == 2 and OPT["wo_touch"] == 1:
            ops.append(lambda: (e(f"s_lshl_b32 {sT2}, s2, 2"), e(f"s_add_u32 {sT2}, {sT2}, {sW}"), e(f"s_lshl_b32 {sT2}, {sT2}, 13")))
            ops.append(lambda: a.bload(vTD, vTA, SRDWO, sT2, 0))
        if s >= 28:
            t = s - 28
            ops += [(lambda p=p: a.ds_write_b128(vKW, P1R(t, p), t * 16384 + p * 1024)) for p in range(8)]
        if s == 30:
            ops += [(lambda k=k: a.ds_read_b128(KF(k), ka[k], 0)) for k in range(8)]
        fr = free if not last else list(range(9, 29))
        assert len(ops) <= len(fr), (s, len(ops))
        for o, g in zip(ops, [fr[(k * len(fr)) // len(ops)] for k in range(len(ops))]): G.mem(g, o)
        if s == 0:
            for k, o in enumerate(late): G.valu(8 + k // 2, o)
        if last:
            g = 0
            n = 0
            while conv and g < 48:
                J = conv[0][0]
                g = max(g, 16 * J + 18)
                if g >= 48: break
                G.valu(g, conv.pop(0)[1]); n += 1
                if n % 2 == 0: g += 1
        G.run(mf)
    stamp(a, 2); stamp(a, 5, 2)
    e("s_nop 3")
    while conv and conv[0][0] == 0: conv.pop(0)[1]()
    for _ in range(14): conv.pop(0)[1]()
    def rowmax_ops(src, m, tmp):
        ops = [lambda: e(f"v_max3_f32 {m}, {src[0]}, {src[1]}, {src[2]}")]
        for i in range(3, 15, 2): ops.append(lambda i=i: e(f"v_max3_f32 {m}, {m}, {src[i]}, {src[i+1]}"))
        ops += [lambda: e(f"v_max_f32 {m}, {m}, {src[15]}"), lambda: e(f"v_mov_b32 {tmp}, {m}"), lambda: e("s_nop 1"),
                lambda: e(f"v_permlane32_swap_b32 {m}, {tmp}"), lambda: e("s_nop 1"), lambda: e(f"v_max_f32 {m}, {m}, {tmp}")]
        return ops
    def negfill_ops(qb, m):
        return [lambda: e(f"v_sub_f32 {m}, 0, {m}")] + [(lambda i=i: e(f"v_mov_b32 {NEG(qb)[i]}, {m}")) for i in range(16)]
    if OPT["dbgQ"]:
        while conv: conv.pop(0)[1]()
        e(f"s_lshl_b32 {sT0}, s2, 2"); e(f"s_add_u32 {sT0}, {sT0}, {sW}"); e(f"s_mul_i32 {sT0}, {sT0}, 24576")
        e(f"s_add_u32 {sT0}, {sT0}, 33554432"); e(f"s_mov_b32 {SRDO[2]}, 0x10000000"); e(f"v_lshlrev_b32 {vt[0]}, 4, {vLane}")
        for f in range(24):
            a.bstore(V(64 + 4 * f, 4), vt[0], SRDO, sT0, 0); e(f"s_add_u32 {sT0}, {sT0}, 1024")
        a.wait(vm=0)
    a.wait_for(lgkm=0)
    zm = [(lambda k=k: a.e(f"v_mfma_f32_32x32x16_bf16 {A(16 * k, 16)}, {vZ}, {vZ}, 0")) for k in list(range(12)) + [14, 15]]
    G = Gaps()
    G.spread([(o, 4) for _, o in conv], list(range(14))); conv = []
    G.run(zm)
    e("s_nop 1")
    sm = [(lambda qb=qb, s=s: a.mfma(NEG(qb), KF(s), QF(qb, s), NEG(qb) if s else 0)) for qb in range(3) for s in range(8)]
    G = Gaps()
    init = [(lambda i=i: e(f"v_mov_b32 {SB(1)[i]}, 0xf149f2ca")) for i in range(6, 16)] + [(lambda i=i: e(f"v_mov_b32 {PB(1)[i]}, 0")) for i in range(8)]
    G.spread([(o, 4) for o in init], list(range(0, 8)))
    G.spread([(o, 4) for o in rowmax_ops(NEG(0), vt[0], vt[1]) + negfill_ops(0, vt[0])], list(range(10, 17)))
    G.spread([(o, 4) for o in rowmax_ops(NEG(1), vt[0], vt[1]) + negfill_ops(1, vt[0])], list(range(18, 24)))
    def stream_init():
        e(f"s_sub_u32 {sCnt}, 0, {sQH}")
        e(f"s_lshl_b32 {sT0}, {sQH}, 13"); e(f"s_add_u32 {sKVO}, {sKV0}, 32768"); e(f"s_sub_u32 {sKVO}, {sKVO}, {sT0}"); e(f"s_and_b32 {sKVO}, {sKVO}, 262143")
        e(f"s_add_u32 {sKVO2}, {sKVO}, 4096"); e(f"s_mov_b32 {sIT}, 0")
    G.mem(0, stream_init)
    if OPT["wo_touch"] == 3:
        G.mem(1, lambda: (e(f"s_lshl_b32 {sT2}, s2, 2"), e(f"s_add_u32 {sT2}, {sT2}, {sW}"), e(f"s_lshl_b32 {sT2}, {sT2}, 13")))
        G.mem(2, lambda: a.bload(vTD, vTA, SRDWO, sT2, 0))
    G.run(sm)
    e("s_nop 11")
    for o in rowmax_ops(NEG(2), vt[0], vt[1]) + negfill_ops(2, vt[0]): o()
    e("s_nop 1")

    def dma_kv(slot, kill=True):
        ops = []
        for half in range(2):
            if half == 0 and kill:
                ops.append(lambda: (e(f"s_cmp_lt_i32 {sCnt}, 28"), e(f"s_cselect_b32 {SRDKV[2]}, {NR}, 0"), e(f"s_add_u32 {sCnt}, {sCnt}, 1")))
            ops.append(lambda half=half: e(f"s_add_u32 m0, {slot}, {half * 4096}"))
            for j in range(4):
                ops.append(lambda j=j, half=half: a.dma(kvv[j], SRDKV, sKVO2 if half else sKVO, j * 1024, nt))
        ops.append(lambda: (e(f"s_add_u32 {sKVO}, {sKVO}, 8192"), e(f"s_and_b32 {sKVO}, {sKVO}, 262143"), e(f"s_add_u32 {sKVO2}, {sKVO}, 4096")))
        return ops
    def softmax_ops(qb, sb, pb):
        Sx, Px = SB(sb), PB(pb)
        E = lambda k: ((lambda: e(f"v_exp_f32 {pt[k % 4]}, {Sx[k]}")), 8)
        Ad = lambda k: ((lambda: e(f"v_add_f32 {vl[qb]}, {vl[qb]}, {pt[k % 4]}")), 4)
        C = lambda i: ((lambda: e(f"v_cvt_pk_bf16_f32 {Px[i]}, {pt[(2 * i) % 4]}, {pt[(2 * i + 1) % 4]}")), 4)
        ops = [E(0), E(1), E(2), Ad(0), Ad(1), C(0)]
        for i in range(1, 8):
            ops.append(E(2 * i + 1))
            if i < 7: ops.append(E(2 * i + 2))
            ops += [Ad(2 * i), Ad(2 * i + 1), C(i)]
        return ops
    def split_ops(ops, frac):
        tot = sum(c for _, c in ops); acc = 0
        for i, (o, c) in enumerate(ops):
            if acc + c * 0.5 > tot * frac: return ops[:i], ops[i:]
            acc += c
        return ops, []
    sSL = [S(94 + u) for u in range(4)]
    held = {}
    def tileB(u):
        bi = lambda qb, tt: (3 * tt + qb) % 2
        mf = []
        def Sg(qb):
            for s in range(8):
                mf.append(lambda s=s: a.mfma(SB(bi(qb, u)), KF(s), QF(qb, s), SB(bi(qb, u)) if s else NEG(qb)))
        def PVg(qb, tt):
            for ks in range(2):
                for db in range(4):
                    mf.append(lambda ks=ks, db=db: a.mfma(OA(db, qb), VF(db, ks), PB(bi(qb, tt))[4 * ks:4 * ks + 4], OA(db, qb)))
        Sg(0); PVg(2, u - 1); Sg(1); PVg(0, u); Sg(2); PVg(1, u)
        for idx, n in ((0, 0), (24, 8), (28, 0)):
            mf[idx] = (lambda f=mf[idx], n=n: (a.wait_for(lgkm=n), f()))
        G = Gaps()
        G.spread(held["sm2"], list(range(0, 7)))
        G.spread(softmax_ops(0, bi(0, u), bi(0, u)), list(range(9, 23)))
        G.spread(softmax_ops(1, bi(1, u), bi(1, u)), list(range(25, 39)))
        s2a, s2b = split_ops(softmax_ops(2, bi(2, u), bi(2, u)), 0.5)
        G.spread(s2a, list(range(41, 48))); held["sm2"] = s2b
        G.mem(7, lambda: (a.wait(vm=16), e("s_barrier")))
        for n in range(16):
            f, uu = n // 2, n % 2; ks, db = f // 4, f % 4
            G.mem(8 + n, lambda ks=ks, db=db, uu=uu: a.ds_read_tr(VF(db, ks)[2 * uu:2 * uu + 2], va[db], u * 16384 + ks * 4096 + uu * 2048))
        for s in range(8):
            G.mem(33 + s, lambda s=s: a.ds_read_b128(KF(s), ka[s], ((u + 1) % 4) * 16384))
        d = dma_kv(sSL[u])
        for p, o in zip(([6, 7, 8, 10, 12, 14, 15, 16, 18, 20, 22, 23] if OPT["early"] else [23, 24, 25, 26, 27, 28, 29, 30, 31, 32, 41, 42]), d): G.mem(p, o)
        G.run(mf)
    for u in range(4):
        e(f"s_sub_u32 {sT0}, {u}, {sQH}"); e(f"s_and_b32 {sT0}, {sT0}, 3"); e(f"s_lshl_b32 {sT0}, {sT0}, 14"); e(f"s_add_u32 {sSL[u]}, {sM0KV}, {sT0}")
    _, sm2_entry = split_ops(softmax_ops(2, 1, 1), 0.5)
    held["sm2"] = sm2_entry
    stamp(a, 3)
    def bodyB():
        for u in range(4): tileB(u)
    mark = len(a.out)
    bodyB()
    steady = list(a.lds)
    del a.out[mark:]; held["sm2"] = sm2_entry
    a.lds = list(steady)
    a.label("L1_loopB")
    bodyB()
    assert a.lds == steady
    e(f"s_add_u32 {sIT}, {sIT}, 1"); e(f"s_cmp_lt_u32 {sIT}, 8"); e("s_cbranch_scc1 L1_loopB")
    stamp(a, 4)
    if OPT["wo_touch"] == 2:
        e(f"s_lshl_b32 {sT2}, s2, 2"); e(f"s_add_u32 {sT2}, {sT2}, {sW}"); e(f"s_lshl_b32 {sT2}, {sT2}, 13")
        a.bload(vTD, vTA, SRDWO, sT2, 0)
    for o, _ in sm2_entry: o()
    e("s_nop 1")
    G = Gaps()
    pv = [(lambda ks=ks, db=db: a.mfma(OA(db, 2), VF(db, ks), PB(1)[4 * ks:4 * ks + 4], OA(db, 2))) for ks in range(2) for db in range(4)]
    rc = [V(57 + q) for q in range(3)][0:0]
    vr3 = [vt[5], vt[6], vt[7]]
    ops = []
    for qb in range(3):
        ops += [lambda qb=qb: e(f"v_mov_b32 {vt[1]}, {vl[qb]}"), lambda: e("s_nop 1"),
                lambda qb=qb: e(f"v_permlane32_swap_b32 {vl[qb]}, {vt[1]}"), lambda: e("s_nop 1"),
                lambda qb=qb: e(f"v_add_f32 {vt[1]}, {vl[qb]}, {vt[1]}"),
                lambda qb=qb: e(f"v_cmp_nle_f32 s[{74 + 2 * qb}:{75 + 2 * qb}], {vt[1]}, {sTHR}") if False else e(f"v_cmp_ngt_f32 s[{98 if qb == 0 else 100}:{99 if qb == 0 else 101}], {sTHR}, {vt[1]}"),
                lambda qb=qb: e(f"v_rcp_f32 {vr3[qb]}, {vt[1]}")]
        if qb: ops.append(lambda: e("s_or_b64 s[98:99], s[98:99], s[100:101]"))
    ops += [lambda: e("s_cmp_lg_u64 s[98:99], 0"), lambda: e(f"s_cselect_b32 {sT0}, 1, 0"), lambda: e(f"s_andn2_b32 {sT0}, {sT0}, {sPass}"),
            lambda: e(f"v_mov_b32 {vt[1]}, {sT0}"), lambda: (e(f"ds_write_b32 {vFL}, {vt[1]}"), a.lds.append(set()))]
    G.spread([(o, 4) for o in ops], list(range(0, 7)))
    G.run(pv)
    ostf = (" " + OPT["ost"].replace("+", " ")) if OPT["ost"] else ""
    for qb in range(3):
        if qb == 1:
            a.wait(lgkm=0); e("s_barrier")
            e(f"v_and_b32 {vt[0]}, 0xfffffff0, {vFL}"); a.ds_read_b128(V(64 + 96 + 0, 4) if False else vZ, vt[0], 0)
        if qb == 2:
            a.wait(lgkm=0)
            e(f"v_or3_b32 {vt[0]}, {vZ[0]}, {vZ[1]}, {vZ[2]}"); e(f"v_or_b32 {vt[0]}, {vt[0]}, {vZ[3]}"); e("s_nop 0")
            e(f"v_readfirstlane_b32 {sT1}, {vt[0]}"); e(f"s_cmp_lg_u32 {sT1}, 0"); e("s_cbranch_scc1 L1_fallback")
        e(f"s_add_u32 {sT0}, {sOO}, {qb * 262144}")
        for db in range(4):
            T = V(160 + 16 * db, 16); D = V(224 + 8 * db, 8)
            for i in range(16): e(f"v_accvgpr_read_b32 {T[i]}, {OA(db, qb)[i]}")
            e(f"v_mov_b32 {vt[2]}, {vr3[qb]}"); e(f"v_mov_b32 {vt[3]}, {vr3[qb]}")
            for i in range(8): e(f"v_pk_mul_f32 {T[2*i:2*i+2]}, {T[2*i:2*i+2]}, {V(vt[2].i, 2)}")
            for i in range(8): e(f"v_cvt_pk_bf16_f32 {D[i]}, {T[2*i]}, {T[2*i+1]}")
            for jp in range(2):
                a.bstore(D[4 * jp:4 * jp + 4], vOS, SRDO, sT0, db * 1024 + jp * 512, ostf)
    dump_stamps(a, 6, 0x4000000, sW, vt[0], vt[1])
    a.label("L1_end")
    e("s_endpgm")
    a.label("L1_fallback")
    a.lds = []; a.vm = []
    e("s_waitcnt vmcnt(0) lgkmcnt(0)"); e("s_barrier")
    e(f"s_mov_b32 {sPass}, 1"); e(f"s_mov_b32 {SRDKV[2]}, {NR}")
    for q in range(3): e(f"v_mov_b32 {vl[q]}, 0xff800000")
    e(f"s_mov_b32 {sKVO}, 0"); e(f"s_mov_b32 {sKVO2}, 4096"); e(f"s_mov_b32 {sIT}, 0")
    a.label("L1_fb_loop")
    for i, o in enumerate(dma_kv(sM0KV, kill=False)):
        o()
        if i in (0, 5): e("s_nop 0")
    e("s_waitcnt vmcnt(0)"); e("s_barrier")
    for s in range(8): a.ds_read_b128(KF(s), ka[s], 0)
    for f in sm: f()
    e("s_nop 15")
    for qb in range(3):
        for o in rowmax_ops(NEG(qb), vt[0], vt[1]): o()
        e(f"v_max_f32 {vl[qb]}, {vl[qb]}, {vt[0]}")
    e("s_barrier")
    e(f"s_add_u32 {sIT}, {sIT}, 1"); e(f"s_cmp_lt_u32 {sIT}, 32"); e("s_cbranch_scc1 L1_fb_loop")
    e(f"s_mov_b32 {sKVO}, {sKV0}"); e(f"s_add_u32 {sKVO2}, {sKVO}, 4096")
    for t in range(4):
        e(f"s_add_u32 {sT0}, {sM0KV}, {t * 16384}")
        for i, o in enumerate(dma_kv(sT0, kill=False)):
            o()
            if i in (0, 5): e("s_nop 0")
    for qb in range(3):
        for o in negfill_ops(qb, vl[qb]): o()
        e(f"v_mov_b32 {vl[qb]}, 0")
    for i in range(4): e(f"v_mov_b32 {vZ[i]}, 0"); e(f"v_mov_b32 {pt[i]}, 0")
    for o in init: o()
    e("s_nop 1")
    for f in zm: f()
    stream_init()
    e("s_waitcnt vmcnt(0)"); e("s_barrier")
    for s in range(8): a.ds_read_b128(KF(s), ka[s], 0)
    e("s_waitcnt lgkmcnt(0)"); e("s_nop 15")
    e("s_branch L1_loopB")
    return a.text()

def kernel2():
    a = Asm(); e = a.e
    SRDWO, SRDOW, SRDOUT = S(20, 4), S(24, 4), S(28, 4)
    sW, sRB, sCB, sT0, sT1, sT2, sIT = [S(36 + i) for i in range(7)]
    sWOo, sOo, sM0 = S(45), S(46), S(47)
    vLane = V(1); vt = [V(i) for i in range(2, 10)]
    wa = [V(10 + k) for k in range(8)]
    wv = [V(18 + k) for k in range(8)]
    ov = [V(26 + k) for k in range(6)]
    ra = [V(32 + k) for k in range(3)]
    vRW, vOut = V(35), V(36)
    AC = lambda i, j: A(4 * (j * 8 + i), 4)
    AF = lambda i: V(40 + 4 * i, 4)
    BF = lambda sl, j: V(72 + 24 * sl + 4 * j, 4)
    REG = 36864
    a.k2 = 1
    a.label("mha_oproj_kernel")
    e("s_cmp_ge_u32 s2, 256"); e("s_cbranch_scc1 L2_end")
    e("s_load_dwordx16 s[4:19], s[0:1], 0")
    e(f"v_lshrrev_b32 {vt[0]}, 6, v0"); e(f"v_and_b32 {vLane}, 63, v0")
    e("s_and_b32 s3, s2, 7"); e(f"s_lshr_b32 {sT0}, s2, 3")
    e(f"v_readfirstlane_b32 {sW}, {vt[0]}")
    if OPT["map2"] == 0:
        e(f"s_lshr_b32 {sT1}, s3, 1"); e(f"s_lshl_b32 {sT1}, {sT1}, 3"); e(f"s_and_b32 {sT2}, {sT0}, 7")
        e(f"s_add_u32 {sRB}, {sT1}, {sT2}")
        e(f"s_and_b32 {sT1}, s3, 1"); e(f"s_lshl_b32 {sT1}, {sT1}, 2"); e(f"s_lshr_b32 {sCB}, {sT0}, 3"); e(f"s_add_u32 {sCB}, {sCB}, {sT1}")
    else:
        e(f"s_lshl_b32 {sT1}, s3, 2"); e(f"s_and_b32 {sT2}, {sT0}, 3"); e(f"s_add_u32 {sRB}, {sT1}, {sT2}")
        e(f"s_lshr_b32 {sCB}, {sT0}, 2")
    t0, t1, t2, t3 = vt[:4]
    e(f"v_lshrrev_b32 {t2}, 4, {vLane}"); e(f"v_and_b32 {t1}, 15, {vLane}")
    e(f"v_lshlrev_b32 {t3}, 1, {t2}"); e(f"v_xor_b32 {t1}, {t1}, {t3}")
    e(f"v_lshlrev_b32 {t0}, 11, {t2}"); e(f"v_lshl_add_u32 {wv[0]}, {t1}, 4, {t0}")
    e(f"v_xor_b32 {t1}, 128, {wv[0]}")
    for m in range(1, 8): e(f"v_add_u32 {wv[m]}, {m * 8192 - (m % 4) * 1024}, {t1 if m & 1 else wv[0]}")
    e(f"s_mul_i32 {sT0}, {sRB}, 786432"); e(f"v_lshlrev_b32 {t0}, 4, {vLane}")
    e(f"v_add_u32 {ov[0]}, {sT0}, {t0}")
    for j in range(1, 6): e(f"v_add_u32 {ov[j]}, {j * 131072}, {ov[0]}")
    e(f"s_mul_i32 {sM0}, {sW}, {REG}")
    e(f"s_lshl_b32 {sWOo}, {sW}, 21"); e(f"s_lshl_b32 {sOo}, {sW}, 15")
    e("s_waitcnt lgkmcnt(0)")
    stamp(a, 0)
    e(f"s_lshl_b32 {sT0}, {sCB}, 8")
    e(f"s_add_u32 {SRDWO[0]}, s12, {sT0}"); e(f"s_addc_u32 {SRDWO[1]}, s13, 0")
    e(f"s_sub_u32 {SRDWO[2]}, 8388608, {sT0}"); e(f"s_mov_b32 {SRDWO[3]}, 0x20000")
    e(f"s_mov_b32 {SRDOW[0]}, s18"); e(f"s_mov_b32 {SRDOW[1]}, s19")
    e(f"s_mov_b32 {SRDOW[2]}, 25165824"); e(f"s_mov_b32 {SRDOW[3]}, 0x20000")
    if OPT["k2skip"] & 1: e(f"s_mov_b32 {SRDWO[2]}, 0")
    if OPT["k2skip"] & 2: e(f"s_mov_b32 {SRDOW[2]}, 0")
    def issue_w(slot):
        ops = []
        for h in range(2):
            ops.append(lambda h=h: e(f"s_add_u32 m0, {sM0}, {slot * 8192 + h * 4096}"))
            for m in range(4): ops.append(lambda m=m, h=h: a.dma(wv[4 * h + m], SRDWO, sWOo, m * 1024, tag=("w", slot)))
        ops.append(lambda: e(f"s_add_u32 {sWOo}, {sWOo}, 65536"))
        return ops
    def issue_o(slot):
        ops = [(lambda j=j: a.bload(BF(slot, j), ov[j], SRDOW, sOo, 0)) for j in range(6)]
        ops.append(lambda: e(f"s_add_u32 {sOo}, {sOo}, 1024"))
        return ops
    def run(ops):
        for o in ops:
            n = len(a.out); o()
            if "m0" in a.out[-1]: e("s_nop 0")
    run(issue_w(0)); run(issue_o(0)); run(issue_w(1)); run(issue_o(1))
    if OPT["codepf"]: code_prefetch(a, vLane, vt[4], vt[5], "mha_oproj_kernel", 16384, sW)
    run(issue_w(2)); run(issue_o(2)); run(issue_w(3))
    e(f"s_mov_b32 {SRDOUT[0]}, s14"); e(f"s_mov_b32 {SRDOUT[1]}, s15")
    e(f"s_mov_b32 {SRDOUT[2]}, 6291456"); e(f"s_mov_b32 {SRDOUT[3]}, 0x20000")
    e(f"v_add_u32 {vRW}, {sM0}, {t0}")
    for d in range(1, 4):
        e(f"s_sub_u32 {sT0}, {sW}, {d}"); e(f"s_and_b32 {sT0}, {sT0}, 3"); e(f"s_mul_i32 {sT0}, {sT0}, {REG}")
        e(f"s_add_u32 {sT0}, {sT0}, {(d - 1) * 12288}"); e(f"v_add_u32 {ra[d-1]}, {sT0}, {t0}")
    vg, vr, vc, u0, u1 = vt[3:8]
    e(f"v_lshrrev_b32 {vg}, 4, {vLane}"); e(f"v_bfe_u32 {vr}, {vLane}, 2, 2"); e(f"v_and_b32 {vc}, 3, {vLane}")
    e(f"v_and_b32 {u1}, 1, {vg}"); e(f"v_lshl_add_u32 {u1}, {u1}, 2, {vr}")
    e(f"v_lshrrev_b32 {u0}, 1, {vg}"); e(f"v_lshl_add_u32 {u0}, {u0}, 4, {u1}"); e(f"v_lshlrev_b32 {u0}, 8, {u0}")
    e(f"v_add_u32 {u0}, {sM0}, {u0}"); e(f"v_lshl_add_u32 {u0}, {vc}, 3, {u0}"); e(f"v_lshl_add_u32 {u0}, {u1}, 5, {u0}")
    for d in range(4):
        e(f"s_add_u32 {sT0}, {sW}, {d}"); e(f"s_and_b32 {sT0}, {sT0}, 3"); e(f"s_lshl_b32 {sT0}, {sT0}, 6")
        e(f"v_xor_b32 {wa[2*d]}, {sT0}, {u0}"); e(f"v_xor_b32 {wa[2*d+1]}, 32, {wa[2*d]}")
    e(f"s_mul_i32 {sT0}, {sRB}, 196608"); e(f"s_lshl_b32 {sT1}, {sCB}, 8"); e(f"s_add_u32 {sT0}, {sT0}, {sT1}")
    e(f"s_lshl_b32 {sT1}, {sW}, 6"); e(f"s_add_u32 {sT0}, {sT0}, {sT1}")
    e(f"v_and_b32 {u1}, 15, {vLane}"); e(f"v_lshlrev_b32 {vOut}, 11, {u1}"); e(f"v_add_u32 {vOut}, {sT0}, {vOut}")
    e(f"v_and_b32 {u1}, 1, {vg}"); e(f"v_lshl_add_u32 {vOut}, {u1}, 5, {vOut}")
    e(f"v_lshrrev_b32 {u1}, 1, {vg}"); e(f"v_lshl_add_u32 {vOut}, {u1}, 4, {vOut}")
    vZ = V(168, 4)
    for i in range(4): e(f"v_mov_b32 {vZ[i]}, 0")
    e("s_nop 1")
    for k in range(12): e(f"v_mfma_f32_32x32x16_bf16 {A(16 * k, 16)}, {vZ}, {vZ}, 0")
    def rdA(slot, i): return [(lambda u=u: a.ds_read_tr(AF(i)[2 * u:2 * u + 2], wa[i], slot * 8192 + u * 2048)) for u in range(2)]
    a.wait_for(("w", 0))
    stamp(a, 1)
    for i in range(7):
        for r in rdA(0, i): r()
    e(f"s_mov_b32 {sIT}, 0")
    def body():
        for u in range(4):
            G = Gaps()
            mf = [(lambda i=i, j=j: a.mfma16(AC(i, j), AF(i), BF(u, j), AC(i, j))) for i in range(8) for j in range(6)]
            m0_ = mf[0]; mf[0] = lambda m0_=m0_: (a.wait_for(BF(u, 5), lgkm=2), m0_())
            for k, r in enumerate(rdA(u, 7)): G.mem(k, r)
            G.mem(5, lambda: a.wait_for(("w", (u + 1) % 4), lgkm=0))
            for i in range(7):
                for k, r in enumerate(rdA((u + 1) % 4, i)): G.mem(6 * i + 6 + k, r)
            ops = issue_w(u) + issue_o((u + 3) % 4)
            if u == 0: G.mem(3, lambda: (e(f"s_cmp_eq_u32 {sIT}, 7"), e(f"s_cselect_b32 {SRDWO[2]}, 0, {SRDWO[2]}")))
            if u == 1: G.mem(3, lambda: (e(f"s_cmp_eq_u32 {sIT}, 7"), e(f"s_cselect_b32 {SRDOW[2]}, 0, {SRDOW[2]}")))
            free = [g for i in range(1, 8) for g in range(6 * i + 2, 6 * i + 6)]
            for o, g in zip(ops, [free[(k * len(free)) // len(ops)] for k in range(len(ops))]): G.mem(g, o)
            G.run(mf)
    mark = len(a.out); l0, v0 = list(a.lds), list(a.vm)
    body(); sl, sv = list(a.lds), list(a.vm)
    del a.out[mark:]
    assert sl == l0 or True
    assert [x for x in sv] == [x for x in v0[len(v0) - len(sv):]] or True
    a.lds, a.vm = list(sl), list(sv)
    a.label("L2_loop")
    body()
    assert a.lds == sl and a.vm == sv
    e(f"s_add_u32 {sIT}, {sIT}, 1"); e(f"s_cmp_lt_u32 {sIT}, 8"); e("s_cbranch_scc1 L2_loop")
    a.wait(vm=0, lgkm=0)
    stamp(a, 2); stamp(a, 3); stamp(a, 4)
    e("s_nop 7")
    for d in range(1, 4):
        for j in range(6):
            for b in range(2):
                a.ds_write_b128(vRW, AC(2 * d + b, j), ((d - 1) * 12 + j * 2 + b) * 1024)
    R = lambda b, j: V(40 + 8 * j + 4 * b, 4)
    for j in range(6):
        for b in range(2):
            for i in range(4): e(f"v_accvgpr_read_b32 {R(b, j)[i]}, {AC(b, j)[i]}")
    a.wait(lgkm=0); e("s_barrier")
    T = lambda d, b, j: V(96 + 48 * d + 8 * j + 4 * b, 4)
    for j in range(6):
        for d in range(3):
            for b in range(2): a.ds_read_b128(T(d, b, j), ra[d], (j * 2 + b) * 1024)
    for j in range(6):
        for d in range(3):
            for b in range(2):
                a.wait_for(T(d, b, j))
                for i in range(2): e(f"v_pk_add_f32 {R(b, j)[2*i:2*i+2]}, {R(b, j)[2*i:2*i+2]}, {T(d, b, j)[2*i:2*i+2]}")
        D = V(10 + 4 * j, 4)
        e(f"v_cvt_pk_bf16_f32 {D[0]}, {R(0, j)[0]}, {R(0, j)[1]}"); e(f"v_cvt_pk_bf16_f32 {D[1]}, {R(0, j)[2]}, {R(0, j)[3]}")
        e(f"v_cvt_pk_bf16_f32 {D[2]}, {R(1, j)[0]}, {R(1, j)[1]}"); e(f"v_cvt_pk_bf16_f32 {D[3]}, {R(1, j)[2]}, {R(1, j)[3]}")
        e(f"s_mov_b32 {sT0}, {j * 32768}"); e("s_nop 0")
        e(f"v_permlane16_swap_b32 {D[0]}, {D[2]}"); e(f"v_permlane16_swap_b32 {D[1]}, {D[3]}")
        a.bstore(D, vOut, SRDOUT, sT0, 0, (" " + OPT["ost2"].replace("+", " ")) if OPT["ost2"] else "")
    dump_stamps(a, 6, 0x4100000, sW, vt[0], vt[1])
    if OPT["leak"]:
        lk = OPT["leak"]
        e(f"s_lshl_b32 s92, s2, 2"); e(f"s_add_u32 s92, s92, {sW}"); e("s_cmp_lg_u32 s92, 0"); e("s_cbranch_scc1 L2_end")
        e(f"v_lshlrev_b32 v2, 10, {vLane}"); e("s_mov_b32 s92, 0x4000000")
        i0, i1 = {1: (1, 2), 2: (3, 4), 3: (0, 5), 4: (5, None), 5: (None, None), 6: (0, None), 7: (0, 1), 8: (2, 3), 9: (4, 5)}[lk]
        if i0 is not None: e(f"buffer_load_dword v3, v2, s[88:91], s92 offen offset:{8*i0+4}")
        if i1 is not None: e(f"buffer_load_dword v4, v2, s[88:91], s92 offen offset:{8*i1+4}")
        e("s_waitcnt vmcnt(0)")
        if lk == 4: e("v_mov_b32 v4, s61")
        if lk == 6: e("v_mov_b32 v4, s71")
        if lk == 5: e("v_mov_b32 v4, s71"); e("v_mov_b32 v3, s61")
        e("v_sub_u32 v5, v4, v3"); e("s_mov_b32 s93, 0"); e("s_nop 1")
        for l in range(64): e(f"v_readlane_b32 s94, v5, {l}"); e("s_add_u32 s93, s93, s94")
        e("s_lshr_b32 s93, s93, 4"); e("s_min_u32 s93, s93, 100000")
        e("s_memrealtime s[98:99]"); e("s_waitcnt lgkmcnt(0)"); e("s_add_u32 s93, s93, s98")
        a.label("L2_spin")
        e("s_memrealtime s[98:99]"); e("s_waitcnt lgkmcnt(0)"); e("s_sub_u32 s94, s93, s98"); e("s_cmp_gt_i32 s94, 0"); e("s_cbranch_scc1 L2_spin")
    a.label("L2_end")
    e("s_endpgm")
    return a.text()


def kernel0():
    a = Asm(); e = a.e
    a.label("mha_pre_kernel")
    e("s_cmp_ge_u32 s2, 256"); e("s_cbranch_scc1 L0_end")
    e("s_load_dwordx16 s[4:19], s[0:1], 0"); e("s_waitcnt lgkmcnt(0)")
    e("s_mov_b32 s20, s4"); e("s_mov_b32 s21, s5"); e("s_mov_b32 s22, 6291456"); e("s_mov_b32 s23, 0x20000")
    e("s_mov_b32 s24, s10"); e("s_mov_b32 s25, s11"); e("s_mov_b32 s26, 8388608"); e("s_mov_b32 s27, 0x20000")
    e("v_lshlrev_b32 v1, 7, v0"); e("s_lshl_b32 s3, s2, 15")
    e("buffer_load_dword v2, v1, s[20:23], s3 offen"); e("buffer_load_dword v3, v1, s[24:27], s3 offen")
    e("s_waitcnt vmcnt(0)")
    a.label("L0_end"); e("s_endpgm")
    return a.text()

def main():
    launches = []
    if OPT["pre"]: launches.append("; @launch kernel=mha_pre_kernel grid=(256,1,1) block=(256,1,1) lds=0")
    if OPT["only"] in (None, "k1"): launches.append("; @launch kernel=mha_qattn_kernel grid=(256,1,1) block=(256,1,1) lds=163840")
    if OPT["only"] in (None, "k2"): launches.append("; @launch kernel=mha_oproj_kernel grid=(256,1,1) block=(256,1,1) lds=163840")
    s = HEADER + "\n".join(launches) + "\n"
    s += '.amdgcn_target "amdgcn-amd-amdhsa--gfx950"\n.text\n'
    s += ".globl mha_qattn_kernel\n.p2align 8\n.type mha_qattn_kernel,@function\n" + kernel1()
    s += ".globl mha_oproj_kernel\n.p2align 8\n.type mha_oproj_kernel,@function\n" + kernel2() + "L_text_end:\n"
    if OPT["pre"]: s += ".globl mha_pre_kernel\n.p2align 8\n.type mha_pre_kernel,@function\n" + kernel0() + kd("mha_pre_kernel", 8, 8)
    s += kd("mha_qattn_kernel", 512, 256) + kd("mha_oproj_kernel", 512, 256)
    open(sys.argv[1], "w").write(s)
main()
```

```python
class Reg:
    __slots__ = ("c", "i", "n")
    def __init__(self, c, i, n=1): self.c, self.i, self.n = c, i, n
    def __str__(self):
        return f"{self.c}{self.i}" if self.n == 1 else f"{self.c}[{self.i}:{self.i+self.n-1}]"
    def regs(self): return {(self.c, self.i + k) for k in range(self.n)}
    def __getitem__(self, k):
        if isinstance(k, slice):
            a, b = k.start or 0, k.stop
            assert b <= self.n
            return Reg(self.c, self.i + a, b - a)
        assert 0 <= k < self.n
        return Reg(self.c, self.i + k, 1)
def V(i, n=1): return Reg("v", i, n)
def A(i, n=1): return Reg("a", i, n)
def S(i, n=1): return Reg("s", i, n)

class Asm:
    def __init__(self):
        self.out = []
        self.lds = []
        self.vm = []
    def e(self, s): self.out.append(" " + s)
    def label(self, l): self.out.append(l + ":")
    def text(self): return "\n".join(self.out) + "\n"
    def _need(self, fifo, regs):
        last = -1
        for i, d in enumerate(fifo):
            if d & regs: last = i
        return last
    def wait_for(self, *ops, lgkm=None):
        regs = set()
        for o in ops:
            if isinstance(o, Reg): regs |= o.regs()
            elif isinstance(o, tuple): regs.add(o)
        w = []
        i = self._need(self.vm, regs)
        if i >= 0:
            n = len(self.vm) - 1 - i
            if n > 63: n = 63; i = len(self.vm) - 1 - 63
            w.append(f"vmcnt({n})"); self.vm = self.vm[i+1:]
        i = self._need(self.lds, regs)
        if lgkm is not None: i = max(i, len(self.lds) - 1 - lgkm)
        if i >= 0:
            n = len(self.lds) - 1 - i
            if n > 15: n = 15; i = len(self.lds) - 1 - 15
            w.append(f"lgkmcnt({n})"); self.lds = self.lds[i+1:]
        if w: self.e("s_waitcnt " + " ".join(w))
    def wait(self, vm=None, lgkm=None):
        w = []
        if vm is not None:
            w.append(f"vmcnt({vm})")
            if len(self.vm) > vm: self.vm = self.vm[len(self.vm)-vm:] if vm else []
        if lgkm is not None:
            w.append(f"lgkmcnt({lgkm})")
            if len(self.lds) > lgkm: self.lds = self.lds[len(self.lds)-lgkm:] if lgkm else []
        self.e("s_waitcnt " + " ".join(w))
    def _off(self, off): return f" offset:{off}" if off else ""
    def ds_read_b128(self, d, addr, off=0):
        assert 0 <= off < 65536 and d.n == 4
        self.e(f"ds_read_b128 {d}, {addr}{self._off(off)}"); self.lds.append(d.regs())
    def ds_read_b64(self, d, addr, off=0):
        assert 0 <= off < 65536 and d.n == 2
        self.e(f"ds_read_b64 {d}, {addr}{self._off(off)}"); self.lds.append(d.regs())
    def ds_read_tr(self, d, addr, off=0):
        assert 0 <= off < 65536 and d.n == 2
        self.e(f"ds_read_b64_tr_b16 {d}, {addr}{self._off(off)}"); self.lds.append(d.regs())
    def ds_write_b128(self, addr, s, off=0):
        assert 0 <= off < 65536 and s.n == 4
        self.wait_for(s)
        self.e(f"ds_write_b128 {addr}, {s}{self._off(off)}"); self.lds.append(set())
    def mfma(self, d, a, b, c, half=None, cinit=None, a2=None):
        self.wait_for(a, b, c if isinstance(c, Reg) else None)
        if half is not None:
            cc = cinit if cinit is not None else c
            o = 8 * half
            self.e(f"v_mfma_f32_16x16x32_bf16 {d[o:o+4]}, {a}, {b}, {cc[o:o+4]}")
            self.pending = f"v_mfma_f32_16x16x32_bf16 {d[o+4:o+8]}, {a2 if a2 is not None else a}, {b}, {cc[o+4:o+8]}"
            return
        self.e(f"v_mfma_f32_32x32x16_bf16 {d}, {a}, {b}, {c}")
    def mfma16(self, d, a, b, c):
        self.wait_for(a, b, c if isinstance(c, Reg) else None)
        self.e(f"v_mfma_f32_16x16x32_bf16 {d}, {a}, {b}, {c}")
    def dma(self, voff, srd, soff, imm=0, flags="", tag=None):
        assert 0 <= imm < 4096
        self.e(f"buffer_load_dwordx4 {voff}, {srd}, {soff} offen{self._off(imm)}{flags} lds"); self.vm.append({tag} if tag else set())
    def bload(self, d, voff, srd, soff, imm=0, flags=""):
        assert 0 <= imm < 4096
        sz = {1: "dword", 2: "dwordx2", 4: "dwordx4"}[d.n]
        self.e(f"buffer_load_{sz} {d}, {voff}, {srd}, {soff} offen{self._off(imm)}{flags}"); self.vm.append(d.regs())
    def bstore(self, s, voff, srd, soff, imm=0, flags=""):
        assert 0 <= imm < 4096
        sz = {1: "dword", 2: "dwordx2", 4: "dwordx4"}[s.n]
        self.e(f"buffer_store_{sz} {s}, {voff}, {srd}, {soff} offen{self._off(imm)}{flags}"); self.vm.append(set())

class Gaps:
    def __init__(self): self.m, self.v = {}, {}
    def mem(self, g, f): self.m.setdefault(g, []).append(f)
    def valu(self, g, f): self.v.setdefault(g, []).append(f)
    def spread(self, ops, gap_ids):
        if not ops: return
        tot = sum(c for _, c in ops); n = len(gap_ids); acc = 0.0
        for it, c in ops:
            g = min(n - 1, int((acc + c * 0.5) * n / tot))
            self.valu(gap_ids[g], it); acc += c
    def run(self, mfmas, a=None):
        for i, m in enumerate(mfmas):
            m()
            fl = self.m.pop(i, []) + self.v.pop(i, [])
            pend = getattr(a, "pending", None) if a else None
            h = (len(fl) + 1) // 2 if pend else -1
            for k, f in enumerate(fl):
                if k == h: a.e(pend); a.pending = None; pend = None
                f()
            if pend: a.e(pend); a.pending = None
        assert not self.m and not self.v, (self.m.keys(), self.v.keys())

def kd(name, vgpr, accum, sgpr=102):
    return f""".section .rodata,"a"
.p2align 6
.amdhsa_kernel {name}
  .amdhsa_next_free_vgpr {vgpr}
  .amdhsa_next_free_sgpr {sgpr}
  .amdhsa_accum_offset {accum}
  .amdhsa_group_segment_fixed_size 0
  .amdhsa_kernarg_size 64
  .amdhsa_user_sgpr_count 2
  .amdhsa_user_sgpr_kernarg_segment_ptr 1
  .amdhsa_system_sgpr_workgroup_id_x 1
.end_amdhsa_kernel
"""
```

```python
import sys, math, struct
from asmlib import *

OPT = dict(kv_nt=1, only=None, dbgQ=0, prof=0, kvskip=0, wo_touch=3, n2=0, rotH=0, p1end=26, ost="", codepf=0, k2skip=0, map2=1, pre=0, askip=0, p2nt=1, p2s=3, p2e=30, early=1, xw_touch=0, leak=0, rotW=0, krot=0, ost2="", itst=0, bwait=16, bdrop=0, qmode=0, tl=64, fuse=1, psleep=2, osc=1, bmap=0, evw=16, h16=0, dg0=20, verbose=0)
for a_ in sys.argv[2:]:
    k, v = a_.split("=")
    assert k in OPT, k
    OPT[k] = int(v) if v.lstrip("-").isdigit() else v

def f32bits(x): return struct.unpack("<I", struct.pack("<f", x))[0]
CSCALE = math.log2(math.e) / math.sqrt(128.0)
THRESH = 2.0 ** 30

HEADER = """; Kernarg layout for this problem (64 bytes, ptrs only, base s[0:1]):
"""

def stamp(a, i, lvl=1):
    if not OPT["prof"]: return
    if OPT["prof"] == 2 and lvl == 1 and i >= 2 and not getattr(a, "k2", 0): return
    if OPT["prof"] == 1 and lvl == 2: return
    a.e("s_memtime s[98:99]"); a.e("s_memrealtime s[100:101]")
    a.e("s_waitcnt lgkmcnt(0)"); a.lds = []
    if getattr(a, "k2", 0): a.e(f"v_mov_b32 v{240+2*i}, s98"); a.e(f"v_mov_b32 v{241+2*i}, s100")
    else: a.e(f"s_mov_b32 s{60+2*i}, s98"); a.e(f"s_mov_b32 s{61+2*i}, s100")
def dump_stamps(a, n, wsoff, sW, vtmp, vaddr, last=True):
    if not OPT["prof"]: return
    e = a.e
    e("s_waitcnt vmcnt(0)")
    if last: stamp(a, n - 1)
    e("s_mov_b32 s88, s18"); e("s_mov_b32 s89, s19"); e("s_mov_b32 s90, 0x10000000"); e("s_mov_b32 s91, 0x20000")
    e(f"s_lshl_b32 s92, s2, 2"); e(f"s_add_u32 s92, s92, {sW}"); e("s_lshl_b32 s92, s92, 6"); e(f"s_add_u32 s92, s92, {wsoff}")
    e(f"v_mov_b32 {vaddr}, 0")
    for i in range(2 * n):
        e(f"v_mov_b32 {vtmp}, " + (f"v{240+i}" if getattr(a, "k2", 0) else f"s{60+i}"))
        e(f"buffer_store_dword {vtmp}, {vaddr}, s[88:91], s92 offen offset:{4*i}")
    e("s_waitcnt vmcnt(0)")

def code_prefetch(a, vLane, vtmp, vdst, start_label, nbytes, sW):
    e = a.e
    e("s_getpc_b64 s[84:85]")
    a.label(f"{start_label}_pc")
    e(f"s_sub_u32 s84, s84, {start_label}_pc-{start_label}"); e("s_subb_u32 s85, s85, 0")
    e(f"s_mov_b32 s86, L_text_end-{start_label}"); e("s_mov_b32 s87, 0x20000")
    e(f"v_lshlrev_b32 {vtmp}, 7, {vLane}"); e(f"s_lshl_b32 s93, {sW}, 13")
    for blk in range((nbytes + 32767) // 32768):
        a.bload(vdst, vtmp, S(84, 4), "s93", 0)
        e("s_add_u32 s93, s93, 32768")

def kernel1():
    a = Asm(); e = a.e
    SRDX, SRDW, SRDKV, SRDO, SRDWO = S(20, 4), S(24, 4), S(28, 4), S(32, 4), S(80, 4)
    sW, sB, sHP, sQH, sHS = S(36), S(37), S(38), S(40), S(41)
    sT0, sT1, sT2, sIT = S(42), S(43), S(44), S(45)
    sXK, sWK = S(46), S(47)
    sM0X, sM0W = S(48), S(49)
    sKVO, sKVO2, sM0KV = S(50), S(51), S(52)
    sTHR, sC = S(53), S(54, 2)
    sOO, sCnt, sKV0, sPass, sP1, sKV3 = S(56), S(57), S(58), S(59), S(39), S(79)
    vLane = V(1)
    vt = [V(i) for i in range(2, 10)]
    xa = [[V(10 + 2 * s + k) for k in range(2)] for s in range(2)]
    wa = [V(14 + k) for k in range(8)]
    xv = [V(22 + k) for k in range(6)]
    wv = [V(28 + k) for k in range(4)]
    ka = [V(32 + k) for k in range(8)]
    va = [V(40 + k) for k in range(8)]
    kvv = [V(48 + k) for k in range(4)]
    vl = [V(52 + k) for k in range(6)]
    vKW, vOS, vTA, vTD, vFL = V(58), V(59), V(60), V(61), V(62)
    vZ = V(10, 4)
    ACC = lambda i, j: V(64 + 64 * (j >> 1) + 8 * i + 4 * (j & 1), 4)
    QF = lambda j, ks: V(64 + 32 * (j >> 1) + 8 * ks + 4 * (j & 1), 4)
    NEG = lambda j: V(160 + 4 * j, 4)
    SB = lambda i: V(184 + 8 * i, 8)
    PB = lambda i: V(200 + 4 * i, 4)
    TMP = lambda j: V(208 + 4 * j, 4)
    R2 = lambda j: V(232 + 2 * j, 2)
    OA = lambda db, j: A(4 * (8 * j + db), 4)
    KF = lambda n: A(192 + 4 * n, 4)
    VF = lambda db: A(224 + 4 * db, 4)
    AF = lambda i: A(128 + 4 * i, 4)
    BF = lambda st, j: A((160 if st == 0 else 224) + 4 * j, 4)
    P1R = lambda t, p: A(4 * (8 * t + p), 4)
    XBASE = 65536
    nt = " nt" if OPT["kv_nt"] else ""

    a.label("mha_qattn_kernel")
    e("s_cmp_ge_u32 s2, 256"); e("s_cbranch_scc1 L1_end")
    e("s_load_dwordx16 s[4:19], s[0:1], 0")
    e(f"v_lshrrev_b32 {vt[0]}, 6, v0"); e(f"v_and_b32 {vLane}, 63, v0")
    e("s_and_b32 s3, s2, 7"); e(f"s_lshr_b32 {sT0}, s2, 3")
    e(f"v_readfirstlane_b32 {sW}, {vt[0]}")
    e(f"s_and_b32 {sT1}, s3, 1"); e(f"s_and_b32 {sT2}, {sT0}, 7")
    if OPT["bmap"] == 0: e(f"s_lshl_b32 {sT1}, {sT1}, 3")
    if OPT["bmap"] == 1: e(f"s_lshl_b32 {sT2}, {sT2}, 1")
    if OPT["bmap"] == 2: e(f"s_xor_b32 {sT1}, {sT1}, 1"); e(f"s_lshl_b32 {sT1}, {sT1}, 3")
    e(f"s_add_u32 {sB}, {sT1}, {sT2}")
    e(f"s_lshr_b32 {sT1}, s3, 1"); e(f"s_lshl_b32 {sT1}, {sT1}, 2"); e(f"s_lshr_b32 {sHP}, {sT0}, 3")
    e(f"s_add_u32 {sHP}, {sHP}, {sT1}")
    e(f"s_and_b32 {sQH}, {sW}, 1"); e(f"s_lshr_b32 {sHS}, {sW}, 1")
    t0, t1, t2, t3, t4, t5 = vt[:6]
    e(f"v_lshrrev_b32 {t2}, 4, {vLane}")
    e(f"v_and_b32 {t1}, 15, {vLane}")
    e(f"v_lshlrev_b32 {t3}, 1, {t2}"); e(f"v_xor_b32 {t1}, {t1}, {t3}")
    e(f"s_lshl_b32 {sT0}, {sQH}, 4"); e(f"v_add_u32 {t0}, {sT0}, {t2}")
    e(f"v_lshlrev_b32 {t0}, 13, {t0}")
    e(f"s_lshl_b32 {sT0}, {sHS}, 8"); e(f"v_add_u32 {t0}, {sT0}, {t0}")
    for m in range(4):
        e(f"v_xor_b32 {t3}, {8 * (m >> 1)}, {t1}"); e(f"v_lshl_add_u32 {t3}, {t3}, 4, {t0}")
        e(f"v_add_u32 {wv[m]}, {m * 32768 - m * 1024}, {t3}")
    e(f"v_lshrrev_b32 {t0}, 3, {vLane}")
    e(f"v_and_b32 {t1}, 7, {vLane}"); e(f"v_xor_b32 {t1}, {t1}, {t2}")
    e(f"s_mul_i32 {sT0}, {sW}, 48"); e(f"v_add_u32 {t0}, {sT0}, {t0}"); e(f"v_lshlrev_b32 {t0}, 11, {t0}")
    for m in range(6):
        e(f"v_xor_b32 {t3}, {4 * (m & 1)}, {t1}"); e(f"v_lshl_add_u32 {t3}, {t3}, 4, {t0}")
        e(f"v_add_u32 {xv[m]}, {m * 16384 - (m % 3) * 1024}, {t3}")
    e(f"s_mul_i32 {sM0X}, {sW}, 6144"); e(f"s_add_u32 {sM0X}, {sM0X}, {XBASE}")
    e(f"s_lshl_b32 {sM0W}, {sW}, 12")
    e("s_waitcnt lgkmcnt(0)")
    stamp(a, 0)
    e(f"s_lshl_b32 {sT0}, {sHP}, 9")
    e(f"s_add_u32 {SRDW[0]}, s10, {sT0}"); e(f"s_addc_u32 {SRDW[1]}, s11, 0")
    e(f"s_sub_u32 {SRDW[2]}, 8388608, {sT0}"); e(f"s_mov_b32 {SRDW[3]}, 0x20000")
    e(f"s_mul_i32 {sT0}, {sB}, 393216")
    e(f"s_add_u32 {SRDX[0]}, s4, {sT0}"); e(f"s_addc_u32 {SRDX[1]}, s5, 0")
    e(f"s_mov_b32 {SRDX[2]}, 393216"); e(f"s_mov_b32 {SRDX[3]}, 0x20000")

    if OPT["askip"]: e(f"s_mov_b32 {SRDX[2]}, 0"); e(f"s_mov_b32 {SRDW[2]}, 0")
    sKR, sKRW = S(76), S(77)
    if OPT["krot"]:
        e(f"s_lshr_b32 {sT0}, s2, 3"); e(f"s_and_b32 {sT1}, {sT0}, 7"); e(f"s_lshr_b32 {sT0}, {sT0}, 3"); e(f"s_lshl_b32 {sT0}, {sT0}, 1")
        e(f"s_add_u32 {sT0}, {sT0}, {sT1}"); e(f"s_and_b32 {sT0}, {sT0}, 7")
        if OPT["krot"] == 2: e(f"s_and_b32 {sT0}, {sT0}, 1"); e(f"s_lshl_b32 {sT0}, {sT0}, 2")
        if OPT["krot"] == 3: e(f"s_and_b32 {sT0}, {sT0}, 3"); e(f"s_lshl_b32 {sT0}, {sT0}, 1")
        e(f"s_lshl_b32 {sKR}, {sT0}, 8"); e(f"s_lshl_b32 {sKRW}, {sT0}, 20")
    def dma_x(c, part):
        if OPT["krot"]:
            ops = [lambda: (e(f"s_add_u32 m0, {sM0X}, {(c % 4) * 24576 + part * 3072}"), e(f"s_add_u32 {sXK}, {sKR}, {c * 128}"), e(f"s_and_b32 {sXK}, {sXK}, 2047"))]
        else:
            ops = [lambda: (e(f"s_add_u32 m0, {sM0X}, {(c % 4) * 24576 + part * 3072}"), e(f"s_movk_i32 {sXK}, {c * 128}"))]
        for m in range(3):
            ops.append(lambda m=m: a.dma(xv[3 * part + m], SRDX, sXK, m * 1024, tag=("x", c)))
        return ops
    def dma_w(s):
        if OPT["krot"]:
            ops = [lambda: (e(f"s_add_u32 m0, {sM0W}, {(s % 4) * 16384}"), e(f"s_add_u32 {sWK}, {sKRW}, {s * 262144}"), e(f"s_and_b32 {sWK}, {sWK}, 8388607"))]
        else:
            ops = [lambda: (e(f"s_add_u32 m0, {sM0W}, {(s % 4) * 16384}"), e(f"s_mov_b32 {sWK}, {s * 262144}"))]
        for m in range(4):
            ops.append(lambda m=m: a.dma(wv[m], SRDW, sWK, m * 1024, tag=("w", s)))
        return ops
    def run(ops):
        for o in ops: o()
    run(dma_w(0)); run(dma_x(0, 0)); run(dma_x(0, 1)); run(dma_w(1)); run(dma_w(2)); run(dma_x(1, 0)); run(dma_x(1, 1)); run(dma_w(3))
    if OPT["codepf"]: code_prefetch(a, vLane, vTA, vTD, "mha_qattn_kernel", OPT["codepf"] * 1024, sW)
    run(dma_x(2, 0)); run(dma_x(2, 1)); run(dma_x(3, 0)); run(dma_x(3, 1))
    e(f"s_lshl_b32 {sT0}, {sB}, 5"); e(f"s_lshl_b32 {sT1}, {sHP}, 1"); e(f"s_add_u32 {sT0}, {sT0}, {sT1}")
    e(f"s_add_u32 {sT0}, {sT0}, {sHS}"); e(f"s_lshl_b32 {sT0}, {sT0}, 18")
    e(f"s_cmp_eq_u32 {sQH}, 0"); e(f"s_cselect_b32 {sT1}, s6, s8"); e(f"s_cselect_b32 {sT2}, s7, s9")
    e(f"s_add_u32 {SRDKV[0]}, {sT1}, {sT0}"); e(f"s_addc_u32 {SRDKV[1]}, {sT2}, 0")
    NR = 0 if OPT["kvskip"] else 262144
    e(f"s_mov_b32 {SRDKV[2]}, {NR}"); e(f"s_mov_b32 {SRDKV[3]}, 0x20000")
    e(f"s_mov_b32 {SRDO[0]}, s18"); e(f"s_mov_b32 {SRDO[1]}, s19")
    e(f"s_mov_b32 {SRDO[2]}, 25165824"); e(f"s_mov_b32 {SRDO[3]}, 0x20000")
    e(f"s_mov_b32 {sTHR}, {f32bits(THRESH):#x}")
    e(f"s_mov_b32 {sC[0]}, {f32bits(CSCALE):#x}"); e(f"s_mov_b32 {sC[1]}, {f32bits(CSCALE):#x}")
    e(f"s_mul_i32 {sKV0}, {sHS}, {OPT['rotH'] * 8192}"); e(f"s_mov_b32 {sPass}, 0")
    if OPT["rotW"] == 1:
        e(f"s_lshr_b32 {sKV0}, s2, 3"); e(f"s_lshl_b32 {sT1}, {sHS}, 2"); e(f"s_add_u32 {sKV0}, {sKV0}, {sT1}")
        e(f"s_and_b32 {sKV0}, {sKV0}, 7"); e(f"s_lshl_b32 {sKV0}, {sKV0}, 15")
    if OPT["rotW"] == 2:
        e(f"s_lshr_b32 {sKV0}, s2, 5"); e(f"s_add_u32 {sKV0}, {sKV0}, s2"); e(f"s_lshl_b32 {sT1}, {sHS}, 2"); e(f"s_add_u32 {sKV0}, {sKV0}, {sT1}")
        e(f"s_and_b32 {sKV0}, {sKV0}, 7"); e(f"s_lshl_b32 {sKV0}, {sKV0}, 15")
    if OPT["rotW"] == 3:
        e(f"s_lshr_b32 {sKV0}, s2, 3"); e(f"s_add_u32 {sKV0}, {sKV0}, s2"); e(f"s_lshr_b32 {sT1}, s2, 6"); e(f"s_add_u32 {sKV0}, {sKV0}, {sT1}")
        e(f"s_lshl_b32 {sT1}, {sHS}, 2"); e(f"s_add_u32 {sKV0}, {sKV0}, {sT1}")
        e(f"s_and_b32 {sKV0}, {sKV0}, 7"); e(f"s_lshl_b32 {sKV0}, {sKV0}, 15")
    if OPT["rotW"] == 4:
        e(f"s_mul_i32 {sKV0}, s2, 5"); e(f"s_lshr_b32 {sT1}, s2, 5"); e(f"s_add_u32 {sKV0}, {sKV0}, {sT1}")
        e(f"s_lshl_b32 {sT1}, {sHS}, 4"); e(f"s_add_u32 {sKV0}, {sKV0}, {sT1}")
        e(f"s_and_b32 {sKV0}, {sKV0}, 31"); e(f"s_lshl_b32 {sKV0}, {sKV0}, 13")
    if OPT["rotW"] == 5:
        e(f"s_lshr_b32 {sKV0}, s2, 3"); e(f"s_lshl_b32 {sT1}, s2, 2"); e(f"s_add_u32 {sKV0}, {sKV0}, {sT1}")
        e(f"s_lshl_b32 {sT1}, {sHS}, 4"); e(f"s_add_u32 {sKV0}, {sKV0}, {sT1}")
        e(f"s_and_b32 {sKV0}, {sKV0}, 31"); e(f"s_lshl_b32 {sKV0}, {sKV0}, 13")
    if OPT["rotW"] == 6:
        e(f"s_lshl_b32 {sKV0}, s2, 1"); e(f"s_add_u32 {sKV0}, {sKV0}, {sHS}"); e(f"s_mul_i32 {sKV0}, {sKV0}, 0x9e3779b1")
        e(f"s_lshr_b32 {sKV0}, {sKV0}, 27"); e(f"s_lshl_b32 {sKV0}, {sKV0}, 13")
    e(f"s_lshl_b32 {sKV3}, {sQH}, 18")
    e(f"v_lshlrev_b32 {vTA}, 7, {vLane}")
    vT2 = V(0)
    e(f"v_lshrrev_b32 {vT2}, {int(math.log2(64 // OPT['tl']))}, {vLane}"); e(f"v_lshlrev_b32 {vT2}, 7, {vT2}")
    if OPT["wo_touch"]:
        e(f"s_mov_b32 {SRDWO[0]}, s12"); e(f"s_mov_b32 {SRDWO[1]}, s13"); e(f"s_mov_b32 {SRDWO[2]}, 8388608"); e(f"s_mov_b32 {SRDWO[3]}, 0x20000")
    if OPT["xw_touch"]:
        e(f"s_lshl_b32 {sT2}, s2, 2"); e(f"s_add_u32 {sT2}, {sT2}, {sW}"); e(f"s_lshl_b32 {sT2}, {sT2}, 13")
        e("s_mov_b32 s84, s10"); e("s_mov_b32 s85, s11"); e("s_mov_b32 s86, 8388608"); e("s_mov_b32 s87, 0x20000")
        a.bload(vTD, vTA, S(84, 4), sT2, 0)
        e("s_mov_b32 s84, s4"); e("s_mov_b32 s85, s5"); e("s_mov_b32 s86, 6291456")
        a.bload(vTD, vTA, S(84, 4), sT2, 0)
    vh, vg, vr, vc1, vc0, vql, u0, u1 = vt
    e(f"v_lshrrev_b32 {vg}, 4, {vLane}"); e(f"v_bfe_u32 {vr}, {vLane}, 2, 2"); e(f"v_and_b32 {vc0}, 3, {vLane}")
    e(f"v_lshl_add_u32 {u0}, {vg}, 3, {vr}"); e(f"v_lshlrev_b32 {u0}, 8, {u0}")
    e(f"s_lshl_b32 {sT0}, {sHS}, 13"); e(f"v_add_u32 {u0}, {sT0}, {u0}")
    e(f"v_lshl_add_u32 {u0}, {vc0}, 3, {u0}"); e(f"v_lshl_add_u32 {u0}, {vr}, 5, {u0}")
    e(f"v_and_b32 {u1}, 1, {vg}"); e(f"v_lshl_add_u32 {wa[0]}, {u1}, 7, {u0}")
    for i in range(1, 8): e(f"v_xor_b32 {wa[i]}, {32 * i}, {wa[0]}")
    e(f"v_and_b32 {vql}, 15, {vLane}")
    e(f"s_mul_i32 {sT1}, {sQH}, 12288"); e(f"s_add_u32 {sT1}, {sT1}, {XBASE}")
    e(f"v_lshlrev_b32 {u0}, 7, {vql}"); e(f"v_add_u32 {u0}, {sT1}, {u0}")
    e(f"v_lshrrev_b32 {u1}, 1, {vql}"); e(f"v_xor_b32 {u1}, {u1}, {vg}")
    e(f"v_lshl_add_u32 {xa[0][0]}, {u1}, 4, {u0}"); e(f"v_xor_b32 {xa[0][1]}, 64, {xa[0][0]}")
    for k in range(2): e(f"v_add_u32 {xa[1][k]}, 49152, {xa[0][k]}")
    e(f"v_lshlrev_b32 {vh}, {sQH}, {vg}")
    e(f"v_xor_b32 {vh}, {vh}, {vql}"); e(f"v_lshlrev_b32 {u0}, 8, {vg}")
    e(f"v_lshl_add_u32 {kvv[0]}, {vh}, 4, {u0}")
    e(f"s_cmp_eq_u32 {sQH}, 0")
    for j in range(1, 4):
        e(f"s_cselect_b32 {sT1}, {4 * j}, {8 * (j & 1)}"); e(f"s_mul_i32 {sT1}, {sT1}, 16"); e(f"v_xor_b32 {kvv[j]}, {sT1}, {kvv[0]}")

    def late_setup():
        ops = []
        E = lambda s: ops.append(lambda: e(s))
        E(f"v_lshrrev_b32 {vg}, 4, {vLane}"); E(f"v_bfe_u32 {vr}, {vLane}, 2, 2"); E(f"v_and_b32 {vc0}, 3, {vLane}")
        E(f"v_and_b32 {vql}, 15, {vLane}"); E(f"v_lshrrev_b32 {vc1}, 2, {vLane}")
        E(f"s_lshl_b32 {sT0}, {sHS}, 16"); E(f"s_add_u32 {sT1}, {sT0}, 8192")
        E(f"v_lshlrev_b32 {u0}, 8, {vc1}"); E(f"v_add_u32 {u0}, {sT1}, {u0}"); E(f"v_lshl_add_u32 {u0}, {vc0}, 3, {u0}")
        E(f"v_and_b32 {u1}, 7, {vc1}"); E(f"v_lshl_add_u32 {va[0]}, {u1}, 5, {u0}")
        for db in range(1, 8): E(f"v_xor_b32 {va[db]}, {32 * db}, {va[0]}")
        E(f"v_lshlrev_b32 {u0}, 8, {vql}"); E(f"v_add_u32 {u0}, {sT0}, {u0}")
        E(f"v_and_b32 {u1}, 1, {vg}"); E(f"v_lshl_add_u32 {u0}, {u1}, 3, {u0}")
        E(f"v_lshrrev_b32 {u1}, 1, {vg}"); E(f"v_xor_b32 {u1}, {u1}, {vql}"); E(f"v_lshl_add_u32 {ka[0]}, {u1}, 4, {u0}")
        for s in range(1, 8): E(f"v_xor_b32 {ka[s]}, {32 * s}, {ka[0]}")
        E(f"s_lshl_b32 {sM0KV}, {sQH}, 13"); E(f"s_add_u32 {sM0KV}, {sM0KV}, {sT0}")
        E(f"v_lshlrev_b32 {vOS}, 4, {vLane}"); E(f"v_add_u32 {vKW}, {sM0KV}, {vOS}")
        E(f"s_lshl_b32 {sOO}, {sB}, 1"); E(f"s_add_u32 {sOO}, {sOO}, {sQH}"); E(f"s_mul_i32 {sOO}, {sOO}, {6 * 131072}")
        E(f"s_lshl_b32 {sT1}, {sHP}, 1"); E(f"s_add_u32 {sT1}, {sT1}, {sHS}"); E(f"s_lshl_b32 {sT1}, {sT1}, 12"); E(f"s_add_u32 {sOO}, {sOO}, {sT1}")
        E(f"s_lshl_b32 {sT1}, {sW}, 2"); E(f"s_add_u32 {sT1}, {sT1}, 163776"); E(f"v_mov_b32 {vFL}, {sT1}")
        for q in range(6): E(f"v_mov_b32 {vl[q]}, 0")
        return ops
    def rdK(n, pi, slot): return lambda: a.ds_read_b64(KF(n)[2 * pi:2 * pi + 2], ka[2 * (n >> 1) + pi], slot * 16384 + (n & 1) * 4096)
    def rdV(db, uu, slot): return lambda: a.ds_read_tr(VF(db)[2 * uu:2 * uu + 2], va[db], slot * 16384 + uu * 4096)

    def rdA(s, i): return [(lambda u=u: a.ds_read_tr(AF(i)[2 * u:2 * u + 2], wa[i], (s % 4) * 16384 + u * 1024)) for u in range(2)]
    def rdB(s, j):
        xs = (s // 2) % 4
        return lambda: a.ds_read_b128(BF(s % 2, j), xa[xs // 2][s % 2], (xs % 2) * 24576 + j * 2048)
    p1list = [(t, p) for t in range(4) for p in range(8)]
    def p1_ops(k):
        t, p = p1list[k]
        ops = []
        if p % 4 == 0:
            ops.append(lambda: (e(f"s_add_u32 {sP1}, {sKV0}, {t * 8192 + (p // 4) * 4096}"), e(f"s_and_b32 {sP1}, {sP1}, 262143"),
                                e(f"s_add_u32 {sP1}, {sP1}, {sKV3}") if t == 3 else None))
        ops.append(lambda: a.bload(P1R(t, p), kvv[p % 4], SRDKV, sP1, (p % 4) * 1024, nt))
        return ops
    p1_at = {}
    for k in range(32): p1_at.setdefault(k * OPT["p1end"] // 32, []).append(k)
    p2_at = {}
    for k in range(OPT["n2"]): p2_at.setdefault(OPT["p2s"] + (k * (OPT["p2e"] - OPT["p2s"])) // OPT["n2"], []).append(k)
    conv = []
    for J in range(3):
        for ks in range(4):
            for jj in range(2):
                j = 2 * J + jj
                X, Y, D = ACC(2 * ks, j), ACC(2 * ks + 1, j), QF(j, ks)
                for R in (X, Y):
                    for k in range(4): conv.append((J, lambda r=R[k]: e(f"v_mul_f32 {r}, {sC[0]}, {r}")))
                conv.append((J, lambda X=X, D=D: e(f"v_cvt_pk_bf16_f32 {D[0]}, {X[0]}, {X[1]}")))
                conv.append((J, lambda X=X, D=D: e(f"v_cvt_pk_bf16_f32 {D[1]}, {X[2]}, {X[3]}")))
                conv.append((J, lambda Y=Y, D=D: e(f"v_cvt_pk_bf16_f32 {D[2]}, {Y[0]}, {Y[1]}")))
                conv.append((J, lambda Y=Y, D=D: e(f"v_cvt_pk_bf16_f32 {D[3]}, {Y[2]}, {Y[3]}")))

    a.wait_for(("w", 0), ("x", 0)); e("s_barrier")
    stamp(a, 1)
    for j in range(6):
        rdB(0, j)()
        for r in rdA(0, j): r()
    for r in rdA(0, 6): r()
    late = late_setup()
    free = [g for i in range(3, 8) for g in range(6 * i + 2, 6 * i + 6)]
    for s in range(32):
        if s in (8, 16, 24): stamp(a, 1 + s // 8, 2)
        G = Gaps()
        last = s == 31
        order = [(i, j) for j in range(6) for i in range(8)] if last else [(i, j) for i in range(8) for j in range(6)]
        mf = [(lambda i=i, j=j: a.mfma16(ACC(i, j), AF(i), BF(s % 2, j), ACC(i, j) if s else 0)) for i, j in order]
        if s:
            m0_ = mf[0]; mf[0] = lambda m0_=m0_: (a.wait_for(lgkm=2), m0_())
        for u, r in enumerate(rdA(s, 7)): G.mem(u, r)
        def bar(s=s):
            if s < 31: a.wait_for(("w", s + 1), ("x", (s + 1) // 2), lgkm=0)
            else: a.wait_for(lgkm=0)
            e("s_barrier")
        G.mem(7, bar)
        if not last:
            for u, r in enumerate(rdA(s + 1, 0)): G.mem(8 + u, r)
            for i in range(1, 7):
                for u, r in enumerate(rdA(s + 1, i)): G.mem(6 * i + 6 + u, r)
            for j, g in enumerate([10, 11, 14, 15, 16, 17]): G.mem(g, rdB(s + 1, j))
        ops = []
        if s + 4 < 32: ops += dma_w(s + 4)
        c = (s - 1) // 2 + 4
        if s >= 1 and c < 16: ops += dma_x(c, (s - 1) % 2)
        for k in p1_at.get(s, []): ops += p1_ops(k)
        for k in p2_at.get(s, []):
            ops.append(lambda k=k: (e(f"s_add_u32 {sT2}, {sKV0}, {32768 + k * OPT['tl'] * 128}"), e(f"s_and_b32 {sT2}, {sT2}, 262143")))
            ops.append(lambda: a.bload(vTD, vT2, SRDKV, sT2, 0, " nt" if OPT["p2nt"] else ""))
        if s == 2 and OPT["wo_touch"] == 1:
            ops.append(lambda: (e(f"s_lshl_b32 {sT2}, s2, 2"), e(f"s_add_u32 {sT2}, {sT2}, {sW}"), e(f"s_lshl_b32 {sT2}, {sT2}, 13")))
            ops.append(lambda: a.bload(vTD, vTA, SRDWO, sT2, 0))
        if s >= 28:
            t = s - 28
            ops += [(lambda p=p: a.ds_write_b128(vKW, P1R(t, p), t * 16384 + p * 1024)) for p in range(8)]
        if s >= 30:
            ops += [rdK(n, pi, 0) for n in range(4 * (s - 30), 4 * (s - 30) + 4) for pi in range(2)]
        if last:
            for i in range(4): G.valu(4 + i, lambda i=i: e(f"v_mov_b32 {vZ[i]}, 0"))
        fr = free if not last else list(range(9, 29))
        assert len(ops) <= len(fr), (s, len(ops))
        for o, g in zip(ops, [fr[(k * len(fr)) // len(ops)] for k in range(len(ops))]): G.mem(g, o)
        if s == 0:
            for k, o in enumerate(late): G.valu(8 + k // 2, o)
        if last:
            g = 0
            n = 0
            while conv and g < 48:
                J = conv[0][0]
                g = max(g, 16 * J + 18)
                if g >= 48: break
                G.valu(g, conv.pop(0)[1]); n += 1
                if n % 2 == 0: g += 1
        G.run(mf)
    stamp(a, 2); stamp(a, 5, 2)
    e("s_nop 3")
    def xlane(op, m, tmp):
        return [lambda: e(f"v_mov_b32 {tmp}, {m}"), lambda: e("s_nop 1"), lambda: e(f"v_permlane16_swap_b32 {m}, {tmp}"), lambda: e("s_nop 1"),
                lambda: e(f"{op} {m}, {m}, {tmp}"),
                lambda: e(f"v_mov_b32 {tmp}, {m}"), lambda: e("s_nop 1"), lambda: e(f"v_permlane32_swap_b32 {m}, {tmp}"), lambda: e("s_nop 1"),
                lambda: e(f"{op} {m}, {m}, {tmp}")]
    def rowmax_ops(j, m, tmp):
        X, Y = NEG(j), TMP(j)
        return [lambda: e(f"v_max3_f32 {m}, {X[0]}, {X[1]}, {X[2]}"), lambda: e(f"v_max3_f32 {m}, {m}, {X[3]}, {Y[0]}"),
                lambda: e(f"v_max3_f32 {m}, {m}, {Y[1]}, {Y[2]}"), lambda: e(f"v_max_f32 {m}, {m}, {Y[3]}")] + xlane("v_max_f32", m, tmp)
    def negfill_ops(j, m):
        return [(lambda i=i: e(f"v_sub_f32 {NEG(j)[i]}, 0, {m}")) for i in range(4)]
    a.wait_for(lgkm=0)
    zm = [(lambda k=k: a.e(f"v_mfma_f32_32x32x16_bf16 {A(16 * k, 16)}, {vZ}, {vZ}, 0")) for k in list(range(12)) + [14, 15]]
    G = Gaps()
    G.spread([(o, 4) for _, o in conv], list(range(14))); conv = []
    G.run(zm)
    e("s_nop 1")
    sm = [(lambda j=j, n=n: a.mfma16(TMP(j) if n & 1 else NEG(j), KF(n), QF(j, n >> 1), (TMP(j) if n & 1 else NEG(j)) if n > 1 else 0))
          for j in range(6) for n in range(8)]

    NS = 96
    used = [0] * NS
    memg = {}
    def M(g, it, cost=4): memg.setdefault(g % NS, []).append(it); used[g % NS] += cost
    M(5, ("kill",), 12); M(6, ("m0", 0)); M(7, ("bar",), 8)
    for db in range(8): M(8 + db, ("v", db, 0)); M(12 + db, ("v", db, 1))
    for n in range(8): M(80 + n, ("k", n, 0)); M(84 + n, ("k", n, 1))
    dg = OPT["dg0"]
    for k in range(4): M(dg + 2 * k, ("dma", 0, k)); M(dg + 10 + 2 * k, ("dma", 1, k))
    M(dg + 8, ("m0", 1)); M(dg + 19, ("adv",), 12)
    for g in (95, 3, 23, 27): used[g] += 4
    valg = {}
    def place(j, seq, lo, hi):
        for L in range(8, 41, 4):
            u2 = list(used); g = lo; out = []
            for op, c, mn in seq:
                g = max(g, mn)
                while g <= hi and u2[g % NS] + c > L: g += 1
                if g > hi: break
                u2[g % NS] += c; out.append((op, g))
            else:
                used[:] = u2
                for op, g in out: valg.setdefault(g, []).append((j, op))
                return dict(out)
        raise Exception("no fit")
    pos = {}
    for j in range(6):
        b = 16 * j
        crit = [("e0", 8, b + 8), ("e1", 8, 0), ("e2", 8, 0), ("c0", 4, 0), ("e3", 8, 0), ("e4", 8, b + 10), ("c1", 4, 0), ("e5", 8, 0), ("e6", 8, 0),
                ("c2", 4, 0), ("e7", 8, 0), ("a0", 4, 0), ("c3", 4, 0)]
        pos[j] = place(j, crit, b + 8, b + 22)
    for j in range(6):
        b = 16 * j
        place(j, [(f"a{k}", 4, pos[j][f"e{k}"] + 1) for k in range(1, 8)], b + 9, b + 30)
    if OPT["verbose"]: print("gap load", used, "over", sum(max(0, x - 12) for x in used))
    def sm_op(j, op):
        Sx, Px, k = SB(j % 2), PB(j % 2), int(op[1])
        if op[0] == "e": e(f"v_exp_f32 {Sx[k]}, {Sx[k]}")
        if op[0] == "a": e(f"v_add_f32 {vl[j]}, {vl[j]}, {Sx[k]}")
        if op[0] == "c": e(f"v_cvt_pk_bf16_f32 {Px[k]}, {Sx[2 * k]}, {Sx[2 * k + 1]}")
    tail = [(g, j, op) for g in sorted(valg) if g >= NS for j, op in valg[g]]
    tail_e = {(j, int(op[1])) for g, j, op in tail if op[0] == "e"}
    init = [(lambda j=j, k=k: e(f"v_mov_b32 {SB(j % 2)[k]}, {'0xf149f2ca' if (j, k) in tail_e else 0}")) for j in (4, 5) for k in range(8)]
    init += [(lambda k=k: e(f"v_mov_b32 {PB(1)[k]}, 0")) for k in range(4)]

    G = Gaps()
    G.spread([(o, 4) for o in init], list(range(0, 9)))
    for j in range(5):
        G.spread([(o, 4) for o in rowmax_ops(j, vt[0], vt[1]) + negfill_ops(j, vt[0])], list(range(8 * j + 9, min(48, 8 * j + 17))))
    def stream_init():
        e(f"s_sub_u32 {sCnt}, 0, {sQH}")
        e(f"s_lshl_b32 {sT0}, {sQH}, 13"); e(f"s_add_u32 {sKVO}, {sKV0}, 32768"); e(f"s_sub_u32 {sKVO}, {sKVO}, {sT0}"); e(f"s_and_b32 {sKVO}, {sKVO}, 262143")
        e(f"s_add_u32 {sKVO2}, {sKVO}, 4096"); e(f"s_mov_b32 {sIT}, 0")
    G.mem(0, stream_init)
    if OPT["wo_touch"] == 3:
        G.mem(1, lambda: (e(f"s_lshl_b32 {sT2}, s2, 2"), e(f"s_add_u32 {sT2}, {sT2}, {sW}"), e(f"s_lshl_b32 {sT2}, {sT2}, 13")))
        G.mem(2, lambda: a.bload(vTD, vTA, SRDWO, sT2, 0))
    sSL = [S(94 + u) for u in range(4)]
    for u in range(4):
        G.mem(3 + u, lambda u=u: (e(f"s_sub_u32 {sT0}, {u}, {sQH}"), e(f"s_and_b32 {sT0}, {sT0}, 3"), e(f"s_lshl_b32 {sT0}, {sT0}, 14"), e(f"s_add_u32 {sSL[u]}, {sM0KV}, {sT0}")))
    G.run(sm)
    e("s_nop 7")
    for o in rowmax_ops(5, vt[0], vt[1]) + negfill_ops(5, vt[0]): o()
    e("s_nop 1")

    def dma_kv(slot):
        ops = []
        for half in range(2):
            ops.append(lambda half=half: (e(f"s_add_u32 m0, {slot}, {half * 4096}"), e("s_nop 0")))
            for j in range(4):
                ops.append(lambda j=j, half=half: a.dma(kvv[j], SRDKV, sKVO2 if half else sKVO, j * 1024, nt))
        ops.append(lambda: (e(f"s_add_u32 {sKVO}, {sKVO}, 8192"), e(f"s_and_b32 {sKVO}, {sKVO}, 262143"), e(f"s_add_u32 {sKVO2}, {sKVO}, 4096")))
        return ops
    PVg = lambda j: [(lambda db=db: a.mfma16(OA(db, j), VF(db), PB(j % 2), OA(db, j))) for db in range(8)]
    def tileB(u):
        mf = []
        for j in range(6):
            for n in range(8):
                D = SB(j % 2)[4 * (n & 1):4 * (n & 1) + 4]
                mf.append(lambda n=n, D=D, j=j: a.mfma16(D, KF(n), QF(j, n >> 1), D if n > 1 else NEG(j)))
            mf += PVg((j + 5) % 6)
        for idx, regs in ((0, [KF(n) for n in range(4)]), (4, [KF(n) for n in range(8)]), (24, [VF(d) for d in range(4)]), (28, [VF(d) for d in range(8)])):
            mf[idx] = (lambda f=mf[idx], regs=regs: (a.wait_for(*regs), f()))
        for g in range(NS):
            mf[g]()
            for it in memg.get(g, []):
                k = it[0]
                if k == "kill": e(f"s_cmp_lt_i32 {sCnt}, 28"); e(f"s_cselect_b32 {SRDKV[2]}, {NR}, 0"); e(f"s_add_u32 {sCnt}, {sCnt}, 1")
                if k == "m0": e(f"s_add_u32 m0, {sSL[u]}, {it[1] * 4096}")
                if k == "bar": a.wait(vm=OPT["bwait"]); e("s_barrier")
                if k == "v": rdV(it[1], it[2], u)()
                if k == "k": rdK(it[1], it[2], (u + 1) % 4)()
                if k == "dma": a.dma(kvv[it[2]], SRDKV, sKVO2 if it[1] else sKVO, it[2] * 1024, nt)
                if k == "adv": e(f"s_add_u32 {sKVO}, {sKVO}, 8192"); e(f"s_and_b32 {sKVO}, {sKVO}, 262143"); e(f"s_add_u32 {sKVO2}, {sKVO}, 4096")
            for j, op in valg.get(g + NS, []) + valg.get(g, []): sm_op(j, op)
    stamp(a, 3)
    def bodyB():
        for u in range(4): tileB(u)
    mark = len(a.out)
    bodyB()
    steady = list(a.lds)
    del a.out[mark:]
    a.lds = list(steady)
    a.label("L1_loopB")
    bodyB()
    assert a.lds == steady
    e(f"s_add_u32 {sIT}, {sIT}, 1"); e(f"s_cmp_lt_u32 {sIT}, 8"); e("s_cbranch_scc1 L1_loopB")
    stamp(a, 4)
    for g, j, op in tail: sm_op(j, op)
    e("s_nop 1")
    def lsum_ops(j):
        sp = "s[98:99]" if j == 0 else "s[100:101]"
        ops = xlane("v_add_f32", vl[j], vt[1]) + [lambda: e(f"v_cmp_ngt_f32 {sp}, {sTHR}, {vl[j]}"), lambda: e(f"v_rcp_f32 {R2(j)[0]}, {vl[j]}"),
                                                  lambda: e(f"v_rcp_f32 {R2(j)[1]}, {vl[j]}")]
        if j: ops.append(lambda: e("s_or_b64 s[98:99], s[98:99], s[100:101]"))
        return ops
    G = Gaps()
    G.spread([(o, 4) for j in range(2) for o in lsum_ops(j)], list(range(0, 8)))
    G.run(PVg(5))
    for j in range(2, 6):
        for o in lsum_ops(j): o()
    e("s_cmp_lg_u64 s[98:99], 0"); e(f"s_cselect_b32 {sT0}, 1, 0"); e(f"s_andn2_b32 {sT0}, {sT0}, {sPass}")
    e(f"v_mov_b32 {vt[1]}, {sT0}"); e(f"ds_write_b32 {vFL}, {vt[1]}"); a.lds.append(set())
    ostf = (" " + OPT["ost"].replace("+", " ")) if OPT["ost"] else ""
    K2 = kernel2(a) if OPT["fuse"] else None
    fill = []
    cnt = [0]
    def ev(t):
        e(t); cnt[0] += 1
        if fill and cnt[0] % 3 == 0: fill.pop(0)()
    for j in range(6):
        if j == 1:
            a.wait(lgkm=0, vm=4); e("s_barrier")
            e(f"v_and_b32 {vt[0]}, 0xfffffff0, {vFL}"); a.ds_read_b128(vZ, vt[0], 0)
        if j == 2:
            a.wait(lgkm=0)
            e(f"v_or3_b32 {vt[0]}, {vZ[0]}, {vZ[1]}, {vZ[2]}"); e(f"v_or_b32 {vt[0]}, {vt[0]}, {vZ[3]}"); e("s_nop 0")
            e(f"v_readfirstlane_b32 {sT1}, {vt[0]}"); e(f"s_cmp_lg_u32 {sT1}, 0"); e("s_cbranch_scc1 L1_fallback")
            if K2: next(K2); fill = next(K2)
        e(f"s_add_u32 {sT0}, {sOO}, {j * 131072}")
        for m in range(4):
            T = V(208 + 8 * (m % 2), 8); D = V(224 + 4 * (m % 2), 4)
            for i in range(8): ev(f"v_accvgpr_read_b32 {T[i]}, {OA(2 * m + (i >> 2), j)[i & 3]}")
            for i in range(4): ev(f"v_pk_mul_f32 {T[2*i:2*i+2]}, {T[2*i:2*i+2]}, {R2(j)}")
            for i in range(4): ev(f"v_cvt_pk_bf16_f32 {D[i]}, {T[2*i]}, {T[2*i+1]}")
            a.bstore(D, vOS, SRDO, sT0, m * 1024, ostf)
    assert not fill
    if K2:
        stamp(a, 5)
        K2.send((sB, lambda: dump_stamps(a, 6, 0x4000000, sW, vt[0], vt[1], last=False)))
    else:
        dump_stamps(a, 6, 0x4000000, sW, vt[0], vt[1])
    a.label("L1_end"); e("s_endpgm")
    a.label("L1_fallback")
    a.lds = []; a.vm = []
    e("s_waitcnt vmcnt(0) lgkmcnt(0)"); e("s_barrier")
    e(f"s_mov_b32 {sPass}, 1"); e(f"s_mov_b32 {SRDKV[2]}, {NR}")
    for q in range(6): e(f"v_mov_b32 {vl[q]}, 0xff800000")
    e(f"s_mov_b32 {sKVO}, 0"); e(f"s_mov_b32 {sKVO2}, 4096"); e(f"s_mov_b32 {sIT}, 0")
    a.label("L1_fb_loop")
    for o in dma_kv(sM0KV): o()
    e("s_waitcnt vmcnt(0)"); e("s_barrier")
    for n in range(8):
        for pi in range(2): rdK(n, pi, 0)()
    for f in sm: f()
    e("s_nop 15")
    for j in range(6):
        for o in rowmax_ops(j, vt[0], vt[1]): o()
        e(f"v_max_f32 {vl[j]}, {vl[j]}, {vt[0]}")
    e("s_barrier")
    e(f"s_add_u32 {sIT}, {sIT}, 1"); e(f"s_cmp_lt_u32 {sIT}, 32"); e("s_cbranch_scc1 L1_fb_loop")
    e(f"s_mov_b32 {sKVO}, {sKV0}"); e(f"s_add_u32 {sKVO2}, {sKVO}, 4096")
    for t in range(4):
        e(f"s_add_u32 {sT0}, {sM0KV}, {t * 16384}")
        for o in dma_kv(sT0): o()
    for j in range(6):
        for o in negfill_ops(j, vl[j]): o()
        e(f"v_mov_b32 {vl[j]}, 0")
    for i in range(4): e(f"v_mov_b32 {vZ[i]}, 0")
    for o in init: o()
    e("s_nop 1")
    for f in zm: f()
    stream_init()
    e("s_waitcnt vmcnt(0)"); e("s_barrier")
    for n in range(8):
        for pi in range(2): rdK(n, pi, 0)()
    e("s_waitcnt lgkmcnt(0)"); e("s_nop 15")
    e("s_branch L1_loopB")
    return a.text()

def kernel2(a):
    fused = a is not None
    if not fused: a = Asm()
    e = a.e
    SRDWO, SRDOW, SRDOUT, SRDDBG = S(20, 4), S(24, 4), S(28, 4), S(80, 4)
    sW, sRB, sCB, sT0, sT1, sT2, sIT = S(36), S(46), S(47), S(48), S(49), S(50), S(45)
    sWOo, sOo, sM0 = S(76), S(77), S(78)
    vLane = V(1); vt = [V(i) for i in range(2, 10)]
    wa = [V(10 + k) for k in range(8)]
    wv = [V(18 + k) for k in range(8)]
    ov = [V(26 + k) for k in range(6)]
    ra = [V(32 + k) for k in range(3)]
    vRW, vOut = V(35), V(36)
    AC = lambda i, j: A(4 * (j * 8 + i), 4)
    AF = lambda i: V(40 + 4 * i, 4)
    BF = lambda sl, j: V(72 + 24 * sl + 4 * j, 4)
    REG = 36864
    osc = " sc1" if (fused and OPT["osc"]) else ""
    if not fused:
        a.k2 = 1
        a.label("mha_oproj_kernel")
        e("s_cmp_ge_u32 s2, 256"); e("s_cbranch_scc1 L2_end")
        e("s_load_dwordx16 s[4:19], s[0:1], 0")
        e(f"v_lshrrev_b32 {vt[0]}, 6, v0"); e(f"v_and_b32 {vLane}, 63, v0")
        e(f"v_readfirstlane_b32 {sW}, {vt[0]}")
    e(f"s_and_b32 {sT2}, s2, 7"); e(f"s_lshr_b32 {sT0}, s2, 3")
    if OPT["map2"] == 0:
        e(f"s_lshr_b32 {sT1}, {sT2}, 1"); e(f"s_lshl_b32 {sT1}, {sT1}, 3"); e(f"s_and_b32 {sRB}, {sT0}, 7")
        e(f"s_add_u32 {sRB}, {sT1}, {sRB}")
        e(f"s_and_b32 {sT1}, {sT2}, 1"); e(f"s_lshl_b32 {sT1}, {sT1}, 2"); e(f"s_lshr_b32 {sCB}, {sT0}, 3"); e(f"s_add_u32 {sCB}, {sCB}, {sT1}")
    else:
        e(f"s_lshl_b32 {sT1}, {sT2}, 2"); e(f"s_and_b32 {sT2}, {sT0}, 3"); e(f"s_add_u32 {sRB}, {sT1}, {sT2}")
        e(f"s_lshr_b32 {sCB}, {sT0}, 2")
    t0, t1, t2, t3 = wa[:4]
    e(f"v_lshrrev_b32 {t2}, 4, {vLane}"); e(f"v_and_b32 {t1}, 15, {vLane}")
    e(f"v_lshlrev_b32 {t3}, 1, {t2}"); e(f"v_xor_b32 {t1}, {t1}, {t3}")
    e(f"v_lshlrev_b32 {t0}, 11, {t2}"); e(f"v_lshl_add_u32 {wv[0]}, {t1}, 4, {t0}")
    e(f"v_xor_b32 {t1}, 128, {wv[0]}")
    for m in range(1, 8): e(f"v_add_u32 {wv[m]}, {m * 8192 - (m % 4) * 1024}, {t1 if m & 1 else wv[0]}")
    e(f"s_mul_i32 {sM0}, {sW}, {REG}")
    e(f"s_lshl_b32 {sWOo}, {sW}, 21"); e(f"s_lshl_b32 {sOo}, {sW}, 15")
    def ovs():
        e(f"s_mul_i32 {sT0}, {sRB}, 786432"); e(f"v_lshlrev_b32 {vt[0]}, 4, {vLane}")
        e(f"v_add_u32 {ov[0]}, {sT0}, {vt[0]}")
        for j in range(1, 6): e(f"v_add_u32 {ov[j]}, {j * 131072}, {ov[0]}")
    if not fused:
        ovs()
        e("s_waitcnt lgkmcnt(0)")
        stamp(a, 0)
    e(f"s_lshl_b32 {sT0}, {sCB}, 8")
    e(f"s_add_u32 {SRDWO[0]}, s12, {sT0}"); e(f"s_addc_u32 {SRDWO[1]}, s13, 0")
    e(f"s_sub_u32 {SRDWO[2]}, 8388608, {sT0}"); e(f"s_mov_b32 {SRDWO[3]}, 0x20000")
    e(f"s_mov_b32 {SRDOW[0]}, s18"); e(f"s_mov_b32 {SRDOW[1]}, s19")
    e(f"s_mov_b32 {SRDOW[2]}, 25165824"); e(f"s_mov_b32 {SRDOW[3]}, 0x20000")
    if OPT["k2skip"] & 1: e(f"s_mov_b32 {SRDWO[2]}, 0")
    if OPT["k2skip"] & 2: e(f"s_mov_b32 {SRDOW[2]}, 0")
    def issue_w(slot):
        ops = []
        for h in range(2):
            ops.append(lambda h=h: e(f"s_add_u32 m0, {sM0}, {slot * 8192 + h * 4096}"))
            for m in range(4): ops.append(lambda m=m, h=h: a.dma(wv[4 * h + m], SRDWO, sWOo, m * 1024, tag=("w", slot)))
        ops.append(lambda: e(f"s_add_u32 {sWOo}, {sWOo}, 65536"))
        return ops
    def issue_o(slot):
        ops = [(lambda j=j: a.bload(BF(slot, j), ov[j], SRDOW, sOo, 0, osc)) for j in range(6)]
        ops.append(lambda: e(f"s_add_u32 {sOo}, {sOo}, 1024"))
        return ops
    def run(ops):
        for o in ops:
            n = len(a.out); o()
            if "m0" in a.out[-1]: e("s_nop 0")
    if fused:
        yield None
        sB1, dump1 = yield issue_w(0) + issue_w(1) + issue_w(2) + issue_w(3)
        ovs()
    else:
        run(issue_w(0)); run(issue_o(0)); run(issue_w(1)); run(issue_o(1))
        if OPT["codepf"]: code_prefetch(a, vLane, vt[4], vt[5], "mha_oproj_kernel", 16384, sW)
        run(issue_w(2)); run(issue_o(2)); run(issue_w(3))
    t0 = vt[0]
    e(f"s_mov_b32 {SRDOUT[0]}, s14"); e(f"s_mov_b32 {SRDOUT[1]}, s15")
    e(f"s_mov_b32 {SRDOUT[2]}, 6291456"); e(f"s_mov_b32 {SRDOUT[3]}, 0x20000")
    e(f"v_add_u32 {vRW}, {sM0}, {t0}")
    for d in range(1, 4):
        e(f"s_sub_u32 {sT0}, {sW}, {d}"); e(f"s_and_b32 {sT0}, {sT0}, 3"); e(f"s_mul_i32 {sT0}, {sT0}, {REG}")
        e(f"s_add_u32 {sT0}, {sT0}, {(d - 1) * 12288}"); e(f"v_add_u32 {ra[d-1]}, {sT0}, {t0}")
    vg, vr, vc, u0, u1 = vt[3:8]
    e(f"v_lshrrev_b32 {vg}, 4, {vLane}"); e(f"v_lshrrev_b32 {vr}, 2, {vLane}"); e(f"v_and_b32 {vc}, 3, {vLane}")
    e(f"v_and_b32 {u1}, 7, {vr}"); e(f"v_lshlrev_b32 {u0}, 8, {vr}")
    e(f"v_add_u32 {u0}, {sM0}, {u0}"); e(f"v_lshl_add_u32 {u0}, {vc}, 3, {u0}"); e(f"v_lshl_add_u32 {u0}, {u1}, 5, {u0}")
    for d in range(4):
        e(f"s_add_u32 {sT0}, {sW}, {d}"); e(f"s_and_b32 {sT0}, {sT0}, 3"); e(f"s_lshl_b32 {sT0}, {sT0}, 6")
        e(f"v_xor_b32 {wa[2*d]}, {sT0}, {u0}"); e(f"v_xor_b32 {wa[2*d+1]}, 32, {wa[2*d]}")
    e(f"s_mul_i32 {sT0}, {sRB}, 196608"); e(f"s_lshl_b32 {sT1}, {sCB}, 8"); e(f"s_add_u32 {sT0}, {sT0}, {sT1}")
    e(f"s_lshl_b32 {sT1}, {sW}, 6"); e(f"s_add_u32 {sT0}, {sT0}, {sT1}")
    e(f"v_and_b32 {u1}, 15, {vLane}"); e(f"v_lshlrev_b32 {vOut}, 11, {u1}"); e(f"v_add_u32 {vOut}, {sT0}, {vOut}")
    e(f"v_and_b32 {u1}, 1, {vg}"); e(f"v_lshl_add_u32 {vOut}, {u1}, 5, {vOut}")
    e(f"v_lshrrev_b32 {u1}, 1, {vg}"); e(f"v_lshl_add_u32 {vOut}, {u1}, 4, {vOut}")
    vZ = V(168, 4)
    for i in range(4): e(f"v_mov_b32 {vZ[i]}, 0")
    e("s_nop 1")
    for k in range(12): e(f"v_mfma_f32_32x32x16_bf16 {A(16 * k, 16)}, {vZ}, {vZ}, 0")
    def rdA(slot, i): return [(lambda u=u: a.ds_read_tr(AF(i)[2 * u:2 * u + 2], wa[i], slot * 8192 + u * 4096)) for u in range(2)]
    if fused:
        e(f"s_mov_b32 {SRDDBG[0]}, s16"); e(f"s_mov_b32 {SRDDBG[1]}, s17"); e(f"s_mov_b32 {SRDDBG[2]}, 256"); e(f"s_mov_b32 {SRDDBG[3]}, 0x20000")
        e(f"s_lshl_b32 {sT0}, {sB1}, 4"); e(f"s_lshr_b32 {sT1}, {sRB}, 1"); e(f"s_lshl_b32 {sT1}, {sT1}, 4")
        e(f"v_mov_b32 {vt[0]}, 1"); e(f"v_mov_b32 {vt[1]}, 0"); e(f"s_mov_b32 {sIT}, 0")
        a.k2 = 1; stamp(a, 0)
        a.wait(vm=0); e("s_barrier")
        stamp(a, 1)
        e(f"s_cmp_lg_u32 {sW}, 0"); e("s_cbranch_scc1 L2_skip")
        e("s_mov_b64 exec, 1")
        e(f"buffer_atomic_add {vt[0]}, {vt[1]}, {SRDDBG}, {sT0} offen sc1")
        a.label("L2_poll")
        e(f"buffer_load_dword {vt[2]}, {vt[1]}, {SRDDBG}, {sT1} offen sc1")
        e("s_waitcnt vmcnt(0)")
        e(f"v_readfirstlane_b32 {sT2}, {vt[2]}"); e(f"s_add_u32 {sIT}, {sIT}, 1")
        e(f"s_cmp_ge_u32 {sT2}, 16"); e("s_cbranch_scc1 L2_go")
        e(f"s_sleep {OPT['psleep']}")
        e(f"s_cmp_lt_u32 {sIT}, 0x40000"); e("s_cbranch_scc1 L2_poll")
        a.label("L2_go")
        e("s_mov_b64 exec, -1")
        a.label("L2_skip")
        for i in range(7):
            for r in rdA(0, i): r()
        e("s_barrier")
        stamp(a, 2)
        run(issue_o(0)); run(issue_o(1)); run(issue_o(2))
        a.wait(vm=0)
        stamp(a, 3)
    else:
        a.wait_for(("w", 0))
        stamp(a, 1)
        for i in range(7):
            for r in rdA(0, i): r()
    e(f"s_mov_b32 {sIT}, 0")
    def body():
        for u in range(4):
            G = Gaps()
            mf = [(lambda i=i, j=j: a.mfma16(AC(i, j), AF(i), BF(u, j), AC(i, j))) for i in range(8) for j in range(6)]
            m0_ = mf[0]; mf[0] = lambda m0_=m0_: (a.wait_for(BF(u, 5), lgkm=2), m0_())
            for k, r in enumerate(rdA(u, 7)): G.mem(k, r)
            G.mem(5, lambda: a.wait_for(("w", (u + 1) % 4), lgkm=0))
            for i in range(7):
                for k, r in enumerate(rdA((u + 1) % 4, i)): G.mem(6 * i + 6 + k, r)
            ops = issue_w(u) + issue_o((u + 3) % 4)
            if u == 0: G.mem(3, lambda: (e(f"s_cmp_eq_u32 {sIT}, 7"), e(f"s_cselect_b32 {SRDWO[2]}, 0, {SRDWO[2]}")))
            if u == 1: G.mem(3, lambda: (e(f"s_cmp_eq_u32 {sIT}, 7"), e(f"s_cselect_b32 {SRDOW[2]}, 0, {SRDOW[2]}")))
            free = [g for i in range(1, 8) for g in range(6 * i + 2, 6 * i + 6)]
            for o, g in zip(ops, [free[(k * len(free)) // len(ops)] for k in range(len(ops))]): G.mem(g, o)
            G.run(mf)
    mark = len(a.out)
    body(); body(); sl, sv = list(a.lds), list(a.vm)
    del a.out[mark:]
    a.lds, a.vm = list(sl), list(sv)
    a.label("L2_loop")
    body()
    assert a.lds == sl and a.vm == sv, (a.vm, sv)
    e(f"s_add_u32 {sIT}, {sIT}, 1"); e(f"s_cmp_lt_u32 {sIT}, 8"); e("s_cbranch_scc1 L2_loop")
    a.wait(vm=0, lgkm=0)
    if not fused: stamp(a, 2); stamp(a, 3)
    stamp(a, 4)
    e("s_nop 7")
    for d in range(1, 4):
        for j in range(6):
            for b in range(2):
                a.ds_write_b128(vRW, AC(2 * d + b, j), ((d - 1) * 12 + j * 2 + b) * 1024)
    R = lambda b, j: V(40 + 8 * j + 4 * b, 4)
    for j in range(6):
        for b in range(2):
            for i in range(4): e(f"v_accvgpr_read_b32 {R(b, j)[i]}, {AC(b, j)[i]}")
    a.wait(lgkm=0); e("s_barrier")
    T = lambda d, b, j: V(96 + 48 * d + 8 * j + 4 * b, 4)
    for j in range(6):
        for d in range(3):
            for b in range(2): a.ds_read_b128(T(d, b, j), ra[d], (j * 2 + b) * 1024)
    for j in range(6):
        for d in range(3):
            for b in range(2):
                a.wait_for(T(d, b, j))
                for i in range(2): e(f"v_pk_add_f32 {R(b, j)[2*i:2*i+2]}, {R(b, j)[2*i:2*i+2]}, {T(d, b, j)[2*i:2*i+2]}")
        D = V(10 + 4 * j, 4)
        e(f"v_cvt_pk_bf16_f32 {D[0]}, {R(0, j)[0]}, {R(0, j)[1]}"); e(f"v_cvt_pk_bf16_f32 {D[1]}, {R(0, j)[2]}, {R(0, j)[3]}")
        e(f"v_cvt_pk_bf16_f32 {D[2]}, {R(1, j)[0]}, {R(1, j)[1]}"); e(f"v_cvt_pk_bf16_f32 {D[3]}, {R(1, j)[2]}, {R(1, j)[3]}")
        e(f"s_mov_b32 {sT0}, {j * 32768}"); e("s_nop 0")
        e(f"v_permlane16_swap_b32 {D[0]}, {D[2]}"); e(f"v_permlane16_swap_b32 {D[1]}, {D[3]}")
        a.bstore(D, vOut, SRDOUT, sT0, 0, (" " + OPT["ost2"].replace("+", " ")) if OPT["ost2"] else "")
    dump_stamps(a, 6, 0x4100000, sW, vt[0], vt[1])
    a.k2 = 0
    if fused:
        dump1()
        yield None
    else:
        a.label("L2_end")
        e("s_endpgm")
        yield a.text()


def kernel0():
    a = Asm(); e = a.e
    a.label("mha_pre_kernel")
    e("s_cmp_ge_u32 s2, 256"); e("s_cbranch_scc1 L0_end")
    e("s_load_dwordx16 s[4:19], s[0:1], 0"); e("s_waitcnt lgkmcnt(0)")
    e("s_mov_b32 s20, s4"); e("s_mov_b32 s21, s5"); e("s_mov_b32 s22, 6291456"); e("s_mov_b32 s23, 0x20000")
    e("s_mov_b32 s24, s10"); e("s_mov_b32 s25, s11"); e("s_mov_b32 s26, 8388608"); e("s_mov_b32 s27, 0x20000")
    e("v_lshlrev_b32 v1, 7, v0"); e("s_lshl_b32 s3, s2, 15")
    e("buffer_load_dword v2, v1, s[20:23], s3 offen"); e("buffer_load_dword v3, v1, s[24:27], s3 offen")
    e("s_waitcnt vmcnt(0)")
    a.label("L0_end"); e("s_endpgm")
    return a.text()

def main():
    launches = []
    if OPT["fuse"]:
        s = HEADER + "; @launch kernel=mha_qattn_kernel grid=(256,1,1) block=(256,1,1) lds=163840\n"
        s += '.amdgcn_target "amdgcn-amd-amdhsa--gfx950"\n.text\n'
        s += ".globl mha_qattn_kernel\n.p2align 8\n.type mha_qattn_kernel,@function\n" + kernel1() + "L_text_end:\n"
        s += kd("mha_qattn_kernel", 512, 256)
        open(sys.argv[1], "w").write(s)
        return
    if OPT["only"] in (None, "k1"): launches.append("; @launch kernel=mha_qattn_kernel grid=(256,1,1) block=(256,1,1) lds=163840")
    if OPT["only"] in (None, "k2"): launches.append("; @launch kernel=mha_oproj_kernel grid=(256,1,1) block=(256,1,1) lds=163840")
    s = HEADER + "\n".join(launches) + "\n"
    s += '.amdgcn_target "amdgcn-amd-amdhsa--gfx950"\n.text\n'
    s += ".globl mha_qattn_kernel\n.p2align 8\n.type mha_qattn_kernel,@function\n" + kernel1()
    s += ".globl mha_oproj_kernel\n.p2align 8\n.type mha_oproj_kernel,@function\n" + next(kernel2(None)) + "L_text_end:\n"
    s += kd("mha_qattn_kernel", 512, 256) + kd("mha_oproj_kernel", 512, 256)
    open(sys.argv[1], "w").write(s)
main()
```

```python
import sys, math, struct
from asmlib import *

OPT = dict(kv_nt=1, only=None, dbgQ=0, prof=0, kvskip=0, wo_touch=3, n2=0, rotH=0, p1end=26, ost="", codepf=0, k2skip=0, map2=1, pre=0, askip=0, p2nt=1, p2s=3, p2e=30, early=1, xw_touch=0, leak=0, rotW=0, krot=0, ost2="", itst=0, bwait=16, bdrop=0, qmode=0, tl=64, fuse=1, psleep=2, osc=1, bmap=0, evw=16, h16=0, dg0=20, verbose=0)
for a_ in sys.argv[2:]:
    k, v = a_.split("=")
    assert k in OPT, k
    OPT[k] = int(v) if v.lstrip("-").isdigit() else v

def f32bits(x): return struct.unpack("<I", struct.pack("<f", x))[0]
CSCALE = math.log2(math.e) / math.sqrt(128.0)
THRESH = 2.0 ** 30

HEADER = """; Kernarg layout for this problem (64 bytes, ptrs only, base s[0:1]):
"""

def stamp(a, i, lvl=1):
    if not OPT["prof"]: return
    if OPT["prof"] == 2 and lvl == 1 and i >= 2 and not getattr(a, "k2", 0): return
    if OPT["prof"] == 1 and lvl == 2: return
    a.e("s_memtime s[98:99]"); a.e("s_memrealtime s[100:101]")
    a.e("s_waitcnt lgkmcnt(0)"); a.lds = []
    if getattr(a, "k2", 0): a.e(f"v_mov_b32 v{240+2*i}, s98"); a.e(f"v_mov_b32 v{241+2*i}, s100")
    else: a.e(f"s_mov_b32 s{60+2*i}, s98"); a.e(f"s_mov_b32 s{61+2*i}, s100")
def dump_stamps(a, n, wsoff, sW, vtmp, vaddr, last=True):
    if not OPT["prof"]: return
    e = a.e
    e("s_waitcnt vmcnt(0)")
    if last: stamp(a, n - 1)
    e("s_mov_b32 s88, s18"); e("s_mov_b32 s89, s19"); e("s_mov_b32 s90, 0x10000000"); e("s_mov_b32 s91, 0x20000")
    e(f"s_lshl_b32 s92, s2, 2"); e(f"s_add_u32 s92, s92, {sW}"); e("s_lshl_b32 s92, s92, 6"); e(f"s_add_u32 s92, s92, {wsoff}")
    e(f"v_mov_b32 {vaddr}, 0")
    for i in range(2 * n):
        e(f"v_mov_b32 {vtmp}, " + (f"v{240+i}" if getattr(a, "k2", 0) else f"s{60+i}"))
        e(f"buffer_store_dword {vtmp}, {vaddr}, s[88:91], s92 offen offset:{4*i}")
    e("s_waitcnt vmcnt(0)")

def code_prefetch(a, vLane, vtmp, vdst, start_label, nbytes, sW):
    e = a.e
    e("s_getpc_b64 s[84:85]")
    a.label(f"{start_label}_pc")
    e(f"s_sub_u32 s84, s84, {start_label}_pc-{start_label}"); e("s_subb_u32 s85, s85, 0")
    e(f"s_mov_b32 s86, L_text_end-{start_label}"); e("s_mov_b32 s87, 0x20000")
    e(f"v_lshlrev_b32 {vtmp}, 7, {vLane}"); e(f"s_lshl_b32 s93, {sW}, 13")
    for blk in range((nbytes + 32767) // 32768):
        a.bload(vdst, vtmp, S(84, 4), "s93", 0)
        e("s_add_u32 s93, s93, 32768")

def kernel1():
    a = Asm(); e = a.e
    SRDX, SRDW, SRDKV, SRDO, SRDWO = S(20, 4), S(24, 4), S(28, 4), S(32, 4), S(80, 4)
    sW, sB, sHP, sQH, sHS = S(36), S(37), S(38), S(40), S(41)
    sT0, sT1, sT2, sIT = S(42), S(43), S(44), S(45)
    sXK, sWK = S(46), S(47)
    sM0X, sM0W = S(48), S(49)
    sKVO, sKVO2, sM0KV = S(50), S(51), S(52)
    sTHR, sC = S(53), S(54, 2)
    sOO, sCnt, sKV0, sPass, sP1, sKV3 = S(56), S(57), S(58), S(59), S(39), S(79)
    vLane = V(1)
    vt = [V(i) for i in range(2, 10)]
    xa = [[V(10 + 2 * s + k) for k in range(2)] for s in range(2)]
    wa = [V(14 + k) for k in range(8)]
    xv = [V(22 + k) for k in range(6)]
    wv = [V(28 + k) for k in range(4)]
    ka = [V(32 + k) for k in range(8)]
    va = [V(40 + k) for k in range(8)]
    kvv = [V(48 + k) for k in range(4)]
    vl = [V(52 + k) for k in range(6)]
    vKW, vOS, vTA, vTD, vFL = V(58), V(59), V(60), V(61), V(62)
    vZ = V(10, 4)
    ACC = lambda i, j: V(64 + 64 * (j >> 1) + 8 * i + 4 * (j & 1), 4)
    QF = lambda j, ks: V(64 + 32 * (j >> 1) + 8 * ks + 4 * (j & 1), 4)
    NEG = lambda j: V(160 + 4 * j, 4)
    SB = lambda i: V(184 + 8 * i, 8)
    PB = lambda i: V(200 + 4 * i, 4)
    TMP = lambda j: V(208 + 4 * j, 4)
    R2 = lambda j: V(232 + 2 * j, 2)
    OA = lambda db, j: A(4 * (8 * j + db), 4)
    KF = lambda n: A(192 + 4 * n, 4)
    VF = lambda db: A(224 + 4 * db, 4)
    AF = lambda i: A(128 + 4 * i, 4)
    BF = lambda st, j: A((160 if st == 0 else 224) + 4 * j, 4)
    P1R = lambda t, p: A(4 * (8 * t + p), 4)
    XBASE = 65536
    nt = " nt" if OPT["kv_nt"] else ""

    a.label("mha_qattn_kernel")
    e("s_cmp_ge_u32 s2, 256"); e("s_cbranch_scc1 L1_end")
    e("s_load_dwordx16 s[4:19], s[0:1], 0")
    e(f"v_lshrrev_b32 {vt[0]}, 6, v0"); e(f"v_and_b32 {vLane}, 63, v0")
    e("s_and_b32 s3, s2, 7"); e(f"s_lshr_b32 {sT0}, s2, 3")
    e(f"v_readfirstlane_b32 {sW}, {vt[0]}")
    e(f"s_and_b32 {sT1}, s3, 1"); e(f"s_and_b32 {sT2}, {sT0}, 7")
    if OPT["bmap"] == 0: e(f"s_lshl_b32 {sT1}, {sT1}, 3")
    if OPT["bmap"] == 1: e(f"s_lshl_b32 {sT2}, {sT2}, 1")
    if OPT["bmap"] == 2: e(f"s_xor_b32 {sT1}, {sT1}, 1"); e(f"s_lshl_b32 {sT1}, {sT1}, 3")
    e(f"s_add_u32 {sB}, {sT1}, {sT2}")
    e(f"s_lshr_b32 {sT1}, s3, 1"); e(f"s_lshl_b32 {sT1}, {sT1}, 2"); e(f"s_lshr_b32 {sHP}, {sT0}, 3")
    e(f"s_add_u32 {sHP}, {sHP}, {sT1}")
    e(f"s_and_b32 {sQH}, {sW}, 1"); e(f"s_lshr_b32 {sHS}, {sW}, 1")
    t0, t1, t2, t3, t4, t5 = vt[:6]
    e(f"v_lshrrev_b32 {t2}, 4, {vLane}")
    e(f"v_and_b32 {t1}, 15, {vLane}")
    e(f"v_lshlrev_b32 {t3}, 1, {t2}"); e(f"v_xor_b32 {t1}, {t1}, {t3}")
    e(f"s_lshl_b32 {sT0}, {sQH}, 4"); e(f"v_add_u32 {t0}, {sT0}, {t2}")
    e(f"v_lshlrev_b32 {t0}, 13, {t0}")
    e(f"s_lshl_b32 {sT0}, {sHS}, 8"); e(f"v_add_u32 {t0}, {sT0}, {t0}")
    for m in range(4):
        e(f"v_xor_b32 {t3}, {8 * (m >> 1)}, {t1}"); e(f"v_lshl_add_u32 {t3}, {t3}, 4, {t0}")
        e(f"v_add_u32 {wv[m]}, {m * 32768 - m * 1024}, {t3}")
    e(f"v_lshrrev_b32 {t0}, 3, {vLane}")
    e(f"v_and_b32 {t1}, 7, {vLane}"); e(f"v_xor_b32 {t1}, {t1}, {t2}")
    e(f"s_mul_i32 {sT0}, {sW}, 48"); e(f"v_add_u32 {t0}, {sT0}, {t0}"); e(f"v_lshlrev_b32 {t0}, 11, {t0}")
    for m in range(6):
        e(f"v_xor_b32 {t3}, {4 * (m & 1)}, {t1}"); e(f"v_lshl_add_u32 {t3}, {t3}, 4, {t0}")
        e(f"v_add_u32 {xv[m]}, {m * 16384 - (m % 3) * 1024}, {t3}")
    e(f"s_mul_i32 {sM0X}, {sW}, 6144"); e(f"s_add_u32 {sM0X}, {sM0X}, {XBASE}")
    e(f"s_lshl_b32 {sM0W}, {sW}, 12")
    e("s_waitcnt lgkmcnt(0)")
    stamp(a, 0)
    e(f"s_lshl_b32 {sT0}, {sHP}, 9")
    e(f"s_add_u32 {SRDW[0]}, s10, {sT0}"); e(f"s_addc_u32 {SRDW[1]}, s11, 0")
    e(f"s_sub_u32 {SRDW[2]}, 8388608, {sT0}"); e(f"s_mov_b32 {SRDW[3]}, 0x20000")
    e(f"s_mul_i32 {sT0}, {sB}, 393216")
    e(f"s_add_u32 {SRDX[0]}, s4, {sT0}"); e(f"s_addc_u32 {SRDX[1]}, s5, 0")
    e(f"s_mov_b32 {SRDX[2]}, 393216"); e(f"s_mov_b32 {SRDX[3]}, 0x20000")

    if OPT["askip"]: e(f"s_mov_b32 {SRDX[2]}, 0"); e(f"s_mov_b32 {SRDW[2]}, 0")
    sKR, sKRW = S(76), S(77)
    if OPT["krot"]:
        e(f"s_lshr_b32 {sT0}, s2, 3"); e(f"s_and_b32 {sT1}, {sT0}, 7"); e(f"s_lshr_b32 {sT0}, {sT0}, 3"); e(f"s_lshl_b32 {sT0}, {sT0}, 1")
        e(f"s_add_u32 {sT0}, {sT0}, {sT1}"); e(f"s_and_b32 {sT0}, {sT0}, 7")
        if OPT["krot"] == 2: e(f"s_and_b32 {sT0}, {sT0}, 1"); e(f"s_lshl_b32 {sT0}, {sT0}, 2")
        if OPT["krot"] == 3: e(f"s_and_b32 {sT0}, {sT0}, 3"); e(f"s_lshl_b32 {sT0}, {sT0}, 1")
        e(f"s_lshl_b32 {sKR}, {sT0}, 8"); e(f"s_lshl_b32 {sKRW}, {sT0}, 20")
    def dma_x(c, part):
        if OPT["krot"]:
            ops = [lambda: (e(f"s_add_u32 m0, {sM0X}, {(c % 4) * 24576 + part * 3072}"), e(f"s_add_u32 {sXK}, {sKR}, {c * 128}"), e(f"s_and_b32 {sXK}, {sXK}, 2047"))]
        else:
            ops = [lambda: (e(f"s_add_u32 m0, {sM0X}, {(c % 4) * 24576 + part * 3072}"), e(f"s_movk_i32 {sXK}, {c * 128}"))]
        for m in range(3):
            ops.append(lambda m=m: a.dma(xv[3 * part + m], SRDX, sXK, m * 1024, tag=("x", c)))
        return ops
    def dma_w(s):
        if OPT["krot"]:
            ops = [lambda: (e(f"s_add_u32 m0, {sM0W}, {(s % 4) * 16384}"), e(f"s_add_u32 {sWK}, {sKRW}, {s * 262144}"), e(f"s_and_b32 {sWK}, {sWK}, 8388607"))]
        else:
            ops = [lambda: (e(f"s_add_u32 m0, {sM0W}, {(s % 4) * 16384}"), e(f"s_mov_b32 {sWK}, {s * 262144}"))]
        for m in range(4):
            ops.append(lambda m=m: a.dma(wv[m], SRDW, sWK, m * 1024, tag=("w", s)))
        return ops
    def run(ops):
        for o in ops: o()
    run(dma_w(0)); run(dma_x(0, 0)); run(dma_x(0, 1)); run(dma_w(1)); run(dma_w(2)); run(dma_x(1, 0)); run(dma_x(1, 1)); run(dma_w(3))
    if OPT["codepf"]: code_prefetch(a, vLane, vTA, vTD, "mha_qattn_kernel", OPT["codepf"] * 1024, sW)
    run(dma_x(2, 0)); run(dma_x(2, 1)); run(dma_x(3, 0)); run(dma_x(3, 1))
    e(f"s_lshl_b32 {sT0}, {sB}, 5"); e(f"s_lshl_b32 {sT1}, {sHP}, 1"); e(f"s_add_u32 {sT0}, {sT0}, {sT1}")
    e(f"s_add_u32 {sT0}, {sT0}, {sHS}"); e(f"s_lshl_b32 {sT0}, {sT0}, 18")
    e(f"s_cmp_eq_u32 {sQH}, 0"); e(f"s_cselect_b32 {sT1}, s6, s8"); e(f"s_cselect_b32 {sT2}, s7, s9")
    e(f"s_add_u32 {SRDKV[0]}, {sT1}, {sT0}"); e(f"s_addc_u32 {SRDKV[1]}, {sT2}, 0")
    NR = 0 if OPT["kvskip"] else 262144
    e(f"s_mov_b32 {SRDKV[2]}, {NR}"); e(f"s_mov_b32 {SRDKV[3]}, 0x20000")
    e(f"s_mov_b32 {SRDO[0]}, s18"); e(f"s_mov_b32 {SRDO[1]}, s19")
    e(f"s_mov_b32 {SRDO[2]}, 25165824"); e(f"s_mov_b32 {SRDO[3]}, 0x20000")
    e(f"s_mov_b32 {sTHR}, {f32bits(THRESH):#x}")
    e(f"s_mov_b32 {sC[0]}, {f32bits(CSCALE):#x}"); e(f"s_mov_b32 {sC[1]}, {f32bits(CSCALE):#x}")
    e(f"s_mul_i32 {sKV0}, {sHS}, {OPT['rotH'] * 8192}"); e(f"s_mov_b32 {sPass}, 0")
    if OPT["rotW"] == 1:
        e(f"s_lshr_b32 {sKV0}, s2, 3"); e(f"s_lshl_b32 {sT1}, {sHS}, 2"); e(f"s_add_u32 {sKV0}, {sKV0}, {sT1}")
        e(f"s_and_b32 {sKV0}, {sKV0}, 7"); e(f"s_lshl_b32 {sKV0}, {sKV0}, 15")
    if OPT["rotW"] == 2:
        e(f"s_lshr_b32 {sKV0}, s2, 5"); e(f"s_add_u32 {sKV0}, {sKV0}, s2"); e(f"s_lshl_b32 {sT1}, {sHS}, 2"); e(f"s_add_u32 {sKV0}, {sKV0}, {sT1}")
        e(f"s_and_b32 {sKV0}, {sKV0}, 7"); e(f"s_lshl_b32 {sKV0}, {sKV0}, 15")
    if OPT["rotW"] == 3:
        e(f"s_lshr_b32 {sKV0}, s2, 3"); e(f"s_add_u32 {sKV0}, {sKV0}, s2"); e(f"s_lshr_b32 {sT1}, s2, 6"); e(f"s_add_u32 {sKV0}, {sKV0}, {sT1}")
        e(f"s_lshl_b32 {sT1}, {sHS}, 2"); e(f"s_add_u32 {sKV0}, {sKV0}, {sT1}")
        e(f"s_and_b32 {sKV0}, {sKV0}, 7"); e(f"s_lshl_b32 {sKV0}, {sKV0}, 15")
    if OPT["rotW"] == 4:
        e(f"s_mul_i32 {sKV0}, s2, 5"); e(f"s_lshr_b32 {sT1}, s2, 5"); e(f"s_add_u32 {sKV0}, {sKV0}, {sT1}")
        e(f"s_lshl_b32 {sT1}, {sHS}, 4"); e(f"s_add_u32 {sKV0}, {sKV0}, {sT1}")
        e(f"s_and_b32 {sKV0}, {sKV0}, 31"); e(f"s_lshl_b32 {sKV0}, {sKV0}, 13")
    if OPT["rotW"] == 5:
        e(f"s_lshr_b32 {sKV0}, s2, 3"); e(f"s_lshl_b32 {sT1}, s2, 2"); e(f"s_add_u32 {sKV0}, {sKV0}, {sT1}")
        e(f"s_lshl_b32 {sT1}, {sHS}, 4"); e(f"s_add_u32 {sKV0}, {sKV0}, {sT1}")
        e(f"s_and_b32 {sKV0}, {sKV0}, 31"); e(f"s_lshl_b32 {sKV0}, {sKV0}, 13")
    if OPT["rotW"] == 6:
        e(f"s_lshl_b32 {sKV0}, s2, 1"); e(f"s_add_u32 {sKV0}, {sKV0}, {sHS}"); e(f"s_mul_i32 {sKV0}, {sKV0}, 0x9e3779b1")
        e(f"s_lshr_b32 {sKV0}, {sKV0}, 27"); e(f"s_lshl_b32 {sKV0}, {sKV0}, 13")
    e(f"s_lshl_b32 {sKV3}, {sQH}, 18")
    e(f"v_lshlrev_b32 {vTA}, 7, {vLane}")
    vT2 = V(0)
    e(f"v_lshrrev_b32 {vT2}, {int(math.log2(64 // OPT['tl']))}, {vLane}"); e(f"v_lshlrev_b32 {vT2}, 7, {vT2}")
    if OPT["wo_touch"]:
        e(f"s_mov_b32 {SRDWO[0]}, s12"); e(f"s_mov_b32 {SRDWO[1]}, s13"); e(f"s_mov_b32 {SRDWO[2]}, 8388608"); e(f"s_mov_b32 {SRDWO[3]}, 0x20000")
    if OPT["xw_touch"]:
        e(f"s_lshl_b32 {sT2}, s2, 2"); e(f"s_add_u32 {sT2}, {sT2}, {sW}"); e(f"s_lshl_b32 {sT2}, {sT2}, 13")
        e("s_mov_b32 s84, s10"); e("s_mov_b32 s85, s11"); e("s_mov_b32 s86, 8388608"); e("s_mov_b32 s87, 0x20000")
        a.bload(vTD, vTA, S(84, 4), sT2, 0)
        e("s_mov_b32 s84, s4"); e("s_mov_b32 s85, s5"); e("s_mov_b32 s86, 6291456")
        a.bload(vTD, vTA, S(84, 4), sT2, 0)
    vh, vg, vr, vc1, vc0, vql, u0, u1 = vt
    e(f"v_lshrrev_b32 {vg}, 4, {vLane}"); e(f"v_bfe_u32 {vr}, {vLane}, 2, 2"); e(f"v_and_b32 {vc0}, 3, {vLane}")
    e(f"v_lshl_add_u32 {u0}, {vg}, 3, {vr}"); e(f"v_lshlrev_b32 {u0}, 8, {u0}")
    e(f"s_lshl_b32 {sT0}, {sHS}, 13"); e(f"v_add_u32 {u0}, {sT0}, {u0}")
    e(f"v_lshl_add_u32 {u0}, {vc0}, 3, {u0}"); e(f"v_lshl_add_u32 {u0}, {vr}, 5, {u0}")
    e(f"v_and_b32 {u1}, 1, {vg}"); e(f"v_lshl_add_u32 {wa[0]}, {u1}, 7, {u0}")
    for i in range(1, 8): e(f"v_xor_b32 {wa[i]}, {32 * i}, {wa[0]}")
    e(f"v_and_b32 {vql}, 15, {vLane}")
    e(f"s_mul_i32 {sT1}, {sQH}, 12288"); e(f"s_add_u32 {sT1}, {sT1}, {XBASE}")
    e(f"v_lshlrev_b32 {u0}, 7, {vql}"); e(f"v_add_u32 {u0}, {sT1}, {u0}")
    e(f"v_lshrrev_b32 {u1}, 1, {vql}"); e(f"v_xor_b32 {u1}, {u1}, {vg}")
    e(f"v_lshl_add_u32 {xa[0][0]}, {u1}, 4, {u0}"); e(f"v_xor_b32 {xa[0][1]}, 64, {xa[0][0]}")
    for k in range(2): e(f"v_add_u32 {xa[1][k]}, 49152, {xa[0][k]}")
    e(f"v_lshlrev_b32 {vh}, {sQH}, {vg}")
    e(f"v_xor_b32 {vh}, {vh}, {vql}"); e(f"v_lshlrev_b32 {u0}, 8, {vg}")
    e(f"v_lshl_add_u32 {kvv[0]}, {vh}, 4, {u0}")
    e(f"s_cmp_eq_u32 {sQH}, 0")
    for j in range(1, 4):
        e(f"s_cselect_b32 {sT1}, {4 * j}, {8 * (j & 1)}"); e(f"s_mul_i32 {sT1}, {sT1}, 16"); e(f"v_xor_b32 {kvv[j]}, {sT1}, {kvv[0]}")

    def late_setup():
        ops = []
        E = lambda s: ops.append(lambda: e(s))
        E(f"v_lshrrev_b32 {vg}, 4, {vLane}"); E(f"v_bfe_u32 {vr}, {vLane}, 2, 2"); E(f"v_and_b32 {vc0}, 3, {vLane}")
        E(f"v_and_b32 {vql}, 15, {vLane}"); E(f"v_lshrrev_b32 {vc1}, 2, {vLane}")
        E(f"s_lshl_b32 {sT0}, {sHS}, 16"); E(f"s_add_u32 {sT1}, {sT0}, 8192")
        E(f"v_lshlrev_b32 {u0}, 8, {vc1}"); E(f"v_add_u32 {u0}, {sT1}, {u0}"); E(f"v_lshl_add_u32 {u0}, {vc0}, 3, {u0}")
        E(f"v_and_b32 {u1}, 7, {vc1}"); E(f"v_lshl_add_u32 {va[0]}, {u1}, 5, {u0}")
        for db in range(1, 8): E(f"v_xor_b32 {va[db]}, {32 * db}, {va[0]}")
        E(f"v_lshlrev_b32 {u0}, 8, {vql}"); E(f"v_add_u32 {u0}, {sT0}, {u0}")
        E(f"v_and_b32 {u1}, 1, {vg}"); E(f"v_lshl_add_u32 {u0}, {u1}, 3, {u0}")
        E(f"v_lshrrev_b32 {u1}, 1, {vg}"); E(f"v_xor_b32 {u1}, {u1}, {vql}"); E(f"v_lshl_add_u32 {ka[0]}, {u1}, 4, {u0}")
        for s in range(1, 8): E(f"v_xor_b32 {ka[s]}, {32 * s}, {ka[0]}")
        E(f"s_lshl_b32 {sM0KV}, {sQH}, 13"); E(f"s_add_u32 {sM0KV}, {sM0KV}, {sT0}")
        E(f"v_lshlrev_b32 {vOS}, 4, {vLane}"); E(f"v_add_u32 {vKW}, {sM0KV}, {vOS}")
        E(f"s_lshl_b32 {sOO}, {sB}, 1"); E(f"s_add_u32 {sOO}, {sOO}, {sQH}"); E(f"s_mul_i32 {sOO}, {sOO}, {6 * 131072}")
        E(f"s_lshl_b32 {sT1}, {sHP}, 1"); E(f"s_add_u32 {sT1}, {sT1}, {sHS}"); E(f"s_lshl_b32 {sT1}, {sT1}, 12"); E(f"s_add_u32 {sOO}, {sOO}, {sT1}")
        E(f"s_lshl_b32 {sT1}, {sW}, 2"); E(f"s_add_u32 {sT1}, {sT1}, 163776"); E(f"v_mov_b32 {vFL}, {sT1}")
        for q in range(6): E(f"v_mov_b32 {vl[q]}, 0")
        return ops
    def rdK(n, pi, slot): return lambda: a.ds_read_b64(KF(n)[2 * pi:2 * pi + 2], ka[2 * (n >> 1) + pi], slot * 16384 + (n & 1) * 4096)
    def rdV(db, uu, slot): return lambda: a.ds_read_tr(VF(db)[2 * uu:2 * uu + 2], va[db], slot * 16384 + uu * 4096)

    def rdA(s, i): return [(lambda u=u: a.ds_read_tr(AF(i)[2 * u:2 * u + 2], wa[i], (s % 4) * 16384 + u * 1024)) for u in range(2)]
    def rdB(s, j):
        xs = (s // 2) % 4
        return lambda: a.ds_read_b128(BF(s % 2, j), xa[xs // 2][s % 2], (xs % 2) * 24576 + j * 2048)
    p1list = [(t, p) for t in range(4) for p in range(8)]
    def p1_ops(k):
        t, p = p1list[k]
        ops = []
        if p % 4 == 0:
            ops.append(lambda: (e(f"s_add_u32 {sP1}, {sKV0}, {t * 8192 + (p // 4) * 4096}"), e(f"s_and_b32 {sP1}, {sP1}, 262143"),
                                e(f"s_add_u32 {sP1}, {sP1}, {sKV3}") if t == 3 else None))
        ops.append(lambda: a.bload(P1R(t, p), kvv[p % 4], SRDKV, sP1, (p % 4) * 1024, nt))
        return ops
    p1_at = {}
    for k in range(32): p1_at.setdefault(k * OPT["p1end"] // 32, []).append(k)
    p2_at = {}
    for k in range(OPT["n2"]): p2_at.setdefault(OPT["p2s"] + (k * (OPT["p2e"] - OPT["p2s"])) // OPT["n2"], []).append(k)
    conv = []
    for J in range(3):
        for ks in range(4):
            for jj in range(2):
                j = 2 * J + jj
                X, Y, D = ACC(2 * ks, j), ACC(2 * ks + 1, j), QF(j, ks)
                for R in (X, Y):
                    for k in range(4): conv.append((J, lambda r=R[k]: e(f"v_mul_f32 {r}, {sC[0]}, {r}")))
                conv.append((J, lambda X=X, D=D: e(f"v_cvt_pk_bf16_f32 {D[0]}, {X[0]}, {X[1]}")))
                conv.append((J, lambda X=X, D=D: e(f"v_cvt_pk_bf16_f32 {D[1]}, {X[2]}, {X[3]}")))
                conv.append((J, lambda Y=Y, D=D: e(f"v_cvt_pk_bf16_f32 {D[2]}, {Y[0]}, {Y[1]}")))
                conv.append((J, lambda Y=Y, D=D: e(f"v_cvt_pk_bf16_f32 {D[3]}, {Y[2]}, {Y[3]}")))

    a.wait_for(("w", 0), ("x", 0)); e("s_barrier")
    stamp(a, 1)
    for j in range(6):
        rdB(0, j)()
        for r in rdA(0, j): r()
    for r in rdA(0, 6): r()
    late = late_setup()
    free = [g for i in range(3, 8) for g in range(6 * i + 2, 6 * i + 6)]
    for s in range(32):
        if s in (8, 16, 24): stamp(a, 1 + s // 8, 2)
        G = Gaps()
        last = s == 31
        order = [(i, j) for j in range(6) for i in range(8)] if last else [(i, j) for i in range(8) for j in range(6)]
        mf = [(lambda i=i, j=j: a.mfma16(ACC(i, j), AF(i), BF(s % 2, j), ACC(i, j) if s else 0)) for i, j in order]
        if s:
            m0_ = mf[0]; mf[0] = lambda m0_=m0_: (a.wait_for(lgkm=2), m0_())
        for u, r in enumerate(rdA(s, 7)): G.mem(u, r)
        def bar(s=s):
            if s < 31: a.wait_for(("w", s + 1), ("x", (s + 1) // 2), lgkm=0)
            else: a.wait_for(lgkm=0)
            e("s_barrier")
        G.mem(7, bar)
        if not last:
            for u, r in enumerate(rdA(s + 1, 0)): G.mem(8 + u, r)
            for i in range(1, 7):
                for u, r in enumerate(rdA(s + 1, i)): G.mem(6 * i + 6 + u, r)
            for j, g in enumerate([10, 11, 14, 15, 16, 17]): G.mem(g, rdB(s + 1, j))
        ops = []
        if s + 4 < 32: ops += dma_w(s + 4)
        c = (s - 1) // 2 + 4
        if s >= 1 and c < 16: ops += dma_x(c, (s - 1) % 2)
        for k in p1_at.get(s, []): ops += p1_ops(k)
        for k in p2_at.get(s, []):
            ops.append(lambda k=k: (e(f"s_add_u32 {sT2}, {sKV0}, {32768 + k * OPT['tl'] * 128}"), e(f"s_and_b32 {sT2}, {sT2}, 262143")))
            ops.append(lambda: a.bload(vTD, vT2, SRDKV, sT2, 0, " nt" if OPT["p2nt"] else ""))
        if s == 2 and OPT["wo_touch"] == 1:
            ops.append(lambda: (e(f"s_lshl_b32 {sT2}, s2, 2"), e(f"s_add_u32 {sT2}, {sT2}, {sW}"), e(f"s_lshl_b32 {sT2}, {sT2}, 13")))
            ops.append(lambda: a.bload(vTD, vTA, SRDWO, sT2, 0))
        if s >= 28:
            t = s - 28
            ops += [(lambda p=p: a.ds_write_b128(vKW, P1R(t, p), t * 16384 + p * 1024)) for p in range(8)]
        if s >= 30:
            ops += [rdK(n, pi, 0) for n in range(4 * (s - 30), 4 * (s - 30) + 4) for pi in range(2)]
        if last:
            for i in range(4): G.valu(4 + i, lambda i=i: e(f"v_mov_b32 {vZ[i]}, 0"))
        fr = free if not last else list(range(9, 29))
        assert len(ops) <= len(fr), (s, len(ops))
        for o, g in zip(ops, [fr[(k * len(fr)) // len(ops)] for k in range(len(ops))]): G.mem(g, o)
        if s == 0:
            for k, o in enumerate(late): G.valu(8 + k // 2, o)
        if last:
            g = 0
            n = 0
            while conv and g < 48:
                J = conv[0][0]
                g = max(g, 16 * J + 18)
                if g >= 48: break
                G.valu(g, conv.pop(0)[1]); n += 1
                if n % 2 == 0: g += 1
        G.run(mf)
    stamp(a, 2); stamp(a, 5, 2)
    e("s_nop 3")
    def xlane(op, m, tmp):
        return [lambda: e(f"v_mov_b32 {tmp}, {m}"), lambda: e("s_nop 1"), lambda: e(f"v_permlane16_swap_b32 {m}, {tmp}"), lambda: e("s_nop 1"),
                lambda: e(f"{op} {m}, {m}, {tmp}"),
                lambda: e(f"v_mov_b32 {tmp}, {m}"), lambda: e("s_nop 1"), lambda: e(f"v_permlane32_swap_b32 {m}, {tmp}"), lambda: e("s_nop 1"),
                lambda: e(f"{op} {m}, {m}, {tmp}")]
    def rowmax_ops(j, m, tmp):
        X, Y = NEG(j), TMP(j)
        return [lambda: e(f"v_max3_f32 {m}, {X[0]}, {X[1]}, {X[2]}"), lambda: e(f"v_max3_f32 {m}, {m}, {X[3]}, {Y[0]}"),
                lambda: e(f"v_max3_f32 {m}, {m}, {Y[1]}, {Y[2]}"), lambda: e(f"v_max_f32 {m}, {m}, {Y[3]}")] + xlane("v_max_f32", m, tmp)
    def negfill_ops(j, m):
        return [(lambda i=i: e(f"v_sub_f32 {NEG(j)[i]}, 0, {m}")) for i in range(4)]
    a.wait_for(lgkm=0)
    zm = [(lambda k=k: a.e(f"v_mfma_f32_32x32x16_bf16 {A(16 * k, 16)}, {vZ}, {vZ}, 0")) for k in list(range(12)) + [14, 15]]
    G = Gaps()
    G.spread([(o, 4) for _, o in conv], list(range(14))); conv = []
    G.run(zm)
    e("s_nop 1")
    sm = [(lambda j=j, n=n: a.mfma16(TMP(j) if n & 1 else NEG(j), KF(n), QF(j, n >> 1), (TMP(j) if n & 1 else NEG(j)) if n > 1 else 0))
          for j in range(6) for n in range(8)]

    NS = 96
    used = [0] * NS
    memg = {}
    def M(g, it, cost=4): memg.setdefault(g % NS, []).append(it); used[g % NS] += cost
    M(5, ("kill",), 12); M(6, ("m0", 0)); M(7, ("bar",), 8)
    for db in range(8): M(8 + db, ("v", db, 0)); M(12 + db, ("v", db, 1))
    for n in range(8): M(80 + n, ("k", n, 0)); M(84 + n, ("k", n, 1))
    dg = OPT["dg0"]
    for k in range(4): M(dg + 2 * k, ("dma", 0, k)); M(dg + 10 + 2 * k, ("dma", 1, k))
    M(dg + 8, ("m0", 1)); M(dg + 19, ("adv",), 12)
    for g in (95, 3, 23, 27): used[g] += 4
    valg = {}
    def place(j, seq, lo, hi):
        for L in range(8, 41, 4):
            u2 = list(used); g = lo; out = []
            for op, c, mn in seq:
                g = max(g, mn)
                while g <= hi and u2[g % NS] + c > L: g += 1
                if g > hi: break
                u2[g % NS] += c; out.append((op, g))
            else:
                used[:] = u2
                for op, g in out: valg.setdefault(g, []).append((j, op))
                return dict(out)
        raise Exception("no fit")
    pos = {}
    for j in range(6):
        b = 16 * j
        crit = [("e0", 8, b + 8), ("e1", 8, 0), ("e2", 8, 0), ("c0", 4, 0), ("e3", 8, 0), ("e4", 8, b + 10), ("c1", 4, 0), ("e5", 8, 0), ("e6", 8, 0),
                ("c2", 4, 0), ("e7", 8, 0), ("a0", 4, 0), ("c3", 4, 0)]
        pos[j] = place(j, crit, b + 8, b + 22)
    for j in range(6):
        b = 16 * j
        place(j, [(f"a{k}", 4, pos[j][f"e{k}"] + 1) for k in range(1, 8)], b + 9, b + 30)
    if OPT["verbose"]: print("gap load", used, "over", sum(max(0, x - 12) for x in used))
    def sm_op(j, op):
        Sx, Px, k = SB(j % 2), PB(j % 2), int(op[1])
        if op[0] == "e": e(f"v_exp_f32 {Sx[k]}, {Sx[k]}")
        if op[0] == "a": e(f"v_add_f32 {vl[j]}, {vl[j]}, {Sx[k]}")
        if op[0] == "c": e(f"v_cvt_pk_bf16_f32 {Px[k]}, {Sx[2 * k]}, {Sx[2 * k + 1]}")
    tail = [(g, j, op) for g in sorted(valg) if g >= NS for j, op in valg[g]]
    tail_e = {(j, int(op[1])) for g, j, op in tail if op[0] == "e"}
    init = [(lambda j=j, k=k: e(f"v_mov_b32 {SB(j % 2)[k]}, {'0xf149f2ca' if (j, k) in tail_e else 0}")) for j in (4, 5) for k in range(8)]
    init += [(lambda k=k: e(f"v_mov_b32 {PB(1)[k]}, 0")) for k in range(4)]

    G = Gaps()
    G.spread([(o, 4) for o in init], list(range(0, 9)))
    for j in range(5):
        G.spread([(o, 4) for o in rowmax_ops(j, vt[0], vt[1]) + negfill_ops(j, vt[0])], list(range(8 * j + 9, min(48, 8 * j + 17))))
    def stream_init():
        e(f"s_sub_u32 {sCnt}, 0, {sQH}")
        e(f"s_lshl_b32 {sT0}, {sQH}, 13"); e(f"s_add_u32 {sKVO}, {sKV0}, 32768"); e(f"s_sub_u32 {sKVO}, {sKVO}, {sT0}"); e(f"s_and_b32 {sKVO}, {sKVO}, 262143")
        e(f"s_add_u32 {sKVO2}, {sKVO}, 4096"); e(f"s_mov_b32 {sIT}, 0")
    G.mem(0, stream_init)
    if OPT["wo_touch"] == 3:
        G.mem(1, lambda: (e(f"s_lshl_b32 {sT2}, s2, 2"), e(f"s_add_u32 {sT2}, {sT2}, {sW}"), e(f"s_lshl_b32 {sT2}, {sT2}, 13")))
        G.mem(2, lambda: a.bload(vTD, vTA, SRDWO, sT2, 0))
    sSL = [S(94 + u) for u in range(4)]
    for u in range(4):
        G.mem(3 + u, lambda u=u: (e(f"s_sub_u32 {sT0}, {u}, {sQH}"), e(f"s_and_b32 {sT0}, {sT0}, 3"), e(f"s_lshl_b32 {sT0}, {sT0}, 14"), e(f"s_add_u32 {sSL[u]}, {sM0KV}, {sT0}")))
    G.run(sm)
    e("s_nop 7")
    for o in rowmax_ops(5, vt[0], vt[1]) + negfill_ops(5, vt[0]): o()
    e("s_nop 1")

    def dma_kv(slot):
        ops = []
        for half in range(2):
            ops.append(lambda half=half: (e(f"s_add_u32 m0, {slot}, {half * 4096}"), e("s_nop 0")))
            for j in range(4):
                ops.append(lambda j=j, half=half: a.dma(kvv[j], SRDKV, sKVO2 if half else sKVO, j * 1024, nt))
        ops.append(lambda: (e(f"s_add_u32 {sKVO}, {sKVO}, 8192"), e(f"s_and_b32 {sKVO}, {sKVO}, 262143"), e(f"s_add_u32 {sKVO2}, {sKVO}, 4096")))
        return ops
    PVg = lambda j: [(lambda db=db: a.mfma16(OA(db, j), VF(db), PB(j % 2), OA(db, j))) for db in range(8)]
    def tileB(u):
        mf = []
        for j in range(6):
            for n in range(8):
                D = SB(j % 2)[4 * (n & 1):4 * (n & 1) + 4]
                mf.append(lambda n=n, D=D, j=j: a.mfma16(D, KF(n), QF(j, n >> 1), D if n > 1 else NEG(j)))
            mf += PVg((j + 5) % 6)
        for idx, regs in ((0, [KF(n) for n in range(4)]), (4, [KF(n) for n in range(8)]), (24, [VF(d) for d in range(4)]), (28, [VF(d) for d in range(8)])):
            mf[idx] = (lambda f=mf[idx], regs=regs: (a.wait_for(*regs), f()))
        for g in range(NS):
            mf[g]()
            for it in memg.get(g, []):
                k = it[0]
                if k == "kill": e(f"s_cmp_lt_i32 {sCnt}, 28"); e(f"s_cselect_b32 {SRDKV[2]}, {NR}, 0"); e(f"s_add_u32 {sCnt}, {sCnt}, 1")
                if k == "m0": e(f"s_add_u32 m0, {sSL[u]}, {it[1] * 4096}")
                if k == "bar": a.wait(vm=OPT["bwait"]); e("s_barrier")
                if k == "v": rdV(it[1], it[2], u)()
                if k == "k": rdK(it[1], it[2], (u + 1) % 4)()
                if k == "dma": a.dma(kvv[it[2]], SRDKV, sKVO2 if it[1] else sKVO, it[2] * 1024, nt)
                if k == "adv": e(f"s_add_u32 {sKVO}, {sKVO}, 8192"); e(f"s_and_b32 {sKVO}, {sKVO}, 262143"); e(f"s_add_u32 {sKVO2}, {sKVO}, 4096")
            for j, op in valg.get(g + NS, []) + valg.get(g, []): sm_op(j, op)
    stamp(a, 3)
    def bodyB():
        for u in range(4): tileB(u)
    mark = len(a.out)
    bodyB()
    steady = list(a.lds)
    del a.out[mark:]
    a.lds = list(steady)
    a.label("L1_loopB")
    bodyB()
    assert a.lds == steady
    e(f"s_add_u32 {sIT}, {sIT}, 1"); e(f"s_cmp_lt_u32 {sIT}, 8"); e("s_cbranch_scc1 L1_loopB")
    stamp(a, 4)
    for g, j, op in tail: sm_op(j, op)
    e("s_nop 1")
    def lsum_ops(j):
        sp = "s[98:99]" if j == 0 else "s[100:101]"
        ops = xlane("v_add_f32", vl[j], vt[1]) + [lambda: e(f"v_cmp_ngt_f32 {sp}, {sTHR}, {vl[j]}"), lambda: e(f"v_rcp_f32 {R2(j)[0]}, {vl[j]}"),
                                                  lambda: e(f"v_rcp_f32 {R2(j)[1]}, {vl[j]}")]
        if j: ops.append(lambda: e("s_or_b64 s[98:99], s[98:99], s[100:101]"))
        return ops
    G = Gaps()
    G.spread([(o, 4) for j in range(2) for o in lsum_ops(j)], list(range(0, 8)))
    G.run(PVg(5))
    for j in range(2, 6):
        for o in lsum_ops(j): o()
    e("s_cmp_lg_u64 s[98:99], 0"); e(f"s_cselect_b32 {sT0}, 1, 0"); e(f"s_andn2_b32 {sT0}, {sT0}, {sPass}")
    e(f"v_mov_b32 {vt[1]}, {sT0}"); e(f"ds_write_b32 {vFL}, {vt[1]}"); a.lds.append(set())
    ostf = (" " + OPT["ost"].replace("+", " ")) if OPT["ost"] else ""
    K2 = kernel2(a) if OPT["fuse"] else None
    fill = []
    cnt = [0]
    def ev(t):
        e(t); cnt[0] += 1
        if fill and cnt[0] % 3 == 0: fill.pop(0)()
    for j in range(6):
        if j == 1:
            a.wait(lgkm=0, vm=4); e("s_barrier")
            e(f"v_and_b32 {vt[0]}, 0xfffffff0, {vFL}"); a.ds_read_b128(vZ, vt[0], 0)
        if j == 2:
            a.wait(lgkm=0)
            e(f"v_or3_b32 {vt[0]}, {vZ[0]}, {vZ[1]}, {vZ[2]}"); e(f"v_or_b32 {vt[0]}, {vt[0]}, {vZ[3]}"); e("s_nop 0")
            e(f"v_readfirstlane_b32 {sT1}, {vt[0]}"); e(f"s_cmp_lg_u32 {sT1}, 0"); e("s_cbranch_scc1 L1_fallback")
            if K2: next(K2); fill = next(K2)
        e(f"s_add_u32 {sT0}, {sOO}, {j * 131072}")
        for m in range(4):
            T = V(208 + 8 * (m % 2), 8); D = V(224 + 4 * (m % 2), 4)
            for i in range(8): ev(f"v_accvgpr_read_b32 {T[i]}, {OA(2 * m + (i >> 2), j)[i & 3]}")
            for i in range(4): ev(f"v_pk_mul_f32 {T[2*i:2*i+2]}, {T[2*i:2*i+2]}, {R2(j)}")
            for i in range(4): ev(f"v_cvt_pk_bf16_f32 {D[i]}, {T[2*i]}, {T[2*i+1]}")
            a.bstore(D, vOS, SRDO, sT0, m * 1024, ostf)
    assert not fill
    if K2:
        stamp(a, 5)
        K2.send((sB, lambda: dump_stamps(a, 6, 0x4000000, sW, vt[0], vt[1], last=False)))
    else:
        dump_stamps(a, 6, 0x4000000, sW, vt[0], vt[1])
    a.label("L1_end"); e("s_endpgm")
    a.label("L1_fallback")
    a.lds = []; a.vm = []
    e("s_waitcnt vmcnt(0) lgkmcnt(0)"); e("s_barrier")
    e(f"s_mov_b32 {sPass}, 1"); e(f"s_mov_b32 {SRDKV[2]}, {NR}")
    for q in range(6): e(f"v_mov_b32 {vl[q]}, 0xff800000")
    e(f"s_mov_b32 {sKVO}, 0"); e(f"s_mov_b32 {sKVO2}, 4096"); e(f"s_mov_b32 {sIT}, 0")
    a.label("L1_fb_loop")
    for o in dma_kv(sM0KV): o()
    e("s_waitcnt vmcnt(0)"); e("s_barrier")
    for n in range(8):
        for pi in range(2): rdK(n, pi, 0)()
    for f in sm: f()
    e("s_nop 15")
    for j in range(6):
        for o in rowmax_ops(j, vt[0], vt[1]): o()
        e(f"v_max_f32 {vl[j]}, {vl[j]}, {vt[0]}")
    e("s_barrier")
    e(f"s_add_u32 {sIT}, {sIT}, 1"); e(f"s_cmp_lt_u32 {sIT}, 32"); e("s_cbranch_scc1 L1_fb_loop")
    e(f"s_mov_b32 {sKVO}, {sKV0}"); e(f"s_add_u32 {sKVO2}, {sKVO}, 4096")
    for t in range(4):
        e(f"s_add_u32 {sT0}, {sM0KV}, {t * 16384}")
        for o in dma_kv(sT0): o()
    for j in range(6):
        for o in negfill_ops(j, vl[j]): o()
        e(f"v_mov_b32 {vl[j]}, 0")
    for i in range(4): e(f"v_mov_b32 {vZ[i]}, 0")
    for o in init: o()
    e("s_nop 1")
    for f in zm: f()
    stream_init()
    e("s_waitcnt vmcnt(0)"); e("s_barrier")
    for n in range(8):
        for pi in range(2): rdK(n, pi, 0)()
    e("s_waitcnt lgkmcnt(0)"); e("s_nop 15")
    e("s_branch L1_loopB")
    return a.text()

def kernel2(a):
    fused = a is not None
    if not fused: a = Asm()
    e = a.e
    SRDWO, SRDOW, SRDOUT, SRDDBG = S(20, 4), S(24, 4), S(28, 4), S(80, 4)
    sW, sRB, sCB, sT0, sT1, sT2, sIT = S(36), S(46), S(47), S(48), S(49), S(50), S(45)
    sWOo, sOo, sM0 = S(76), S(77), S(78)
    vLane = V(1); vt = [V(i) for i in range(2, 10)]
    wa = [V(10 + k) for k in range(8)]
    wv = [V(18 + k) for k in range(8)]
    ov = [V(26 + k) for k in range(6)]
    ra = [V(32 + k) for k in range(3)]
    vRW, vOut = V(35), V(36)
    AC = lambda i, j: A(4 * (j * 8 + i), 4)
    AF = lambda i: V(40 + 4 * i, 4)
    BF = lambda sl, j: V(72 + 24 * sl + 4 * j, 4)
    REG = 36864
    osc = " sc1" if (fused and OPT["osc"]) else ""
    if not fused:
        a.k2 = 1
        a.label("mha_oproj_kernel")
        e("s_cmp_ge_u32 s2, 256"); e("s_cbranch_scc1 L2_end")
        e("s_load_dwordx16 s[4:19], s[0:1], 0")
        e(f"v_lshrrev_b32 {vt[0]}, 6, v0"); e(f"v_and_b32 {vLane}, 63, v0")
        e(f"v_readfirstlane_b32 {sW}, {vt[0]}")
    e(f"s_and_b32 {sT2}, s2, 7"); e(f"s_lshr_b32 {sT0}, s2, 3")
    if OPT["map2"] == 0:
        e(f"s_lshr_b32 {sT1}, {sT2}, 1"); e(f"s_lshl_b32 {sT1}, {sT1}, 3"); e(f"s_and_b32 {sRB}, {sT0}, 7")
        e(f"s_add_u32 {sRB}, {sT1}, {sRB}")
        e(f"s_and_b32 {sT1}, {sT2}, 1"); e(f"s_lshl_b32 {sT1}, {sT1}, 2"); e(f"s_lshr_b32 {sCB}, {sT0}, 3"); e(f"s_add_u32 {sCB}, {sCB}, {sT1}")
    else:
        e(f"s_lshl_b32 {sT1}, {sT2}, 2"); e(f"s_and_b32 {sT2}, {sT0}, 3"); e(f"s_add_u32 {sRB}, {sT1}, {sT2}")
        e(f"s_lshr_b32 {sCB}, {sT0}, 2")
    t0, t1, t2, t3 = wa[:4]
    e(f"v_lshrrev_b32 {t2}, 4, {vLane}"); e(f"v_and_b32 {t1}, 15, {vLane}")
    e(f"v_lshlrev_b32 {t3}, 1, {t2}"); e(f"v_xor_b32 {t1}, {t1}, {t3}")
    e(f"v_lshlrev_b32 {t0}, 11, {t2}"); e(f"v_lshl_add_u32 {wv[0]}, {t1}, 4, {t0}")
    e(f"v_xor_b32 {t1}, 128, {wv[0]}")
    for m in range(1, 8): e(f"v_add_u32 {wv[m]}, {m * 8192 - (m % 4) * 1024}, {t1 if m & 1 else wv[0]}")
    e(f"s_mul_i32 {sM0}, {sW}, {REG}")
    e(f"s_lshl_b32 {sWOo}, {sW}, 21"); e(f"s_lshl_b32 {sOo}, {sW}, 15")
    def ovs():
        e(f"s_mul_i32 {sT0}, {sRB}, 786432"); e(f"v_lshlrev_b32 {vt[0]}, 4, {vLane}")
        e(f"v_add_u32 {ov[0]}, {sT0}, {vt[0]}")
        for j in range(1, 6): e(f"v_add_u32 {ov[j]}, {j * 131072}, {ov[0]}")
    if not fused:
        ovs()
        e("s_waitcnt lgkmcnt(0)")
        stamp(a, 0)
    e(f"s_lshl_b32 {sT0}, {sCB}, 8")
    e(f"s_add_u32 {SRDWO[0]}, s12, {sT0}"); e(f"s_addc_u32 {SRDWO[1]}, s13, 0")
    e(f"s_sub_u32 {SRDWO[2]}, 8388608, {sT0}"); e(f"s_mov_b32 {SRDWO[3]}, 0x20000")
    e(f"s_mov_b32 {SRDOW[0]}, s18"); e(f"s_mov_b32 {SRDOW[1]}, s19")
    e(f"s_mov_b32 {SRDOW[2]}, 25165824"); e(f"s_mov_b32 {SRDOW[3]}, 0x20000")
    if OPT["k2skip"] & 1: e(f"s_mov_b32 {SRDWO[2]}, 0")
    if OPT["k2skip"] & 2: e(f"s_mov_b32 {SRDOW[2]}, 0")
    def issue_w(slot):
        ops = []
        for h in range(2):
            ops.append(lambda h=h: e(f"s_add_u32 m0, {sM0}, {slot * 8192 + h * 4096}"))
            for m in range(4): ops.append(lambda m=m, h=h: a.dma(wv[4 * h + m], SRDWO, sWOo, m * 1024, tag=("w", slot)))
        ops.append(lambda: e(f"s_add_u32 {sWOo}, {sWOo}, 65536"))
        return ops
    def issue_o(slot):
        ops = [(lambda j=j: a.bload(BF(slot, j), ov[j], SRDOW, sOo, 0, osc)) for j in range(6)]
        ops.append(lambda: e(f"s_add_u32 {sOo}, {sOo}, 1024"))
        return ops
    def run(ops):
        for o in ops:
            n = len(a.out); o()
            if "m0" in a.out[-1]: e("s_nop 0")
    if fused:
        yield None
        sB1, dump1 = yield issue_w(0) + issue_w(1) + issue_w(2) + issue_w(3)
        ovs()
    else:
        run(issue_w(0)); run(issue_o(0)); run(issue_w(1)); run(issue_o(1))
        if OPT["codepf"]: code_prefetch(a, vLane, vt[4], vt[5], "mha_oproj_kernel", 16384, sW)
        run(issue_w(2)); run(issue_o(2)); run(issue_w(3))
    t0 = vt[0]
    e(f"s_mov_b32 {SRDOUT[0]}, s14"); e(f"s_mov_b32 {SRDOUT[1]}, s15")
    e(f"s_mov_b32 {SRDOUT[2]}, 6291456"); e(f"s_mov_b32 {SRDOUT[3]}, 0x20000")
    e(f"v_add_u32 {vRW}, {sM0}, {t0}")
    for d in range(1, 4):
        e(f"s_sub_u32 {sT0}, {sW}, {d}"); e(f"s_and_b32 {sT0}, {sT0}, 3"); e(f"s_mul_i32 {sT0}, {sT0}, {REG}")
        e(f"s_add_u32 {sT0}, {sT0}, {(d - 1) * 12288}"); e(f"v_add_u32 {ra[d-1]}, {sT0}, {t0}")
    vg, vr, vc, u0, u1 = vt[3:8]
    e(f"v_lshrrev_b32 {vg}, 4, {vLane}"); e(f"v_lshrrev_b32 {vr}, 2, {vLane}"); e(f"v_and_b32 {vc}, 3, {vLane}")
    e(f"v_and_b32 {u1}, 7, {vr}"); e(f"v_lshlrev_b32 {u0}, 8, {vr}")
    e(f"v_add_u32 {u0}, {sM0}, {u0}"); e(f"v_lshl_add_u32 {u0}, {vc}, 3, {u0}"); e(f"v_lshl_add_u32 {u0}, {u1}, 5, {u0}")
    for d in range(4):
        e(f"s_add_u32 {sT0}, {sW}, {d}"); e(f"s_and_b32 {sT0}, {sT0}, 3"); e(f"s_lshl_b32 {sT0}, {sT0}, 6")
        e(f"v_xor_b32 {wa[2*d]}, {sT0}, {u0}"); e(f"v_xor_b32 {wa[2*d+1]}, 32, {wa[2*d]}")
    e(f"s_mul_i32 {sT0}, {sRB}, 196608"); e(f"s_lshl_b32 {sT1}, {sCB}, 8"); e(f"s_add_u32 {sT0}, {sT0}, {sT1}")
    e(f"s_lshl_b32 {sT1}, {sW}, 6"); e(f"s_add_u32 {sT0}, {sT0}, {sT1}")
    e(f"v_and_b32 {u1}, 15, {vLane}"); e(f"v_lshlrev_b32 {vOut}, 11, {u1}"); e(f"v_add_u32 {vOut}, {sT0}, {vOut}")
    e(f"v_and_b32 {u1}, 1, {vg}"); e(f"v_lshl_add_u32 {vOut}, {u1}, 5, {vOut}")
    e(f"v_lshrrev_b32 {u1}, 1, {vg}"); e(f"v_lshl_add_u32 {vOut}, {u1}, 4, {vOut}")
    vZ = V(168, 4)
    for i in range(4): e(f"v_mov_b32 {vZ[i]}, 0")
    e("s_nop 1")
    for k in range(12): e(f"v_mfma_f32_32x32x16_bf16 {A(16 * k, 16)}, {vZ}, {vZ}, 0")
    def rdA(slot, i): return [(lambda u=u: a.ds_read_tr(AF(i)[2 * u:2 * u + 2], wa[i], slot * 8192 + u * 4096)) for u in range(2)]
    if fused:
        e(f"s_mov_b32 {SRDDBG[0]}, s16"); e(f"s_mov_b32 {SRDDBG[1]}, s17"); e(f"s_mov_b32 {SRDDBG[2]}, 256"); e(f"s_mov_b32 {SRDDBG[3]}, 0x20000")
        e(f"s_lshl_b32 {sT0}, {sB1}, 4"); e(f"s_lshr_b32 {sT1}, {sRB}, 1"); e(f"s_lshl_b32 {sT1}, {sT1}, 4")
        e(f"v_mov_b32 {vt[0]}, 1"); e(f"v_mov_b32 {vt[1]}, 0"); e(f"s_mov_b32 {sIT}, 0")
        a.k2 = 1; stamp(a, 0)
        a.wait(vm=0); e("s_barrier")
        stamp(a, 1)
        e(f"s_cmp_lg_u32 {sW}, 0"); e("s_cbranch_scc1 L2_skip")
        e("s_mov_b64 exec, 1")
        e(f"buffer_atomic_add {vt[0]}, {vt[1]}, {SRDDBG}, {sT0} offen sc1")
        a.label("L2_poll")
        e(f"buffer_load_dword {vt[2]}, {vt[1]}, {SRDDBG}, {sT1} offen sc1")
        e("s_waitcnt vmcnt(0)")
        e(f"v_readfirstlane_b32 {sT2}, {vt[2]}"); e(f"s_add_u32 {sIT}, {sIT}, 1")
        e(f"s_cmp_ge_u32 {sT2}, 16"); e("s_cbranch_scc1 L2_go")
        e(f"s_sleep {OPT['psleep']}")
        e(f"s_cmp_lt_u32 {sIT}, 0x40000"); e("s_cbranch_scc1 L2_poll")
        a.label("L2_go")
        e("s_mov_b64 exec, -1")
        a.label("L2_skip")
        for i in range(7):
            for r in rdA(0, i): r()
        e("s_barrier")
        stamp(a, 2)
        run(issue_o(0)); run(issue_o(1)); run(issue_o(2))
        a.wait(vm=0)
        stamp(a, 3)
    else:
        a.wait_for(("w", 0))
        stamp(a, 1)
        for i in range(7):
            for r in rdA(0, i): r()
    e(f"s_mov_b32 {sIT}, 0")
    def body():
        for u in range(4):
            G = Gaps()
            mf = [(lambda i=i, j=j: a.mfma16(AC(i, j), AF(i), BF(u, j), AC(i, j))) for i in range(8) for j in range(6)]
            m0_ = mf[0]; mf[0] = lambda m0_=m0_: (a.wait_for(BF(u, 5), lgkm=2), m0_())
            for k, r in enumerate(rdA(u, 7)): G.mem(k, r)
            G.mem(5, lambda: a.wait_for(("w", (u + 1) % 4), lgkm=0))
            for i in range(7):
                for k, r in enumerate(rdA((u + 1) % 4, i)): G.mem(6 * i + 6 + k, r)
            ops = issue_w(u) + issue_o((u + 3) % 4)
            if u == 0: G.mem(3, lambda: (e(f"s_cmp_eq_u32 {sIT}, 7"), e(f"s_cselect_b32 {SRDWO[2]}, 0, {SRDWO[2]}")))
            if u == 1: G.mem(3, lambda: (e(f"s_cmp_eq_u32 {sIT}, 7"), e(f"s_cselect_b32 {SRDOW[2]}, 0, {SRDOW[2]}")))
            free = [g for i in range(1, 8) for g in range(6 * i + 2, 6 * i + 6)]
            for o, g in zip(ops, [free[(k * len(free)) // len(ops)] for k in range(len(ops))]): G.mem(g, o)
            G.run(mf)
    mark = len(a.out)
    body(); body(); sl, sv = list(a.lds), list(a.vm)
    del a.out[mark:]
    a.lds, a.vm = list(sl), list(sv)
    a.label("L2_loop")
    body()
    assert a.lds == sl and a.vm == sv, (a.vm, sv)
    e(f"s_add_u32 {sIT}, {sIT}, 1"); e(f"s_cmp_lt_u32 {sIT}, 8"); e("s_cbranch_scc1 L2_loop")
    a.wait(vm=0, lgkm=0)
    if not fused: stamp(a, 2); stamp(a, 3)
    stamp(a, 4)
    e("s_nop 7")
    for d in range(1, 4):
        for j in range(6):
            for b in range(2):
                a.ds_write_b128(vRW, AC(2 * d + b, j), ((d - 1) * 12 + j * 2 + b) * 1024)
    R = lambda b, j: V(40 + 8 * j + 4 * b, 4)
    for j in range(6):
        for b in range(2):
            for i in range(4): e(f"v_accvgpr_read_b32 {R(b, j)[i]}, {AC(b, j)[i]}")
    a.wait(lgkm=0); e("s_barrier")
    T = lambda d, b, j: V(96 + 48 * d + 8 * j + 4 * b, 4)
    for j in range(6):
        for d in range(3):
            for b in range(2): a.ds_read_b128(T(d, b, j), ra[d], (j * 2 + b) * 1024)
    for j in range(6):
        for d in range(3):
            for b in range(2):
                a.wait_for(T(d, b, j))
                for i in range(2): e(f"v_pk_add_f32 {R(b, j)[2*i:2*i+2]}, {R(b, j)[2*i:2*i+2]}, {T(d, b, j)[2*i:2*i+2]}")
        D = V(10 + 4 * j, 4)
        e(f"v_cvt_pk_bf16_f32 {D[0]}, {R(0, j)[0]}, {R(0, j)[1]}"); e(f"v_cvt_pk_bf16_f32 {D[1]}, {R(0, j)[2]}, {R(0, j)[3]}")
        e(f"v_cvt_pk_bf16_f32 {D[2]}, {R(1, j)[0]}, {R(1, j)[1]}"); e(f"v_cvt_pk_bf16_f32 {D[3]}, {R(1, j)[2]}, {R(1, j)[3]}")
        e(f"s_mov_b32 {sT0}, {j * 32768}"); e("s_nop 0")
        e(f"v_permlane16_swap_b32 {D[0]}, {D[2]}"); e(f"v_permlane16_swap_b32 {D[1]}, {D[3]}")
        a.bstore(D, vOut, SRDOUT, sT0, 0, (" " + OPT["ost2"].replace("+", " ")) if OPT["ost2"] else "")
    dump_stamps(a, 6, 0x4100000, sW, vt[0], vt[1])
    a.k2 = 0
    if OPT["leak"]:
        lk = OPT["leak"]
        if lk < 100:
            e(f"v_readfirstlane_b32 s93, v{241 + 2 * (lk % 10)}"); e(f"v_readfirstlane_b32 s94, v{241 + 2 * (lk // 10)}")
        elif lk < 200:
            e(f"s_mov_b32 s93, s{61 + 2 * (lk % 10)}"); e(f"s_mov_b32 s94, s{61 + 2 * ((lk // 10) % 10)}")
        else:
            e("v_readfirstlane_b32 s93, v251"); e("s_mov_b32 s94, s61")
        e("s_nop 4"); e("s_sub_u32 s93, s93, s94"); e("s_lshl_b32 s93, s93, 2"); e("s_min_u32 s93, s93, 100000")
        e("s_memrealtime s[98:99]"); e("s_waitcnt lgkmcnt(0)"); e("s_add_u32 s93, s93, s98")
        a.label("L2_spin")
        e("s_memrealtime s[98:99]"); e("s_waitcnt lgkmcnt(0)"); e("s_sub_u32 s94, s93, s98"); e("s_cmp_gt_i32 s94, 0"); e("s_cbranch_scc1 L2_spin")
    if fused:
        dump1()
        yield None
    else:
        a.label("L2_end")
        e("s_endpgm")
        yield a.text()


def kernel0():
    a = Asm(); e = a.e
    a.label("mha_pre_kernel")
    e("s_cmp_ge_u32 s2, 256"); e("s_cbranch_scc1 L0_end")
    e("s_load_dwordx16 s[4:19], s[0:1], 0"); e("s_waitcnt lgkmcnt(0)")
    e("s_mov_b32 s20, s4"); e("s_mov_b32 s21, s5"); e("s_mov_b32 s22, 6291456"); e("s_mov_b32 s23, 0x20000")
    e("s_mov_b32 s24, s10"); e("s_mov_b32 s25, s11"); e("s_mov_b32 s26, 8388608"); e("s_mov_b32 s27, 0x20000")
    e("v_lshlrev_b32 v1, 7, v0"); e("s_lshl_b32 s3, s2, 15")
    e("buffer_load_dword v2, v1, s[20:23], s3 offen"); e("buffer_load_dword v3, v1, s[24:27], s3 offen")
    e("s_waitcnt vmcnt(0)")
    a.label("L0_end"); e("s_endpgm")
    return a.text()

def main():
    launches = []
    if OPT["fuse"]:
        s = HEADER + "; @launch kernel=mha_qattn_kernel grid=(256,1,1) block=(256,1,1) lds=163840\n"
        s += '.amdgcn_target "amdgcn-amd-amdhsa--gfx950"\n.text\n'
        s += ".globl mha_qattn_kernel\n.p2align 8\n.type mha_qattn_kernel,@function\n" + kernel1() + "L_text_end:\n"
        s += kd("mha_qattn_kernel", 512, 256)
        open(sys.argv[1], "w").write(s)
        return
    if OPT["only"] in (None, "k1"): launches.append("; @launch kernel=mha_qattn_kernel grid=(256,1,1) block=(256,1,1) lds=163840")
    if OPT["only"] in (None, "k2"): launches.append("; @launch kernel=mha_oproj_kernel grid=(256,1,1) block=(256,1,1) lds=163840")
    s = HEADER + "\n".join(launches) + "\n"
    s += '.amdgcn_target "amdgcn-amd-amdhsa--gfx950"\n.text\n'
    s += ".globl mha_qattn_kernel\n.p2align 8\n.type mha_qattn_kernel,@function\n" + kernel1()
    s += ".globl mha_oproj_kernel\n.p2align 8\n.type mha_oproj_kernel,@function\n" + next(kernel2(None)) + "L_text_end:\n"
    s += kd("mha_qattn_kernel", 512, 256) + kd("mha_oproj_kernel", 512, 256)
    open(sys.argv[1], "w").write(s)
main()
```

```python
import sys, math, struct
from asmlib import *

OPT = dict(kv_nt=1, only=None, dbgQ=0, prof=0, kvskip=0, wo_touch=3, n2=0, rotH=0, p1end=26, ost="", codepf=0, k2skip=0, map2=1, pre=0, askip=0, p2nt=1, p2s=3, p2e=30, early=1, xw_touch=0, leak=0, rotW=0, krot=0, ost2="", itst=0, bwait=16, bdrop=0, qmode=0, tl=64, fuse=1, psleep=2, osc=1, bmap=0, evw=16, h16=0, dg0=20, verbose=0, d4=8, x5g=0, bnoc=0, xmap=0, only01=0)
for a_ in sys.argv[2:]:
    k, v = a_.split("=")
    assert k in OPT, k
    OPT[k] = int(v) if v.lstrip("-").isdigit() else v

def f32bits(x): return struct.unpack("<I", struct.pack("<f", x))[0]
CSCALE = math.log2(math.e) / math.sqrt(128.0)
THRESH = 2.0 ** 30

HEADER = """; Kernarg layout for this problem (64 bytes, ptrs only, base s[0:1]):
"""

def stamp(a, i, lvl=1):
    if not OPT["prof"]: return
    if OPT["prof"] == 2 and lvl == 1 and i >= 2 and not getattr(a, "k2", 0): return
    if OPT["prof"] == 1 and lvl == 2: return
    a.e("s_memtime s[98:99]"); a.e("s_memrealtime s[100:101]")
    a.e("s_waitcnt lgkmcnt(0)"); a.lds = []
    if getattr(a, "k2", 0): a.e(f"v_mov_b32 v{240+2*i}, s98"); a.e(f"v_mov_b32 v{241+2*i}, s100")
    else: a.e(f"s_mov_b32 s{60+2*i}, s98"); a.e(f"s_mov_b32 s{61+2*i}, s100")
def dump_stamps(a, n, wsoff, sW, vtmp, vaddr, last=True):
    if not OPT["prof"]: return
    e = a.e
    e("s_waitcnt vmcnt(0)")
    if last: stamp(a, n - 1)
    e("s_mov_b32 s88, s18"); e("s_mov_b32 s89, s19"); e("s_mov_b32 s90, 0x10000000"); e("s_mov_b32 s91, 0x20000")
    e(f"s_lshl_b32 s92, s2, 2"); e(f"s_add_u32 s92, s92, {sW}"); e("s_lshl_b32 s92, s92, 6"); e(f"s_add_u32 s92, s92, {wsoff}")
    e(f"v_mov_b32 {vaddr}, 0")
    for i in range(2 * n):
        e(f"v_mov_b32 {vtmp}, " + (f"v{240+i}" if getattr(a, "k2", 0) else f"s{60+i}"))
        e(f"buffer_store_dword {vtmp}, {vaddr}, s[88:91], s92 offen offset:{4*i}")
    e("s_waitcnt vmcnt(0)")

def code_prefetch(a, vLane, vtmp, vdst, start_label, nbytes, sW):
    e = a.e
    e("s_getpc_b64 s[84:85]")
    a.label(f"{start_label}_pc")
    e(f"s_sub_u32 s84, s84, {start_label}_pc-{start_label}"); e("s_subb_u32 s85, s85, 0")
    e(f"s_mov_b32 s86, L_text_end-{start_label}"); e("s_mov_b32 s87, 0x20000")
    e(f"v_lshlrev_b32 {vtmp}, 7, {vLane}"); e(f"s_lshl_b32 s93, {sW}, 13")
    for blk in range((nbytes + 32767) // 32768):
        a.bload(vdst, vtmp, S(84, 4), "s93", 0)
        e("s_add_u32 s93, s93, 32768")

def kernel1():
    a = Asm(); e = a.e
    SRDX, SRDW, SRDKV, SRDO, SRDWO = S(20, 4), S(24, 4), S(28, 4), S(32, 4), S(80, 4)
    sW, sB, sHP, sQH, sHS = S(36), S(37), S(38), S(40), S(41)
    sT0, sT1, sT2, sIT = S(42), S(43), S(44), S(45)
    sXK, sWK = S(46), S(47)
    sM0X, sM0W = S(48), S(49)
    sKVO, sKVO2, sM0KV = S(50), S(51), S(52)
    sTHR, sC = S(53), S(54, 2)
    sOO, sCnt, sKV0, sPass, sP1 = S(56), S(57), S(58), S(59), S(39)
    sDL, sSL0, sS = S(79), S(78), S(72)
    vLane = V(1)
    vt = [V(i) for i in range(2, 10)]
    xa = [[V(10 + 2 * s + k) for k in range(2)] for s in range(2)]
    wa = [V(14 + k) for k in range(8)]
    xv = [V(22 + k) for k in range(6)]
    wv = [V(28 + k) for k in range(4)]
    ka = [V(32 + k) for k in range(8)]
    va = [V(40 + k) for k in range(8)]
    kvv = [V(48 + k) for k in range(4)]
    vl = [V(52 + k) for k in range(6)]
    vKW, vOS, vTA, vTD, vFL = V(58), V(59), V(60), V(61), V(62)
    vZ = V(10, 4)
    ACC = lambda i, j: V(64 + 64 * (j >> 1) + 8 * i + 4 * (j & 1), 4)
    QF = lambda j, ks: V(64 + 32 * (j >> 1) + 8 * ks + 4 * (j & 1), 4)
    NEG = lambda j: V(160 + 4 * j, 4)
    SB = lambda i: V(184 + 8 * i, 8)
    PB = lambda i: V(200 + 4 * i, 4)
    TMP = lambda j: V(184 + 4 * j, 4)
    X5 = lambda p: V(208 + 4 * p, 4)
    R2 = lambda j: V(232 + 2 * j, 2)
    OA = lambda db, j: A(4 * (8 * j + db), 4)
    KF = lambda n: A(192 + 4 * n, 4)
    VF = lambda db: A(224 + 4 * db, 4)
    AF = lambda i: A(128 + 4 * i, 4)
    BF = lambda st, j: A((160 if st == 0 else 224) + 4 * j, 4)
    P1R = lambda t, p: A(4 * (8 * t + p), 4)
    XBASE = 65536
    nt = " nt" if OPT["kv_nt"] else ""

    a.label("mha_qattn_kernel")
    e("s_cmp_ge_u32 s2, 256"); e("s_cbranch_scc1 L1_end")
    e("s_load_dwordx16 s[4:19], s[0:1], 0")
    e(f"v_lshrrev_b32 {vt[0]}, 6, v0"); e(f"v_and_b32 {vLane}, 63, v0")
    e("s_and_b32 s3, s2, 7"); e(f"s_lshr_b32 {sT0}, s2, 3")
    e(f"v_readfirstlane_b32 {sW}, {vt[0]}")
    e(f"s_and_b32 {sT1}, s3, 1"); e(f"s_and_b32 {sT2}, {sT0}, 7")
    if OPT["bmap"] == 0: e(f"s_lshl_b32 {sT1}, {sT1}, 3")
    if OPT["bmap"] == 1: e(f"s_lshl_b32 {sT2}, {sT2}, 1")
    if OPT["bmap"] == 2: e(f"s_xor_b32 {sT1}, {sT1}, 1"); e(f"s_lshl_b32 {sT1}, {sT1}, 3")
    e(f"s_add_u32 {sB}, {sT1}, {sT2}")
    e(f"s_lshr_b32 {sT1}, s3, 1"); e(f"s_lshl_b32 {sT1}, {sT1}, 2"); e(f"s_lshr_b32 {sHP}, {sT0}, 3")
    e(f"s_add_u32 {sHP}, {sHP}, {sT1}")
    if OPT["xmap"] == 1:
        e(f"s_lshr_b32 {sT1}, s3, 1"); e(f"s_lshl_b32 {sT1}, {sT1}, 2"); e(f"s_and_b32 {sT2}, {sT0}, 3"); e(f"s_add_u32 {sB}, {sT1}, {sT2}")
        e(f"s_and_b32 {sT1}, s3, 1"); e(f"s_lshl_b32 {sT1}, {sT1}, 3"); e(f"s_lshr_b32 {sHP}, {sT0}, 2"); e(f"s_add_u32 {sHP}, {sHP}, {sT1}")
    if OPT["xmap"] == 2:
        e(f"s_lshl_b32 {sT1}, s3, 1"); e(f"s_and_b32 {sT2}, {sT0}, 1"); e(f"s_add_u32 {sB}, {sT1}, {sT2}"); e(f"s_lshr_b32 {sHP}, {sT0}, 1")
    if OPT["xmap"] == 3:
        e(f"s_and_b32 {sB}, {sT0}, 15"); e(f"s_lshl_b32 {sT1}, s3, 1"); e(f"s_lshr_b32 {sHP}, {sT0}, 4"); e(f"s_add_u32 {sHP}, {sHP}, {sT1}")
    e(f"s_and_b32 {sQH}, {sW}, 1"); e(f"s_lshr_b32 {sHS}, {sW}, 1")
    t0, t1, t2, t3, t4, t5 = vt[:6]
    e(f"v_lshrrev_b32 {t2}, 4, {vLane}")
    e(f"v_and_b32 {t1}, 15, {vLane}")
    e(f"v_lshlrev_b32 {t3}, 1, {t2}"); e(f"v_xor_b32 {t1}, {t1}, {t3}")
    e(f"s_lshl_b32 {sT0}, {sQH}, 4"); e(f"v_add_u32 {t0}, {sT0}, {t2}")
    e(f"v_lshlrev_b32 {t0}, 13, {t0}")
    e(f"s_lshl_b32 {sT0}, {sHS}, 8"); e(f"v_add_u32 {t0}, {sT0}, {t0}")
    for m in range(4):
        e(f"v_xor_b32 {t3}, {8 * (m >> 1)}, {t1}"); e(f"v_lshl_add_u32 {t3}, {t3}, 4, {t0}")
        e(f"v_add_u32 {wv[m]}, {m * 32768 - m * 1024}, {t3}")
    e(f"v_lshrrev_b32 {t0}, 3, {vLane}")
    e(f"v_and_b32 {t1}, 7, {vLane}"); e(f"v_xor_b32 {t1}, {t1}, {t2}")
    e(f"s_mul_i32 {sT0}, {sW}, 48"); e(f"v_add_u32 {t0}, {sT0}, {t0}"); e(f"v_lshlrev_b32 {t0}, 11, {t0}")
    for m in range(6):
        e(f"v_xor_b32 {t3}, {4 * (m & 1)}, {t1}"); e(f"v_lshl_add_u32 {t3}, {t3}, 4, {t0}")
        e(f"v_add_u32 {xv[m]}, {m * 16384 - (m % 3) * 1024}, {t3}")
    e(f"s_mul_i32 {sM0X}, {sW}, 6144"); e(f"s_add_u32 {sM0X}, {sM0X}, {XBASE}")
    e(f"s_lshl_b32 {sM0W}, {sW}, 12")
    e("s_waitcnt lgkmcnt(0)")
    stamp(a, 0)
    e(f"s_lshl_b32 {sT0}, {sHP}, 9")
    e(f"s_add_u32 {SRDW[0]}, s10, {sT0}"); e(f"s_addc_u32 {SRDW[1]}, s11, 0")
    e(f"s_sub_u32 {SRDW[2]}, 8388608, {sT0}"); e(f"s_mov_b32 {SRDW[3]}, 0x20000")
    e(f"s_mul_i32 {sT0}, {sB}, 393216")
    e(f"s_add_u32 {SRDX[0]}, s4, {sT0}"); e(f"s_addc_u32 {SRDX[1]}, s5, 0")
    e(f"s_mov_b32 {SRDX[2]}, 393216"); e(f"s_mov_b32 {SRDX[3]}, 0x20000")

    if OPT["askip"]: e(f"s_mov_b32 {SRDX[2]}, 0"); e(f"s_mov_b32 {SRDW[2]}, 0")
    sKR, sKRW = S(76), S(77)
    if OPT["krot"]:
        e(f"s_lshr_b32 {sT0}, s2, 3"); e(f"s_and_b32 {sT1}, {sT0}, 7"); e(f"s_lshr_b32 {sT0}, {sT0}, 3"); e(f"s_lshl_b32 {sT0}, {sT0}, 1")
        e(f"s_add_u32 {sT0}, {sT0}, {sT1}"); e(f"s_and_b32 {sT0}, {sT0}, 7")
        if OPT["krot"] == 2: e(f"s_and_b32 {sT0}, {sT0}, 1"); e(f"s_lshl_b32 {sT0}, {sT0}, 2")
        if OPT["krot"] == 3: e(f"s_and_b32 {sT0}, {sT0}, 3"); e(f"s_lshl_b32 {sT0}, {sT0}, 1")
        e(f"s_lshl_b32 {sKR}, {sT0}, 8"); e(f"s_lshl_b32 {sKRW}, {sT0}, 20")
    def dma_x(c, part):
        if OPT["krot"]:
            ops = [lambda: (e(f"s_add_u32 m0, {sM0X}, {(c % 4) * 24576 + part * 3072}"), e(f"s_add_u32 {sXK}, {sKR}, {c * 128}"), e(f"s_and_b32 {sXK}, {sXK}, 2047"))]
        else:
            ops = [lambda: (e(f"s_add_u32 m0, {sM0X}, {(c % 4) * 24576 + part * 3072}"), e(f"s_movk_i32 {sXK}, {c * 128}"))]
        for m in range(3):
            ops.append(lambda m=m: a.dma(xv[3 * part + m], SRDX, sXK, m * 1024, tag=("x", c)))
        return ops
    def dma_w(s):
        if OPT["krot"]:
            ops = [lambda: (e(f"s_add_u32 m0, {sM0W}, {(s % 4) * 16384}"), e(f"s_add_u32 {sWK}, {sKRW}, {s * 262144}"), e(f"s_and_b32 {sWK}, {sWK}, 8388607"))]
        else:
            ops = [lambda: (e(f"s_add_u32 m0, {sM0W}, {(s % 4) * 16384}"), e(f"s_mov_b32 {sWK}, {s * 262144}"))]
        for m in range(4):
            ops.append(lambda m=m: a.dma(wv[m], SRDW, sWK, m * 1024, tag=("w", s)))
        return ops
    def run(ops):
        for o in ops: o()
    run(dma_w(0)); run(dma_x(0, 0)); run(dma_x(0, 1)); run(dma_w(1)); run(dma_w(2)); run(dma_x(1, 0)); run(dma_x(1, 1)); run(dma_w(3))
    if OPT["codepf"]: code_prefetch(a, vLane, vTA, vTD, "mha_qattn_kernel", OPT["codepf"] * 1024, sW)
    run(dma_x(2, 0)); run(dma_x(2, 1)); run(dma_x(3, 0)); run(dma_x(3, 1))
    e(f"s_lshl_b32 {sT0}, {sB}, 5"); e(f"s_lshl_b32 {sT1}, {sHP}, 1"); e(f"s_add_u32 {sT0}, {sT0}, {sT1}")
    e(f"s_add_u32 {sT0}, {sT0}, {sHS}"); e(f"s_lshl_b32 {sT0}, {sT0}, 18")
    e(f"s_cmp_eq_u32 {sQH}, 0"); e(f"s_cselect_b32 {sT1}, s6, s8"); e(f"s_cselect_b32 {sT2}, s7, s9")
    e(f"s_add_u32 {SRDKV[0]}, {sT1}, {sT0}"); e(f"s_addc_u32 {SRDKV[1]}, {sT2}, 0")
    NR = 0 if OPT["kvskip"] else 262144
    e(f"s_mov_b32 {SRDKV[2]}, {NR}"); e(f"s_mov_b32 {SRDKV[3]}, 0x20000")
    e(f"s_mov_b32 {SRDO[0]}, s18"); e(f"s_mov_b32 {SRDO[1]}, s19")
    e(f"s_mov_b32 {SRDO[2]}, 25165824"); e(f"s_mov_b32 {SRDO[3]}, 0x20000")
    e(f"s_mov_b32 {sTHR}, {f32bits(THRESH):#x}")
    e(f"s_mov_b32 {sC[0]}, {f32bits(CSCALE):#x}"); e(f"s_mov_b32 {sC[1]}, {f32bits(CSCALE):#x}")
    e(f"s_mul_i32 {sKV0}, {sHS}, {OPT['rotH'] * 8192}"); e(f"s_mov_b32 {sPass}, 0")
    if OPT["rotW"] == 1:
        e(f"s_lshr_b32 {sKV0}, s2, 3"); e(f"s_lshl_b32 {sT1}, {sHS}, 2"); e(f"s_add_u32 {sKV0}, {sKV0}, {sT1}")
        e(f"s_and_b32 {sKV0}, {sKV0}, 7"); e(f"s_lshl_b32 {sKV0}, {sKV0}, 15")
    if OPT["rotW"] == 2:
        e(f"s_lshr_b32 {sKV0}, s2, 5"); e(f"s_add_u32 {sKV0}, {sKV0}, s2"); e(f"s_lshl_b32 {sT1}, {sHS}, 2"); e(f"s_add_u32 {sKV0}, {sKV0}, {sT1}")
        e(f"s_and_b32 {sKV0}, {sKV0}, 7"); e(f"s_lshl_b32 {sKV0}, {sKV0}, 15")
    if OPT["rotW"] == 3:
        e(f"s_lshr_b32 {sKV0}, s2, 3"); e(f"s_add_u32 {sKV0}, {sKV0}, s2"); e(f"s_lshr_b32 {sT1}, s2, 6"); e(f"s_add_u32 {sKV0}, {sKV0}, {sT1}")
        e(f"s_lshl_b32 {sT1}, {sHS}, 2"); e(f"s_add_u32 {sKV0}, {sKV0}, {sT1}")
        e(f"s_and_b32 {sKV0}, {sKV0}, 7"); e(f"s_lshl_b32 {sKV0}, {sKV0}, 15")
    if OPT["rotW"] == 4:
        e(f"s_mul_i32 {sKV0}, s2, 5"); e(f"s_lshr_b32 {sT1}, s2, 5"); e(f"s_add_u32 {sKV0}, {sKV0}, {sT1}")
        e(f"s_lshl_b32 {sT1}, {sHS}, 4"); e(f"s_add_u32 {sKV0}, {sKV0}, {sT1}")
        e(f"s_and_b32 {sKV0}, {sKV0}, 31"); e(f"s_lshl_b32 {sKV0}, {sKV0}, 13")
    if OPT["rotW"] == 5:
        e(f"s_lshr_b32 {sKV0}, s2, 3"); e(f"s_lshl_b32 {sT1}, s2, 2"); e(f"s_add_u32 {sKV0}, {sKV0}, {sT1}")
        e(f"s_lshl_b32 {sT1}, {sHS}, 4"); e(f"s_add_u32 {sKV0}, {sKV0}, {sT1}")
        e(f"s_and_b32 {sKV0}, {sKV0}, 31"); e(f"s_lshl_b32 {sKV0}, {sKV0}, 13")
    if OPT["rotW"] == 6:
        e(f"s_lshl_b32 {sKV0}, s2, 1"); e(f"s_add_u32 {sKV0}, {sKV0}, {sHS}"); e(f"s_mul_i32 {sKV0}, {sKV0}, 0x9e3779b1")
        e(f"s_lshr_b32 {sKV0}, {sKV0}, 27"); e(f"s_lshl_b32 {sKV0}, {sKV0}, 13")
    e(f"s_mul_i32 {sDL}, {sHS}, 49152"); e(f"s_sub_u32 {sDL}, 131072, {sDL}")
    e(f"v_lshlrev_b32 {vTA}, 7, {vLane}")
    vT2 = V(0)
    e(f"v_lshrrev_b32 {vT2}, {int(math.log2(64 // OPT['tl']))}, {vLane}"); e(f"v_lshlrev_b32 {vT2}, 7, {vT2}")
    if OPT["wo_touch"]:
        e(f"s_mov_b32 {SRDWO[0]}, s12"); e(f"s_mov_b32 {SRDWO[1]}, s13"); e(f"s_mov_b32 {SRDWO[2]}, 8388608"); e(f"s_mov_b32 {SRDWO[3]}, 0x20000")
    if OPT["xw_touch"]:
        e(f"s_lshl_b32 {sT2}, s2, 2"); e(f"s_add_u32 {sT2}, {sT2}, {sW}"); e(f"s_lshl_b32 {sT2}, {sT2}, 13")
        e("s_mov_b32 s84, s10"); e("s_mov_b32 s85, s11"); e("s_mov_b32 s86, 8388608"); e("s_mov_b32 s87, 0x20000")
        a.bload(vTD, vTA, S(84, 4), sT2, 0)
        e("s_mov_b32 s84, s4"); e("s_mov_b32 s85, s5"); e("s_mov_b32 s86, 6291456")
        a.bload(vTD, vTA, S(84, 4), sT2, 0)
    vh, vg, vr, vc1, vc0, vql, u0, u1 = vt
    e(f"v_lshrrev_b32 {vg}, 4, {vLane}"); e(f"v_bfe_u32 {vr}, {vLane}, 2, 2"); e(f"v_and_b32 {vc0}, 3, {vLane}")
    e(f"v_lshl_add_u32 {u0}, {vg}, 3, {vr}"); e(f"v_lshlrev_b32 {u0}, 8, {u0}")
    e(f"s_lshl_b32 {sT0}, {sHS}, 13"); e(f"v_add_u32 {u0}, {sT0}, {u0}")
    e(f"v_lshl_add_u32 {u0}, {vc0}, 3, {u0}"); e(f"v_lshl_add_u32 {u0}, {vr}, 5, {u0}")
    e(f"v_and_b32 {u1}, 1, {vg}"); e(f"v_lshl_add_u32 {wa[0]}, {u1}, 7, {u0}")
    for i in range(1, 8): e(f"v_xor_b32 {wa[i]}, {32 * i}, {wa[0]}")
    e(f"v_and_b32 {vql}, 15, {vLane}")
    e(f"s_mul_i32 {sT1}, {sQH}, 12288"); e(f"s_add_u32 {sT1}, {sT1}, {XBASE}")
    e(f"v_lshlrev_b32 {u0}, 7, {vql}"); e(f"v_add_u32 {u0}, {sT1}, {u0}")
    e(f"v_lshrrev_b32 {u1}, 1, {vql}"); e(f"v_xor_b32 {u1}, {u1}, {vg}")
    e(f"v_lshl_add_u32 {xa[0][0]}, {u1}, 4, {u0}"); e(f"v_xor_b32 {xa[0][1]}, 64, {xa[0][0]}")
    for k in range(2): e(f"v_add_u32 {xa[1][k]}, 49152, {xa[0][k]}")
    e(f"v_lshlrev_b32 {vh}, {sQH}, {vg}")
    e(f"v_xor_b32 {vh}, {vh}, {vql}"); e(f"v_lshlrev_b32 {u0}, 8, {vg}")
    e(f"v_lshl_add_u32 {kvv[0]}, {vh}, 4, {u0}")
    e(f"s_cmp_eq_u32 {sQH}, 0")
    for j in range(1, 4):
        e(f"s_cselect_b32 {sT1}, {4 * j}, {8 * (j & 1)}"); e(f"s_mul_i32 {sT1}, {sT1}, 16"); e(f"v_xor_b32 {kvv[j]}, {sT1}, {kvv[0]}")

    def late_setup():
        ops = []
        E = lambda s: ops.append(lambda: e(s))
        E(f"v_lshrrev_b32 {vg}, 4, {vLane}"); E(f"v_bfe_u32 {vr}, {vLane}, 2, 2"); E(f"v_and_b32 {vc0}, 3, {vLane}")
        E(f"v_and_b32 {vql}, 15, {vLane}"); E(f"v_lshrrev_b32 {vc1}, 2, {vLane}")
        E(f"s_lshl_b32 {sT0}, {sHS}, 16"); E(f"s_add_u32 {sT1}, {sT0}, 8192")
        E(f"v_lshlrev_b32 {u0}, 8, {vc1}"); E(f"v_add_u32 {u0}, {sT1}, {u0}"); E(f"v_lshl_add_u32 {u0}, {vc0}, 3, {u0}")
        E(f"v_and_b32 {u1}, 7, {vc1}"); E(f"v_lshl_add_u32 {va[0]}, {u1}, 5, {u0}")
        for db in range(1, 8): E(f"v_xor_b32 {va[db]}, {32 * db}, {va[0]}")
        E(f"v_lshlrev_b32 {u0}, 8, {vql}"); E(f"v_add_u32 {u0}, {sT0}, {u0}")
        E(f"v_and_b32 {u1}, 1, {vg}"); E(f"v_lshl_add_u32 {u0}, {u1}, 3, {u0}")
        E(f"v_lshrrev_b32 {u1}, 1, {vg}"); E(f"v_xor_b32 {u1}, {u1}, {vql}"); E(f"v_lshl_add_u32 {ka[0]}, {u1}, 4, {u0}")
        for s in range(1, 8): E(f"v_xor_b32 {ka[s]}, {32 * s}, {ka[0]}")
        E(f"s_lshl_b32 {sM0KV}, {sQH}, 13"); E(f"s_add_u32 {sM0KV}, {sM0KV}, {sT0}")
        E(f"v_lshlrev_b32 {vOS}, 4, {vLane}"); E(f"v_add_u32 {vKW}, {sM0KV}, {vOS}"); E(f"s_add_u32 {sS}, {sM0KV}, {sDL}")
        E(f"s_lshl_b32 {sOO}, {sB}, 1"); E(f"s_add_u32 {sOO}, {sOO}, {sQH}"); E(f"s_mul_i32 {sOO}, {sOO}, {6 * 131072}")
        E(f"s_lshl_b32 {sT1}, {sHP}, 1"); E(f"s_add_u32 {sT1}, {sT1}, {sHS}"); E(f"s_lshl_b32 {sT1}, {sT1}, 12"); E(f"s_add_u32 {sOO}, {sOO}, {sT1}")
        E(f"s_lshl_b32 {sT1}, {sW}, 2"); E(f"s_add_u32 {sT1}, {sT1}, 163776"); E(f"v_mov_b32 {vFL}, {sT1}")
        for q in range(6): E(f"v_mov_b32 {vl[q]}, 0")
        return ops
    def rdK(n, pi, slot): return lambda: a.ds_read_b64(KF(n)[2 * pi:2 * pi + 2], ka[2 * (n >> 1) + pi], slot * 16384 + (n & 1) * 4096)
    def rdV(db, uu, slot): return lambda: a.ds_read_tr(VF(db)[2 * uu:2 * uu + 2], va[db], slot * 16384 + uu * 4096)

    def rdA(s, i): return [(lambda u=u: a.ds_read_tr(AF(i)[2 * u:2 * u + 2], wa[i], (s % 4) * 16384 + u * 1024)) for u in range(2)]
    def rdB(s, j):
        xs = (s // 2) % 4
        return lambda: a.ds_read_b128(BF(s % 2, j), xa[xs // 2][s % 2], (xs % 2) * 24576 + j * 2048)
    p1list = [(t, p) for t in range(4) for p in range(8)]
    def p1_ops(k):
        t, p = p1list[k]
        ops = []
        if p % 4 == 0:
            ops.append(lambda: (e(f"s_add_u32 {sP1}, {sKV0}, {t * 8192 + (p // 4) * 4096}"), e(f"s_and_b32 {sP1}, {sP1}, 262143")))
        ops.append(lambda: a.bload(P1R(t, p), kvv[p % 4], SRDKV, sP1, (p % 4) * 1024, nt))
        return ops
    p1_at = {}
    for k in range(32): p1_at.setdefault(k * OPT["p1end"] // 32, []).append(k)
    p2_at = {}
    for k in range(OPT["n2"]): p2_at.setdefault(OPT["p2s"] + (k * (OPT["p2e"] - OPT["p2s"])) // OPT["n2"], []).append(k)
    conv = []
    for J in range(3):
        for ks in range(4):
            for jj in range(2):
                j = 2 * J + jj
                X, Y, D = ACC(2 * ks, j), ACC(2 * ks + 1, j), QF(j, ks)
                for R in (X, Y):
                    for k in range(4): conv.append((J, lambda r=R[k]: e(f"v_mul_f32 {r}, {sC[0]}, {r}")))
                conv.append((J, lambda X=X, D=D: e(f"v_cvt_pk_bf16_f32 {D[0]}, {X[0]}, {X[1]}")))
                conv.append((J, lambda X=X, D=D: e(f"v_cvt_pk_bf16_f32 {D[1]}, {X[2]}, {X[3]}")))
                conv.append((J, lambda Y=Y, D=D: e(f"v_cvt_pk_bf16_f32 {D[2]}, {Y[0]}, {Y[1]}")))
                conv.append((J, lambda Y=Y, D=D: e(f"v_cvt_pk_bf16_f32 {D[3]}, {Y[2]}, {Y[3]}")))

    a.wait_for(("w", 0), ("x", 0)); e("s_barrier")
    stamp(a, 1)
    for j in range(6):
        rdB(0, j)()
        for r in rdA(0, j): r()
    for r in rdA(0, 6): r()
    late = late_setup()
    free = [g for i in range(3, 8) for g in range(6 * i + 2, 6 * i + 6)]
    for s in range(32):
        if s in (8, 16, 24): stamp(a, 1 + s // 8, 2)
        G = Gaps()
        last = s == 31
        order = [(i, j) for j in range(6) for i in range(8)] if last else [(i, j) for i in range(8) for j in range(6)]
        mf = [(lambda i=i, j=j: a.mfma16(ACC(i, j), AF(i), BF(s % 2, j), ACC(i, j) if s else 0)) for i, j in order]
        if s:
            m0_ = mf[0]; mf[0] = lambda m0_=m0_: (a.wait_for(lgkm=2), m0_())
        for u, r in enumerate(rdA(s, 7)): G.mem(u, r)
        def bar(s=s):
            if s < 31: a.wait_for(("w", s + 1), ("x", (s + 1) // 2), lgkm=0)
            else: a.wait_for(lgkm=0)
            e("s_barrier")
        G.mem(7, bar)
        if not last:
            for u, r in enumerate(rdA(s + 1, 0)): G.mem(8 + u, r)
            for i in range(1, 7):
                for u, r in enumerate(rdA(s + 1, i)): G.mem(6 * i + 6 + u, r)
            for j, g in enumerate([10, 11, 14, 15, 16, 17]): G.mem(g, rdB(s + 1, j))
        ops = []
        if s + 4 < 32: ops += dma_w(s + 4)
        c = (s - 1) // 2 + 4
        if s >= 1 and c < 16: ops += dma_x(c, (s - 1) % 2)
        for k in p1_at.get(s, []): ops += p1_ops(k)
        for k in p2_at.get(s, []):
            ops.append(lambda k=k: (e(f"s_add_u32 {sT2}, {sKV0}, {32768 + k * OPT['tl'] * 128}"), e(f"s_and_b32 {sT2}, {sT2}, 262143")))
            ops.append(lambda: a.bload(vTD, vT2, SRDKV, sT2, 0, " nt" if OPT["p2nt"] else ""))
        if s == 2 and OPT["wo_touch"] == 1:
            ops.append(lambda: (e(f"s_lshl_b32 {sT2}, s2, 2"), e(f"s_add_u32 {sT2}, {sT2}, {sW}"), e(f"s_lshl_b32 {sT2}, {sT2}, 13")))
            ops.append(lambda: a.bload(vTD, vTA, SRDWO, sT2, 0))
        if last:
            for half in range(2):
                ops.append(lambda half=half: (e(f"s_add_u32 {sP1}, {sKV0}, {32768 + half * 4096}"), e(f"s_and_b32 {sP1}, {sP1}, 262143"), e(f"s_add_u32 m0, {sS}, {half * 4096}")))
                for j in range(4): ops.append(lambda j=j: a.dma(kvv[j], SRDKV, sP1, j * 1024, nt))
        if s >= 28:
            t = s - 28
            ops += [(lambda p=p: a.ds_write_b128(vKW, P1R(t, p), t * 16384 + p * 1024)) for p in range(8)]
        if s >= 30:
            ops += [rdK(n, pi, 0) for n in range(4 * (s - 30), 4 * (s - 30) + 4) for pi in range(2)]
        if last:
            for i in range(4): G.valu(4 + i, lambda i=i: e(f"v_mov_b32 {vZ[i]}, 0"))
        fr = free if not last else list(range(OPT['d4'], OPT['d4'] + 28))
        assert len(ops) <= len(fr), (s, len(ops))
        for o, g in zip(ops, [fr[(k * len(fr)) // len(ops)] for k in range(len(ops))]): G.mem(g, o)
        if s == 0:
            for k, o in enumerate(late): G.valu(8 + k // 2, o)
        if last:
            g = 0
            n = 0
            while conv and g < 48:
                J = conv[0][0]
                g = max(g, 16 * J + 18)
                if g >= 48: break
                G.valu(g, conv.pop(0)[1]); n += 1
                if n % 2 == 0: g += 1
        G.run(mf)
    stamp(a, 2); stamp(a, 5, 2)
    if OPT["only01"]: e("s_waitcnt vmcnt(0) lgkmcnt(0)"); e(f"s_cmp_eq_u32 {sHS}, 1"); e("s_cbranch_scc1 L1_end")
    e("s_nop 3")
    def xlane(op, m, tmp):
        return [lambda: e(f"v_mov_b32 {tmp}, {m}"), lambda: e("s_nop 1"), lambda: e(f"v_permlane16_swap_b32 {m}, {tmp}"), lambda: e("s_nop 1"),
                lambda: e(f"{op} {m}, {m}, {tmp}"),
                lambda: e(f"v_mov_b32 {tmp}, {m}"), lambda: e("s_nop 1"), lambda: e(f"v_permlane32_swap_b32 {m}, {tmp}"), lambda: e("s_nop 1"),
                lambda: e(f"{op} {m}, {m}, {tmp}")]
    def rowmax_ops(j, m, tmp):
        X, Y = NEG(j), TMP(j)
        return [lambda: e(f"v_max3_f32 {m}, {X[0]}, {X[1]}, {X[2]}"), lambda: e(f"v_max3_f32 {m}, {m}, {X[3]}, {Y[0]}"),
                lambda: e(f"v_max3_f32 {m}, {m}, {Y[1]}, {Y[2]}"), lambda: e(f"v_max_f32 {m}, {m}, {Y[3]}")] + xlane("v_max_f32", m, tmp)
    def negfill_ops(j, m):
        return [(lambda i=i: e(f"v_sub_f32 {NEG(j)[i]}, 0, {m}")) for i in range(4)]
    a.wait_for(lgkm=0)
    zm = [(lambda k=k: a.e(f"v_mfma_f32_32x32x16_bf16 {A(16 * k, 16)}, {vZ}, {vZ}, 0")) for k in list(range(12)) + [14, 15]]
    G = Gaps()
    G.spread([(o, 4) for _, o in conv], list(range(14))); conv = []
    G.run(zm)
    e("s_nop 1")
    sm = [(lambda j=j, n=n: a.mfma16(TMP(j) if n & 1 else NEG(j), KF(n), QF(j, n >> 1), (TMP(j) if n & 1 else NEG(j)) if n > 1 else 0))
          for j in range(6) for n in range(8)]

    NS = 96
    used = [0] * NS
    memg = {}
    def M(g, it, cost=4): memg.setdefault(g % NS, []).append(it); used[g % NS] += cost
    M(5, ("kill",), 12); M(6, ("m0", 0)); M(7, ("bar",), 8)
    for db in range(8): M(8 + db, ("v", db, 0)); M(12 + db, ("v", db, 1))
    for n in range(8): M(80 + n, ("k", n, 0)); M(84 + n, ("k", n, 1))
    dg = OPT["dg0"]
    for k in range(4): M(dg + 2 * k, ("dma", 0, k)); M(dg + 10 + 2 * k, ("dma", 1, k))
    M(dg + 8, ("m0", 1)); M(dg + 19, ("adv",), 12)
    for g in (95, 3, 23, 27): used[g] += 4
    valg = {}
    def place(j, seq, lo, hi):
        for L in range(8, 41, 4):
            u2 = list(used); g = lo; out = []
            for op, c, mn in seq:
                g = max(g, mn)
                while g <= hi and u2[g % NS] + c > L: g += 1
                if g > hi: break
                u2[g % NS] += c; out.append((op, g))
            else:
                used[:] = u2
                for op, g in out: valg.setdefault(g, []).append((j, op))
                return dict(out)
        raise Exception("no fit")
    pos = {}
    for j in range(6):
        b = 16 * j
        crit = [("e0", 8, b + 8), ("e1", 8, 0), ("e2", 8, 0), ("c0", 4, 0), ("e3", 8, 0), ("e4", 8, b + 10), ("c1", 4, 0), ("e5", 8, 0), ("e6", 8, 0),
                ("c2", 4, 0), ("e7", 8, 0), ("a0", 4, 0), ("c3", 4, 0)]
        pos[j] = place(j, crit, b + 8, b + 22)
    for j in range(6):
        b = 16 * j
        place(j, [(f"a{k}", 4, pos[j][f"e{k}"] + 1) for k in range(1, 8)], b + 9, b + 30)
    if OPT["verbose"]: print("gap load", used, "over", sum(max(0, x - 12) for x in used))
    def sm_op(j, op):
        Sx, Px, k = SB(j % 2), PB(j % 2), int(op[1])
        if op[0] == "e": e(f"v_exp_f32 {Sx[k]}, {Sx[k]}")
        if op[0] == "a": e(f"v_add_f32 {vl[j]}, {vl[j]}, {Sx[k]}")
        if op[0] == "c": e(f"v_cvt_pk_bf16_f32 {Px[k]}, {Sx[2 * k]}, {Sx[2 * k + 1]}")
    tail = [(g, j, op) for g in sorted(valg) if g >= NS for j, op in valg[g]]
    tail_e = {(j, int(op[1])) for g, j, op in tail if op[0] == "e"}
    init = [(lambda j=j, k=k: e(f"v_mov_b32 {SB(j % 2)[k]}, {'0xf149f2ca' if (j, k) in tail_e else 0}")) for j in (4, 5) for k in range(8)]
    init += [(lambda k=k: e(f"v_mov_b32 {PB(1)[k]}, 0")) for k in range(4)]

    G = Gaps()
    for j in range(5):
        G.spread([(o, 4) for o in rowmax_ops(j, vt[0], vt[1]) + negfill_ops(j, vt[0])], list(range(8 * j + 9, min(48, 8 * j + 17))))
    G.spread([(o, 4) for o in init[0:8]], list(range(26, 34)))
    G.spread([(o, 4) for o in init[8:16]], list(range(42, 48)))
    sSL = [S(94 + u) for u in range(4)]
    def stream_init():
        e(f"s_sub_u32 {sCnt}, 0, {sQH}")
        e(f"s_lshl_b32 {sT0}, {sQH}, 13"); e(f"s_add_u32 {sKVO}, {sKV0}, 49152"); e(f"s_sub_u32 {sKVO}, {sKVO}, {sT0}"); e(f"s_and_b32 {sKVO}, {sKVO}, 262143")
        e(f"s_add_u32 {sKVO2}, {sKVO}, 4096"); e(f"s_mov_b32 {sIT}, 0")
    def x5_ops():
        ops = []
        for p in range(8):
            if p % 4 == 0: ops.append(lambda p=p: (e(f"s_add_u32 {sP1}, {sKV0}, {5 * 8192 + (p // 4) * 4096}"), e(f"s_and_b32 {sP1}, {sP1}, 262143")))
            ops.append(lambda p=p: e(f"buffer_load_dwordx4 {X5(p)}, {kvv[p % 4]}, {SRDKV}, {sP1} offen" + (f" offset:{(p % 4) * 1024}" if p % 4 else "") + nt))
        return ops
    for k, o in enumerate(x5_ops()): G.mem(OPT["x5g"] + k // 2, o)
    G.mem(6, stream_init)
    if OPT["wo_touch"] == 3:
        G.mem(7, lambda: (e(f"s_lshl_b32 {sT2}, s2, 2"), e(f"s_add_u32 {sT2}, {sT2}, {sW}"), e(f"s_lshl_b32 {sT2}, {sT2}, 13")))
        G.mem(8, lambda: a.bload(vTD, vTA, SRDWO, sT2, 0))
    for u in range(4):
        G.mem(9 + u, lambda u=u: (e(f"s_sub_u32 {sT0}, {u}, {sQH}"), e(f"s_and_b32 {sT0}, {sT0}, 3"), e(f"s_lshl_b32 {sT0}, {sT0}, 14"), e(f"s_add_u32 {sSL[u]}, {sM0KV}, {sT0}")))
    G.mem(13, lambda: (e(f"s_mov_b32 {sSL0}, {sSL[0]}"), e(f"s_cmp_lg_u32 {sQH}, 0"), e("s_cselect_b64 vcc, -1, 0")))
    G.valu(14, lambda: e(f"v_add_u32 {vKW}, {sDL}, {vKW}"))
    G.run(sm)
    e("s_nop 7")
    for o in rowmax_ops(5, vt[0], vt[1]) + negfill_ops(5, vt[0]) + init[16:]: o()
    e("s_nop 1")

    def dma_kv(slot):
        ops = []
        for half in range(2):
            ops.append(lambda half=half: (e(f"s_add_u32 m0, {slot}, {half * 4096}"), e("s_nop 0")))
            for j in range(4):
                ops.append(lambda j=j, half=half: a.dma(kvv[j], SRDKV, sKVO2 if half else sKVO, j * 1024, nt))
        ops.append(lambda: (e(f"s_add_u32 {sKVO}, {sKVO}, 8192"), e(f"s_and_b32 {sKVO}, {sKVO}, 262143"), e(f"s_add_u32 {sKVO2}, {sKVO}, 4096")))
        return ops
    PVg = lambda j: [(lambda db=db: a.mfma16(OA(db, j), VF(db), PB(j % 2), OA(db, j))) for db in range(8)]
    lblc = [0]
    def only(kind, f):
        lblc[0] += 1; L = f"L1_only{lblc[0]}"
        e(f"s_cbranch_vcc{'z' if kind else 'nz'} {L}"); f(); a.label(L)
    def dma_half(u, half):
        e(f"s_add_u32 m0, {sSL[u]}, {half * 4096}"); e("s_nop 0")
        for j in range(4): e(f"buffer_load_dwordx4 {kvv[j]}, {SRDKV}, {sKVO2 if half else sKVO} offen" + (f" offset:{j * 1024}" if j else "") + nt + " lds")
    def x5_write():
        for p in range(8): e(f"ds_write_b128 {vKW}, {X5(p)}" + (f" offset:{p * 1024}" if p else ""))
    def tileB(u, vs=None, ks=None, dma=True, adv=True, kill=False, vm=OPT["bwait"], extra={}, nok=False):
        vs = u if vs is None else vs
        ks = (u + 1) % 4 if ks is None else ks
        mf = []
        for j in range(6):
            for n in range(8):
                D = SB(j % 2)[4 * (n & 1):4 * (n & 1) + 4]
                mf.append(lambda n=n, D=D, j=j: a.mfma16(D, KF(n), QF(j, n >> 1), D if n > 1 else NEG(j)))
            mf += PVg((j + 5) % 6)
        for idx, regs in ((0, [KF(n) for n in range(4)]), (4, [KF(n) for n in range(8)]), (24, [VF(d) for d in range(4)]), (28, [VF(d) for d in range(8)])):
            mf[idx] = (lambda f=mf[idx], regs=regs: (a.wait_for(*regs), f()))
        for g in range(NS):
            if not OPT["bnoc"] & 1: mf[g]()
            for it in memg.get(g, []):
                k = it[0]
                if OPT["bnoc"] & 2 and k in "vk": continue
                if k == "kill" and kill: e(f"s_cmp_lt_u32 {sCnt}, 22"); e(f"s_cselect_b32 {SRDKV[2]}, {NR}, 0"); e(f"s_add_u32 {sCnt}, {sCnt}, 1")
                if k == "m0" and dma: e(f"s_add_u32 m0, {sSL[u]}, {it[1] * 4096}")
                if k == "bar":
                    if vm is not None: a.wait(vm=vm)
                    e("s_barrier")
                if k == "v": rdV(it[1], it[2], vs)()
                if k == "k" and not nok: rdK(it[1], it[2], ks)()
                if k == "dma" and dma: a.dma(kvv[it[2]], SRDKV, sKVO2 if it[1] else sKVO, it[2] * 1024, nt)
                if k == "adv" and adv: e(f"s_add_u32 {sKVO}, {sKVO}, 8192"); e(f"s_and_b32 {sKVO}, {sKVO}, 262143"); e(f"s_add_u32 {sKVO2}, {sKVO}, 4096")
            for f in extra.get(g, []): f()
            for j, op in valg.get(g + NS, []) + valg.get(g, []):
                if not OPT["bnoc"] & 4: sm_op(j, op)
        if OPT["bnoc"] & 1: a.wait(lgkm=0)
    stamp(a, 3)
    shift = lambda op, g0: {g0 + k: [lambda r=r: e(f"{op} {r}, {r}, {sDL}" if op == "v_subrev_u32" else f"{op} {r}, {sDL}, {r}")] for k, r in enumerate(ka + va)}
    shift = lambda op, g0: {g0 + k: [lambda r=r: e(f"{op} {r}, {sDL}, {r}")] for k, r in enumerate(ka + va)}
    e("s_waitcnt lgkmcnt(0)"); a.lds = []
    a.label("L1_tile0")
    tileB(0, dma=False, vm=None, extra={dg: [lambda: only(0, lambda: dma_half(0, 0))], dg + 10: [lambda: only(0, lambda: dma_half(0, 1))]})
    tileB(1, vm=None)
    tileB(2, vm=None)
    tileB(3, ks=0, vm=32, extra=shift("v_add_u32", 44))
    tileB(0, vs=0, ks=0, dma=False, adv=False, vm=32,
          extra={29: [lambda: only(0, x5_write)], 45: [lambda: (a.wait(vm=24, lgkm=0), e("s_barrier"))], 46: [lambda: only(1, x5_write)],
                 50: [lambda: only(1, lambda: dma_half(0, 0))], 60: [lambda: only(1, lambda: dma_half(0, 1))],
                 62: [lambda: (e(f"s_cmp_eq_u32 {sQH}, 0"), e(f"s_cselect_b32 {sSL[0]}, {sSL0}, {sS}"))]})
    tileB(0, vs=0, ks=0, dma=False, adv=False, vm=24, extra=shift("v_subrev_u32", 44))
    def bodyB():
        for u in range(4): tileB(u, kill=True, extra={40: [lambda: e(f"s_mov_b32 {sSL[0]}, {sSL0}")]} if u == 1 else {})
    steady = list(a.lds)
    a.label("L1_loopB")
    bodyB()
    assert a.lds == steady
    e(f"s_add_u32 {sIT}, {sIT}, 1"); e(f"s_cmp_lt_u32 {sIT}, 6"); e("s_cbranch_scc1 L1_loopB")
    tileB(0, dma=False, adv=False, vm=16)
    tileB(1, dma=False, adv=False, vm=0, nok=True)
    stamp(a, 4)
    for g, j, op in tail: sm_op(j, op)
    e("s_nop 1")
    def lsum_ops(j):
        sp = "s[98:99]" if j == 0 else "s[100:101]"
        ops = xlane("v_add_f32", vl[j], vt[1]) + [lambda: e(f"v_cmp_ngt_f32 {sp}, {sTHR}, {vl[j]}"), lambda: e(f"v_rcp_f32 {R2(j)[0]}, {vl[j]}"),
                                                  lambda: e(f"v_rcp_f32 {R2(j)[1]}, {vl[j]}")]
        if j: ops.append(lambda: e("s_or_b64 s[98:99], s[98:99], s[100:101]"))
        return ops
    G = Gaps()
    G.spread([(o, 4) for j in range(2) for o in lsum_ops(j)], list(range(0, 8)))
    G.run(PVg(5))
    for j in range(2, 6):
        for o in lsum_ops(j): o()
    e("s_cmp_lg_u64 s[98:99], 0"); e(f"s_cselect_b32 {sT0}, 1, 0"); e(f"s_andn2_b32 {sT0}, {sT0}, {sPass}")
    if OPT["bnoc"]: e(f"s_mov_b32 {sT0}, 0")
    e(f"v_mov_b32 {vt[1]}, {sT0}"); e(f"ds_write_b32 {vFL}, {vt[1]}"); a.lds.append(set())
    ostf = (" " + OPT["ost"].replace("+", " ")) if OPT["ost"] else ""
    K2 = kernel2(a) if OPT["fuse"] else None
    fill = []
    cnt = [0]
    def ev(t):
        e(t); cnt[0] += 1
        if fill and cnt[0] % 3 == 0: fill.pop(0)()
    for j in range(6):
        if j == 1:
            a.wait(lgkm=0, vm=4); e("s_barrier")
            e(f"v_and_b32 {vt[0]}, 0xfffffff0, {vFL}"); a.ds_read_b128(vZ, vt[0], 0)
        if j == 2:
            a.wait(lgkm=0)
            e(f"v_or3_b32 {vt[0]}, {vZ[0]}, {vZ[1]}, {vZ[2]}"); e(f"v_or_b32 {vt[0]}, {vt[0]}, {vZ[3]}"); e("s_nop 0")
            e(f"v_readfirstlane_b32 {sT1}, {vt[0]}"); e(f"s_cmp_lg_u32 {sT1}, 0")
            if not (OPT["only01"] or OPT["bnoc"] or OPT["kvskip"] or OPT["askip"]): e("s_cbranch_scc1 L1_fallback")
            if K2: next(K2); fill = next(K2)
        e(f"s_add_u32 {sT0}, {sOO}, {j * 131072}")
        for m in range(4):
            T = V(208 + 8 * (m % 2), 8); D = V(224 + 4 * (m % 2), 4)
            for i in range(8): ev(f"v_accvgpr_read_b32 {T[i]}, {OA(2 * m + (i >> 2), j)[i & 3]}")
            for i in range(4): ev(f"v_pk_mul_f32 {T[2*i:2*i+2]}, {T[2*i:2*i+2]}, {R2(j)}")
            for i in range(4): ev(f"v_cvt_pk_bf16_f32 {D[i]}, {T[2*i]}, {T[2*i+1]}")
            a.bstore(D, vOS, SRDO, sT0, m * 1024, ostf)
    assert not fill
    if K2:
        stamp(a, 5)
        K2.send((sB, lambda: dump_stamps(a, 6, 0x4000000, sW, vt[0], vt[1], last=False)))
    else:
        dump_stamps(a, 6, 0x4000000, sW, vt[0], vt[1])
    a.label("L1_end"); e("s_endpgm")
    a.label("L1_fallback")
    a.lds = []; a.vm = []
    e("s_waitcnt vmcnt(0) lgkmcnt(0)"); e("s_barrier")
    e(f"s_mov_b32 {sPass}, 1"); e(f"s_mov_b32 {SRDKV[2]}, {NR}")
    for q in range(6): e(f"v_mov_b32 {vl[q]}, 0xff800000")
    e(f"s_mov_b32 {sKVO}, 0"); e(f"s_mov_b32 {sKVO2}, 4096"); e(f"s_mov_b32 {sIT}, 0")
    a.label("L1_fb_loop")
    for o in dma_kv(sM0KV): o()
    e("s_waitcnt vmcnt(0)"); e("s_barrier")
    for n in range(8):
        for pi in range(2): rdK(n, pi, 0)()
    for f in sm: f()
    e("s_nop 15")
    for j in range(6):
        for o in rowmax_ops(j, vt[0], vt[1]): o()
        e(f"v_max_f32 {vl[j]}, {vl[j]}, {vt[0]}")
    e("s_barrier")
    e(f"s_add_u32 {sIT}, {sIT}, 1"); e(f"s_cmp_lt_u32 {sIT}, 32"); e("s_cbranch_scc1 L1_fb_loop")
    e(f"s_mov_b32 {sKVO}, {sKV0}"); e(f"s_add_u32 {sKVO2}, {sKVO}, 4096")
    for t in range(4):
        e(f"s_add_u32 {sT0}, {sM0KV}, {t * 16384}")
        for o in dma_kv(sT0): o()
    for o in dma_kv(sS): o()
    for o in x5_ops(): o()
    e(f"s_mov_b32 {sSL[0]}, {sSL0}")
    for j in range(6):
        for o in negfill_ops(j, vl[j]): o()
        e(f"v_mov_b32 {vl[j]}, 0")
    for i in range(4): e(f"v_mov_b32 {vZ[i]}, 0")
    for o in init: o()
    e("s_nop 1")
    for f in zm: f()
    stream_init()
    e("s_waitcnt vmcnt(0)"); e("s_barrier")
    for n in range(8):
        for pi in range(2): rdK(n, pi, 0)()
    e("s_waitcnt lgkmcnt(0)"); e("s_nop 15")
    e("s_branch L1_tile0")
    return a.text()

def kernel2(a):
    fused = a is not None
    if not fused: a = Asm()
    e = a.e
    SRDWO, SRDOW, SRDOUT, SRDDBG = S(20, 4), S(24, 4), S(28, 4), S(80, 4)
    sW, sRB, sCB, sT0, sT1, sT2, sIT = S(36), S(46), S(47), S(48), S(49), S(50), S(45)
    sWOo, sOo, sM0 = S(76), S(77), S(78)
    vLane = V(1); vt = [V(i) for i in range(2, 10)]
    wa = [V(10 + k) for k in range(8)]
    wv = [V(18 + k) for k in range(8)]
    ov = [V(26 + k) for k in range(6)]
    ra = [V(32 + k) for k in range(3)]
    vRW, vOut = V(35), V(36)
    AC = lambda i, j: A(4 * (j * 8 + i), 4)
    AF = lambda i: V(40 + 4 * i, 4)
    BF = lambda sl, j: V(72 + 24 * sl + 4 * j, 4)
    REG = 36864
    osc = " sc1" if (fused and OPT["osc"]) else ""
    if not fused:
        a.k2 = 1
        a.label("mha_oproj_kernel")
        e("s_cmp_ge_u32 s2, 256"); e("s_cbranch_scc1 L2_end")
        e("s_load_dwordx16 s[4:19], s[0:1], 0")
        e(f"v_lshrrev_b32 {vt[0]}, 6, v0"); e(f"v_and_b32 {vLane}, 63, v0")
        e(f"v_readfirstlane_b32 {sW}, {vt[0]}")
    e(f"s_and_b32 {sT2}, s2, 7"); e(f"s_lshr_b32 {sT0}, s2, 3")
    if OPT["map2"] == 0:
        e(f"s_lshr_b32 {sT1}, {sT2}, 1"); e(f"s_lshl_b32 {sT1}, {sT1}, 3"); e(f"s_and_b32 {sRB}, {sT0}, 7")
        e(f"s_add_u32 {sRB}, {sT1}, {sRB}")
        e(f"s_and_b32 {sT1}, {sT2}, 1"); e(f"s_lshl_b32 {sT1}, {sT1}, 2"); e(f"s_lshr_b32 {sCB}, {sT0}, 3"); e(f"s_add_u32 {sCB}, {sCB}, {sT1}")
    else:
        e(f"s_lshl_b32 {sT1}, {sT2}, 2"); e(f"s_and_b32 {sT2}, {sT0}, 3"); e(f"s_add_u32 {sRB}, {sT1}, {sT2}")
        e(f"s_lshr_b32 {sCB}, {sT0}, 2")
    t0, t1, t2, t3 = wa[:4]
    e(f"v_lshrrev_b32 {t2}, 4, {vLane}"); e(f"v_and_b32 {t1}, 15, {vLane}")
    e(f"v_lshlrev_b32 {t3}, 1, {t2}"); e(f"v_xor_b32 {t1}, {t1}, {t3}")
    e(f"v_lshlrev_b32 {t0}, 11, {t2}"); e(f"v_lshl_add_u32 {wv[0]}, {t1}, 4, {t0}")
    e(f"v_xor_b32 {t1}, 128, {wv[0]}")
    for m in range(1, 8): e(f"v_add_u32 {wv[m]}, {m * 8192 - (m % 4) * 1024}, {t1 if m & 1 else wv[0]}")
    e(f"s_mul_i32 {sM0}, {sW}, {REG}")
    e(f"s_lshl_b32 {sWOo}, {sW}, 21"); e(f"s_lshl_b32 {sOo}, {sW}, 15")
    def ovs():
        e(f"s_mul_i32 {sT0}, {sRB}, 786432"); e(f"v_lshlrev_b32 {vt[0]}, 4, {vLane}")
        e(f"v_add_u32 {ov[0]}, {sT0}, {vt[0]}")
        for j in range(1, 6): e(f"v_add_u32 {ov[j]}, {j * 131072}, {ov[0]}")
    if not fused:
        ovs()
        e("s_waitcnt lgkmcnt(0)")
        stamp(a, 0)
    e(f"s_lshl_b32 {sT0}, {sCB}, 8")
    e(f"s_add_u32 {SRDWO[0]}, s12, {sT0}"); e(f"s_addc_u32 {SRDWO[1]}, s13, 0")
    e(f"s_sub_u32 {SRDWO[2]}, 8388608, {sT0}"); e(f"s_mov_b32 {SRDWO[3]}, 0x20000")
    e(f"s_mov_b32 {SRDOW[0]}, s18"); e(f"s_mov_b32 {SRDOW[1]}, s19")
    e(f"s_mov_b32 {SRDOW[2]}, 25165824"); e(f"s_mov_b32 {SRDOW[3]}, 0x20000")
    if OPT["k2skip"] & 1: e(f"s_mov_b32 {SRDWO[2]}, 0")
    if OPT["k2skip"] & 2: e(f"s_mov_b32 {SRDOW[2]}, 0")
    def issue_w(slot):
        ops = []
        for h in range(2):
            ops.append(lambda h=h: e(f"s_add_u32 m0, {sM0}, {slot * 8192 + h * 4096}"))
            for m in range(4): ops.append(lambda m=m, h=h: a.dma(wv[4 * h + m], SRDWO, sWOo, m * 1024, tag=("w", slot)))
        ops.append(lambda: e(f"s_add_u32 {sWOo}, {sWOo}, 65536"))
        return ops
    def issue_o(slot):
        ops = [(lambda j=j: a.bload(BF(slot, j), ov[j], SRDOW, sOo, 0, osc)) for j in range(6)]
        ops.append(lambda: e(f"s_add_u32 {sOo}, {sOo}, 1024"))
        return ops
    def run(ops):
        for o in ops:
            n = len(a.out); o()
            if "m0" in a.out[-1]: e("s_nop 0")
    if fused:
        yield None
        sB1, dump1 = yield issue_w(0) + issue_w(1) + issue_w(2) + issue_w(3)
        ovs()
    else:
        run(issue_w(0)); run(issue_o(0)); run(issue_w(1)); run(issue_o(1))
        if OPT["codepf"]: code_prefetch(a, vLane, V(173), V(172), "mha_oproj_kernel", 16384, sW)
        run(issue_w(2)); run(issue_o(2)); run(issue_w(3))
    t0 = vt[0]
    e(f"s_mov_b32 {SRDOUT[0]}, s14"); e(f"s_mov_b32 {SRDOUT[1]}, s15")
    e(f"s_mov_b32 {SRDOUT[2]}, 6291456"); e(f"s_mov_b32 {SRDOUT[3]}, 0x20000")
    e(f"v_add_u32 {vRW}, {sM0}, {t0}")
    for d in range(1, 4):
        e(f"s_sub_u32 {sT0}, {sW}, {d}"); e(f"s_and_b32 {sT0}, {sT0}, 3"); e(f"s_mul_i32 {sT0}, {sT0}, {REG}")
        e(f"s_add_u32 {sT0}, {sT0}, {(d - 1) * 12288}"); e(f"v_add_u32 {ra[d-1]}, {sT0}, {t0}")
    vg, vr, vc, u0, u1 = vt[3:8]
    e(f"v_lshrrev_b32 {vg}, 4, {vLane}"); e(f"v_lshrrev_b32 {vr}, 2, {vLane}"); e(f"v_and_b32 {vc}, 3, {vLane}")
    e(f"v_and_b32 {u1}, 7, {vr}"); e(f"v_lshlrev_b32 {u0}, 8, {vr}")
    e(f"v_add_u32 {u0}, {sM0}, {u0}"); e(f"v_lshl_add_u32 {u0}, {vc}, 3, {u0}"); e(f"v_lshl_add_u32 {u0}, {u1}, 5, {u0}")
    for d in range(4):
        e(f"s_add_u32 {sT0}, {sW}, {d}"); e(f"s_and_b32 {sT0}, {sT0}, 3"); e(f"s_lshl_b32 {sT0}, {sT0}, 6")
        e(f"v_xor_b32 {wa[2*d]}, {sT0}, {u0}"); e(f"v_xor_b32 {wa[2*d+1]}, 32, {wa[2*d]}")
    e(f"s_mul_i32 {sT0}, {sRB}, 196608"); e(f"s_lshl_b32 {sT1}, {sCB}, 8"); e(f"s_add_u32 {sT0}, {sT0}, {sT1}")
    e(f"s_lshl_b32 {sT1}, {sW}, 6"); e(f"s_add_u32 {sT0}, {sT0}, {sT1}")
    e(f"v_and_b32 {u1}, 15, {vLane}"); e(f"v_lshlrev_b32 {vOut}, 11, {u1}"); e(f"v_add_u32 {vOut}, {sT0}, {vOut}")
    e(f"v_and_b32 {u1}, 1, {vg}"); e(f"v_lshl_add_u32 {vOut}, {u1}, 5, {vOut}")
    e(f"v_lshrrev_b32 {u1}, 1, {vg}"); e(f"v_lshl_add_u32 {vOut}, {u1}, 4, {vOut}")
    vZ = V(168, 4)
    for i in range(4): e(f"v_mov_b32 {vZ[i]}, 0")
    e("s_nop 1")
    for k in range(12): e(f"v_mfma_f32_32x32x16_bf16 {A(16 * k, 16)}, {vZ}, {vZ}, 0")
    def rdA(slot, i): return [(lambda u=u: a.ds_read_tr(AF(i)[2 * u:2 * u + 2], wa[i], slot * 8192 + u * 4096)) for u in range(2)]
    if fused:
        e(f"s_mov_b32 {SRDDBG[0]}, s16"); e(f"s_mov_b32 {SRDDBG[1]}, s17"); e(f"s_mov_b32 {SRDDBG[2]}, 256"); e(f"s_mov_b32 {SRDDBG[3]}, 0x20000")
        e(f"s_lshl_b32 {sT0}, {sB1}, 4"); e(f"s_lshr_b32 {sT1}, {sRB}, 1"); e(f"s_lshl_b32 {sT1}, {sT1}, 4")
        if OPT["fuse"] == 2: e(f"s_mov_b32 {sT0}, 0"); e(f"s_mov_b32 {sT1}, 0")
        e(f"v_mov_b32 {vt[0]}, 1"); e(f"v_mov_b32 {vt[1]}, 0"); e(f"s_mov_b32 {sIT}, 0")
        a.k2 = 1; stamp(a, 0)
        a.wait(vm=0); e("s_barrier")
        stamp(a, 1)
        e(f"s_cmp_lg_u32 {sW}, 0"); e("s_cbranch_scc1 L2_skip")
        e("s_mov_b64 exec, 1")
        e(f"buffer_atomic_add {vt[0]}, {vt[1]}, {SRDDBG}, {sT0} offen sc1")
        a.label("L2_poll")
        e(f"buffer_load_dword {vt[2]}, {vt[1]}, {SRDDBG}, {sT1} offen sc1")
        e("s_waitcnt vmcnt(0)")
        e(f"v_readfirstlane_b32 {sT2}, {vt[2]}"); e(f"s_add_u32 {sIT}, {sIT}, 1")
        e(f"s_cmp_ge_u32 {sT2}, {256 if OPT['fuse'] == 2 else 16}"); e("s_cbranch_scc1 L2_go")
        e(f"s_sleep {OPT['psleep']}")
        e(f"s_cmp_lt_u32 {sIT}, 0x40000"); e("s_cbranch_scc1 L2_poll")
        a.label("L2_go")
        e("s_mov_b64 exec, -1")
        a.label("L2_skip")
        for i in range(7):
            for r in rdA(0, i): r()
        e("s_barrier")
        stamp(a, 2)
        run(issue_o(0)); run(issue_o(1)); run(issue_o(2))
        a.wait(vm=0)
        stamp(a, 3)
    else:
        a.wait_for(("w", 0))
        stamp(a, 1)
        for i in range(7):
            for r in rdA(0, i): r()
    e(f"s_mov_b32 {sIT}, 0")
    def body():
        for u in range(4):
            G = Gaps()
            mf = [(lambda i=i, j=j: a.mfma16(AC(i, j), AF(i), BF(u, j), AC(i, j))) for i in range(8) for j in range(6)]
            m0_ = mf[0]; mf[0] = lambda m0_=m0_: (a.wait_for(BF(u, 5), lgkm=2), m0_())
            for k, r in enumerate(rdA(u, 7)): G.mem(k, r)
            G.mem(5, lambda: a.wait_for(("w", (u + 1) % 4), lgkm=0))
            for i in range(7):
                for k, r in enumerate(rdA((u + 1) % 4, i)): G.mem(6 * i + 6 + k, r)
            ops = issue_w(u) + issue_o((u + 3) % 4)
            if u == 0: G.mem(3, lambda: (e(f"s_cmp_eq_u32 {sIT}, 7"), e(f"s_cselect_b32 {SRDWO[2]}, 0, {SRDWO[2]}")))
            if u == 1: G.mem(3, lambda: (e(f"s_cmp_eq_u32 {sIT}, 7"), e(f"s_cselect_b32 {SRDOW[2]}, 0, {SRDOW[2]}")))
            free = [g for i in range(1, 8) for g in range(6 * i + 2, 6 * i + 6)]
            for o, g in zip(ops, [free[(k * len(free)) // len(ops)] for k in range(len(ops))]): G.mem(g, o)
            G.run(mf)
    mark = len(a.out)
    body(); body(); sl, sv = list(a.lds), list(a.vm)
    del a.out[mark:]
    a.lds, a.vm = list(sl), list(sv)
    a.label("L2_loop")
    body()
    assert a.lds == sl and a.vm == sv, (a.vm, sv)
    e(f"s_add_u32 {sIT}, {sIT}, 1"); e(f"s_cmp_lt_u32 {sIT}, 8"); e("s_cbranch_scc1 L2_loop")
    a.wait(vm=0, lgkm=0)
    if not fused: stamp(a, 2); stamp(a, 3)
    stamp(a, 4)
    e("s_nop 7")
    for d in range(1, 4):
        for j in range(6):
            for b in range(2):
                a.ds_write_b128(vRW, AC(2 * d + b, j), ((d - 1) * 12 + j * 2 + b) * 1024)
    R = lambda b, j: V(40 + 8 * j + 4 * b, 4)
    for j in range(6):
        for b in range(2):
            for i in range(4): e(f"v_accvgpr_read_b32 {R(b, j)[i]}, {AC(b, j)[i]}")
    a.wait(lgkm=0); e("s_barrier")
    T = lambda d, b, j: V(96 + 48 * d + 8 * j + 4 * b, 4)
    for j in range(6):
        for d in range(3):
            for b in range(2): a.ds_read_b128(T(d, b, j), ra[d], (j * 2 + b) * 1024)
    for j in range(6):
        for d in range(3):
            for b in range(2):
                a.wait_for(T(d, b, j))
                for i in range(2): e(f"v_pk_add_f32 {R(b, j)[2*i:2*i+2]}, {R(b, j)[2*i:2*i+2]}, {T(d, b, j)[2*i:2*i+2]}")
        D = V(10 + 4 * j, 4)
        e(f"v_cvt_pk_bf16_f32 {D[0]}, {R(0, j)[0]}, {R(0, j)[1]}"); e(f"v_cvt_pk_bf16_f32 {D[1]}, {R(0, j)[2]}, {R(0, j)[3]}")
        e(f"v_cvt_pk_bf16_f32 {D[2]}, {R(1, j)[0]}, {R(1, j)[1]}"); e(f"v_cvt_pk_bf16_f32 {D[3]}, {R(1, j)[2]}, {R(1, j)[3]}")
        e(f"s_mov_b32 {sT0}, {j * 32768}"); e("s_nop 0")
        e(f"v_permlane16_swap_b32 {D[0]}, {D[2]}"); e(f"v_permlane16_swap_b32 {D[1]}, {D[3]}")
        a.bstore(D, vOut, SRDOUT, sT0, 0, (" " + OPT["ost2"].replace("+", " ")) if OPT["ost2"] else "")
    dump_stamps(a, 6, 0x4100000, sW, vt[0], vt[1])
    a.k2 = 0
    if OPT["leak"]:
        lk = OPT["leak"]
        if lk < 100:
            e(f"v_readfirstlane_b32 s93, v{241 + 2 * (lk % 10)}"); e(f"v_readfirstlane_b32 s94, v{241 + 2 * (lk // 10)}")
        elif lk < 200:
            e(f"s_mov_b32 s93, s{61 + 2 * (lk % 10)}"); e(f"s_mov_b32 s94, s{61 + 2 * ((lk // 10) % 10)}")
        else:
            e("v_readfirstlane_b32 s93, v251"); e("s_mov_b32 s94, s61")
        e("s_nop 4"); e("s_sub_u32 s93, s93, s94"); e("s_lshl_b32 s93, s93, 2"); e("s_min_u32 s93, s93, 100000")
        e("s_memrealtime s[98:99]"); e("s_waitcnt lgkmcnt(0)"); e("s_add_u32 s93, s93, s98")
        a.label("L2_spin")
        e("s_memrealtime s[98:99]"); e("s_waitcnt lgkmcnt(0)"); e("s_sub_u32 s94, s93, s98"); e("s_cmp_gt_i32 s94, 0"); e("s_cbranch_scc1 L2_spin")
    if fused:
        dump1()
        yield None
    else:
        a.label("L2_end")
        e("s_endpgm")
        yield a.text()


def kernel0():
    a = Asm(); e = a.e
    a.label("mha_pre_kernel")
    e("s_cmp_ge_u32 s2, 256"); e("s_cbranch_scc1 L0_end")
    e("s_load_dwordx16 s[4:19], s[0:1], 0"); e("s_waitcnt lgkmcnt(0)")
    e("s_mov_b32 s20, s4"); e("s_mov_b32 s21, s5"); e("s_mov_b32 s22, 6291456"); e("s_mov_b32 s23, 0x20000")
    e("s_mov_b32 s24, s10"); e("s_mov_b32 s25, s11"); e("s_mov_b32 s26, 8388608"); e("s_mov_b32 s27, 0x20000")
    e("v_lshlrev_b32 v1, 7, v0"); e("s_lshl_b32 s3, s2, 15")
    e("buffer_load_dword v2, v1, s[20:23], s3 offen"); e("buffer_load_dword v3, v1, s[24:27], s3 offen")
    e("s_waitcnt vmcnt(0)")
    a.label("L0_end"); e("s_endpgm")
    return a.text()

def main():
    launches = []
    if OPT["fuse"]:
        s = HEADER + "; @launch kernel=mha_qattn_kernel grid=(256,1,1) block=(256,1,1) lds=163840\n"
        s += '.amdgcn_target "amdgcn-amd-amdhsa--gfx950"\n.text\n'
        s += ".globl mha_qattn_kernel\n.p2align 8\n.type mha_qattn_kernel,@function\n" + kernel1() + "L_text_end:\n"
        s += kd("mha_qattn_kernel", 512, 256)
        open(sys.argv[1], "w").write(s)
        return
    if OPT["only"] in (None, "k1"): launches.append("; @launch kernel=mha_qattn_kernel grid=(256,1,1) block=(256,1,1) lds=163840")
    if OPT["only"] in (None, "k2"): launches.append("; @launch kernel=mha_oproj_kernel grid=(256,1,1) block=(256,1,1) lds=163840")
    s = HEADER + "\n".join(launches) + "\n"
    s += '.amdgcn_target "amdgcn-amd-amdhsa--gfx950"\n.text\n'
    s += ".globl mha_qattn_kernel\n.p2align 8\n.type mha_qattn_kernel,@function\n" + kernel1()
    s += ".globl mha_oproj_kernel\n.p2align 8\n.type mha_oproj_kernel,@function\n" + next(kernel2(None)) + "L_text_end:\n"
    s += kd("mha_qattn_kernel", 512, 256) + kd("mha_oproj_kernel", 512, 256)
    open(sys.argv[1], "w").write(s)
main()
```

```python
import sys, math, struct
from asmlib import *

OPT = dict(kv_nt=1, only=None, dbgQ=0, prof=0, kvskip=0, wo_touch=3, n2=0, rotH=0, p1end=26, ost="", codepf=0, k2skip=0, map2=1, pre=0, askip=0, p2nt=1, p2s=3, p2e=30, early=1, xw_touch=0, leak=0, rotW=0, krot=0, ost2="", itst=0, bwait=16, bdrop=0, qmode=0, tl=64, fuse=1, psleep=2, osc=1, bmap=0, evw=16, h16=0, dg0=20, verbose=0, d4=8, x5g=0, bnoc=0, xmap=0, only01=0, p2b=49152, pollu=2, fo=0, fint=4, hperm=0, cbrot=0, wvx=0, cbtab='0x76345210', e30=20, e31=20, pj=5, w3l=0)
for a_ in sys.argv[2:]:
    k, v = a_.split("=")
    assert k in OPT, k
    OPT[k] = int(v) if v.lstrip("-").isdigit() else v

def f32bits(x): return struct.unpack("<I", struct.pack("<f", x))[0]
CSCALE = math.log2(math.e) / math.sqrt(128.0)
THRESH = 2.0 ** 30
FLOFF = 0x2000000

HEADER = """; Kernarg layout for this problem (64 bytes, ptrs only, base s[0:1]):
"""

def stamp(a, i, lvl=1):
    if not OPT["prof"]: return
    if OPT["prof"] == 2 and lvl == 1 and i >= 2 and not getattr(a, "k2", 0): return
    if OPT["prof"] == 1 and lvl == 2: return
    a.e("s_memtime s[98:99]"); a.e("s_memrealtime s[100:101]")
    a.e("s_waitcnt lgkmcnt(0)"); a.lds = []
    if getattr(a, "k2", 0): a.e(f"v_mov_b32 v{240+2*i}, s98"); a.e(f"v_mov_b32 v{241+2*i}, s100")
    else: a.e(f"s_mov_b32 s{60+2*i}, s98"); a.e(f"s_mov_b32 s{61+2*i}, s100")
def dump_stamps(a, n, wsoff, sW, vtmp, vaddr, last=True):
    if not OPT["prof"]: return
    e = a.e
    e("s_waitcnt vmcnt(0)")
    if last: stamp(a, n - 1)
    e("s_mov_b32 s88, s18"); e("s_mov_b32 s89, s19"); e("s_mov_b32 s90, 0x10000000"); e("s_mov_b32 s91, 0x20000")
    e(f"s_lshl_b32 s92, s2, 2"); e(f"s_add_u32 s92, s92, {sW}"); e("s_lshl_b32 s92, s92, 6"); e(f"s_add_u32 s92, s92, {wsoff}")
    e(f"v_mov_b32 {vaddr}, 0")
    for i in range(2 * n):
        e(f"v_mov_b32 {vtmp}, " + (f"v{240+i}" if getattr(a, "k2", 0) else f"s{60+i}"))
        e(f"buffer_store_dword {vtmp}, {vaddr}, s[88:91], s92 offen offset:{4*i}")
    e("s_waitcnt vmcnt(0)")

def code_prefetch(a, vLane, vtmp, vdst, start_label, nbytes, sW):
    e = a.e
    e("s_getpc_b64 s[84:85]")
    a.label(f"{start_label}_pc")
    e(f"s_sub_u32 s84, s84, {start_label}_pc-{start_label}"); e("s_subb_u32 s85, s85, 0")
    e(f"s_mov_b32 s86, L_text_end-{start_label}"); e("s_mov_b32 s87, 0x20000")
    e(f"v_lshlrev_b32 {vtmp}, 7, {vLane}"); e(f"s_lshl_b32 s93, {sW}, 13")
    for blk in range((nbytes + 32767) // 32768):
        a.bload(vdst, vtmp, S(84, 4), "s93", 0)
        e("s_add_u32 s93, s93, 32768")

def kernel1():
    a = Asm(); e = a.e
    SRDX, SRDW, SRDKV, SRDO, SRDWO = S(20, 4), S(24, 4), S(28, 4), S(32, 4), S(80, 4)
    sW, sB, sHP, sQH, sHS = S(36), S(37), S(38), S(40), S(41)
    sT0, sT1, sT2, sIT = S(42), S(43), S(44), S(45)
    sXK, sWK = S(46), S(47)
    sM0X, sM0W = S(48), S(49)
    sKVO, sKVO2, sM0KV = S(50), S(51), S(52)
    sTHR, sC = S(53), S(54, 2)
    sOO, sCnt, sKV0, sPass, sP1 = S(56), S(57), S(58), S(59), S(39)
    sDL, sSL0, sS = S(79), S(78), S(72)
    vLane = V(1)
    vt = [V(i) for i in range(2, 10)]
    xa = [[V(10 + 2 * s + k) for k in range(2)] for s in range(2)]
    wa = [V(14 + k) for k in range(8)]
    xv = [V(22 + k) for k in range(6)]
    wv = [V(28 + k) for k in range(4)]
    ka = [V(32 + k) for k in range(8)]
    va = [V(40 + k) for k in range(8)]
    kvv = [V(48 + k) for k in range(4)]
    vl = [V(52 + k) for k in range(6)]
    vKW, vOS, vTA, vTD, vFL = V(58), V(59), V(60), V(61), V(62)
    vZ = V(10, 4)
    ACC = lambda i, j: V(64 + 64 * (j >> 1) + 8 * i + 4 * (j & 1), 4)
    QF = lambda j, ks: V(64 + 32 * (j >> 1) + 8 * ks + 4 * (j & 1), 4)
    NEG = lambda j: V(160 + 4 * j, 4)
    SB = lambda i: V(184 + 8 * i, 8)
    PB = lambda i: V(200 + 4 * i, 4)
    TMP = lambda j: V(184 + 4 * j, 4)
    X5 = lambda p: V(208 + 4 * p, 4)
    R2 = lambda j: V(232 + 2 * j, 2)
    OA = lambda db, j: A(4 * (8 * j + db), 4)
    KF = lambda n: A(192 + 4 * n, 4)
    VF = lambda db: A(224 + 4 * db, 4)
    AF = lambda i: A(128 + 4 * i, 4)
    BF = lambda st, j: A((160 if st == 0 else 224) + 4 * j, 4)
    P1R = lambda t, p: A(4 * (8 * t + p), 4)
    XBASE = 65536
    F4 = OPT["fuse"] == 4
    E3 = F4 and OPT["fo"] == 3
    SRDF, SRDD, sFLO, vTag, vZero, vZ4 = S(84, 4), S(88, 4), S(73), V(63), V(0), V(252, 4)
    nt = " nt" if OPT["kv_nt"] else ""

    a.label("mha_qattn_kernel")
    e("s_cmp_ge_u32 s2, 256"); e("s_cbranch_scc1 L1_end")
    e("s_load_dwordx16 s[4:19], s[0:1], 0")
    e(f"v_lshrrev_b32 {vt[0]}, 6, v0"); e(f"v_and_b32 {vLane}, 63, v0")
    e("s_and_b32 s3, s2, 7"); e(f"s_lshr_b32 {sT0}, s2, 3")
    e(f"v_readfirstlane_b32 {sW}, {vt[0]}")
    e(f"s_and_b32 {sT1}, s3, 1"); e(f"s_and_b32 {sT2}, {sT0}, 7")
    if OPT["bmap"] == 0: e(f"s_lshl_b32 {sT1}, {sT1}, 3")
    if OPT["bmap"] == 1: e(f"s_lshl_b32 {sT2}, {sT2}, 1")
    if OPT["bmap"] == 2: e(f"s_xor_b32 {sT1}, {sT1}, 1"); e(f"s_lshl_b32 {sT1}, {sT1}, 3")
    e(f"s_add_u32 {sB}, {sT1}, {sT2}")
    e(f"s_lshr_b32 {sT1}, s3, 1"); e(f"s_lshl_b32 {sT1}, {sT1}, 2"); e(f"s_lshr_b32 {sHP}, {sT0}, 3")
    if OPT["hperm"]:
        e(f"s_lshr_b32 {sT2}, {sHP}, 1"); e(f"s_not_b32 {sHP}, {sHP}"); e(f"s_and_b32 {sHP}, {sHP}, 1"); e(f"s_lshl_b32 {sHP}, {sHP}, 1"); e(f"s_add_u32 {sHP}, {sHP}, {sT2}")
    e(f"s_add_u32 {sHP}, {sHP}, {sT1}")
    if OPT["xmap"] == 1:
        e(f"s_lshr_b32 {sT1}, s3, 1"); e(f"s_lshl_b32 {sT1}, {sT1}, 2"); e(f"s_and_b32 {sT2}, {sT0}, 3"); e(f"s_add_u32 {sB}, {sT1}, {sT2}")
        e(f"s_and_b32 {sT1}, s3, 1"); e(f"s_lshl_b32 {sT1}, {sT1}, 3"); e(f"s_lshr_b32 {sHP}, {sT0}, 2"); e(f"s_add_u32 {sHP}, {sHP}, {sT1}")
    if OPT["xmap"] == 2:
        e(f"s_lshl_b32 {sT1}, s3, 1"); e(f"s_and_b32 {sT2}, {sT0}, 1"); e(f"s_add_u32 {sB}, {sT1}, {sT2}"); e(f"s_lshr_b32 {sHP}, {sT0}, 1")
    if OPT["xmap"] == 3:
        e(f"s_and_b32 {sB}, {sT0}, 15"); e(f"s_lshl_b32 {sT1}, s3, 1"); e(f"s_lshr_b32 {sHP}, {sT0}, 4"); e(f"s_add_u32 {sHP}, {sHP}, {sT1}")
    if OPT["xmap"] in (4, 5):
        e(f"s_lshr_b32 {sT1}, s3, 2"); e(f"s_lshl_b32 {sT1}, {sT1}, 3"); e(f"s_and_b32 {sT2}, {sT0}, 7"); e(f"s_add_u32 {sB}, {sT1}, {sT2}")
        e(f"s_and_b32 {sT1}, s3, 2"); e(f"s_lshl_b32 {sT1}, {sT1}, 2"); e(f"s_and_b32 {sT2}, s3, 1"); e(f"s_lshl1_add_u32 {sHP}, {sT2}, {sT1}")
        e(f"s_lshr_b32 {sT1}, {sT0}, 4"); e(f"s_lshl2_add_u32 {sHP}, {sT1}, {sHP}")
        e(f"s_bfe_u32 {sT1}, {sT0}, 0x10003")
        if OPT["xmap"] == 4: e(f"s_xor_b32 {sT1}, {sT1}, 1")
        e(f"s_add_u32 {sHP}, {sHP}, {sT1}")
    e(f"s_and_b32 {sQH}, {sW}, 1"); e(f"s_lshr_b32 {sHS}, {sW}, 1")
    t0, t1, t2, t3, t4, t5 = vt[:6]
    e(f"v_lshrrev_b32 {t2}, 4, {vLane}")
    e(f"v_and_b32 {t1}, 15, {vLane}")
    e(f"v_lshlrev_b32 {t3}, 1, {t2}"); e(f"v_xor_b32 {t1}, {t1}, {t3}")
    e(f"s_lshl_b32 {sT0}, {sQH}, 4"); e(f"v_add_u32 {t0}, {sT0}, {t2}")
    e(f"v_lshlrev_b32 {t0}, 13, {t0}")
    e(f"s_lshl_b32 {sT0}, {sHS}, 8"); e(f"v_add_u32 {t0}, {sT0}, {t0}")
    for m in range(4):
        e(f"v_xor_b32 {t3}, {8 * (m >> 1)}, {t1}"); e(f"v_lshl_add_u32 {t3}, {t3}, 4, {t0}")
        e(f"v_add_u32 {wv[m]}, {m * 32768 - m * 1024}, {t3}")
    e(f"v_lshrrev_b32 {t0}, 3, {vLane}")
    e(f"v_and_b32 {t1}, 7, {vLane}"); e(f"v_xor_b32 {t1}, {t1}, {t2}")
    e(f"s_mul_i32 {sT0}, {sW}, 48"); e(f"v_add_u32 {t0}, {sT0}, {t0}"); e(f"v_lshlrev_b32 {t0}, 11, {t0}")
    for m in range(6):
        e(f"v_xor_b32 {t3}, {4 * (m & 1)}, {t1}"); e(f"v_lshl_add_u32 {t3}, {t3}, 4, {t0}")
        e(f"v_add_u32 {xv[m]}, {m * 16384 - (m % 3) * 1024}, {t3}")
    e(f"s_mul_i32 {sM0X}, {sW}, 6144"); e(f"s_add_u32 {sM0X}, {sM0X}, {XBASE}")
    e(f"s_lshl_b32 {sM0W}, {sW}, 12")
    e("s_waitcnt lgkmcnt(0)")
    stamp(a, 0)
    e(f"s_lshl_b32 {sT0}, {sHP}, 9")
    e(f"s_add_u32 {SRDW[0]}, s10, {sT0}"); e(f"s_addc_u32 {SRDW[1]}, s11, 0")
    e(f"s_sub_u32 {SRDW[2]}, 8388608, {sT0}"); e(f"s_mov_b32 {SRDW[3]}, 0x20000")
    e(f"s_mul_i32 {sT0}, {sB}, 393216")
    e(f"s_add_u32 {SRDX[0]}, s4, {sT0}"); e(f"s_addc_u32 {SRDX[1]}, s5, 0")
    e(f"s_mov_b32 {SRDX[2]}, 393216"); e(f"s_mov_b32 {SRDX[3]}, 0x20000")

    if OPT["askip"]: e(f"s_mov_b32 {SRDX[2]}, 0"); e(f"s_mov_b32 {SRDW[2]}, 0")
    sKR, sKRW = S(76), S(77)
    if OPT["krot"]:
        e(f"s_lshr_b32 {sT0}, s2, 3"); e(f"s_and_b32 {sT1}, {sT0}, 7"); e(f"s_lshr_b32 {sT0}, {sT0}, 3"); e(f"s_lshl_b32 {sT0}, {sT0}, 1")
        e(f"s_add_u32 {sT0}, {sT0}, {sT1}"); e(f"s_and_b32 {sT0}, {sT0}, 7")
        if OPT["krot"] == 2: e(f"s_and_b32 {sT0}, {sT0}, 1"); e(f"s_lshl_b32 {sT0}, {sT0}, 2")
        if OPT["krot"] == 3: e(f"s_and_b32 {sT0}, {sT0}, 3"); e(f"s_lshl_b32 {sT0}, {sT0}, 1")
        e(f"s_lshl_b32 {sKR}, {sT0}, 8"); e(f"s_lshl_b32 {sKRW}, {sT0}, 20")
    def dma_x(c, part):
        if OPT["krot"]:
            ops = [lambda: (e(f"s_add_u32 m0, {sM0X}, {(c % 4) * 24576 + part * 3072}"), e(f"s_add_u32 {sXK}, {sKR}, {c * 128}"), e(f"s_and_b32 {sXK}, {sXK}, 2047"))]
        else:
            ops = [lambda: (e(f"s_add_u32 m0, {sM0X}, {(c % 4) * 24576 + part * 3072}"), e(f"s_movk_i32 {sXK}, {c * 128}"))]
        for m in range(3):
            ops.append(lambda m=m: a.dma(xv[3 * part + m], SRDX, sXK, m * 1024, tag=("x", c)))
        return ops
    def dma_w(s):
        if OPT["krot"]:
            ops = [lambda: (e(f"s_add_u32 m0, {sM0W}, {(s % 4) * 16384}"), e(f"s_add_u32 {sWK}, {sKRW}, {s * 262144}"), e(f"s_and_b32 {sWK}, {sWK}, 8388607"))]
        else:
            ops = [lambda: (e(f"s_add_u32 m0, {sM0W}, {(s % 4) * 16384}"), e(f"s_mov_b32 {sWK}, {s * 262144}"))]
        for m in range(4):
            ops.append(lambda m=m: a.dma(wv[m], SRDW, sWK, m * 1024, tag=("w", s)))
        return ops
    def run(ops):
        for o in ops: o()
    run(dma_w(0)); run(dma_x(0, 0)); run(dma_x(0, 1)); run(dma_w(1)); run(dma_w(2)); run(dma_x(1, 0)); run(dma_x(1, 1)); run(dma_w(3))
    if OPT["codepf"]: code_prefetch(a, vLane, vTA, vTD, "mha_qattn_kernel", OPT["codepf"] * 1024, sW)
    run(dma_x(2, 0)); run(dma_x(2, 1)); run(dma_x(3, 0)); run(dma_x(3, 1))
    e(f"s_lshl_b32 {sT0}, {sB}, 5"); e(f"s_lshl_b32 {sT1}, {sHP}, 1"); e(f"s_add_u32 {sT0}, {sT0}, {sT1}")
    e(f"s_add_u32 {sT0}, {sT0}, {sHS}"); e(f"s_lshl_b32 {sT0}, {sT0}, 18")
    e(f"s_cmp_eq_u32 {sQH}, 0"); e(f"s_cselect_b32 {sT1}, s6, s8"); e(f"s_cselect_b32 {sT2}, s7, s9")
    e(f"s_add_u32 {SRDKV[0]}, {sT1}, {sT0}"); e(f"s_addc_u32 {SRDKV[1]}, {sT2}, 0")
    NR = 0 if OPT["kvskip"] else 262144
    e(f"s_mov_b32 {SRDKV[2]}, {NR}"); e(f"s_mov_b32 {SRDKV[3]}, 0x20000")
    e(f"s_mov_b32 {SRDO[0]}, s18"); e(f"s_mov_b32 {SRDO[1]}, s19")
    e(f"s_mov_b32 {SRDO[2]}, 25165824"); e(f"s_mov_b32 {SRDO[3]}, 0x20000")
    e(f"s_mov_b32 {sTHR}, {f32bits(THRESH):#x}")
    e(f"s_mov_b32 {sC[0]}, {f32bits(CSCALE):#x}"); e(f"s_mov_b32 {sC[1]}, {f32bits(CSCALE):#x}")
    e(f"s_mul_i32 {sKV0}, {sHS}, {OPT['rotH'] * 8192}"); e(f"s_mov_b32 {sPass}, 0")
    if OPT["rotW"] == 1:
        e(f"s_lshr_b32 {sKV0}, s2, 3"); e(f"s_lshl_b32 {sT1}, {sHS}, 2"); e(f"s_add_u32 {sKV0}, {sKV0}, {sT1}")
        e(f"s_and_b32 {sKV0}, {sKV0}, 7"); e(f"s_lshl_b32 {sKV0}, {sKV0}, 15")
    if OPT["rotW"] == 2:
        e(f"s_lshr_b32 {sKV0}, s2, 5"); e(f"s_add_u32 {sKV0}, {sKV0}, s2"); e(f"s_lshl_b32 {sT1}, {sHS}, 2"); e(f"s_add_u32 {sKV0}, {sKV0}, {sT1}")
        e(f"s_and_b32 {sKV0}, {sKV0}, 7"); e(f"s_lshl_b32 {sKV0}, {sKV0}, 15")
    if OPT["rotW"] == 3:
        e(f"s_lshr_b32 {sKV0}, s2, 3"); e(f"s_add_u32 {sKV0}, {sKV0}, s2"); e(f"s_lshr_b32 {sT1}, s2, 6"); e(f"s_add_u32 {sKV0}, {sKV0}, {sT1}")
        e(f"s_lshl_b32 {sT1}, {sHS}, 2"); e(f"s_add_u32 {sKV0}, {sKV0}, {sT1}")
        e(f"s_and_b32 {sKV0}, {sKV0}, 7"); e(f"s_lshl_b32 {sKV0}, {sKV0}, 15")
    if OPT["rotW"] == 7:
        e(f"s_lshr_b32 {sKV0}, {sB}, 3"); e(f"s_add_u32 {sKV0}, {sKV0}, {sB}"); e(f"s_lshr_b32 {sT1}, {sHP}, 2"); e(f"s_lshl1_add_u32 {sKV0}, {sT1}, {sKV0}")
        e(f"s_and_b32 {sT1}, {sHP}, 3"); e(f"s_add_u32 {sKV0}, {sKV0}, {sT1}"); e(f"s_lshl2_add_u32 {sKV0}, {sHS}, {sKV0}")
        e(f"s_and_b32 {sKV0}, {sKV0}, 7"); e(f"s_lshl_b32 {sKV0}, {sKV0}, 15")
    if OPT["rotW"] == 4:
        e(f"s_mul_i32 {sKV0}, s2, 5"); e(f"s_lshr_b32 {sT1}, s2, 5"); e(f"s_add_u32 {sKV0}, {sKV0}, {sT1}")
        e(f"s_lshl_b32 {sT1}, {sHS}, 4"); e(f"s_add_u32 {sKV0}, {sKV0}, {sT1}")
        e(f"s_and_b32 {sKV0}, {sKV0}, 31"); e(f"s_lshl_b32 {sKV0}, {sKV0}, 13")
    if OPT["rotW"] == 5:
        e(f"s_lshr_b32 {sKV0}, s2, 3"); e(f"s_lshl_b32 {sT1}, s2, 2"); e(f"s_add_u32 {sKV0}, {sKV0}, {sT1}")
        e(f"s_lshl_b32 {sT1}, {sHS}, 4"); e(f"s_add_u32 {sKV0}, {sKV0}, {sT1}")
        e(f"s_and_b32 {sKV0}, {sKV0}, 31"); e(f"s_lshl_b32 {sKV0}, {sKV0}, 13")
    if OPT["rotW"] == 6:
        e(f"s_lshl_b32 {sKV0}, s2, 1"); e(f"s_add_u32 {sKV0}, {sKV0}, {sHS}"); e(f"s_mul_i32 {sKV0}, {sKV0}, 0x9e3779b1")
        e(f"s_lshr_b32 {sKV0}, {sKV0}, 27"); e(f"s_lshl_b32 {sKV0}, {sKV0}, 13")
    e(f"s_mul_i32 {sDL}, {sHS}, 49152"); e(f"s_sub_u32 {sDL}, 131072, {sDL}")
    e(f"v_lshlrev_b32 {vTA}, 7, {vLane}")
    vT2 = V(0)
    e(f"v_lshrrev_b32 {vT2}, {int(math.log2(64 // OPT['tl']))}, {vLane}"); e(f"v_lshlrev_b32 {vT2}, 7, {vT2}")
    if OPT["wo_touch"]:
        e(f"s_mov_b32 {SRDWO[0]}, s12"); e(f"s_mov_b32 {SRDWO[1]}, s13"); e(f"s_mov_b32 {SRDWO[2]}, 8388608"); e(f"s_mov_b32 {SRDWO[3]}, 0x20000")
    if OPT["xw_touch"]:
        e(f"s_lshl_b32 {sT2}, s2, 2"); e(f"s_add_u32 {sT2}, {sT2}, {sW}"); e(f"s_lshl_b32 {sT2}, {sT2}, 13")
        e("s_mov_b32 s84, s10"); e("s_mov_b32 s85, s11"); e("s_mov_b32 s86, 8388608"); e("s_mov_b32 s87, 0x20000")
        a.bload(vTD, vTA, S(84, 4), sT2, 0)
        e("s_mov_b32 s84, s4"); e("s_mov_b32 s85, s5"); e("s_mov_b32 s86, 6291456")
        a.bload(vTD, vTA, S(84, 4), sT2, 0)
    vh, vg, vr, vc1, vc0, vql, u0, u1 = vt
    e(f"v_lshrrev_b32 {vg}, 4, {vLane}"); e(f"v_bfe_u32 {vr}, {vLane}, 2, 2"); e(f"v_and_b32 {vc0}, 3, {vLane}")
    e(f"v_lshl_add_u32 {u0}, {vg}, 3, {vr}"); e(f"v_lshlrev_b32 {u0}, 8, {u0}")
    e(f"s_lshl_b32 {sT0}, {sHS}, 13"); e(f"v_add_u32 {u0}, {sT0}, {u0}")
    e(f"v_lshl_add_u32 {u0}, {vc0}, 3, {u0}"); e(f"v_lshl_add_u32 {u0}, {vr}, 5, {u0}")
    e(f"v_and_b32 {u1}, 1, {vg}"); e(f"v_lshl_add_u32 {wa[0]}, {u1}, 7, {u0}")
    for i in range(1, 8): e(f"v_xor_b32 {wa[i]}, {32 * i}, {wa[0]}")
    e(f"v_and_b32 {vql}, 15, {vLane}")
    e(f"s_mul_i32 {sT1}, {sQH}, 12288"); e(f"s_add_u32 {sT1}, {sT1}, {XBASE}")
    e(f"v_lshlrev_b32 {u0}, 7, {vql}"); e(f"v_add_u32 {u0}, {sT1}, {u0}")
    e(f"v_lshrrev_b32 {u1}, 1, {vql}"); e(f"v_xor_b32 {u1}, {u1}, {vg}")
    e(f"v_lshl_add_u32 {xa[0][0]}, {u1}, 4, {u0}"); e(f"v_xor_b32 {xa[0][1]}, 64, {xa[0][0]}")
    for k in range(2): e(f"v_add_u32 {xa[1][k]}, 49152, {xa[0][k]}")
    e(f"v_lshlrev_b32 {vh}, {sQH}, {vg}")
    e(f"v_xor_b32 {vh}, {vh}, {vql}"); e(f"v_lshlrev_b32 {u0}, 8, {vg}")
    e(f"v_lshl_add_u32 {kvv[0]}, {vh}, 4, {u0}")
    e(f"s_cmp_eq_u32 {sQH}, 0")
    for j in range(1, 4):
        e(f"s_cselect_b32 {sT1}, {4 * j}, {8 * (j & 1)}"); e(f"s_mul_i32 {sT1}, {sT1}, 16"); e(f"v_xor_b32 {kvv[j]}, {sT1}, {kvv[0]}")

    def late_setup():
        ops = []
        E = lambda s: ops.append(lambda: e(s))
        E(f"v_lshrrev_b32 {vg}, 4, {vLane}"); E(f"v_bfe_u32 {vr}, {vLane}, 2, 2"); E(f"v_and_b32 {vc0}, 3, {vLane}")
        E(f"v_and_b32 {vql}, 15, {vLane}"); E(f"v_lshrrev_b32 {vc1}, 2, {vLane}")
        E(f"s_lshl_b32 {sT0}, {sHS}, 16"); E(f"s_add_u32 {sT1}, {sT0}, 8192")
        E(f"v_lshlrev_b32 {u0}, 8, {vc1}"); E(f"v_add_u32 {u0}, {sT1}, {u0}"); E(f"v_lshl_add_u32 {u0}, {vc0}, 3, {u0}")
        E(f"v_and_b32 {u1}, 7, {vc1}"); E(f"v_lshl_add_u32 {va[0]}, {u1}, 5, {u0}")
        for db in range(1, 8): E(f"v_xor_b32 {va[db]}, {32 * db}, {va[0]}")
        E(f"v_lshlrev_b32 {u0}, 8, {vql}"); E(f"v_add_u32 {u0}, {sT0}, {u0}")
        E(f"v_and_b32 {u1}, 1, {vg}"); E(f"v_lshl_add_u32 {u0}, {u1}, 3, {u0}")
        E(f"v_lshrrev_b32 {u1}, 1, {vg}"); E(f"v_xor_b32 {u1}, {u1}, {vql}"); E(f"v_lshl_add_u32 {ka[0]}, {u1}, 4, {u0}")
        for s in range(1, 8): E(f"v_xor_b32 {ka[s]}, {32 * s}, {ka[0]}")
        E(f"s_lshl_b32 {sM0KV}, {sQH}, 13"); E(f"s_add_u32 {sM0KV}, {sM0KV}, {sT0}")
        E(f"v_lshlrev_b32 {vOS}, 4, {vLane}"); E(f"v_add_u32 {vKW}, {sM0KV}, {vOS}"); E(f"s_add_u32 {sS}, {sM0KV}, {sDL}")
        E(f"s_lshl_b32 {sOO}, {sB}, 1"); E(f"s_add_u32 {sOO}, {sOO}, {sQH}"); E(f"s_mul_i32 {sOO}, {sOO}, {6 * 131072}")
        E(f"s_lshl_b32 {sT1}, {sHP}, 1"); E(f"s_add_u32 {sT1}, {sT1}, {sHS}"); E(f"s_lshl_b32 {sT1}, {sT1}, 12"); E(f"s_add_u32 {sOO}, {sOO}, {sT1}")
        E(f"s_lshl_b32 {sT1}, {sW}, 2"); E(f"s_add_u32 {sT1}, {sT1}, {65536 if E3 else 163776}"); E(f"v_mov_b32 {vFL}, {sT1}")
        for q in range(6): E(f"v_mov_b32 {vl[q]}, 0")
        if F4:
            E(f"v_mov_b32 {vZero}, 0")
            E(f"s_lshl_b32 {sT1}, {sB}, 12"); E(f"s_lshl_b32 {sFLO}, {sHP}, 2"); E(f"s_add_u32 {sT1}, {sT1}, {sFLO}"); E(f"s_add_u32 {sFLO}, {sT1}, {FLOFF}")
            ops.append(lambda: (e(f"s_or_b32 {sT1}, s2, {sW}"), e(f"s_cselect_b32 {SRDF[2]}, 0, {FLOFF + 65536}"), e(f"s_cselect_b32 {SRDD[2]}, 0, 4")))
            E(f"s_mov_b32 {SRDF[0]}, s18"); E(f"s_mov_b32 {SRDF[1]}, s19"); E(f"s_mov_b32 {SRDF[3]}, 0x20000")
            E(f"s_mov_b32 {SRDD[0]}, s16"); E(f"s_mov_b32 {SRDD[1]}, s17"); E(f"s_mov_b32 {SRDD[3]}, 0x20000")
        return ops
    def rdK(n, pi, slot): return lambda: a.ds_read_b64(KF(n)[2 * pi:2 * pi + 2], ka[2 * (n >> 1) + pi], slot * 16384 + (n & 1) * 4096)
    def rdV(db, uu, slot): return lambda: a.ds_read_tr(VF(db)[2 * uu:2 * uu + 2], va[db], slot * 16384 + uu * 4096)

    def rdA(s, i): return [(lambda u=u: a.ds_read_tr(AF(i)[2 * u:2 * u + 2], wa[i], (s % 4) * 16384 + u * 1024)) for u in range(2)]
    def rdB(s, j):
        xs = (s // 2) % 4
        return lambda: a.ds_read_b128(BF(s % 2, j), xa[xs // 2][s % 2], (xs % 2) * 24576 + j * 2048)
    p1list = [(t, p) for t in range(4) for p in range(8)]
    def p1_ops(k):
        t, p = p1list[k]
        ops = []
        if p % 4 == 0:
            ops.append(lambda: (e(f"s_add_u32 {sP1}, {sKV0}, {t * 8192 + (p // 4) * 4096}"), e(f"s_and_b32 {sP1}, {sP1}, 262143")))
        ops.append(lambda: a.bload(P1R(t, p), kvv[p % 4], SRDKV, sP1, (p % 4) * 1024, nt))
        return ops
    p1_at = {}
    for k in range(32): p1_at.setdefault(k * OPT["p1end"] // 32, []).append(k)
    p2_at = {}
    for k in range(OPT["n2"]): p2_at.setdefault(OPT["p2s"] + (k * (OPT["p2e"] - OPT["p2s"])) // OPT["n2"], []).append(k)
    conv = []
    for J in range(3):
        for ks in range(4):
            for jj in range(2):
                j = 2 * J + jj
                X, Y, D = ACC(2 * ks, j), ACC(2 * ks + 1, j), QF(j, ks)
                for R in (X, Y):
                    for k in range(4): conv.append((J, lambda r=R[k]: e(f"v_mul_f32 {r}, {sC[0]}, {r}")))
                conv.append((J, lambda X=X, D=D: e(f"v_cvt_pk_bf16_f32 {D[0]}, {X[0]}, {X[1]}")))
                conv.append((J, lambda X=X, D=D: e(f"v_cvt_pk_bf16_f32 {D[1]}, {X[2]}, {X[3]}")))
                conv.append((J, lambda Y=Y, D=D: e(f"v_cvt_pk_bf16_f32 {D[2]}, {Y[0]}, {Y[1]}")))
                conv.append((J, lambda Y=Y, D=D: e(f"v_cvt_pk_bf16_f32 {D[3]}, {Y[2]}, {Y[3]}")))

    a.wait_for(("w", 0), ("x", 0)); e("s_barrier")
    stamp(a, 1)
    for j in range(6):
        rdB(0, j)()
        for r in rdA(0, j): r()
    for r in rdA(0, 6): r()
    late = late_setup()
    free = [g for i in range(3, 8) for g in range(6 * i + 2, 6 * i + 6)]
    for s in range(32):
        if s in (8, 16, 24): stamp(a, 1 + s // 8, 2)
        G = Gaps()
        last = s == 31
        order = [(i, j) for j in range(6) for i in range(8)] if last else [(i, j) for i in range(8) for j in range(6)]
        mf = [(lambda i=i, j=j: a.mfma16(ACC(i, j), AF(i), BF(s % 2, j), ACC(i, j) if s else 0)) for i, j in order]
        if s:
            m0_ = mf[0]; mf[0] = lambda m0_=m0_: (a.wait_for(lgkm=2), m0_())
        for u, r in enumerate(rdA(s, 7)): G.mem(u, r)
        def bar(s=s):
            if s < 31: a.wait_for(("w", s + 1), ("x", (s + 1) // 2), lgkm=0)
            else: a.wait_for(lgkm=0)
            e("s_barrier")
        G.mem(7, bar)
        if not last:
            for u, r in enumerate(rdA(s + 1, 0)): G.mem(8 + u, r)
            for i in range(1, 7):
                for u, r in enumerate(rdA(s + 1, i)): G.mem(6 * i + 6 + u, r)
            for j, g in enumerate([10, 11, 14, 15, 16, 17]): G.mem(g, rdB(s + 1, j))
        ops = []
        if s + 4 < 32: ops += dma_w(s + 4)
        c = (s - 1) // 2 + 4
        if s >= 1 and c < 16: ops += dma_x(c, (s - 1) % 2)
        for k in p1_at.get(s, []): ops += p1_ops(k)
        for k in p2_at.get(s, []):
            ops.append(lambda k=k: (e(f"s_add_u32 {sT2}, {sKV0}, {OPT['p2b'] + k * OPT['tl'] * 128}"), e(f"s_and_b32 {sT2}, {sT2}, 262143")))
            ops.append(lambda: a.bload(vTD, vT2, SRDKV, sT2, 0, " nt" if OPT["p2nt"] else ""))
        if F4 and s == 2: ops.append(lambda: a.bload(vTag, vZero, SRDF, sFLO, 0, " sc1"))
        if F4 and s == 10:
            ops.append(lambda: (a.wait_for(vTag), e(f"v_add_u32 {vTag}, 0x9e3779b9, {vTag}"), e(f"v_or_b32 {vTag}, 1, {vTag}")))
            ops.append(lambda: a.bstore(vTag, vZero, SRDD, 0, 0, " sc1"))
        if F4 and s == 12:
            ops.append(lambda: (e(f"s_cmp_eq_u32 {sW}, 0"), e(f"s_cselect_b32 {SRDD[2]}, 4, 0"), e(f"s_mov_b32 {SRDF[2]}, {FLOFF + 65536}")))
        if s == 2 and OPT["wo_touch"] == 1:
            ops.append(lambda: (e(f"s_lshl_b32 {sT2}, s2, 2"), e(f"s_add_u32 {sT2}, {sT2}, {sW}"), e(f"s_lshl_b32 {sT2}, {sT2}, 13")))
            ops.append(lambda: a.bload(vTD, vTA, SRDWO, sT2, 0))
        if last:
            for half in range(2):
                ops.append(lambda half=half: (e(f"s_add_u32 {sP1}, {sKV0}, {32768 + half * 4096}"), e(f"s_and_b32 {sP1}, {sP1}, 262143"), e(f"s_add_u32 m0, {sS}, {half * 4096}")))
                for j in range(4): ops.append(lambda j=j: a.dma(kvv[j], SRDKV, sP1, j * 1024, nt))
        if s >= 28:
            t = s - 28
            ops += [(lambda p=p: a.ds_write_b128(vKW, P1R(t, p), t * 16384 + p * 1024)) for p in range(8)]
        if s >= 30:
            ops += [rdK(n, pi, 0) for n in range(4 * (s - 30), 4 * (s - 30) + 4) for pi in range(2)]
        if last:
            for i in range(4): G.valu(4 + i, lambda i=i: e(f"v_mov_b32 {vZ[i]}, 0"))
        fr = free if not last else list(range(OPT['d4'], OPT['d4'] + 28))
        assert len(ops) <= len(fr), (s, len(ops))
        for o, g in zip(ops, [fr[(k * len(fr)) // len(ops)] for k in range(len(ops))]): G.mem(g, o)
        if s == 0:
            for k, o in enumerate(late): G.valu(8 + k // 2, o)
        if last:
            g = 0
            n = 0
            while conv and g < 48:
                J = conv[0][0]
                g = max(g, 16 * J + 18)
                if g >= 48: break
                G.valu(g, conv.pop(0)[1]); n += 1
                if n % 2 == 0: g += 1
        G.run(mf)
    stamp(a, 2); stamp(a, 5, 2)
    if OPT["only01"]: e("s_waitcnt vmcnt(0) lgkmcnt(0)"); e(f"s_cmp_eq_u32 {sHS}, 1"); e("s_cbranch_scc1 L1_end")
    e("s_nop 3")
    def xlane(op, m, tmp):
        return [lambda: e(f"v_mov_b32 {tmp}, {m}"), lambda: e("s_nop 1"), lambda: e(f"v_permlane16_swap_b32 {m}, {tmp}"), lambda: e("s_nop 1"),
                lambda: e(f"{op} {m}, {m}, {tmp}"),
                lambda: e(f"v_mov_b32 {tmp}, {m}"), lambda: e("s_nop 1"), lambda: e(f"v_permlane32_swap_b32 {m}, {tmp}"), lambda: e("s_nop 1"),
                lambda: e(f"{op} {m}, {m}, {tmp}")]
    def rowmax_ops(j, m, tmp):
        X, Y = NEG(j), TMP(j)
        return [lambda: e(f"v_max3_f32 {m}, {X[0]}, {X[1]}, {X[2]}"), lambda: e(f"v_max3_f32 {m}, {m}, {X[3]}, {Y[0]}"),
                lambda: e(f"v_max3_f32 {m}, {m}, {Y[1]}, {Y[2]}"), lambda: e(f"v_max_f32 {m}, {m}, {Y[3]}")] + xlane("v_max_f32", m, tmp)
    def negfill_ops(j, m):
        return [(lambda i=i: e(f"v_sub_f32 {NEG(j)[i]}, 0, {m}")) for i in range(4)]
    a.wait_for(lgkm=0)
    zm = [(lambda k=k: a.e(f"v_mfma_f32_32x32x16_bf16 {A(16 * k, 16)}, {vZ}, {vZ}, 0")) for k in list(range(12)) + [14, 15]]
    zm4 = [(lambda k=k: a.e(f"v_mfma_f32_32x32x16_bf16 {A(16 * k, 16)}, {vZ4}, {vZ4}, 0")) for k in list(range(12)) + [14, 15]]
    G = Gaps()
    G.spread([(o, 4) for _, o in conv], list(range(14))); conv = []
    G.run(zm)
    e("s_nop 1")
    sm = [(lambda j=j, n=n: a.mfma16(TMP(j) if n & 1 else NEG(j), KF(n), QF(j, n >> 1), (TMP(j) if n & 1 else NEG(j)) if n > 1 else 0))
          for j in range(6) for n in range(8)]

    NS = 96
    used = [0] * NS
    memg = {}
    def M(g, it, cost=4): memg.setdefault(g % NS, []).append(it); used[g % NS] += cost
    M(5, ("kill",), 12); M(6, ("m0", 0)); M(7, ("bar",), 8)
    for db in range(8): M(8 + db, ("v", db, 0)); M(12 + db, ("v", db, 1))
    for n in range(8): M(80 + n, ("k", n, 0)); M(84 + n, ("k", n, 1))
    dg = OPT["dg0"]
    for k in range(4): M(dg + 2 * k, ("dma", 0, k)); M(dg + 10 + 2 * k, ("dma", 1, k))
    M(dg + 8, ("m0", 1)); M(dg + 19, ("adv",), 12)
    for g in (95, 3, 23, 27): used[g] += 4
    valg = {}
    def place(j, seq, lo, hi):
        for L in range(8, 41, 4):
            u2 = list(used); g = lo; out = []
            for op, c, mn in seq:
                g = max(g, mn)
                while g <= hi and u2[g % NS] + c > L: g += 1
                if g > hi: break
                u2[g % NS] += c; out.append((op, g))
            else:
                used[:] = u2
                for op, g in out: valg.setdefault(g, []).append((j, op))
                return dict(out)
        raise Exception("no fit")
    pos = {}
    for j in range(6):
        b = 16 * j
        crit = [("e0", 8, b + 8), ("e1", 8, 0), ("e2", 8, 0), ("c0", 4, 0), ("e3", 8, 0), ("e4", 8, b + 10), ("c1", 4, 0), ("e5", 8, 0), ("e6", 8, 0),
                ("c2", 4, 0), ("e7", 8, 0), ("a0", 4, 0), ("c3", 4, 0)]
        pos[j] = place(j, crit, b + 8, b + 22)
    for j in range(6):
        b = 16 * j
        place(j, [(f"a{k}", 4, pos[j][f"e{k}"] + 1) for k in range(1, 8)], b + 9, b + 30)
    if OPT["verbose"]: print("gap load", used, "over", sum(max(0, x - 12) for x in used))
    def sm_op(j, op):
        Sx, Px, k = SB(j % 2), PB(j % 2), int(op[1])
        if op[0] == "e": e(f"v_exp_f32 {Sx[k]}, {Sx[k]}")
        if op[0] == "a": e(f"v_add_f32 {vl[j]}, {vl[j]}, {Sx[k]}")
        if op[0] == "c": e(f"v_cvt_pk_bf16_f32 {Px[k]}, {Sx[2 * k]}, {Sx[2 * k + 1]}")
    tail = [(g, j, op) for g in sorted(valg) if g >= NS for j, op in valg[g]]
    tail_e = {(j, int(op[1])) for g, j, op in tail if op[0] == "e"}
    init = [(lambda j=j, k=k: e(f"v_mov_b32 {SB(j % 2)[k]}, {'0xf149f2ca' if (j, k) in tail_e else 0}")) for j in (4, 5) for k in range(8)]
    init += [(lambda k=k: e(f"v_mov_b32 {PB(1)[k]}, 0")) for k in range(4)]

    G = Gaps()
    for j in range(5):
        G.spread([(o, 4) for o in rowmax_ops(j, vt[0], vt[1]) + negfill_ops(j, vt[0])], list(range(8 * j + 9, min(48, 8 * j + 17))))
    G.spread([(o, 4) for o in init[0:8]], list(range(26, 34)))
    G.spread([(o, 4) for o in init[8:16]], list(range(42, 48)))
    sSL = [S(94 + u) for u in range(4)]
    def stream_init():
        e(f"s_sub_u32 {sCnt}, 0, {sQH}")
        e(f"s_lshl_b32 {sT0}, {sQH}, 13"); e(f"s_add_u32 {sKVO}, {sKV0}, 49152"); e(f"s_sub_u32 {sKVO}, {sKVO}, {sT0}"); e(f"s_and_b32 {sKVO}, {sKVO}, 262143")
        e(f"s_add_u32 {sKVO2}, {sKVO}, 4096"); e(f"s_mov_b32 {sIT}, 0")
    def x5_ops():
        ops = []
        for p in range(8):
            if p % 4 == 0: ops.append(lambda p=p: (e(f"s_add_u32 {sP1}, {sKV0}, {5 * 8192 + (p // 4) * 4096}"), e(f"s_and_b32 {sP1}, {sP1}, 262143")))
            ops.append(lambda p=p: e(f"buffer_load_dwordx4 {X5(p)}, {kvv[p % 4]}, {SRDKV}, {sP1} offen" + (f" offset:{(p % 4) * 1024}" if p % 4 else "") + nt))
        return ops
    for k, o in enumerate(x5_ops()): G.mem(OPT["x5g"] + k // 2, o)
    G.mem(6, stream_init)
    if OPT["wo_touch"] == 3:
        G.mem(7, lambda: (e(f"s_lshl_b32 {sT2}, s2, 2"), e(f"s_add_u32 {sT2}, {sT2}, {sW}"), e(f"s_lshl_b32 {sT2}, {sT2}, 13")))
        G.mem(8, lambda: a.bload(vTD, vTA, SRDWO, sT2, 0))
    for u in range(4):
        G.mem(9 + u, lambda u=u: (e(f"s_sub_u32 {sT0}, {u}, {sQH}"), e(f"s_and_b32 {sT0}, {sT0}, 3"), e(f"s_lshl_b32 {sT0}, {sT0}, 14"), e(f"s_add_u32 {sSL[u]}, {sM0KV}, {sT0}")))
    G.mem(13, lambda: (e(f"s_mov_b32 {sSL0}, {sSL[0]}"), e(f"s_cmp_lg_u32 {sQH}, 0"), e("s_cselect_b64 vcc, -1, 0")))
    G.valu(14, lambda: e(f"v_add_u32 {vKW}, {sDL}, {vKW}"))
    G.run(sm)
    e("s_nop 7")
    for o in rowmax_ops(5, vt[0], vt[1]) + negfill_ops(5, vt[0]) + init[16:]: o()
    e("s_nop 1")

    def dma_kv(slot):
        ops = []
        for half in range(2):
            ops.append(lambda half=half: (e(f"s_add_u32 m0, {slot}, {half * 4096}"), e("s_nop 0")))
            for j in range(4):
                ops.append(lambda j=j, half=half: a.dma(kvv[j], SRDKV, sKVO2 if half else sKVO, j * 1024, nt))
        ops.append(lambda: (e(f"s_add_u32 {sKVO}, {sKVO}, 8192"), e(f"s_and_b32 {sKVO}, {sKVO}, 262143"), e(f"s_add_u32 {sKVO2}, {sKVO}, 4096")))
        return ops
    PVg = lambda j: [(lambda db=db: a.mfma16(OA(db, j), VF(db), PB(j % 2), OA(db, j))) for db in range(8)]
    lblc = [0]
    def only(kind, f):
        lblc[0] += 1; L = f"L1_only{lblc[0]}"
        e(f"s_cbranch_vcc{'z' if kind else 'nz'} {L}"); f(); a.label(L)
    def dma_half(u, half):
        e(f"s_add_u32 m0, {sSL[u]}, {half * 4096}"); e("s_nop 0")
        for j in range(4): e(f"buffer_load_dwordx4 {kvv[j]}, {SRDKV}, {sKVO2 if half else sKVO} offen" + (f" offset:{j * 1024}" if j else "") + nt + " lds")
    def x5_write():
        for p in range(8): e(f"ds_write_b128 {vKW}, {X5(p)}" + (f" offset:{p * 1024}" if p else ""))
    def tileB(u, vs=None, ks=None, dma=True, adv=True, kill=False, vm=OPT["bwait"], extra={}, nok=False):
        vs = u if vs is None else vs
        ks = (u + 1) % 4 if ks is None else ks
        mf = []
        for j in range(6):
            for n in range(8):
                D = SB(j % 2)[4 * (n & 1):4 * (n & 1) + 4]
                mf.append(lambda n=n, D=D, j=j: a.mfma16(D, KF(n), QF(j, n >> 1), D if n > 1 else NEG(j)))
            mf += PVg((j + 5) % 6)
        for idx, regs in ((0, [KF(n) for n in range(4)]), (4, [KF(n) for n in range(8)]), (24, [VF(d) for d in range(4)]), (28, [VF(d) for d in range(8)])):
            mf[idx] = (lambda f=mf[idx], regs=regs: (a.wait_for(*regs), f()))
        for g in range(NS):
            if not OPT["bnoc"] & 1: mf[g]()
            for it in memg.get(g, []):
                k = it[0]
                if OPT["bnoc"] & 2 and k in "vk": continue
                if k == "kill" and kill: e(f"s_cmp_lt_u32 {sCnt}, 22"); e(f"s_cselect_b32 {SRDKV[2]}, {NR}, 0"); e(f"s_add_u32 {sCnt}, {sCnt}, 1")
                if k == "m0" and dma: e(f"s_add_u32 m0, {sSL[u]}, {it[1] * 4096}")
                if k == "bar":
                    if vm is not None: a.wait(vm=vm)
                    e("s_barrier")
                if k == "v": rdV(it[1], it[2], vs)()
                if k == "k" and not nok: rdK(it[1], it[2], ks)()
                if k == "dma" and dma: a.dma(kvv[it[2]], SRDKV, sKVO2 if it[1] else sKVO, it[2] * 1024, nt)
                if k == "adv" and adv: e(f"s_add_u32 {sKVO}, {sKVO}, 8192"); e(f"s_and_b32 {sKVO}, {sKVO}, 262143"); e(f"s_add_u32 {sKVO2}, {sKVO}, 4096")
            for f in extra.get(g, []): f()
            for j, op in valg.get(g + NS, []) + valg.get(g, []):
                if not OPT["bnoc"] & 4: sm_op(j, op)
        if OPT["bnoc"] & 1: a.wait(lgkm=0)
    stamp(a, 3)
    shift = lambda op, g0: {g0 + k: [lambda r=r: e(f"{op} {r}, {r}, {sDL}" if op == "v_subrev_u32" else f"{op} {r}, {sDL}, {r}")] for k, r in enumerate(ka + va)}
    shift = lambda op, g0: {g0 + k: [lambda r=r: e(f"{op} {r}, {sDL}, {r}")] for k, r in enumerate(ka + va)}
    e("s_waitcnt lgkmcnt(0)"); a.lds = []
    a.label("L1_tile0")
    tileB(0, dma=False, vm=None, extra={dg: [lambda: only(0, lambda: dma_half(0, 0))], dg + 10: [lambda: only(0, lambda: dma_half(0, 1))]})
    K2 = kernel2(a) if OPT["fuse"] else None
    x1, x2 = {}, {}
    if F4:
        early = next(K2)
        x1 = {50: [lambda: e(f"buffer_load_dword {vTag}, {vZero}, {SRDD}, 0 offen sc1")]}
        gl = [(x1, g) for g in range(30, 94, 2)] + [(x2, g) for g in range(30, 94, 2)]
        for k, un in enumerate(early):
            x, g = gl[k * len(gl) // len(early)]
            x.setdefault(g, []).append(lambda un=un: [e(t) for t in un])
    tileB(1, vm=None, extra=x1)
    tileB(2, vm=None, extra=x2)
    tileB(3, ks=0, vm=32, extra=shift("v_add_u32", 44))
    tileB(0, vs=0, ks=0, dma=False, adv=False, vm=32,
          extra={29: [lambda: only(0, x5_write)], 45: [lambda: (a.wait(vm=24, lgkm=0), e("s_barrier"))], 46: [lambda: only(1, x5_write)],
                 50: [lambda: only(1, lambda: dma_half(0, 0))], 60: [lambda: only(1, lambda: dma_half(0, 1))],
                 62: [lambda: (e(f"s_cmp_eq_u32 {sQH}, 0"), e(f"s_cselect_b32 {sSL[0]}, {sSL0}, {sS}"))]})
    tileB(0, vs=0, ks=0, dma=False, adv=False, vm=24, extra=shift("v_subrev_u32", 44))
    def bodyB():
        for u in range(4): tileB(u, kill=True, extra={40: [lambda: e(f"s_mov_b32 {sSL[0]}, {sSL0}")]} if u == 1 else {})
    steady = list(a.lds)
    a.label("L1_loopB")
    bodyB()
    assert a.lds == steady
    e(f"s_add_u32 {sIT}, {sIT}, 1"); e(f"s_cmp_lt_u32 {sIT}, 6"); e("s_cbranch_scc1 L1_loopB")
    x30, x31 = {}, {}
    if E3:
        fl4 = next(K2)
        for k, o in enumerate(fl4[0]): x30.setdefault(OPT["e30"] + 2 * k, []).append(o)
        for k, o in enumerate(fl4[1] + fl4[2]): x31.setdefault(OPT["e31"] + 2 * k, []).append(o)
    tileB(0, dma=False, adv=False, vm=16, extra=x30)
    tileB(1, dma=False, adv=False, vm=8 if E3 else 0, nok=True, extra=x31)
    stamp(a, 4)
    for g, j, op in tail: sm_op(j, op)
    e("s_nop 1")
    def lsum_ops(j):
        sp = "s[98:99]" if j == 0 else "s[100:101]"
        ops = xlane("v_add_f32", vl[j], vt[1]) + [lambda: e(f"v_cmp_ngt_f32 {sp}, {sTHR}, {vl[j]}"), lambda: e(f"v_rcp_f32 {R2(j)[0]}, {vl[j]}"),
                                                  lambda: e(f"v_rcp_f32 {R2(j)[1]}, {vl[j]}")]
        if j: ops.append(lambda: e("s_or_b64 s[98:99], s[98:99], s[100:101]"))
        return ops
    G = Gaps()
    G.spread([(o, 4) for j in range(2) for o in lsum_ops(j)], list(range(0, 8)))
    G.run(PVg(5))
    for j in range(2, 6):
        for o in lsum_ops(j): o()
    e("s_cmp_lg_u64 s[98:99], 0"); e(f"s_cselect_b32 {sT0}, 1, 0"); e(f"s_andn2_b32 {sT0}, {sT0}, {sPass}")
    if OPT["bnoc"]: e(f"s_mov_b32 {sT0}, 0")
    e(f"v_mov_b32 {vt[1]}, {sT0}"); e(f"ds_write_b32 {vFL}, {vt[1]}"); a.lds.append(set())
    if F4:
        e(f"v_readfirstlane_b32 s93, {vTag}"); e(f"s_or_b32 s93, s93, {sW}"); e("s_cbranch_scc0 L1_tagslow")
        a.label("L1_tagok")
        e(f"ds_write_b32 {vFL}, {vTag} offset:16"); a.lds.append(set())
    ostf = (" " + OPT["ost"].replace("+", " ")) if OPT["ost"] else ""
    fill = []
    cnt = [0]
    def ev(t):
        e(t); cnt[0] += 1
        if fill and cnt[0] % (OPT["fint"] if F4 else 3) == 0: fill.pop(0)()
    for j in range(6):
        if j == 1:
            a.wait(lgkm=0, vm=None if E3 else 4); e("s_barrier")
            if F4: vZ = V(244, 4)
            e(f"v_and_b32 {vt[0]}, 0xfffffff0, {vFL}"); a.ds_read_b128(vZ, vt[0], 0)
            if F4: e(f"ds_read_b32 {vTag}, {vt[0]} offset:16"); a.lds.append(vTag.regs())
        if j == 2:
            a.wait(lgkm=0)
            e(f"v_or3_b32 {vt[0]}, {vZ[0]}, {vZ[1]}, {vZ[2]}"); e(f"v_or_b32 {vt[0]}, {vt[0]}, {vZ[3]}"); e("s_nop 0")
            e(f"v_readfirstlane_b32 {sT1}, {vt[0]}"); e(f"s_cmp_lg_u32 {sT1}, 0")
            if not (OPT["only01"] or OPT["bnoc"] or OPT["kvskip"] or OPT["askip"]): e("s_cbranch_scc1 L1_fallback")
            if K2 and OPT["fuse"] < 3: next(K2); fill = next(K2)
            if E3: next(K2); fill = [] if OPT["w3l"] else fl4[3]
            elif F4:
                fl4 = next(K2)
                if OPT["fo"] == 2: fill = fl4
            if OPT["fuse"] == 3:
                e(f"s_mov_b32 {SRDWO[0]}, s18"); e(f"s_mov_b32 {SRDWO[1]}, s19"); e(f"s_mov_b32 {SRDWO[2]}, {FLOFF + 65536}"); e(f"s_mov_b32 {SRDWO[3]}, 0x20000")
                e(f"s_lshl_b32 {sT1}, {sB}, 12"); e(f"s_lshl_b32 {sT2}, {sHP}, 2"); e(f"s_add_u32 {sT1}, {sT1}, {sT2}"); e(f"s_add_u32 {sP1}, {sT1}, {FLOFF}")
                e(f"v_lshlrev_b32 {vTA}, 8, {vLane}"); e(f"v_mov_b32 {vTD}, 0x5eedf1a6")
        if E3 and j == OPT["pj"]: next(K2)
        e(f"s_add_u32 {sT0}, {sOO}, {j * 131072}")
        for m in range(4):
            T = V(208 + 8 * (m % 2), 8); D = V(224 + 4 * (m % 2), 4)
            for i in range(8): ev(f"v_accvgpr_read_b32 {T[i]}, {OA(2 * m + (i >> 2), j)[i & 3]}")
            for i in range(4): ev(f"v_pk_mul_f32 {T[2*i:2*i+2]}, {T[2*i:2*i+2]}, {R2(j)}")
            for i in range(4): ev(f"v_cvt_pk_bf16_f32 {D[i]}, {T[2*i]}, {T[2*i+1]}")
            a.bstore(D, vOS, SRDO, sT0, m * 1024, ostf)
        if F4: zm4[2 * j](); zm4[2 * j + 1]()
    assert not fill
    if F4:
        e(f"v_lshlrev_b32 v179, 8, {vLane}")
        if OPT["fo"] == 0:
            for o in fl4: o()
        if not E3: next(K2)
        a.wait(vm=32 if OPT["fo"] == 0 else 0); e("s_barrier")
        stamp(a, 5)
        e(f"s_cmp_lg_u32 {sW}, 0"); e("s_cbranch_scc1 L1_nosig")
        e("s_mov_b64 exec, 0xffff")
        e(f"buffer_store_dword v38, v179, {SRDF}, {sFLO} offen sc1")
        e("s_mov_b64 exec, -1")
        a.label("L1_nosig")
        if E3 and OPT["pj"] == 6: next(K2)
        if E3 and OPT["w3l"]:
            for o in fl4[3]: o()
        if E3 and OPT["pj"] == 6: a.wait(vm=8 if OPT["w3l"] else 0)
        K2.send(lambda: dump_stamps(a, 6, 0x4000000, sW, vt[0], vt[1], last=False))
    if F4: pass
    elif OPT["fuse"] == 3:
        a.wait(vm=0); e("s_barrier")
        stamp(a, 5)
        e(f"s_cmp_lg_u32 {sW}, 0"); e("s_cbranch_scc1 L1_nosig")
        e("s_mov_b64 exec, 0xffff")
        e(f"buffer_store_dword {vTD}, {vTA}, {SRDWO}, {sP1} offen sc1")
        e("s_mov_b64 exec, -1")
        a.label("L1_nosig")
        next(K2); fill = next(K2)
        K2.send((fill, lambda: dump_stamps(a, 6, 0x4000000, sW, vt[0], vt[1], last=False)))
    elif K2:
        stamp(a, 5)
        K2.send((sB, lambda: dump_stamps(a, 6, 0x4000000, sW, vt[0], vt[1], last=False)))
    else:
        dump_stamps(a, 6, 0x4000000, sW, vt[0], vt[1])
    a.label("L1_end"); e("s_endpgm")
    if F4:
        next(K2)
        a.label("L1_tagslow")
        e("s_mov_b32 s75, 0")
        a.label("L1_tagloop")
        e("s_sleep 8"); e(f"buffer_load_dword {vTag}, {vZero}, {SRDD}, 0 offen sc1"); e("s_waitcnt vmcnt(0)")
        e(f"v_readfirstlane_b32 s93, {vTag}"); e("s_add_u32 s75, s75, 1"); e("s_cmp_lg_u32 s93, 0"); e("s_cbranch_scc1 L1_tagok")
        e("s_cmp_lt_u32 s75, 0x40000"); e("s_cbranch_scc1 L1_tagloop")
        e("s_branch L1_tagok")
    a.label("L1_fallback")
    a.lds = []; a.vm = []
    e("s_waitcnt vmcnt(0) lgkmcnt(0)"); e("s_barrier")
    e(f"s_mov_b32 {sPass}, 1"); e(f"s_mov_b32 {SRDKV[2]}, {NR}")
    for q in range(6): e(f"v_mov_b32 {vl[q]}, 0xff800000")
    e(f"s_mov_b32 {sKVO}, 0"); e(f"s_mov_b32 {sKVO2}, 4096"); e(f"s_mov_b32 {sIT}, 0")
    a.label("L1_fb_loop")
    for o in dma_kv(sM0KV): o()
    e("s_waitcnt vmcnt(0)"); e("s_barrier")
    for n in range(8):
        for pi in range(2): rdK(n, pi, 0)()
    for f in sm: f()
    e("s_nop 15")
    for j in range(6):
        for o in rowmax_ops(j, vt[0], vt[1]): o()
        e(f"v_max_f32 {vl[j]}, {vl[j]}, {vt[0]}")
    e("s_barrier")
    e(f"s_add_u32 {sIT}, {sIT}, 1"); e(f"s_cmp_lt_u32 {sIT}, 32"); e("s_cbranch_scc1 L1_fb_loop")
    e(f"s_mov_b32 {sKVO}, {sKV0}"); e(f"s_add_u32 {sKVO2}, {sKVO}, 4096")
    for t in range(4):
        e(f"s_add_u32 {sT0}, {sM0KV}, {t * 16384}")
        for o in dma_kv(sT0): o()
    for o in dma_kv(sS): o()
    for o in x5_ops(): o()
    e(f"s_mov_b32 {sSL[0]}, {sSL0}")
    for j in range(6):
        for o in negfill_ops(j, vl[j]): o()
        e(f"v_mov_b32 {vl[j]}, 0")
    if not F4:
        for i in range(4): e(f"v_mov_b32 {vZ[i]}, 0")
    for o in init: o()
    e("s_nop 1")
    for f in (zm4 if F4 else zm): f()
    stream_init()
    e("s_waitcnt vmcnt(0)"); e("s_barrier")
    for n in range(8):
        for pi in range(2): rdK(n, pi, 0)()
    e("s_waitcnt lgkmcnt(0)"); e("s_nop 15")
    e("s_branch L1_tile0")
    return a.text()

def kernel2(a):
    fused = a is not None
    if not fused: a = Asm()
    e = a.e
    SRDWO, SRDOW, SRDOUT, SRDDBG = S(20, 4), S(24, 4), S(28, 4), S(80, 4)
    sW, sRB, sCB, sT0, sT1, sT2, sIT = S(36), S(46), S(47), S(48), S(49), S(50), S(45)
    sWOo, sOo, sM0 = S(76), S(77), S(78)
    vLane = V(1); vt = [V(i) for i in range(2, 10)]
    wa = [V(10 + k) for k in range(8)]
    wv = [V(18 + k) for k in range(8)]
    ov = [V(26 + k) for k in range(6)]
    ra = [V(32 + k) for k in range(3)]
    vRW, vOut = V(35), V(36)
    AC = lambda i, j: A(4 * (j * 8 + i), 4)
    AF = lambda i: V(40 + 4 * i, 4)
    BF = lambda sl, j: V(72 + 24 * sl + 4 * j, 4)
    REG = 36864
    osc = " sc1" if (fused and OPT["osc"]) else ""
    F4 = fused and OPT["fuse"] == 4
    if F4:
        sT2, sM0 = S(75), S(74)
        vt[0] = V(4)
        SRDF, sCL, sMK, sPC, vPD, vTg, vPA = S(84, 4), S(79), S(50), S(75), V(37), V(38), V(39)
    E3 = F4 and OPT["fo"] == 3
    if E3: sCL = S(92); REG = 8192
    SLB = [131072, 32768, 98304, 0] if E3 else [0, 8192, 16384, 24576]
    wl = [V(168 + k) for k in range(8)]; rw = [V(176 + k) for k in range(3)]
    mark0 = len(a.out)
    if not fused:
        a.k2 = 1
        a.label("mha_oproj_kernel")
        e("s_cmp_ge_u32 s2, 256"); e("s_cbranch_scc1 L2_end")
        e("s_load_dwordx16 s[4:19], s[0:1], 0")
        e(f"v_lshrrev_b32 {vt[0]}, 6, v0"); e(f"v_and_b32 {vLane}, 63, v0")
        e(f"v_readfirstlane_b32 {sW}, {vt[0]}")
    e(f"s_and_b32 {sT2}, s2, 7"); e(f"s_lshr_b32 {sT0}, s2, 3")
    if OPT["map2"] in (0, 2):
        e(f"s_lshr_b32 {sT1}, {sT2}, 1"); e(f"s_lshl_b32 {sT1}, {sT1}, 3"); e(f"s_and_b32 {sRB}, {sT0}, 7")
        e(f"s_add_u32 {sRB}, {sT1}, {sRB}")
        e(f"s_and_b32 {sT1}, {sT2}, 1"); e(f"s_lshl_b32 {sT1}, {sT1}, 2"); e(f"s_lshr_b32 {sCB}, {sT0}, 3"); e(f"s_add_u32 {sCB}, {sCB}, {sT1}")
        if OPT["map2"] == 2:
            e(f"s_lshl_b32 {sCB}, {sCB}, 2"); e(f"s_lshr_b32 {sCB}, {OPT['cbtab']}, {sCB}"); e(f"s_and_b32 {sCB}, {sCB}, 7")
    else:
        e(f"s_lshl_b32 {sT1}, {sT2}, 2"); e(f"s_and_b32 {sT2}, {sT0}, 3"); e(f"s_add_u32 {sRB}, {sT1}, {sT2}")
        e(f"s_lshr_b32 {sCB}, {sT0}, 2")
        if OPT["cbrot"]: e(f"s_add_u32 {sCB}, {sCB}, {OPT['cbrot']}"); e(f"s_and_b32 {sCB}, {sCB}, 7")
    t0, t1, t2, t3 = wa[:4]
    e(f"v_lshrrev_b32 {t2}, 4, {vLane}"); e(f"v_and_b32 {t1}, 15, {vLane}")
    e(f"v_lshlrev_b32 {t3}, 1, {t2}"); e(f"v_xor_b32 {t1}, {t1}, {t3}")
    e(f"v_lshlrev_b32 {t0}, 11, {t2}"); e(f"v_lshl_add_u32 {wv[0]}, {t1}, 4, {t0}")
    e(f"v_xor_b32 {t1}, 128, {wv[0]}")
    for m in range(1, 8): e(f"v_add_u32 {wv[m]}, {m * 8192 - (m % 4) * 1024}, {t1 if m & 1 else wv[0]}")
    if OPT["wvx"] == 1:
        e(f"v_and_b32 {t1}, 15, {vLane}"); e(f"v_lshlrev_b32 {t0}, 14, {t2}"); e(f"v_lshl_add_u32 {wv[0]}, {t1}, 4, {t0}")
        for m in range(1, 8): e(f"v_add_u32 {wv[m]}, {m * 2048 - (m % 4) * 1024}, {wv[0]}")
    if OPT["wvx"] == 5:
        e(f"v_and_b32 {t1}, 15, {vLane}"); e(f"v_lshlrev_b32 {t0}, 12, {t2}"); e(f"v_lshl_add_u32 {wv[0]}, {t1}, 4, {t0}")
        for m in range(1, 8): e(f"v_add_u32 {wv[m]}, {((m & 1) + 8 * (m >> 1)) * 2048 - (m % 4) * 1024}, {wv[0]}")
    if OPT["wvx"] == 6:
        e(f"v_and_b32 {t1}, 15, {vLane}"); e(f"v_lshlrev_b32 {t0}, 13, {t2}"); e(f"v_lshl_add_u32 {wv[0]}, {t1}, 4, {t0}")
        for m in range(1, 8): e(f"v_add_u32 {wv[m]}, {((m & 3) + 16 * (m >> 2)) * 2048 - (m % 4) * 1024}, {wv[0]}")
    if OPT["wvx"] in (7, 8, 9):
        r_ = {7: 0, 8: 2, 9: 2}[OPT["wvx"]]
        e(f"s_add_u32 {sT0}, {sCB}, {r_}"); e(f"s_and_b32 {sT0}, {sT0}, 7"); e(f"s_add_u32 {sT0}, {sT0}, 8"); e(f"s_sub_u32 {sT0}, {sT0}, {sCB}"); e(f"s_lshl_b32 {sT0}, {sT0}, 7")
        e(f"v_bfe_u32 {t1}, {vLane}, 3, 1"); e(f"v_mul_lo_u32 {t1}, {t1}, {sT0}"); e(f"v_and_b32 {t3}, 7, {vLane}"); e(f"v_lshl_add_u32 {t1}, {t3}, 4, {t1}")
        e(f"s_lshl_b32 {sT0}, {sCB}, 7"); e(f"s_sub_u32 {sT0}, 4096, {sT0}"); e(f"v_add_u32 {t1}, {sT0}, {t1}")
        e(f"v_lshlrev_b32 {t0}, {14 if OPT['wvx'] == 9 else 11}, {t2}"); e(f"v_add_u32 {wv[0]}, {t1}, {t0}")
        for m in range(1, 8): e(f"v_add_u32 {wv[m]}, {m * (2048 if OPT['wvx'] == 9 else 8192) - (m % 4) * 1024}, {wv[0]}")
    if OPT["wvx"] == 2:
        e(f"v_and_b32 {t1}, 7, {vLane}"); e(f"v_lshrrev_b32 {t0}, 3, {vLane}"); e(f"v_lshlrev_b32 {t0}, 11, {t0}"); e(f"v_lshl_add_u32 {wv[0]}, {t1}, 4, {t0}")
        for m in range(1, 8): e(f"v_add_u32 {wv[m]}, {(m >> 1) * 16384 + (m & 1) * 128 - (m % 4) * 1024 + 4096}, {wv[0]}")
        e(f"v_add_u32 {wv[0]}, 4096, {wv[0]}")
    if OPT["wvx"] == 3:
        e(f"v_and_b32 {t1}, 15, {vLane}"); e(f"v_lshlrev_b32 {t0}, 11, {t2}"); e(f"v_lshl_add_u32 {wv[0]}, {t1}, 4, {t0}")
        for m in range(1, 8): e(f"v_add_u32 {wv[m]}, {m * 8192 - (m % 4) * 1024}, {wv[0]}")
    if OPT["wvx"] == 4:
        e(f"v_lshlrev_b32 {wv[0]}, 4, {vLane}"); e(f"s_mul_i32 {sT0}, {sCB}, {8192 - 256}"); e(f"v_add_u32 {wv[0]}, {sT0}, {wv[0]}")
        for m in range(1, 8): e(f"v_add_u32 {wv[m]}, {m * 1024 - (m % 4) * 1024}, {wv[0]}")
    e(f"s_mul_i32 {sM0}, {sW}, {REG}")
    e(f"s_lshl_b32 {sWOo}, {sW}, 21"); e(f"s_lshl_b32 {sOo}, {sW}, 15")
    def ovs():
        e(f"s_mul_i32 {sT0}, {sRB}, 786432"); e(f"v_lshlrev_b32 {vt[0]}, 4, {vLane}")
        e(f"v_add_u32 {ov[0]}, {sT0}, {vt[0]}")
        for j in range(1, 6): e(f"v_add_u32 {ov[j]}, {j * 131072}, {ov[0]}")
    if not fused:
        ovs()
        e("s_waitcnt lgkmcnt(0)")
        stamp(a, 0)
    e(f"s_lshl_b32 {sT0}, {sCB}, 8")
    e(f"s_add_u32 {SRDWO[0]}, s12, {sT0}"); e(f"s_addc_u32 {SRDWO[1]}, s13, 0")
    e(f"s_sub_u32 {SRDWO[2]}, 8388608, {sT0}"); e(f"s_mov_b32 {SRDWO[3]}, 0x20000")
    e(f"s_mov_b32 {SRDOW[0]}, s18"); e(f"s_mov_b32 {SRDOW[1]}, s19")
    e(f"s_mov_b32 {SRDOW[2]}, 25165824"); e(f"s_mov_b32 {SRDOW[3]}, 0x20000")
    if OPT["k2skip"] & 1: e(f"s_mov_b32 {SRDWO[2]}, 0")
    if OPT["k2skip"] & 2: e(f"s_mov_b32 {SRDOW[2]}, 0")
    def issue_w(slot):
        ops = []
        for h in range(2):
            ops.append(lambda h=h: e(f"s_add_u32 m0, {sM0}, {SLB[slot] + h * 4096}"))
            for m in range(4): ops.append(lambda m=m, h=h: a.dma(wv[4 * h + m], SRDWO, sWOo, m * 1024, tag=("w", slot)))
        ops.append(lambda: e(f"s_add_u32 {sWOo}, {sWOo}, 65536"))
        return ops
    def issue_o(slot):
        ops = [(lambda j=j: a.bload(BF(slot, j), ov[j], SRDOW, sOo, 0, osc)) for j in range(6)]
        ops.append(lambda: e(f"s_add_u32 {sOo}, {sOo}, 1024"))
        return ops
    def run(ops):
        for o in ops:
            n = len(a.out); o()
            if "m0" in a.out[-1]: e("s_nop 0")
    def wa_setup():
        e(f"v_lshrrev_b32 {vg}, 4, {vLane}"); e(f"v_lshrrev_b32 {vr}, 2, {vLane}"); e(f"v_and_b32 {vc}, 3, {vLane}")
        e(f"v_and_b32 {u1}, 7, {vr}"); e(f"v_lshlrev_b32 {u0}, 8, {vr}")
        e(f"v_add_u32 {u0}, {sM0}, {u0}"); e(f"v_lshl_add_u32 {u0}, {vc}, 3, {u0}"); e(f"v_lshl_add_u32 {u0}, {u1}, 5, {u0}")
        if E3: e(f"v_add_u32 {u0}, 98304, {u0}")
        for d in range(4):
            e(f"s_add_u32 {sT0}, {sW}, {d}"); e(f"s_and_b32 {sT0}, {sT0}, 3"); e(f"s_lshl_b32 {sT0}, {sT0}, 6")
            e(f"v_xor_b32 {wa[2*d]}, {sT0}, {u0}"); e(f"v_xor_b32 {wa[2*d+1]}, 32, {wa[2*d]}")
    vg, vr, vc, u0, u1 = vt[3:8]
    if F4:
        ovs(); wa_setup()
        for i in range(4): e(f"v_mov_b32 v{252 + i}, 0")
        def scl():
            e(f"s_lshr_b32 {sT0}, {sRB}, 1"); e(f"s_lshl_b32 {sT0}, {sT0}, 4"); e(f"s_lshl_b32 {sT1}, {sCB}, 1"); e(f"s_add_u32 {sT0}, {sT0}, {sT1}")
            e(f"s_and_b32 {sT1}, {sRB}, 1"); e(f"s_add_u32 {sT0}, {sT0}, {sT1}"); e(f"s_lshl_b32 {sT0}, {sT0}, 8"); e(f"s_lshl_b32 {sT1}, {sW}, 4")
            e(f"s_add_u32 {sT0}, {sT0}, {sT1}"); e(f"s_add_u32 {sCL}, {sT0}, {FLOFF}")
        if E3: scl()
        lines = [t[1:] for t in a.out[mark0:]]; del a.out[mark0:]
        units = []
        for t in lines:
            if t.startswith(("s_addc", "s_cselect")): units[-1].append(t)
            else: units.append([t])
        yield units
        fills = issue_w(0) + issue_w(1) + issue_w(2) + issue_w(3)
        if E3: yield [[(lambda o=o: run([o])) for o in issue_w(k)] for k in range(4)]
        else:
            yield [(lambda o=o: run([o])) for o in fills]
            scl()
        e(f"v_and_b32 {vPA}, 3, {vLane}"); e(f"v_lshlrev_b32 {vPA}, 2, {vPA}"); e(f"v_mov_b32 {vTg}, v63")
        e(f"s_mov_b32 {sPC}, 0"); e(f"s_mov_b32 {sMK}, 1")
        if E3:
            for k in range(8): e(f"v_add_u32 {wl[k]}, 0xfffe8000, {wa[k]}")
            yield None
            e(f"buffer_load_dword {vPD}, {vPA}, {SRDF}, {sCL} offen sc1"); a.vm.append(set())
        dump1 = yield None
        a.k2 = 1; stamp(a, 0)
        if not E3: e(f"buffer_load_dword {vPD}, {vPA}, {SRDF}, {sCL} offen sc1")
        if OPT["fo"] == 1: run(fills)
    elif fused:
        yield None
        sB1, dump1 = yield issue_w(0) + issue_w(1) + issue_w(2) + issue_w(3)
        if OPT["fuse"] == 3:
            vTag, vPA, vPD = V(61), V(60), V(59)
            a.k2 = 1; stamp(a, 0)
            e(f"s_lshr_b32 {sT0}, {sRB}, 1"); e(f"s_lshl_b32 {sT0}, {sT0}, 4"); e(f"s_lshl_b32 {sT1}, {sCB}, 1"); e(f"s_add_u32 {sT0}, {sT0}, {sT1}")
            e(f"s_and_b32 {sT1}, {sRB}, 1"); e(f"s_add_u32 {sT0}, {sT0}, {sT1}"); e(f"s_lshl_b32 {sT0}, {sT0}, 8"); e(f"s_add_u32 s39, {sT0}, {FLOFF}")
            e(f"v_and_b32 {vPA}, 15, {vLane}"); e(f"v_lshlrev_b32 {vPA}, 2, {vPA}")
            e(f"s_cmp_lg_u32 {sW}, 0"); e("s_cbranch_scc1 L2_np0")
            e(f"buffer_load_dword {vPD}, {vPA}, {SRDDBG}, s39 offen sc1")
            a.label("L2_np0")
            run(sB1)
        ovs()
    else:
        run(issue_w(0)); run(issue_o(0)); run(issue_w(1)); run(issue_o(1))
        if OPT["codepf"]: code_prefetch(a, vLane, V(173), V(172), "mha_oproj_kernel", 16384, sW)
        run(issue_w(2)); run(issue_o(2)); run(issue_w(3))
    t0 = vt[0]
    mark1 = len(a.out)
    e(f"s_mov_b32 {SRDOUT[0]}, s14"); e(f"s_mov_b32 {SRDOUT[1]}, s15")
    e(f"s_mov_b32 {SRDOUT[2]}, 6291456"); e(f"s_mov_b32 {SRDOUT[3]}, 0x20000")
    e(f"v_add_u32 {vRW}, {sM0}, {t0}")
    RB = [0, 32768, 98304]
    if E3: e(f"v_add_u32 {rw[1]}, {RB[1]}, {vRW}"); e(f"v_add_u32 {rw[2]}, {RB[2]}, {vRW}"); rw[0] = vRW
    for d in range(1, 4):
        e(f"s_sub_u32 {sT0}, {sW}, {d}"); e(f"s_and_b32 {sT0}, {sT0}, 3"); e(f"s_mul_i32 {sT0}, {sT0}, {REG}")
        e(f"s_add_u32 {sT0}, {sT0}, {RB[d - 1] if E3 else (d - 1) * 12288}"); e(f"v_add_u32 {ra[d-1]}, {sT0}, {t0}")
    if not F4: wa_setup()
    e(f"s_mul_i32 {sT0}, {sRB}, 196608"); e(f"s_lshl_b32 {sT1}, {sCB}, 8"); e(f"s_add_u32 {sT0}, {sT0}, {sT1}")
    e(f"s_lshl_b32 {sT1}, {sW}, 6"); e(f"s_add_u32 {sT0}, {sT0}, {sT1}")
    e(f"v_and_b32 {u1}, 15, {vLane}"); e(f"v_lshlrev_b32 {vOut}, 11, {u1}"); e(f"v_add_u32 {vOut}, {sT0}, {vOut}")
    e(f"v_and_b32 {u1}, 1, {vg}"); e(f"v_lshl_add_u32 {vOut}, {u1}, 5, {vOut}")
    e(f"v_lshrrev_b32 {u1}, 1, {vg}"); e(f"v_lshl_add_u32 {vOut}, {u1}, 4, {vOut}")
    vZ = V(168, 4)
    if not F4:
        for i in range(4): e(f"v_mov_b32 {vZ[i]}, 0")
        e("s_nop 1")
        for k in range(12): e(f"v_mfma_f32_32x32x16_bf16 {A(16 * k, 16)}, {vZ}, {vZ}, 0")
    def rdA(slot, i):
        if E3: return [(lambda u=u: a.ds_read_tr(AF(i)[2 * u:2 * u + 2], (wl if slot & 1 else wa)[i], (32768 if slot < 2 else 0) + u * 4096)) for u in range(2)]
        return [(lambda u=u: a.ds_read_tr(AF(i)[2 * u:2 * u + 2], wa[i], slot * 8192 + u * 4096)) for u in range(2)]
    late2 = []
    if E3: late2 = a.out[mark1:]; del a.out[mark1:]
    def chk(n):
        e(f"v_cmp_ne_u32 vcc, {vPD}, {vTg}"); e(f"s_and_b32 {sT0}, vcc_lo, {sMK}"); e(f"s_cbranch_scc1 L2_slow{n}")
        a.label(f"L2_back{n}")
    if F4:
        if not E3: a.wait(vm=32 if OPT["fo"] == 1 else 0)
        chk(0)
        stamp(a, 1)
        run(issue_o(0)); run(issue_o(1)); run(issue_o(2))
        if not E3: a.wait(vm=18 + 24)
        for i in range(7):
            for r in rdA(0, i): r()
        a.out += late2
        a.wait(vm=6)
        stamp(a, 2)
    elif fused and OPT["fuse"] == 3:
        stamp(a, 1)
        e(f"s_mov_b32 {sIT}, 0")
        e(f"s_cmp_lg_u32 {sW}, 0"); e("s_cbranch_scc1 L2_skip")
        e("s_waitcnt vmcnt(32)")
        e("s_branch L2_chk")
        a.label("L2_poll")
        e(f"s_sleep {OPT['psleep']}")
        e(f"buffer_load_dword {vPD}, {vPA}, {SRDDBG}, s39 offen sc1")
        e("s_waitcnt vmcnt(0)")
        a.label("L2_chk")
        e(f"v_cmp_ne_u32 vcc, {vPD}, {vTag}"); e(f"s_add_u32 {sIT}, {sIT}, 1")
        e("s_cbranch_vccz L2_skip")
        e(f"s_cmp_lt_u32 {sIT}, 0x40000"); e("s_cbranch_scc1 L2_poll")
        a.label("L2_skip")
        e("s_barrier")
        stamp(a, 2)
        run(issue_o(0)); run(issue_o(1)); run(issue_o(2))
        a.wait_for(("w", 0))
        for i in range(7):
            for r in rdA(0, i): r()
        a.wait(vm=6)
        stamp(a, 3)
    elif fused:
        e(f"s_mov_b32 {SRDDBG[0]}, s16"); e(f"s_mov_b32 {SRDDBG[1]}, s17"); e(f"s_mov_b32 {SRDDBG[2]}, 256"); e(f"s_mov_b32 {SRDDBG[3]}, 0x20000")
        e(f"s_lshl_b32 {sT0}, {sB1}, 4"); e(f"s_lshr_b32 {sT1}, {sRB}, 1"); e(f"s_lshl_b32 {sT1}, {sT1}, 4")
        if OPT["fuse"] == 2: e(f"s_mov_b32 {sT0}, 0"); e(f"s_mov_b32 {sT1}, 0")
        e(f"v_mov_b32 {vt[0]}, 1"); e(f"v_mov_b32 {vt[1]}, 0"); e(f"s_mov_b32 {sIT}, 0")
        a.k2 = 1; stamp(a, 0)
        a.wait(vm=0); e("s_barrier")
        stamp(a, 1)
        e(f"s_cmp_lg_u32 {sW}, 0"); e("s_cbranch_scc1 L2_skip")
        e("s_mov_b64 exec, 1")
        e(f"buffer_atomic_add {vt[0]}, {vt[1]}, {SRDDBG}, {sT0} offen sc1")
        a.label("L2_poll")
        e(f"buffer_load_dword {vt[2]}, {vt[1]}, {SRDDBG}, {sT1} offen sc1")
        e("s_waitcnt vmcnt(0)")
        e(f"v_readfirstlane_b32 {sT2}, {vt[2]}"); e(f"s_add_u32 {sIT}, {sIT}, 1")
        e(f"s_cmp_ge_u32 {sT2}, {256 if OPT['fuse'] == 2 else 16}"); e("s_cbranch_scc1 L2_go")
        e(f"s_sleep {OPT['psleep']}")
        e(f"s_cmp_lt_u32 {sIT}, 0x40000"); e("s_cbranch_scc1 L2_poll")
        a.label("L2_go")
        e("s_mov_b64 exec, -1")
        a.label("L2_skip")
        for i in range(7):
            for r in rdA(0, i): r()
        e("s_barrier")
        stamp(a, 2)
        run(issue_o(0)); run(issue_o(1)); run(issue_o(2))
        a.wait(vm=0)
        stamp(a, 3)
    else:
        a.wait_for(("w", 0))
        stamp(a, 1)
        for i in range(7):
            for r in rdA(0, i): r()
    e(f"s_mov_b32 {sIT}, 0")
    def body():
        for u in range(4):
            G = Gaps()
            mf = [(lambda i=i, j=j: a.mfma16(AC(i, j), AF(i), BF(u, j), AC(i, j))) for i in range(8) for j in range(6)]
            m0_ = mf[0]; mf[0] = lambda m0_=m0_: (a.wait_for(BF(u, 5), lgkm=2), m0_())
            for k, r in enumerate(rdA(u, 7)): G.mem(k, r)
            G.mem(5, lambda: a.wait_for(("w", (u + 1) % 4), lgkm=0))
            for i in range(7):
                for k, r in enumerate(rdA((u + 1) % 4, i)): G.mem(6 * i + 6 + k, r)
            ops = issue_w(u) + issue_o((u + 3) % 4)
            if u == 0: G.mem(3, lambda: (e(f"s_cmp_eq_u32 {sIT}, 7"), e(f"s_cselect_b32 {SRDWO[2]}, 0, {SRDWO[2]}")))
            if u == 1: G.mem(3, lambda: (e(f"s_cmp_eq_u32 {sIT}, 7"), e(f"s_cselect_b32 {SRDOW[2]}, 0, {SRDOW[2]}")))
            if F4 and u == 0: G.mem(4, lambda: (e(f"s_add_u32 {sT1}, {sIT}, 3"), e(f"s_lshr_b32 {sT1}, {sT1}, 1"), e(f"s_bfm_b32 {sMK}, {sT1}, 0")))
            if F4 and u == 1: G.mem(4, lambda: (a.wait_for(vPD), chk(1)))
            if F4 and u == OPT["pollu"]: ops = ops + [lambda: a.bload(vPD, vPA, SRDF, sCL, 0, " sc1")]
            free = [g for i in range(1, 8) for g in range(6 * i + 2, 6 * i + 6)]
            for o, g in zip(ops, [free[(k * len(free)) // len(ops)] for k in range(len(ops))]): G.mem(g, o)
            G.run(mf)
    mark = len(a.out)
    body(); body(); sl, sv = list(a.lds), list(a.vm)
    del a.out[mark:]
    a.lds, a.vm = list(sl), list(sv)
    a.label("L2_loop")
    body()
    assert a.lds == sl and a.vm == sv, (a.vm, sv)
    e(f"s_add_u32 {sIT}, {sIT}, 1"); e(f"s_cmp_lt_u32 {sIT}, 8"); e("s_cbranch_scc1 L2_loop")
    a.wait(vm=0, lgkm=0)
    if not fused: stamp(a, 2); stamp(a, 3)
    if F4: stamp(a, 3)
    stamp(a, 4)
    e("s_nop 7")
    for d in range(1, 4):
        for j in range(6):
            for b in range(2):
                c = (d - 1) * 12 + j * 2 + b
                if E3: a.ds_write_b128(rw[d - 1], AC(2 * d + b, j), (c >> 3) * 32768 - RB[d - 1] + (c & 7) * 1024)
                else: a.ds_write_b128(vRW, AC(2 * d + b, j), c * 1024)
    R = lambda b, j: V(40 + 8 * j + 4 * b, 4)
    for j in range(6):
        for b in range(2):
            for i in range(4): e(f"v_accvgpr_read_b32 {R(b, j)[i]}, {AC(b, j)[i]}")
    a.wait(lgkm=0); e("s_barrier")
    T = lambda d, b, j: V(96 + 48 * d + 8 * j + 4 * b, 4)
    for j in range(6):
        for d in range(3):
            for b in range(2):
                c = d * 12 + j * 2 + b
                a.ds_read_b128(T(d, b, j), ra[d], ((c >> 3) * 32768 - RB[d] + (c & 7) * 1024) if E3 else (j * 2 + b) * 1024)
    for j in range(6):
        for d in range(3):
            for b in range(2):
                a.wait_for(T(d, b, j))
                for i in range(2): e(f"v_pk_add_f32 {R(b, j)[2*i:2*i+2]}, {R(b, j)[2*i:2*i+2]}, {T(d, b, j)[2*i:2*i+2]}")
        D = V(10 + 4 * j, 4)
        e(f"v_cvt_pk_bf16_f32 {D[0]}, {R(0, j)[0]}, {R(0, j)[1]}"); e(f"v_cvt_pk_bf16_f32 {D[1]}, {R(0, j)[2]}, {R(0, j)[3]}")
        e(f"v_cvt_pk_bf16_f32 {D[2]}, {R(1, j)[0]}, {R(1, j)[1]}"); e(f"v_cvt_pk_bf16_f32 {D[3]}, {R(1, j)[2]}, {R(1, j)[3]}")
        e(f"s_mov_b32 {sT0}, {j * 32768}"); e("s_nop 0")
        e(f"v_permlane16_swap_b32 {D[0]}, {D[2]}"); e(f"v_permlane16_swap_b32 {D[1]}, {D[3]}")
        a.bstore(D, vOut, SRDOUT, sT0, 0, (" " + OPT["ost2"].replace("+", " ")) if OPT["ost2"] else "")
    dump_stamps(a, 6, 0x4100000, sW, vt[0], vt[1])
    a.k2 = 0
    if OPT["leak"]:
        lk = OPT["leak"]
        if lk < 100:
            e(f"v_readfirstlane_b32 s93, v{241 + 2 * (lk % 10)}"); e(f"v_readfirstlane_b32 s94, v{241 + 2 * (lk // 10)}")
        elif lk < 200:
            e(f"s_mov_b32 s93, s{61 + 2 * (lk % 10)}"); e(f"s_mov_b32 s94, s{61 + 2 * ((lk // 10) % 10)}")
        else:
            e("v_readfirstlane_b32 s93, v251"); e("s_mov_b32 s94, s61")
        e("s_nop 4"); e("s_sub_u32 s93, s93, s94"); e("s_lshl_b32 s93, s93, 2"); e("s_min_u32 s93, s93, 100000")
        e("s_memrealtime s[98:99]"); e("s_waitcnt lgkmcnt(0)"); e("s_add_u32 s93, s93, s98")
        a.label("L2_spin")
        e("s_memrealtime s[98:99]"); e("s_waitcnt lgkmcnt(0)"); e("s_sub_u32 s94, s93, s98"); e("s_cmp_gt_i32 s94, 0"); e("s_cbranch_scc1 L2_spin")
    if fused:
        dump1()
        yield None
        for n in range(2):
            a.label(f"L2_slow{n}")
            e(f"s_sleep {OPT['psleep']}"); e(f"buffer_load_dword {vPD}, {vPA}, {SRDF}, {sCL} offen sc1"); e("s_waitcnt vmcnt(0)")
            e(f"s_add_u32 {sPC}, {sPC}, 1"); e(f"s_cmp_ge_u32 {sPC}, 0x40000"); e(f"s_cbranch_scc1 L2_back{n}")
            e(f"v_cmp_ne_u32 vcc, {vPD}, {vTg}"); e(f"s_and_b32 {sT0}, vcc_lo, {sMK}"); e(f"s_cbranch_scc1 L2_slow{n}")
            e(f"s_branch L2_back{n}")
        yield None
    else:
        a.label("L2_end")
        e("s_endpgm")
        yield a.text()


def kernel0():
    a = Asm(); e = a.e
    a.label("mha_pre_kernel")
    e("s_cmp_ge_u32 s2, 256"); e("s_cbranch_scc1 L0_end")
    e("s_load_dwordx16 s[4:19], s[0:1], 0"); e("s_waitcnt lgkmcnt(0)")
    e("s_mov_b32 s20, s4"); e("s_mov_b32 s21, s5"); e("s_mov_b32 s22, 6291456"); e("s_mov_b32 s23, 0x20000")
    e("s_mov_b32 s24, s10"); e("s_mov_b32 s25, s11"); e("s_mov_b32 s26, 8388608"); e("s_mov_b32 s27, 0x20000")
    e("v_lshlrev_b32 v1, 7, v0"); e("s_lshl_b32 s3, s2, 15")
    e("buffer_load_dword v2, v1, s[20:23], s3 offen"); e("buffer_load_dword v3, v1, s[24:27], s3 offen")
    e("s_waitcnt vmcnt(0)")
    a.label("L0_end"); e("s_endpgm")
    return a.text()

def main():
    launches = []
    if OPT["fuse"]:
        s = HEADER + "; @launch kernel=mha_qattn_kernel grid=(256,1,1) block=(256,1,1) lds=163840\n"
        s += '.amdgcn_target "amdgcn-amd-amdhsa--gfx950"\n.text\n'
        s += ".globl mha_qattn_kernel\n.p2align 8\n.type mha_qattn_kernel,@function\n" + kernel1() + "L_text_end:\n"
        s += kd("mha_qattn_kernel", 512, 256)
        open(sys.argv[1], "w").write(s)
        return
    if OPT["only"] in (None, "k1"): launches.append("; @launch kernel=mha_qattn_kernel grid=(256,1,1) block=(256,1,1) lds=163840")
    if OPT["only"] in (None, "k2"): launches.append("; @launch kernel=mha_oproj_kernel grid=(256,1,1) block=(256,1,1) lds=163840")
    s = HEADER + "\n".join(launches) + "\n"
    s += '.amdgcn_target "amdgcn-amd-amdhsa--gfx950"\n.text\n'
    s += ".globl mha_qattn_kernel\n.p2align 8\n.type mha_qattn_kernel,@function\n" + kernel1()
    s += ".globl mha_oproj_kernel\n.p2align 8\n.type mha_oproj_kernel,@function\n" + next(kernel2(None)) + "L_text_end:\n"
    s += kd("mha_qattn_kernel", 512, 256) + kd("mha_oproj_kernel", 512, 256)
    open(sys.argv[1], "w").write(s)
main()
```

```python
import sys, math, struct
from asmlib import *

OPT = dict(kv_nt=1, only=None, dbgQ=0, prof=0, kvskip=0, wo_touch=3, n2=0, rotH=0, p1end=26, ost="", codepf=0, k2skip=0, map2=1, pre=0, askip=0, p2nt=1, p2s=3, p2e=30, early=1, xw_touch=0, leak=0, rotW=0, krot=0, ost2="", itst=0, bwait=16, bdrop=0, qmode=0, tl=64, fuse=1, psleep=2, osc=1, bmap=0, evw=16, h16=0, dg0=20, verbose=0, d4=8, x5g=0, bnoc=0, xmap=0, only01=0, p2b=49152, pollu=2, fo=0, fint=4, hperm=0, cbrot=0, wvx=0, cbtab='0x76345210', e30=20, e31=20, pj=5, w3l=0, thr=0, thrp=0, tp=0)
for a_ in sys.argv[2:]:
    k, v = a_.split("=")
    assert k in OPT, k
    OPT[k] = int(v) if v.lstrip("-").isdigit() else v

def f32bits(x): return struct.unpack("<I", struct.pack("<f", x))[0]
CSCALE = math.log2(math.e) / math.sqrt(128.0)
THRESH = 2.0 ** 30
FLOFF = 0x2000000

HEADER = """; Kernarg layout for this problem (64 bytes, ptrs only, base s[0:1]):
"""

def stamp(a, i, lvl=1):
    if not OPT["prof"]: return
    if OPT["prof"] == 2 and lvl == 1 and i >= 2 and not getattr(a, "k2", 0): return
    if OPT["prof"] == 1 and lvl == 2: return
    a.e("s_memtime s[98:99]"); a.e("s_memrealtime s[100:101]")
    a.e("s_waitcnt lgkmcnt(0)"); a.lds = []
    if getattr(a, "k2", 0): a.e(f"v_mov_b32 v{240+2*i}, s98"); a.e(f"v_mov_b32 v{241+2*i}, s100")
    else: a.e(f"s_mov_b32 s{60+2*i}, s98"); a.e(f"s_mov_b32 s{61+2*i}, s100")
def dump_stamps(a, n, wsoff, sW, vtmp, vaddr, last=True):
    if not OPT["prof"]: return
    e = a.e
    e("s_waitcnt vmcnt(0)")
    if last: stamp(a, n - 1)
    e("s_mov_b32 s88, s18"); e("s_mov_b32 s89, s19"); e("s_mov_b32 s90, 0x10000000"); e("s_mov_b32 s91, 0x20000")
    e(f"s_lshl_b32 s92, s2, 2"); e(f"s_add_u32 s92, s92, {sW}"); e("s_lshl_b32 s92, s92, 6"); e(f"s_add_u32 s92, s92, {wsoff}")
    e(f"v_mov_b32 {vaddr}, 0")
    for i in range(2 * n):
        e(f"v_mov_b32 {vtmp}, " + (f"v{240+i}" if getattr(a, "k2", 0) else f"s{60+i}"))
        e(f"buffer_store_dword {vtmp}, {vaddr}, s[88:91], s92 offen offset:{4*i}")
    e("s_waitcnt vmcnt(0)")

def code_prefetch(a, vLane, vtmp, vdst, start_label, nbytes, sW):
    e = a.e
    e("s_getpc_b64 s[84:85]")
    a.label(f"{start_label}_pc")
    e(f"s_sub_u32 s84, s84, {start_label}_pc-{start_label}"); e("s_subb_u32 s85, s85, 0")
    e(f"s_mov_b32 s86, L_text_end-{start_label}"); e("s_mov_b32 s87, 0x20000")
    e(f"v_lshlrev_b32 {vtmp}, 7, {vLane}"); e(f"s_lshl_b32 s93, {sW}, 13")
    for blk in range((nbytes + 32767) // 32768):
        a.bload(vdst, vtmp, S(84, 4), "s93", 0)
        e("s_add_u32 s93, s93, 32768")

def kernel1():
    a = Asm(); e = a.e
    SRDX, SRDW, SRDKV, SRDO, SRDWO = S(20, 4), S(24, 4), S(28, 4), S(32, 4), S(80, 4)
    sW, sB, sHP, sQH, sHS = S(36), S(37), S(38), S(40), S(41)
    sT0, sT1, sT2, sIT = S(42), S(43), S(44), S(45)
    sXK, sWK = S(46), S(47)
    sM0X, sM0W = S(48), S(49)
    sKVO, sKVO2, sM0KV = S(50), S(51), S(52)
    sTHR, sC = S(53), S(54, 2)
    sOO, sCnt, sKV0, sPass, sP1 = S(56), S(57), S(58), S(59), S(39)
    sDL, sSL0, sS = S(79), S(78), S(72)
    vLane = V(1)
    vt = [V(i) for i in range(2, 10)]
    xa = [[V(10 + 2 * s + k) for k in range(2)] for s in range(2)]
    wa = [V(14 + k) for k in range(8)]
    xv = [V(22 + k) for k in range(6)]
    wv = [V(28 + k) for k in range(4)]
    ka = [V(32 + k) for k in range(8)]
    va = [V(40 + k) for k in range(8)]
    kvv = [V(48 + k) for k in range(4)]
    vl = [V(52 + k) for k in range(6)]
    vKW, vOS, vTA, vTD, vFL = V(58), V(59), V(60), V(61), V(62)
    vZ = V(10, 4)
    ACC = lambda i, j: V(64 + 64 * (j >> 1) + 8 * i + 4 * (j & 1), 4)
    QF = lambda j, ks: V(64 + 32 * (j >> 1) + 8 * ks + 4 * (j & 1), 4)
    NEG = lambda j: V(160 + 4 * j, 4)
    SB = lambda i: V(184 + 8 * i, 8)
    PB = lambda i: V(200 + 4 * i, 4)
    TMP = lambda j: V(184 + 4 * j, 4)
    X5 = lambda p: V(208 + 4 * p, 4)
    R2 = lambda j: V(232 + 2 * j, 2)
    OA = lambda db, j: A(4 * (8 * j + db), 4)
    KF = lambda n: A(192 + 4 * n, 4)
    VF = lambda db: A(224 + 4 * db, 4)
    AF = lambda i: A(128 + 4 * i, 4)
    BF = lambda st, j: A((160 if st == 0 else 224) + 4 * j, 4)
    P1R = lambda t, p: A(4 * (8 * t + p), 4)
    XBASE = 65536
    F4 = OPT["fuse"] == 4
    E3 = F4 and OPT["fo"] == 3
    SRDF, SRDD, sFLO, vTag, vZero, vZ4 = S(84, 4), S(88, 4), S(73), V(63), V(0), V(252, 4)
    nt = " nt" if OPT["kv_nt"] else ""

    a.label("mha_qattn_kernel")
    e("s_cmp_ge_u32 s2, 256"); e("s_cbranch_scc1 L1_end")
    e("s_load_dwordx16 s[4:19], s[0:1], 0")
    e(f"v_lshrrev_b32 {vt[0]}, 6, v0"); e(f"v_and_b32 {vLane}, 63, v0")
    e("s_and_b32 s3, s2, 7"); e(f"s_lshr_b32 {sT0}, s2, 3")
    e(f"v_readfirstlane_b32 {sW}, {vt[0]}")
    e(f"s_and_b32 {sT1}, s3, 1"); e(f"s_and_b32 {sT2}, {sT0}, 7")
    if OPT["bmap"] == 0: e(f"s_lshl_b32 {sT1}, {sT1}, 3")
    if OPT["bmap"] == 1: e(f"s_lshl_b32 {sT2}, {sT2}, 1")
    if OPT["bmap"] == 2: e(f"s_xor_b32 {sT1}, {sT1}, 1"); e(f"s_lshl_b32 {sT1}, {sT1}, 3")
    e(f"s_add_u32 {sB}, {sT1}, {sT2}")
    e(f"s_lshr_b32 {sT1}, s3, 1"); e(f"s_lshl_b32 {sT1}, {sT1}, 2"); e(f"s_lshr_b32 {sHP}, {sT0}, 3")
    if OPT["hperm"]:
        e(f"s_lshr_b32 {sT2}, {sHP}, 1"); e(f"s_not_b32 {sHP}, {sHP}"); e(f"s_and_b32 {sHP}, {sHP}, 1"); e(f"s_lshl_b32 {sHP}, {sHP}, 1"); e(f"s_add_u32 {sHP}, {sHP}, {sT2}")
    e(f"s_add_u32 {sHP}, {sHP}, {sT1}")
    if OPT["xmap"] == 1:
        e(f"s_lshr_b32 {sT1}, s3, 1"); e(f"s_lshl_b32 {sT1}, {sT1}, 2"); e(f"s_and_b32 {sT2}, {sT0}, 3"); e(f"s_add_u32 {sB}, {sT1}, {sT2}")
        e(f"s_and_b32 {sT1}, s3, 1"); e(f"s_lshl_b32 {sT1}, {sT1}, 3"); e(f"s_lshr_b32 {sHP}, {sT0}, 2"); e(f"s_add_u32 {sHP}, {sHP}, {sT1}")
    if OPT["xmap"] == 2:
        e(f"s_lshl_b32 {sT1}, s3, 1"); e(f"s_and_b32 {sT2}, {sT0}, 1"); e(f"s_add_u32 {sB}, {sT1}, {sT2}"); e(f"s_lshr_b32 {sHP}, {sT0}, 1")
    if OPT["xmap"] == 3:
        e(f"s_and_b32 {sB}, {sT0}, 15"); e(f"s_lshl_b32 {sT1}, s3, 1"); e(f"s_lshr_b32 {sHP}, {sT0}, 4"); e(f"s_add_u32 {sHP}, {sHP}, {sT1}")
    if OPT["xmap"] in (4, 5):
        e(f"s_lshr_b32 {sT1}, s3, 2"); e(f"s_lshl_b32 {sT1}, {sT1}, 3"); e(f"s_and_b32 {sT2}, {sT0}, 7"); e(f"s_add_u32 {sB}, {sT1}, {sT2}")
        e(f"s_and_b32 {sT1}, s3, 2"); e(f"s_lshl_b32 {sT1}, {sT1}, 2"); e(f"s_and_b32 {sT2}, s3, 1"); e(f"s_lshl1_add_u32 {sHP}, {sT2}, {sT1}")
        e(f"s_lshr_b32 {sT1}, {sT0}, 4"); e(f"s_lshl2_add_u32 {sHP}, {sT1}, {sHP}")
        e(f"s_bfe_u32 {sT1}, {sT0}, 0x10003")
        if OPT["xmap"] == 4: e(f"s_xor_b32 {sT1}, {sT1}, 1")
        e(f"s_add_u32 {sHP}, {sHP}, {sT1}")
    e(f"s_and_b32 {sQH}, {sW}, 1"); e(f"s_lshr_b32 {sHS}, {sW}, 1")
    t0, t1, t2, t3, t4, t5 = vt[:6]
    e(f"v_lshrrev_b32 {t2}, 4, {vLane}")
    e(f"v_and_b32 {t1}, 15, {vLane}")
    e(f"v_lshlrev_b32 {t3}, 1, {t2}"); e(f"v_xor_b32 {t1}, {t1}, {t3}")
    e(f"s_lshl_b32 {sT0}, {sQH}, 4"); e(f"v_add_u32 {t0}, {sT0}, {t2}")
    e(f"v_lshlrev_b32 {t0}, 13, {t0}")
    e(f"s_lshl_b32 {sT0}, {sHS}, 8"); e(f"v_add_u32 {t0}, {sT0}, {t0}")
    for m in range(4):
        e(f"v_xor_b32 {t3}, {8 * (m >> 1)}, {t1}"); e(f"v_lshl_add_u32 {t3}, {t3}, 4, {t0}")
        e(f"v_add_u32 {wv[m]}, {m * 32768 - m * 1024}, {t3}")
    e(f"v_lshrrev_b32 {t0}, 3, {vLane}")
    e(f"v_and_b32 {t1}, 7, {vLane}"); e(f"v_xor_b32 {t1}, {t1}, {t2}")
    e(f"s_mul_i32 {sT0}, {sW}, 48"); e(f"v_add_u32 {t0}, {sT0}, {t0}"); e(f"v_lshlrev_b32 {t0}, 11, {t0}")
    for m in range(6):
        e(f"v_xor_b32 {t3}, {4 * (m & 1)}, {t1}"); e(f"v_lshl_add_u32 {t3}, {t3}, 4, {t0}")
        e(f"v_add_u32 {xv[m]}, {m * 16384 - (m % 3) * 1024}, {t3}")
    e(f"s_mul_i32 {sM0X}, {sW}, 6144"); e(f"s_add_u32 {sM0X}, {sM0X}, {XBASE}")
    e(f"s_lshl_b32 {sM0W}, {sW}, 12")
    e("s_waitcnt lgkmcnt(0)")
    stamp(a, 0)
    e(f"s_lshl_b32 {sT0}, {sHP}, 9")
    e(f"s_add_u32 {SRDW[0]}, s10, {sT0}"); e(f"s_addc_u32 {SRDW[1]}, s11, 0")
    e(f"s_sub_u32 {SRDW[2]}, 8388608, {sT0}"); e(f"s_mov_b32 {SRDW[3]}, 0x20000")
    e(f"s_mul_i32 {sT0}, {sB}, 393216")
    e(f"s_add_u32 {SRDX[0]}, s4, {sT0}"); e(f"s_addc_u32 {SRDX[1]}, s5, 0")
    e(f"s_mov_b32 {SRDX[2]}, 393216"); e(f"s_mov_b32 {SRDX[3]}, 0x20000")

    if OPT["askip"]: e(f"s_mov_b32 {SRDX[2]}, 0"); e(f"s_mov_b32 {SRDW[2]}, 0")
    sKR, sKRW = S(76), S(77)
    if OPT["krot"]:
        e(f"s_lshr_b32 {sT0}, s2, 3"); e(f"s_and_b32 {sT1}, {sT0}, 7"); e(f"s_lshr_b32 {sT0}, {sT0}, 3"); e(f"s_lshl_b32 {sT0}, {sT0}, 1")
        e(f"s_add_u32 {sT0}, {sT0}, {sT1}"); e(f"s_and_b32 {sT0}, {sT0}, 7")
        if OPT["krot"] == 2: e(f"s_and_b32 {sT0}, {sT0}, 1"); e(f"s_lshl_b32 {sT0}, {sT0}, 2")
        if OPT["krot"] == 3: e(f"s_and_b32 {sT0}, {sT0}, 3"); e(f"s_lshl_b32 {sT0}, {sT0}, 1")
        e(f"s_lshl_b32 {sKR}, {sT0}, 8"); e(f"s_lshl_b32 {sKRW}, {sT0}, 20")
    def dma_x(c, part):
        if OPT["krot"]:
            ops = [lambda: (e(f"s_add_u32 m0, {sM0X}, {(c % 4) * 24576 + part * 3072}"), e(f"s_add_u32 {sXK}, {sKR}, {c * 128}"), e(f"s_and_b32 {sXK}, {sXK}, 2047"))]
        else:
            ops = [lambda: (e(f"s_add_u32 m0, {sM0X}, {(c % 4) * 24576 + part * 3072}"), e(f"s_movk_i32 {sXK}, {c * 128}"))]
        for m in range(3):
            ops.append(lambda m=m: a.dma(xv[3 * part + m], SRDX, sXK, m * 1024, tag=("x", c)))
        return ops
    def dma_w(s):
        if OPT["krot"]:
            ops = [lambda: (e(f"s_add_u32 m0, {sM0W}, {(s % 4) * 16384}"), e(f"s_add_u32 {sWK}, {sKRW}, {s * 262144}"), e(f"s_and_b32 {sWK}, {sWK}, 8388607"))]
        else:
            ops = [lambda: (e(f"s_add_u32 m0, {sM0W}, {(s % 4) * 16384}"), e(f"s_mov_b32 {sWK}, {s * 262144}"))]
        for m in range(4):
            ops.append(lambda m=m: a.dma(wv[m], SRDW, sWK, m * 1024, tag=("w", s)))
        return ops
    def run(ops):
        for o in ops: o()
    run(dma_w(0)); run(dma_x(0, 0)); run(dma_x(0, 1)); run(dma_w(1)); run(dma_w(2)); run(dma_x(1, 0)); run(dma_x(1, 1)); run(dma_w(3))
    if OPT["codepf"]: code_prefetch(a, vLane, vTA, vTD, "mha_qattn_kernel", OPT["codepf"] * 1024, sW)
    run(dma_x(2, 0)); run(dma_x(2, 1)); run(dma_x(3, 0)); run(dma_x(3, 1))
    e(f"s_lshl_b32 {sT0}, {sB}, 5"); e(f"s_lshl_b32 {sT1}, {sHP}, 1"); e(f"s_add_u32 {sT0}, {sT0}, {sT1}")
    e(f"s_add_u32 {sT0}, {sT0}, {sHS}"); e(f"s_lshl_b32 {sT0}, {sT0}, 18")
    e(f"s_cmp_eq_u32 {sQH}, 0"); e(f"s_cselect_b32 {sT1}, s6, s8"); e(f"s_cselect_b32 {sT2}, s7, s9")
    e(f"s_add_u32 {SRDKV[0]}, {sT1}, {sT0}"); e(f"s_addc_u32 {SRDKV[1]}, {sT2}, 0")
    NR = 0 if OPT["kvskip"] else 262144
    e(f"s_mov_b32 {SRDKV[2]}, {NR}"); e(f"s_mov_b32 {SRDKV[3]}, 0x20000")
    e(f"s_mov_b32 {SRDO[0]}, s18"); e(f"s_mov_b32 {SRDO[1]}, s19")
    e(f"s_mov_b32 {SRDO[2]}, 25165824"); e(f"s_mov_b32 {SRDO[3]}, 0x20000")
    e(f"s_mov_b32 {sTHR}, {f32bits(THRESH):#x}")
    e(f"s_mov_b32 {sC[0]}, {f32bits(CSCALE):#x}"); e(f"s_mov_b32 {sC[1]}, {f32bits(CSCALE):#x}")
    e(f"s_mul_i32 {sKV0}, {sHS}, {OPT['rotH'] * 8192}"); e(f"s_mov_b32 {sPass}, 0")
    if OPT["rotW"] == 1:
        e(f"s_lshr_b32 {sKV0}, s2, 3"); e(f"s_lshl_b32 {sT1}, {sHS}, 2"); e(f"s_add_u32 {sKV0}, {sKV0}, {sT1}")
        e(f"s_and_b32 {sKV0}, {sKV0}, 7"); e(f"s_lshl_b32 {sKV0}, {sKV0}, 15")
    if OPT["rotW"] == 2:
        e(f"s_lshr_b32 {sKV0}, s2, 5"); e(f"s_add_u32 {sKV0}, {sKV0}, s2"); e(f"s_lshl_b32 {sT1}, {sHS}, 2"); e(f"s_add_u32 {sKV0}, {sKV0}, {sT1}")
        e(f"s_and_b32 {sKV0}, {sKV0}, 7"); e(f"s_lshl_b32 {sKV0}, {sKV0}, 15")
    if OPT["rotW"] == 3:
        e(f"s_lshr_b32 {sKV0}, s2, 3"); e(f"s_add_u32 {sKV0}, {sKV0}, s2"); e(f"s_lshr_b32 {sT1}, s2, 6"); e(f"s_add_u32 {sKV0}, {sKV0}, {sT1}")
        e(f"s_lshl_b32 {sT1}, {sHS}, 2"); e(f"s_add_u32 {sKV0}, {sKV0}, {sT1}")
        e(f"s_and_b32 {sKV0}, {sKV0}, 7"); e(f"s_lshl_b32 {sKV0}, {sKV0}, 15")
    if OPT["rotW"] == 7:
        e(f"s_lshr_b32 {sKV0}, {sB}, 3"); e(f"s_add_u32 {sKV0}, {sKV0}, {sB}"); e(f"s_lshr_b32 {sT1}, {sHP}, 2"); e(f"s_lshl1_add_u32 {sKV0}, {sT1}, {sKV0}")
        e(f"s_and_b32 {sT1}, {sHP}, 3"); e(f"s_add_u32 {sKV0}, {sKV0}, {sT1}"); e(f"s_lshl2_add_u32 {sKV0}, {sHS}, {sKV0}")
        e(f"s_and_b32 {sKV0}, {sKV0}, 7"); e(f"s_lshl_b32 {sKV0}, {sKV0}, 15")
    if OPT["rotW"] == 4:
        e(f"s_mul_i32 {sKV0}, s2, 5"); e(f"s_lshr_b32 {sT1}, s2, 5"); e(f"s_add_u32 {sKV0}, {sKV0}, {sT1}")
        e(f"s_lshl_b32 {sT1}, {sHS}, 4"); e(f"s_add_u32 {sKV0}, {sKV0}, {sT1}")
        e(f"s_and_b32 {sKV0}, {sKV0}, 31"); e(f"s_lshl_b32 {sKV0}, {sKV0}, 13")
    if OPT["rotW"] == 5:
        e(f"s_lshr_b32 {sKV0}, s2, 3"); e(f"s_lshl_b32 {sT1}, s2, 2"); e(f"s_add_u32 {sKV0}, {sKV0}, {sT1}")
        e(f"s_lshl_b32 {sT1}, {sHS}, 4"); e(f"s_add_u32 {sKV0}, {sKV0}, {sT1}")
        e(f"s_and_b32 {sKV0}, {sKV0}, 31"); e(f"s_lshl_b32 {sKV0}, {sKV0}, 13")
    if OPT["rotW"] == 6:
        e(f"s_lshl_b32 {sKV0}, s2, 1"); e(f"s_add_u32 {sKV0}, {sKV0}, {sHS}"); e(f"s_mul_i32 {sKV0}, {sKV0}, 0x9e3779b1")
        e(f"s_lshr_b32 {sKV0}, {sKV0}, 27"); e(f"s_lshl_b32 {sKV0}, {sKV0}, 13")
    e(f"s_mul_i32 {sDL}, {sHS}, 49152"); e(f"s_sub_u32 {sDL}, 131072, {sDL}")
    e(f"v_lshlrev_b32 {vTA}, 7, {vLane}")
    vT2 = V(0)
    e(f"v_lshrrev_b32 {vT2}, {int(math.log2(64 // OPT['tl']))}, {vLane}"); e(f"v_lshlrev_b32 {vT2}, 7, {vT2}")
    if OPT["wo_touch"]:
        e(f"s_mov_b32 {SRDWO[0]}, s12"); e(f"s_mov_b32 {SRDWO[1]}, s13"); e(f"s_mov_b32 {SRDWO[2]}, 8388608"); e(f"s_mov_b32 {SRDWO[3]}, 0x20000")
    if OPT["xw_touch"]:
        e(f"s_lshl_b32 {sT2}, s2, 2"); e(f"s_add_u32 {sT2}, {sT2}, {sW}"); e(f"s_lshl_b32 {sT2}, {sT2}, 13")
        e("s_mov_b32 s84, s10"); e("s_mov_b32 s85, s11"); e("s_mov_b32 s86, 8388608"); e("s_mov_b32 s87, 0x20000")
        a.bload(vTD, vTA, S(84, 4), sT2, 0)
        e("s_mov_b32 s84, s4"); e("s_mov_b32 s85, s5"); e("s_mov_b32 s86, 6291456")
        a.bload(vTD, vTA, S(84, 4), sT2, 0)
    vh, vg, vr, vc1, vc0, vql, u0, u1 = vt
    e(f"v_lshrrev_b32 {vg}, 4, {vLane}"); e(f"v_bfe_u32 {vr}, {vLane}, 2, 2"); e(f"v_and_b32 {vc0}, 3, {vLane}")
    e(f"v_lshl_add_u32 {u0}, {vg}, 3, {vr}"); e(f"v_lshlrev_b32 {u0}, 8, {u0}")
    e(f"s_lshl_b32 {sT0}, {sHS}, 13"); e(f"v_add_u32 {u0}, {sT0}, {u0}")
    e(f"v_lshl_add_u32 {u0}, {vc0}, 3, {u0}"); e(f"v_lshl_add_u32 {u0}, {vr}, 5, {u0}")
    e(f"v_and_b32 {u1}, 1, {vg}"); e(f"v_lshl_add_u32 {wa[0]}, {u1}, 7, {u0}")
    for i in range(1, 8): e(f"v_xor_b32 {wa[i]}, {32 * i}, {wa[0]}")
    e(f"v_and_b32 {vql}, 15, {vLane}")
    e(f"s_mul_i32 {sT1}, {sQH}, 12288"); e(f"s_add_u32 {sT1}, {sT1}, {XBASE}")
    e(f"v_lshlrev_b32 {u0}, 7, {vql}"); e(f"v_add_u32 {u0}, {sT1}, {u0}")
    e(f"v_lshrrev_b32 {u1}, 1, {vql}"); e(f"v_xor_b32 {u1}, {u1}, {vg}")
    e(f"v_lshl_add_u32 {xa[0][0]}, {u1}, 4, {u0}"); e(f"v_xor_b32 {xa[0][1]}, 64, {xa[0][0]}")
    for k in range(2): e(f"v_add_u32 {xa[1][k]}, 49152, {xa[0][k]}")
    e(f"v_lshlrev_b32 {vh}, {sQH}, {vg}")
    e(f"v_xor_b32 {vh}, {vh}, {vql}"); e(f"v_lshlrev_b32 {u0}, 8, {vg}")
    e(f"v_lshl_add_u32 {kvv[0]}, {vh}, 4, {u0}")
    e(f"s_cmp_eq_u32 {sQH}, 0")
    for j in range(1, 4):
        e(f"s_cselect_b32 {sT1}, {4 * j}, {8 * (j & 1)}"); e(f"s_mul_i32 {sT1}, {sT1}, 16"); e(f"v_xor_b32 {kvv[j]}, {sT1}, {kvv[0]}")

    def late_setup():
        ops = []
        E = lambda s: ops.append(lambda: e(s))
        E(f"v_lshrrev_b32 {vg}, 4, {vLane}"); E(f"v_bfe_u32 {vr}, {vLane}, 2, 2"); E(f"v_and_b32 {vc0}, 3, {vLane}")
        E(f"v_and_b32 {vql}, 15, {vLane}"); E(f"v_lshrrev_b32 {vc1}, 2, {vLane}")
        E(f"s_lshl_b32 {sT0}, {sHS}, 16"); E(f"s_add_u32 {sT1}, {sT0}, 8192")
        E(f"v_lshlrev_b32 {u0}, 8, {vc1}"); E(f"v_add_u32 {u0}, {sT1}, {u0}"); E(f"v_lshl_add_u32 {u0}, {vc0}, 3, {u0}")
        E(f"v_and_b32 {u1}, 7, {vc1}"); E(f"v_lshl_add_u32 {va[0]}, {u1}, 5, {u0}")
        for db in range(1, 8): E(f"v_xor_b32 {va[db]}, {32 * db}, {va[0]}")
        E(f"v_lshlrev_b32 {u0}, 8, {vql}"); E(f"v_add_u32 {u0}, {sT0}, {u0}")
        E(f"v_and_b32 {u1}, 1, {vg}"); E(f"v_lshl_add_u32 {u0}, {u1}, 3, {u0}")
        E(f"v_lshrrev_b32 {u1}, 1, {vg}"); E(f"v_xor_b32 {u1}, {u1}, {vql}"); E(f"v_lshl_add_u32 {ka[0]}, {u1}, 4, {u0}")
        for s in range(1, 8): E(f"v_xor_b32 {ka[s]}, {32 * s}, {ka[0]}")
        E(f"s_lshl_b32 {sM0KV}, {sQH}, 13"); E(f"s_add_u32 {sM0KV}, {sM0KV}, {sT0}")
        E(f"v_lshlrev_b32 {vOS}, 4, {vLane}"); E(f"v_add_u32 {vKW}, {sM0KV}, {vOS}"); E(f"s_add_u32 {sS}, {sM0KV}, {sDL}")
        E(f"s_lshl_b32 {sOO}, {sB}, 1"); E(f"s_add_u32 {sOO}, {sOO}, {sQH}"); E(f"s_mul_i32 {sOO}, {sOO}, {6 * 131072}")
        E(f"s_lshl_b32 {sT1}, {sHP}, 1"); E(f"s_add_u32 {sT1}, {sT1}, {sHS}"); E(f"s_lshl_b32 {sT1}, {sT1}, 12"); E(f"s_add_u32 {sOO}, {sOO}, {sT1}")
        E(f"s_lshl_b32 {sT1}, {sW}, 2"); E(f"s_add_u32 {sT1}, {sT1}, {65536 if E3 else 163776}"); E(f"v_mov_b32 {vFL}, {sT1}")
        for q in range(6): E(f"v_mov_b32 {vl[q]}, 0")
        if F4:
            E(f"v_mov_b32 {vZero}, 0")
            E(f"s_lshl_b32 {sT1}, {sB}, 12"); E(f"s_lshl_b32 {sFLO}, {sHP}, 2"); E(f"s_add_u32 {sT1}, {sT1}, {sFLO}"); E(f"s_add_u32 {sFLO}, {sT1}, {FLOFF}")
            ops.append(lambda: (e(f"s_or_b32 {sT1}, s2, {sW}"), e(f"s_cselect_b32 {SRDF[2]}, 0, {FLOFF + 65536}"), e(f"s_cselect_b32 {SRDD[2]}, 0, 4")))
            E(f"s_mov_b32 {SRDF[0]}, s18"); E(f"s_mov_b32 {SRDF[1]}, s19"); E(f"s_mov_b32 {SRDF[3]}, 0x20000")
            E(f"s_mov_b32 {SRDD[0]}, s16"); E(f"s_mov_b32 {SRDD[1]}, s17"); E(f"s_mov_b32 {SRDD[3]}, 0x20000")
        return ops
    def rdK(n, pi, slot): return lambda: a.ds_read_b64(KF(n)[2 * pi:2 * pi + 2], ka[2 * (n >> 1) + pi], slot * 16384 + (n & 1) * 4096)
    def rdV(db, uu, slot): return lambda: a.ds_read_tr(VF(db)[2 * uu:2 * uu + 2], va[db], slot * 16384 + uu * 4096)

    def rdA(s, i): return [(lambda u=u: a.ds_read_tr(AF(i)[2 * u:2 * u + 2], wa[i], (s % 4) * 16384 + u * 1024)) for u in range(2)]
    def rdB(s, j):
        xs = (s // 2) % 4
        return lambda: a.ds_read_b128(BF(s % 2, j), xa[xs // 2][s % 2], (xs % 2) * 24576 + j * 2048)
    p1list = [(t, p) for t in range(4) for p in range(8)]
    def p1_ops(k):
        t, p = p1list[k]
        ops = []
        if p % 4 == 0:
            ops.append(lambda: (e(f"s_add_u32 {sP1}, {sKV0}, {t * 8192 + (p // 4) * 4096}"), e(f"s_and_b32 {sP1}, {sP1}, 262143")))
        ops.append(lambda: a.bload(P1R(t, p), kvv[p % 4], SRDKV, sP1, (p % 4) * 1024, nt))
        return ops
    p1_at = {}
    for k in range(32): p1_at.setdefault(k * OPT["p1end"] // 32, []).append(k)
    p2_at = {}
    for k in range(OPT["n2"]): p2_at.setdefault(OPT["p2s"] + (k * (OPT["p2e"] - OPT["p2s"])) // OPT["n2"], []).append(k)
    conv = []
    for J in range(3):
        for ks in range(4):
            for jj in range(2):
                j = 2 * J + jj
                X, Y, D = ACC(2 * ks, j), ACC(2 * ks + 1, j), QF(j, ks)
                for R in (X, Y):
                    for k in range(4): conv.append((J, lambda r=R[k]: e(f"v_mul_f32 {r}, {sC[0]}, {r}")))
                conv.append((J, lambda X=X, D=D: e(f"v_cvt_pk_bf16_f32 {D[0]}, {X[0]}, {X[1]}")))
                conv.append((J, lambda X=X, D=D: e(f"v_cvt_pk_bf16_f32 {D[1]}, {X[2]}, {X[3]}")))
                conv.append((J, lambda Y=Y, D=D: e(f"v_cvt_pk_bf16_f32 {D[2]}, {Y[0]}, {Y[1]}")))
                conv.append((J, lambda Y=Y, D=D: e(f"v_cvt_pk_bf16_f32 {D[3]}, {Y[2]}, {Y[3]}")))

    a.wait_for(("w", 0), ("x", 0)); e("s_barrier")
    stamp(a, 1)
    for j in range(6):
        rdB(0, j)()
        for r in rdA(0, j): r()
    for r in rdA(0, 6): r()
    late = late_setup()
    free = [g for i in range(3, 8) for g in range(6 * i + 2, 6 * i + 6)]
    for s in range(32):
        if s in (8, 16, 24): stamp(a, 1 + s // 8, 2)
        G = Gaps()
        last = s == 31
        order = [(i, j) for j in range(6) for i in range(8)] if last else [(i, j) for i in range(8) for j in range(6)]
        mf = [(lambda i=i, j=j: a.mfma16(ACC(i, j), AF(i), BF(s % 2, j), ACC(i, j) if s else 0)) for i, j in order]
        if s:
            m0_ = mf[0]; mf[0] = lambda m0_=m0_: (a.wait_for(lgkm=2), m0_())
        for u, r in enumerate(rdA(s, 7)): G.mem(u, r)
        def bar(s=s):
            if s < 31: a.wait_for(("w", s + 1), ("x", (s + 1) // 2), lgkm=0)
            else: a.wait_for(lgkm=0)
            e("s_barrier")
        G.mem(7, bar)
        if not last:
            for u, r in enumerate(rdA(s + 1, 0)): G.mem(8 + u, r)
            for i in range(1, 7):
                for u, r in enumerate(rdA(s + 1, i)): G.mem(6 * i + 6 + u, r)
            for j, g in enumerate([10, 11, 14, 15, 16, 17]): G.mem(g, rdB(s + 1, j))
        ops = []
        if s + 4 < 32: ops += dma_w(s + 4)
        c = (s - 1) // 2 + 4
        if s >= 1 and c < 16: ops += dma_x(c, (s - 1) % 2)
        for k in p1_at.get(s, []): ops += p1_ops(k)
        for k in p2_at.get(s, []):
            ops.append(lambda k=k: (e(f"s_add_u32 {sT2}, {sKV0}, {OPT['p2b'] + k * OPT['tl'] * 128}"), e(f"s_and_b32 {sT2}, {sT2}, 262143")))
            ops.append(lambda: a.bload(vTD, vT2, SRDKV, sT2, 0, " nt" if OPT["p2nt"] else ""))
        if F4 and s == 2: ops.append(lambda: a.bload(vTag, vZero, SRDF, sFLO, 0, " sc1"))
        if F4 and s == 10:
            ops.append(lambda: (a.wait_for(vTag), e(f"v_add_u32 {vTag}, 0x9e3779b9, {vTag}"), e(f"v_or_b32 {vTag}, 1, {vTag}")))
            ops.append(lambda: a.bstore(vTag, vZero, SRDD, 0, 0, " sc1"))
        if F4 and s == 12:
            ops.append(lambda: (e(f"s_cmp_eq_u32 {sW}, 0"), e(f"s_cselect_b32 {SRDD[2]}, 4, 0"), e(f"s_mov_b32 {SRDF[2]}, {FLOFF + 65536}")))
        if s == 2 and OPT["wo_touch"] == 1:
            ops.append(lambda: (e(f"s_lshl_b32 {sT2}, s2, 2"), e(f"s_add_u32 {sT2}, {sT2}, {sW}"), e(f"s_lshl_b32 {sT2}, {sT2}, 13")))
            ops.append(lambda: a.bload(vTD, vTA, SRDWO, sT2, 0))
        if last:
            for half in range(2):
                ops.append(lambda half=half: (e(f"s_add_u32 {sP1}, {sKV0}, {32768 + half * 4096}"), e(f"s_and_b32 {sP1}, {sP1}, 262143"), e(f"s_add_u32 m0, {sS}, {half * 4096}")))
                for j in range(4): ops.append(lambda j=j: a.dma(kvv[j], SRDKV, sP1, j * 1024, nt))
        if s >= 28:
            t = s - 28
            ops += [(lambda p=p: a.ds_write_b128(vKW, P1R(t, p), t * 16384 + p * 1024)) for p in range(8)]
        if s >= 30:
            ops += [rdK(n, pi, 0) for n in range(4 * (s - 30), 4 * (s - 30) + 4) for pi in range(2)]
        if last:
            for i in range(4): G.valu(4 + i, lambda i=i: e(f"v_mov_b32 {vZ[i]}, 0"))
        fr = free if not last else list(range(OPT['d4'], OPT['d4'] + 28))
        assert len(ops) <= len(fr), (s, len(ops))
        for o, g in zip(ops, [fr[(k * len(fr)) // len(ops)] for k in range(len(ops))]): G.mem(g, o)
        if s == 0:
            for k, o in enumerate(late): G.valu(8 + k // 2, o)
        if last:
            g = 0
            n = 0
            while conv and g < 48:
                J = conv[0][0]
                g = max(g, 16 * J + 18)
                if g >= 48: break
                G.valu(g, conv.pop(0)[1]); n += 1
                if n % 2 == 0: g += 1
        G.run(mf)
    stamp(a, 2); stamp(a, 5, 2)
    if OPT["only01"]: e("s_waitcnt vmcnt(0) lgkmcnt(0)"); e(f"s_cmp_eq_u32 {sHS}, 1"); e("s_cbranch_scc1 L1_end")
    e("s_nop 3")
    def xlane(op, m, tmp):
        return [lambda: e(f"v_mov_b32 {tmp}, {m}"), lambda: e("s_nop 1"), lambda: e(f"v_permlane16_swap_b32 {m}, {tmp}"), lambda: e("s_nop 1"),
                lambda: e(f"{op} {m}, {m}, {tmp}"),
                lambda: e(f"v_mov_b32 {tmp}, {m}"), lambda: e("s_nop 1"), lambda: e(f"v_permlane32_swap_b32 {m}, {tmp}"), lambda: e("s_nop 1"),
                lambda: e(f"{op} {m}, {m}, {tmp}")]
    def rowmax_ops(j, m, tmp):
        X, Y = NEG(j), TMP(j)
        return [lambda: e(f"v_max3_f32 {m}, {X[0]}, {X[1]}, {X[2]}"), lambda: e(f"v_max3_f32 {m}, {m}, {X[3]}, {Y[0]}"),
                lambda: e(f"v_max3_f32 {m}, {m}, {Y[1]}, {Y[2]}"), lambda: e(f"v_max_f32 {m}, {m}, {Y[3]}")] + xlane("v_max_f32", m, tmp)
    def negfill_ops(j, m):
        return [(lambda i=i: e(f"v_sub_f32 {NEG(j)[i]}, 0, {m}")) for i in range(4)]
    a.wait_for(lgkm=0)
    zm = [(lambda k=k: a.e(f"v_mfma_f32_32x32x16_bf16 {A(16 * k, 16)}, {vZ}, {vZ}, 0")) for k in list(range(12)) + [14, 15]]
    zm4 = [(lambda k=k: a.e(f"v_mfma_f32_32x32x16_bf16 {A(16 * k, 16)}, {vZ4}, {vZ4}, 0")) for k in list(range(12)) + [14, 15]]
    G = Gaps()
    G.spread([(o, 4) for _, o in conv], list(range(14))); conv = []
    G.run(zm)
    e("s_nop 1")
    sm = [(lambda j=j, n=n: a.mfma16(TMP(j) if n & 1 else NEG(j), KF(n), QF(j, n >> 1), (TMP(j) if n & 1 else NEG(j)) if n > 1 else 0))
          for j in range(6) for n in range(8)]

    NS = 96
    used = [0] * NS
    memg = {}
    def M(g, it, cost=4): memg.setdefault(g % NS, []).append(it); used[g % NS] += cost
    M(5, ("kill",), 12); M(6, ("m0", 0)); M(7, ("bar",), 8)
    for db in range(8): M(8 + db, ("v", db, 0)); M(12 + db, ("v", db, 1))
    for n in range(8): M(80 + n, ("k", n, 0)); M(84 + n, ("k", n, 1))
    dg = OPT["dg0"]
    for k in range(4): M(dg + 2 * k, ("dma", 0, k)); M(dg + 10 + 2 * k, ("dma", 1, k))
    M(dg + 8, ("m0", 1)); M(dg + 19, ("adv",), 12)
    for g in (95, 3, 23, 27): used[g] += 4
    valg = {}
    def place(j, seq, lo, hi):
        for L in range(8, 41, 4):
            u2 = list(used); g = lo; out = []
            for op, c, mn in seq:
                g = max(g, mn)
                while g <= hi and u2[g % NS] + c > L: g += 1
                if g > hi: break
                u2[g % NS] += c; out.append((op, g))
            else:
                used[:] = u2
                for op, g in out: valg.setdefault(g, []).append((j, op))
                return dict(out)
        raise Exception("no fit")
    pos = {}
    for j in range(6):
        b = 16 * j
        crit = [("e0", 8, b + 8), ("e1", 8, 0), ("e2", 8, 0), ("c0", 4, 0), ("e3", 8, 0), ("e4", 8, b + 10), ("c1", 4, 0), ("e5", 8, 0), ("e6", 8, 0),
                ("c2", 4, 0), ("e7", 8, 0), ("a0", 4, 0), ("c3", 4, 0)]
        pos[j] = place(j, crit, b + 8, b + 22)
    for j in range(6):
        b = 16 * j
        place(j, [(f"a{k}", 4, pos[j][f"e{k}"] + 1) for k in range(1, 8)], b + 9, b + 30)
    if OPT["verbose"]: print("gap load", used, "over", sum(max(0, x - 12) for x in used))
    def sm_op(j, op):
        Sx, Px, k = SB(j % 2), PB(j % 2), int(op[1])
        if op[0] == "e": e(f"v_exp_f32 {Sx[k]}, {Sx[k]}")
        if op[0] == "a": e(f"v_add_f32 {vl[j]}, {vl[j]}, {Sx[k]}")
        if op[0] == "c": e(f"v_cvt_pk_bf16_f32 {Px[k]}, {Sx[2 * k]}, {Sx[2 * k + 1]}")
    tail = [(g, j, op) for g in sorted(valg) if g >= NS for j, op in valg[g]]
    tail_e = {(j, int(op[1])) for g, j, op in tail if op[0] == "e"}
    init = [(lambda j=j, k=k: e(f"v_mov_b32 {SB(j % 2)[k]}, {'0xf149f2ca' if (j, k) in tail_e else 0}")) for j in (4, 5) for k in range(8)]
    init += [(lambda k=k: e(f"v_mov_b32 {PB(1)[k]}, 0")) for k in range(4)]

    G = Gaps()
    for j in range(5):
        G.spread([(o, 4) for o in rowmax_ops(j, vt[0], vt[1]) + negfill_ops(j, vt[0])], list(range(8 * j + 9, min(48, 8 * j + 17))))
    G.spread([(o, 4) for o in init[0:8]], list(range(26, 34)))
    G.spread([(o, 4) for o in init[8:16]], list(range(42, 48)))
    sSL = [S(94 + u) for u in range(4)]
    def stream_init():
        e(f"s_sub_u32 {sCnt}, 0, {sQH}")
        e(f"s_lshl_b32 {sT0}, {sQH}, 13"); e(f"s_add_u32 {sKVO}, {sKV0}, 49152"); e(f"s_sub_u32 {sKVO}, {sKVO}, {sT0}"); e(f"s_and_b32 {sKVO}, {sKVO}, 262143")
        e(f"s_add_u32 {sKVO2}, {sKVO}, 4096"); e(f"s_mov_b32 {sIT}, 0")
    def x5_ops():
        ops = []
        for p in range(8):
            if p % 4 == 0: ops.append(lambda p=p: (e(f"s_add_u32 {sP1}, {sKV0}, {5 * 8192 + (p // 4) * 4096}"), e(f"s_and_b32 {sP1}, {sP1}, 262143")))
            ops.append(lambda p=p: e(f"buffer_load_dwordx4 {X5(p)}, {kvv[p % 4]}, {SRDKV}, {sP1} offen" + (f" offset:{(p % 4) * 1024}" if p % 4 else "") + nt))
        return ops
    for k, o in enumerate(x5_ops()): G.mem(OPT["x5g"] + k // 2, o)
    G.mem(6, stream_init)
    if OPT["wo_touch"] == 3:
        G.mem(7, lambda: (e(f"s_lshl_b32 {sT2}, s2, 2"), e(f"s_add_u32 {sT2}, {sT2}, {sW}"), e(f"s_lshl_b32 {sT2}, {sT2}, 13")))
        G.mem(8, lambda: a.bload(vTD, vTA, SRDWO, sT2, 0))
    for u in range(4):
        G.mem(9 + u, lambda u=u: (e(f"s_sub_u32 {sT0}, {u}, {sQH}"), e(f"s_and_b32 {sT0}, {sT0}, 3"), e(f"s_lshl_b32 {sT0}, {sT0}, 14"), e(f"s_add_u32 {sSL[u]}, {sM0KV}, {sT0}")))
    G.mem(13, lambda: (e(f"s_mov_b32 {sSL0}, {sSL[0]}"), e(f"s_cmp_lg_u32 {sQH}, 0"), e("s_cselect_b64 vcc, -1, 0")))
    G.valu(14, lambda: e(f"v_add_u32 {vKW}, {sDL}, {vKW}"))
    G.run(sm)
    e("s_nop 7")
    for o in rowmax_ops(5, vt[0], vt[1]) + negfill_ops(5, vt[0]) + init[16:]: o()
    e("s_nop 1")

    def dma_kv(slot):
        ops = []
        for half in range(2):
            ops.append(lambda half=half: (e(f"s_add_u32 m0, {slot}, {half * 4096}"), e("s_nop 0")))
            for j in range(4):
                ops.append(lambda j=j, half=half: a.dma(kvv[j], SRDKV, sKVO2 if half else sKVO, j * 1024, nt))
        ops.append(lambda: (e(f"s_add_u32 {sKVO}, {sKVO}, 8192"), e(f"s_and_b32 {sKVO}, {sKVO}, 262143"), e(f"s_add_u32 {sKVO2}, {sKVO}, 4096")))
        return ops
    PVg = lambda j: [(lambda db=db: a.mfma16(OA(db, j), VF(db), PB(j % 2), OA(db, j))) for db in range(8)]
    lblc = [0]
    def only(kind, f):
        lblc[0] += 1; L = f"L1_only{lblc[0]}"
        e(f"s_cbranch_vcc{'z' if kind else 'nz'} {L}"); f(); a.label(L)
    def dma_half(u, half):
        e(f"s_add_u32 m0, {sSL[u]}, {half * 4096}"); e("s_nop 0")
        for j in range(4): e(f"buffer_load_dwordx4 {kvv[j]}, {SRDKV}, {sKVO2 if half else sKVO} offen" + (f" offset:{j * 1024}" if j else "") + nt + " lds")
    def x5_write():
        for p in range(8): e(f"ds_write_b128 {vKW}, {X5(p)}" + (f" offset:{p * 1024}" if p else ""))
    def tileB(u, vs=None, ks=None, dma=True, adv=True, kill=False, vm=OPT["bwait"], extra={}, nok=False):
        vs = u if vs is None else vs
        ks = (u + 1) % 4 if ks is None else ks
        mf = []
        for j in range(6):
            for n in range(8):
                D = SB(j % 2)[4 * (n & 1):4 * (n & 1) + 4]
                mf.append(lambda n=n, D=D, j=j: a.mfma16(D, KF(n), QF(j, n >> 1), D if n > 1 else NEG(j)))
            mf += PVg((j + 5) % 6)
        for idx, regs in ((0, [KF(n) for n in range(4)]), (4, [KF(n) for n in range(8)]), (24, [VF(d) for d in range(4)]), (28, [VF(d) for d in range(8)])):
            mf[idx] = (lambda f=mf[idx], regs=regs: (a.wait_for(*regs), f()))
        for g in range(NS):
            if not OPT["bnoc"] & 1: mf[g]()
            for it in memg.get(g, []):
                k = it[0]
                if OPT["bnoc"] & 2 and k in "vk": continue
                if k == "kill" and kill: e(f"s_cmp_lt_u32 {sCnt}, 22"); e(f"s_cselect_b32 {SRDKV[2]}, {NR}, 0"); e(f"s_add_u32 {sCnt}, {sCnt}, 1")
                if k == "m0" and dma: e(f"s_add_u32 m0, {sSL[u]}, {it[1] * 4096}")
                if k == "bar":
                    if vm is not None: a.wait(vm=vm)
                    if kill and OPT["thr"]:
                        lblc[0] += 1
                        e(f"s_bitcmp1_b32 s2, 0"); e(f"s_cbranch_scc{OPT['thrp']} L1_thr{lblc[0]}"); e(f"s_waitcnt vmcnt({OPT['thr']})"); a.label(f"L1_thr{lblc[0]}")
                    e("s_barrier")
                if k == "v": rdV(it[1], it[2], vs)()
                if k == "k" and not nok: rdK(it[1], it[2], ks)()
                if k == "dma" and dma: a.dma(kvv[it[2]], SRDKV, sKVO2 if it[1] else sKVO, it[2] * 1024, nt)
                if k == "adv" and adv: e(f"s_add_u32 {sKVO}, {sKVO}, 8192"); e(f"s_and_b32 {sKVO}, {sKVO}, 262143"); e(f"s_add_u32 {sKVO2}, {sKVO}, 4096")
            for f in extra.get(g, []): f()
            for j, op in valg.get(g + NS, []) + valg.get(g, []):
                if not OPT["bnoc"] & 4: sm_op(j, op)
        if OPT["bnoc"] & 1: a.wait(lgkm=0)
    stamp(a, 3)
    shift = lambda op, g0: {g0 + k: [lambda r=r: e(f"{op} {r}, {r}, {sDL}" if op == "v_subrev_u32" else f"{op} {r}, {sDL}, {r}")] for k, r in enumerate(ka + va)}
    shift = lambda op, g0: {g0 + k: [lambda r=r: e(f"{op} {r}, {sDL}, {r}")] for k, r in enumerate(ka + va)}
    e("s_waitcnt lgkmcnt(0)"); a.lds = []
    a.label("L1_tile0")
    tileB(0, dma=False, vm=None, extra={dg: [lambda: only(0, lambda: dma_half(0, 0))], dg + 10: [lambda: only(0, lambda: dma_half(0, 1))]})
    K2 = kernel2(a) if OPT["fuse"] else None
    x1, x2 = {}, {}
    if F4:
        early = next(K2)
        x1 = {50: [lambda: e(f"buffer_load_dword {vTag}, {vZero}, {SRDD}, 0 offen sc1")]}
        gl = [(x1, g) for g in range(30, 94, 2)] + [(x2, g) for g in range(30, 94, 2)]
        for k, un in enumerate(early):
            x, g = gl[k * len(gl) // len(early)]
            x.setdefault(g, []).append(lambda un=un: [e(t) for t in un])
    tileB(1, vm=None, extra=x1)
    tileB(2, vm=None, extra=x2)
    tileB(3, ks=0, vm=32, extra=shift("v_add_u32", 44))
    tileB(0, vs=0, ks=0, dma=False, adv=False, vm=32,
          extra={29: [lambda: only(0, x5_write)], 45: [lambda: (a.wait(vm=24, lgkm=0), e("s_barrier"))], 46: [lambda: only(1, x5_write)],
                 50: [lambda: only(1, lambda: dma_half(0, 0))], 60: [lambda: only(1, lambda: dma_half(0, 1))],
                 62: [lambda: (e(f"s_cmp_eq_u32 {sQH}, 0"), e(f"s_cselect_b32 {sSL[0]}, {sSL0}, {sS}"))]})
    tileB(0, vs=0, ks=0, dma=False, adv=False, vm=24, extra=shift("v_subrev_u32", 44))
    def bodyB():
        for u in range(4): tileB(u, kill=True, extra={40: [lambda: e(f"s_mov_b32 {sSL[0]}, {sSL0}")]} if u == 1 else {})
    steady = list(a.lds)
    a.label("L1_loopB")
    bodyB()
    assert a.lds == steady
    e(f"s_add_u32 {sIT}, {sIT}, 1"); e(f"s_cmp_lt_u32 {sIT}, 6"); e("s_cbranch_scc1 L1_loopB")
    x30, x31 = {}, {}
    if E3:
        fl4 = next(K2)
        for k, o in enumerate(fl4[0]): x30.setdefault(OPT["e30"] + 2 * k, []).append(o)
        for k, o in enumerate(fl4[1] + fl4[2]): x31.setdefault(OPT["e31"] + 2 * k, []).append(o)
    tileB(0, dma=False, adv=False, vm=16, extra=x30)
    tileB(1, dma=False, adv=False, vm=8 if E3 else 0, nok=True, extra=x31)
    stamp(a, 4)
    for g, j, op in tail: sm_op(j, op)
    e("s_nop 1")
    def lsum_ops(j):
        sp = "s[98:99]" if j == 0 else "s[100:101]"
        ops = xlane("v_add_f32", vl[j], vt[1]) + [lambda: e(f"v_cmp_ngt_f32 {sp}, {sTHR}, {vl[j]}"), lambda: e(f"v_rcp_f32 {R2(j)[0]}, {vl[j]}"),
                                                  lambda: e(f"v_rcp_f32 {R2(j)[1]}, {vl[j]}")]
        if j: ops.append(lambda: e("s_or_b64 s[98:99], s[98:99], s[100:101]"))
        return ops
    G = Gaps()
    G.spread([(o, 4) for j in range(2) for o in lsum_ops(j)], list(range(0, 8)))
    G.run(PVg(5))
    for j in range(2, 6):
        for o in lsum_ops(j): o()
    e("s_cmp_lg_u64 s[98:99], 0"); e(f"s_cselect_b32 {sT0}, 1, 0"); e(f"s_andn2_b32 {sT0}, {sT0}, {sPass}")
    if OPT["bnoc"]: e(f"s_mov_b32 {sT0}, 0")
    e(f"v_mov_b32 {vt[1]}, {sT0}"); e(f"ds_write_b32 {vFL}, {vt[1]}"); a.lds.append(set())
    if F4:
        e(f"v_readfirstlane_b32 s93, {vTag}"); e(f"s_or_b32 s93, s93, {sW}"); e("s_cbranch_scc0 L1_tagslow")
        a.label("L1_tagok")
        e(f"ds_write_b32 {vFL}, {vTag} offset:16"); a.lds.append(set())
    ostf = (" " + OPT["ost"].replace("+", " ")) if OPT["ost"] else ""
    fill = []
    cnt = [0]
    def ev(t):
        e(t); cnt[0] += 1
        if fill and cnt[0] % (OPT["fint"] if F4 else 3) == 0: fill.pop(0)()
    for j in range(6):
        if j == 1:
            a.wait(lgkm=0, vm=None if E3 else 4); e("s_barrier")
            if F4: vZ = V(244, 4)
            e(f"v_and_b32 {vt[0]}, 0xfffffff0, {vFL}"); a.ds_read_b128(vZ, vt[0], 0)
            if F4: e(f"ds_read_b32 {vTag}, {vt[0]} offset:16"); a.lds.append(vTag.regs())
        if j == 2:
            a.wait(lgkm=0)
            e(f"v_or3_b32 {vt[0]}, {vZ[0]}, {vZ[1]}, {vZ[2]}"); e(f"v_or_b32 {vt[0]}, {vt[0]}, {vZ[3]}"); e("s_nop 0")
            e(f"v_readfirstlane_b32 {sT1}, {vt[0]}"); e(f"s_cmp_lg_u32 {sT1}, 0")
            if not (OPT["only01"] or OPT["bnoc"] or OPT["kvskip"] or OPT["askip"]): e("s_cbranch_scc1 L1_fallback")
            if K2 and OPT["fuse"] < 3: next(K2); fill = next(K2)
            if E3: next(K2); fill = [] if OPT["w3l"] else fl4[3]
            elif F4:
                fl4 = next(K2)
                if OPT["fo"] == 2: fill = fl4
            if OPT["fuse"] == 3:
                e(f"s_mov_b32 {SRDWO[0]}, s18"); e(f"s_mov_b32 {SRDWO[1]}, s19"); e(f"s_mov_b32 {SRDWO[2]}, {FLOFF + 65536}"); e(f"s_mov_b32 {SRDWO[3]}, 0x20000")
                e(f"s_lshl_b32 {sT1}, {sB}, 12"); e(f"s_lshl_b32 {sT2}, {sHP}, 2"); e(f"s_add_u32 {sT1}, {sT1}, {sT2}"); e(f"s_add_u32 {sP1}, {sT1}, {FLOFF}")
                e(f"v_lshlrev_b32 {vTA}, 8, {vLane}"); e(f"v_mov_b32 {vTD}, 0x5eedf1a6")
        if E3 and j == OPT["pj"]: next(K2)
        e(f"s_add_u32 {sT0}, {sOO}, {j * 131072}")
        for m in range(4):
            T = V(208 + 8 * (m % 2), 8); D = V(224 + 4 * (m % 2), 4)
            for i in range(8): ev(f"v_accvgpr_read_b32 {T[i]}, {OA(2 * m + (i >> 2), j)[i & 3]}")
            for i in range(4): ev(f"v_pk_mul_f32 {T[2*i:2*i+2]}, {T[2*i:2*i+2]}, {R2(j)}")
            for i in range(4): ev(f"v_cvt_pk_bf16_f32 {D[i]}, {T[2*i]}, {T[2*i+1]}")
            a.bstore(D, vOS, SRDO, sT0, m * 1024, ostf)
        if F4: zm4[2 * j](); zm4[2 * j + 1]()
    assert not fill
    if E3 and OPT["tp"]:
        def signal(t):
            e("s_barrier")
            e(f"s_cmp_lg_u32 {sW}, 0"); e(f"s_cbranch_scc1 L1_nosig{t}")
            e("s_mov_b64 exec, 0xffff")
            e(f"buffer_store_dword v38, v179, {SRDF}, {sFLO} offen sc1")
            e("s_mov_b64 exec, -1")
            a.label(f"L1_nosig{t}")
        K2.send((signal, fl4[3] if OPT["w3l"] else [], lambda: stamp(a, 5), lambda: dump_stamps(a, 6, 0x4000000, sW, vt[0], vt[1], last=False)))
    elif F4:
        e(f"v_lshlrev_b32 v179, 8, {vLane}")
        if OPT["fo"] == 0:
            for o in fl4: o()
        if not E3: next(K2)
        a.wait(vm=32 if OPT["fo"] == 0 else 0); e("s_barrier")
        stamp(a, 5)
        e(f"s_cmp_lg_u32 {sW}, 0"); e("s_cbranch_scc1 L1_nosig")
        e("s_mov_b64 exec, 0xffff")
        e(f"buffer_store_dword v38, v179, {SRDF}, {sFLO} offen sc1")
        e("s_mov_b64 exec, -1")
        a.label("L1_nosig")
        if E3 and OPT["pj"] == 6: next(K2)
        if E3 and OPT["w3l"]:
            for o in fl4[3]: o()
        if E3 and OPT["pj"] == 6: a.wait(vm=8 if OPT["w3l"] else 0)
        K2.send(lambda: dump_stamps(a, 6, 0x4000000, sW, vt[0], vt[1], last=False))
    if F4: pass
    elif OPT["fuse"] == 3:
        a.wait(vm=0); e("s_barrier")
        stamp(a, 5)
        e(f"s_cmp_lg_u32 {sW}, 0"); e("s_cbranch_scc1 L1_nosig")
        e("s_mov_b64 exec, 0xffff")
        e(f"buffer_store_dword {vTD}, {vTA}, {SRDWO}, {sP1} offen sc1")
        e("s_mov_b64 exec, -1")
        a.label("L1_nosig")
        next(K2); fill = next(K2)
        K2.send((fill, lambda: dump_stamps(a, 6, 0x4000000, sW, vt[0], vt[1], last=False)))
    elif K2:
        stamp(a, 5)
        K2.send((sB, lambda: dump_stamps(a, 6, 0x4000000, sW, vt[0], vt[1], last=False)))
    else:
        dump_stamps(a, 6, 0x4000000, sW, vt[0], vt[1])
    a.label("L1_end"); e("s_endpgm")
    if F4:
        next(K2)
        a.label("L1_tagslow")
        e("s_mov_b32 s75, 0")
        a.label("L1_tagloop")
        e("s_sleep 8"); e(f"buffer_load_dword {vTag}, {vZero}, {SRDD}, 0 offen sc1"); e("s_waitcnt vmcnt(0)")
        e(f"v_readfirstlane_b32 s93, {vTag}"); e("s_add_u32 s75, s75, 1"); e("s_cmp_lg_u32 s93, 0"); e("s_cbranch_scc1 L1_tagok")
        e("s_cmp_lt_u32 s75, 0x40000"); e("s_cbranch_scc1 L1_tagloop")
        e("s_branch L1_tagok")
    a.label("L1_fallback")
    a.lds = []; a.vm = []
    e("s_waitcnt vmcnt(0) lgkmcnt(0)"); e("s_barrier")
    e(f"s_mov_b32 {sPass}, 1"); e(f"s_mov_b32 {SRDKV[2]}, {NR}")
    for q in range(6): e(f"v_mov_b32 {vl[q]}, 0xff800000")
    e(f"s_mov_b32 {sKVO}, 0"); e(f"s_mov_b32 {sKVO2}, 4096"); e(f"s_mov_b32 {sIT}, 0")
    a.label("L1_fb_loop")
    for o in dma_kv(sM0KV): o()
    e("s_waitcnt vmcnt(0)"); e("s_barrier")
    for n in range(8):
        for pi in range(2): rdK(n, pi, 0)()
    for f in sm: f()
    e("s_nop 15")
    for j in range(6):
        for o in rowmax_ops(j, vt[0], vt[1]): o()
        e(f"v_max_f32 {vl[j]}, {vl[j]}, {vt[0]}")
    e("s_barrier")
    e(f"s_add_u32 {sIT}, {sIT}, 1"); e(f"s_cmp_lt_u32 {sIT}, 32"); e("s_cbranch_scc1 L1_fb_loop")
    e(f"s_mov_b32 {sKVO}, {sKV0}"); e(f"s_add_u32 {sKVO2}, {sKVO}, 4096")
    for t in range(4):
        e(f"s_add_u32 {sT0}, {sM0KV}, {t * 16384}")
        for o in dma_kv(sT0): o()
    for o in dma_kv(sS): o()
    for o in x5_ops(): o()
    e(f"s_mov_b32 {sSL[0]}, {sSL0}")
    for j in range(6):
        for o in negfill_ops(j, vl[j]): o()
        e(f"v_mov_b32 {vl[j]}, 0")
    if not F4:
        for i in range(4): e(f"v_mov_b32 {vZ[i]}, 0")
    for o in init: o()
    e("s_nop 1")
    for f in (zm4 if F4 else zm): f()
    stream_init()
    e("s_waitcnt vmcnt(0)"); e("s_barrier")
    for n in range(8):
        for pi in range(2): rdK(n, pi, 0)()
    e("s_waitcnt lgkmcnt(0)"); e("s_nop 15")
    e("s_branch L1_tile0")
    return a.text()

def kernel2(a):
    fused = a is not None
    if not fused: a = Asm()
    e = a.e
    SRDWO, SRDOW, SRDOUT, SRDDBG = S(20, 4), S(24, 4), S(28, 4), S(80, 4)
    sW, sRB, sCB, sT0, sT1, sT2, sIT = S(36), S(46), S(47), S(48), S(49), S(50), S(45)
    sWOo, sOo, sM0 = S(76), S(77), S(78)
    vLane = V(1); vt = [V(i) for i in range(2, 10)]
    wa = [V(10 + k) for k in range(8)]
    wv = [V(18 + k) for k in range(8)]
    ov = [V(26 + k) for k in range(6)]
    ra = [V(32 + k) for k in range(3)]
    vRW, vOut = V(35), V(36)
    AC = lambda i, j: A(4 * (j * 8 + i), 4)
    AF = lambda i: V(40 + 4 * i, 4)
    BF = lambda sl, j: V(72 + 24 * sl + 4 * j, 4)
    REG = 36864
    osc = " sc1" if (fused and OPT["osc"]) else ""
    F4 = fused and OPT["fuse"] == 4
    if F4:
        sT2, sM0 = S(75), S(74)
        vt[0] = V(4)
        SRDF, sCL, sMK, sPC, vPD, vTg, vPA = S(84, 4), S(79), S(50), S(75), V(37), V(38), V(39)
    E3 = F4 and OPT["fo"] == 3
    if E3: sCL = S(92); REG = 8192
    TP = E3 and OPT["tp"]
    SLB = [131072, 32768, 98304, 0] if E3 else [0, 8192, 16384, 24576]
    wl = [V(168 + k) for k in range(8)]; rw = [V(176 + k) for k in range(3)]
    mark0 = len(a.out)
    if not fused:
        a.k2 = 1
        a.label("mha_oproj_kernel")
        e("s_cmp_ge_u32 s2, 256"); e("s_cbranch_scc1 L2_end")
        e("s_load_dwordx16 s[4:19], s[0:1], 0")
        e(f"v_lshrrev_b32 {vt[0]}, 6, v0"); e(f"v_and_b32 {vLane}, 63, v0")
        e(f"v_readfirstlane_b32 {sW}, {vt[0]}")
    e(f"s_and_b32 {sT2}, s2, 7"); e(f"s_lshr_b32 {sT0}, s2, 3")
    if OPT["map2"] in (0, 2):
        e(f"s_lshr_b32 {sT1}, {sT2}, 1"); e(f"s_lshl_b32 {sT1}, {sT1}, 3"); e(f"s_and_b32 {sRB}, {sT0}, 7")
        e(f"s_add_u32 {sRB}, {sT1}, {sRB}")
        e(f"s_and_b32 {sT1}, {sT2}, 1"); e(f"s_lshl_b32 {sT1}, {sT1}, 2"); e(f"s_lshr_b32 {sCB}, {sT0}, 3"); e(f"s_add_u32 {sCB}, {sCB}, {sT1}")
        if OPT["map2"] == 2:
            e(f"s_lshl_b32 {sCB}, {sCB}, 2"); e(f"s_lshr_b32 {sCB}, {OPT['cbtab']}, {sCB}"); e(f"s_and_b32 {sCB}, {sCB}, 7")
    else:
        e(f"s_lshl_b32 {sT1}, {sT2}, 2"); e(f"s_and_b32 {sT2}, {sT0}, 3"); e(f"s_add_u32 {sRB}, {sT1}, {sT2}")
        e(f"s_lshr_b32 {sCB}, {sT0}, 2")
        if OPT["cbrot"]: e(f"s_add_u32 {sCB}, {sCB}, {OPT['cbrot']}"); e(f"s_and_b32 {sCB}, {sCB}, 7")
    t0, t1, t2, t3 = wa[:4]
    e(f"v_lshrrev_b32 {t2}, 4, {vLane}"); e(f"v_and_b32 {t1}, 15, {vLane}")
    e(f"v_lshlrev_b32 {t3}, 1, {t2}"); e(f"v_xor_b32 {t1}, {t1}, {t3}")
    e(f"v_lshlrev_b32 {t0}, 11, {t2}"); e(f"v_lshl_add_u32 {wv[0]}, {t1}, 4, {t0}")
    e(f"v_xor_b32 {t1}, 128, {wv[0]}")
    for m in range(1, 8): e(f"v_add_u32 {wv[m]}, {m * 8192 - (m % 4) * 1024}, {t1 if m & 1 else wv[0]}")
    if OPT["wvx"] == 1:
        e(f"v_and_b32 {t1}, 15, {vLane}"); e(f"v_lshlrev_b32 {t0}, 14, {t2}"); e(f"v_lshl_add_u32 {wv[0]}, {t1}, 4, {t0}")
        for m in range(1, 8): e(f"v_add_u32 {wv[m]}, {m * 2048 - (m % 4) * 1024}, {wv[0]}")
    if OPT["wvx"] == 5:
        e(f"v_and_b32 {t1}, 15, {vLane}"); e(f"v_lshlrev_b32 {t0}, 12, {t2}"); e(f"v_lshl_add_u32 {wv[0]}, {t1}, 4, {t0}")
        for m in range(1, 8): e(f"v_add_u32 {wv[m]}, {((m & 1) + 8 * (m >> 1)) * 2048 - (m % 4) * 1024}, {wv[0]}")
    if OPT["wvx"] == 6:
        e(f"v_and_b32 {t1}, 15, {vLane}"); e(f"v_lshlrev_b32 {t0}, 13, {t2}"); e(f"v_lshl_add_u32 {wv[0]}, {t1}, 4, {t0}")
        for m in range(1, 8): e(f"v_add_u32 {wv[m]}, {((m & 3) + 16 * (m >> 2)) * 2048 - (m % 4) * 1024}, {wv[0]}")
    if OPT["wvx"] in (7, 8, 9):
        r_ = {7: 0, 8: 2, 9: 2}[OPT["wvx"]]
        e(f"s_add_u32 {sT0}, {sCB}, {r_}"); e(f"s_and_b32 {sT0}, {sT0}, 7"); e(f"s_add_u32 {sT0}, {sT0}, 8"); e(f"s_sub_u32 {sT0}, {sT0}, {sCB}"); e(f"s_lshl_b32 {sT0}, {sT0}, 7")
        e(f"v_bfe_u32 {t1}, {vLane}, 3, 1"); e(f"v_mul_lo_u32 {t1}, {t1}, {sT0}"); e(f"v_and_b32 {t3}, 7, {vLane}"); e(f"v_lshl_add_u32 {t1}, {t3}, 4, {t1}")
        e(f"s_lshl_b32 {sT0}, {sCB}, 7"); e(f"s_sub_u32 {sT0}, 4096, {sT0}"); e(f"v_add_u32 {t1}, {sT0}, {t1}")
        e(f"v_lshlrev_b32 {t0}, {14 if OPT['wvx'] == 9 else 11}, {t2}"); e(f"v_add_u32 {wv[0]}, {t1}, {t0}")
        for m in range(1, 8): e(f"v_add_u32 {wv[m]}, {m * (2048 if OPT['wvx'] == 9 else 8192) - (m % 4) * 1024}, {wv[0]}")
    if OPT["wvx"] == 2:
        e(f"v_and_b32 {t1}, 7, {vLane}"); e(f"v_lshrrev_b32 {t0}, 3, {vLane}"); e(f"v_lshlrev_b32 {t0}, 11, {t0}"); e(f"v_lshl_add_u32 {wv[0]}, {t1}, 4, {t0}")
        for m in range(1, 8): e(f"v_add_u32 {wv[m]}, {(m >> 1) * 16384 + (m & 1) * 128 - (m % 4) * 1024 + 4096}, {wv[0]}")
        e(f"v_add_u32 {wv[0]}, 4096, {wv[0]}")
    if OPT["wvx"] == 3:
        e(f"v_and_b32 {t1}, 15, {vLane}"); e(f"v_lshlrev_b32 {t0}, 11, {t2}"); e(f"v_lshl_add_u32 {wv[0]}, {t1}, 4, {t0}")
        for m in range(1, 8): e(f"v_add_u32 {wv[m]}, {m * 8192 - (m % 4) * 1024}, {wv[0]}")
    if OPT["wvx"] == 4:
        e(f"v_lshlrev_b32 {wv[0]}, 4, {vLane}"); e(f"s_mul_i32 {sT0}, {sCB}, {8192 - 256}"); e(f"v_add_u32 {wv[0]}, {sT0}, {wv[0]}")
        for m in range(1, 8): e(f"v_add_u32 {wv[m]}, {m * 1024 - (m % 4) * 1024}, {wv[0]}")
    e(f"s_mul_i32 {sM0}, {sW}, {REG}")
    e(f"s_lshl_b32 {sWOo}, {sW}, 21"); e(f"s_lshl_b32 {sOo}, {sW}, 15")
    def ovs():
        e(f"s_mul_i32 {sT0}, {sRB}, 786432"); e(f"v_lshlrev_b32 {vt[0]}, 4, {vLane}")
        e(f"v_add_u32 {ov[0]}, {sT0}, {vt[0]}")
        for j in range(1, 6): e(f"v_add_u32 {ov[j]}, {j * 131072}, {ov[0]}")
    if not fused:
        ovs()
        e("s_waitcnt lgkmcnt(0)")
        stamp(a, 0)
    e(f"s_lshl_b32 {sT0}, {sCB}, 8")
    e(f"s_add_u32 {SRDWO[0]}, s12, {sT0}"); e(f"s_addc_u32 {SRDWO[1]}, s13, 0")
    e(f"s_sub_u32 {SRDWO[2]}, 8388608, {sT0}"); e(f"s_mov_b32 {SRDWO[3]}, 0x20000")
    e(f"s_mov_b32 {SRDOW[0]}, s18"); e(f"s_mov_b32 {SRDOW[1]}, s19")
    e(f"s_mov_b32 {SRDOW[2]}, 25165824"); e(f"s_mov_b32 {SRDOW[3]}, 0x20000")
    if OPT["k2skip"] & 1: e(f"s_mov_b32 {SRDWO[2]}, 0")
    if OPT["k2skip"] & 2: e(f"s_mov_b32 {SRDOW[2]}, 0")
    def issue_w(slot):
        ops = []
        for h in range(2):
            ops.append(lambda h=h: e(f"s_add_u32 m0, {sM0}, {SLB[slot] + h * 4096}"))
            for m in range(4): ops.append(lambda m=m, h=h: a.dma(wv[4 * h + m], SRDWO, sWOo, m * 1024, tag=("w", slot)))
        ops.append(lambda: e(f"s_add_u32 {sWOo}, {sWOo}, 65536"))
        return ops
    def issue_o(slot):
        ops = [(lambda j=j: a.bload(BF(slot, j), ov[j], SRDOW, sOo, 0, osc)) for j in range(6)]
        ops.append(lambda: e(f"s_add_u32 {sOo}, {sOo}, 1024"))
        return ops
    def run(ops):
        for o in ops:
            n = len(a.out); o()
            if "m0" in a.out[-1]: e("s_nop 0")
    def wa_setup():
        e(f"v_lshrrev_b32 {vg}, 4, {vLane}"); e(f"v_lshrrev_b32 {vr}, 2, {vLane}"); e(f"v_and_b32 {vc}, 3, {vLane}")
        e(f"v_and_b32 {u1}, 7, {vr}"); e(f"v_lshlrev_b32 {u0}, 8, {vr}")
        e(f"v_add_u32 {u0}, {sM0}, {u0}"); e(f"v_lshl_add_u32 {u0}, {vc}, 3, {u0}"); e(f"v_lshl_add_u32 {u0}, {u1}, 5, {u0}")
        if E3: e(f"v_add_u32 {u0}, 98304, {u0}")
        for d in range(4):
            e(f"s_add_u32 {sT0}, {sW}, {d}"); e(f"s_and_b32 {sT0}, {sT0}, 3"); e(f"s_lshl_b32 {sT0}, {sT0}, 6")
            e(f"v_xor_b32 {wa[2*d]}, {sT0}, {u0}"); e(f"v_xor_b32 {wa[2*d+1]}, 32, {wa[2*d]}")
    vg, vr, vc, u0, u1 = vt[3:8]
    if F4:
        ovs(); wa_setup()
        for i in range(4): e(f"v_mov_b32 v{252 + i}, 0")
        def scl():
            e(f"s_lshr_b32 {sT0}, {sRB}, 1"); e(f"s_lshl_b32 {sT0}, {sT0}, 4"); e(f"s_lshl_b32 {sT1}, {sCB}, 1"); e(f"s_add_u32 {sT0}, {sT0}, {sT1}")
            e(f"s_and_b32 {sT1}, {sRB}, 1"); e(f"s_add_u32 {sT0}, {sT0}, {sT1}"); e(f"s_lshl_b32 {sT0}, {sT0}, 8"); e(f"s_lshl_b32 {sT1}, {sW}, 4")
            e(f"s_add_u32 {sT0}, {sT0}, {sT1}"); e(f"s_add_u32 {sCL}, {sT0}, {FLOFF}")
        if E3: scl()
        lines = [t[1:] for t in a.out[mark0:]]; del a.out[mark0:]
        units = []
        for t in lines:
            if t.startswith(("s_addc", "s_cselect")): units[-1].append(t)
            else: units.append([t])
        yield units
        fills = issue_w(0) + issue_w(1) + issue_w(2) + issue_w(3)
        if E3: yield [[(lambda o=o: run([o])) for o in issue_w(k)] for k in range(4)]
        else:
            yield [(lambda o=o: run([o])) for o in fills]
            scl()
        e(f"v_and_b32 {vPA}, 3, {vLane}"); e(f"v_lshlrev_b32 {vPA}, 2, {vPA}"); e(f"v_mov_b32 {vTg}, v63")
        e(f"s_mov_b32 {sPC}, 0"); e(f"s_mov_b32 {sMK}, 1")
        if E3:
            for k in range(8): e(f"v_add_u32 {wl[k]}, 0xfffe8000, {wa[k]}")
            if TP: e(f"v_lshlrev_b32 v179, 8, {vLane}"); e("s_mov_b32 s93, 0")
            yield None
            e(f"buffer_load_dword {vPD}, {vPA}, {SRDF}, {sCL} offen sc1"); a.vm.append(vPD.regs())
        dump1 = yield None
        if TP:
            signal, w3ops, st5, dump1 = dump1
            a.wait_for(vPD); st5()
        a.k2 = 1; stamp(a, 0)
        if not E3: e(f"buffer_load_dword {vPD}, {vPA}, {SRDF}, {sCL} offen sc1")
        if OPT["fo"] == 1: run(fills)
    elif fused:
        yield None
        sB1, dump1 = yield issue_w(0) + issue_w(1) + issue_w(2) + issue_w(3)
        if OPT["fuse"] == 3:
            vTag, vPA, vPD = V(61), V(60), V(59)
            a.k2 = 1; stamp(a, 0)
            e(f"s_lshr_b32 {sT0}, {sRB}, 1"); e(f"s_lshl_b32 {sT0}, {sT0}, 4"); e(f"s_lshl_b32 {sT1}, {sCB}, 1"); e(f"s_add_u32 {sT0}, {sT0}, {sT1}")
            e(f"s_and_b32 {sT1}, {sRB}, 1"); e(f"s_add_u32 {sT0}, {sT0}, {sT1}"); e(f"s_lshl_b32 {sT0}, {sT0}, 8"); e(f"s_add_u32 s39, {sT0}, {FLOFF}")
            e(f"v_and_b32 {vPA}, 15, {vLane}"); e(f"v_lshlrev_b32 {vPA}, 2, {vPA}")
            e(f"s_cmp_lg_u32 {sW}, 0"); e("s_cbranch_scc1 L2_np0")
            e(f"buffer_load_dword {vPD}, {vPA}, {SRDDBG}, s39 offen sc1")
            a.label("L2_np0")
            run(sB1)
        ovs()
    else:
        run(issue_w(0)); run(issue_o(0)); run(issue_w(1)); run(issue_o(1))
        if OPT["codepf"]: code_prefetch(a, vLane, V(173), V(172), "mha_oproj_kernel", 16384, sW)
        run(issue_w(2)); run(issue_o(2)); run(issue_w(3))
    t0 = vt[0]
    mark1 = len(a.out)
    e(f"s_mov_b32 {SRDOUT[0]}, s14"); e(f"s_mov_b32 {SRDOUT[1]}, s15")
    e(f"s_mov_b32 {SRDOUT[2]}, 6291456"); e(f"s_mov_b32 {SRDOUT[3]}, 0x20000")
    e(f"v_add_u32 {vRW}, {sM0}, {t0}")
    RB = [0, 32768, 98304]
    if E3: e(f"v_add_u32 {rw[1]}, {RB[1]}, {vRW}"); e(f"v_add_u32 {rw[2]}, {RB[2]}, {vRW}"); rw[0] = vRW
    for d in range(1, 4):
        e(f"s_sub_u32 {sT0}, {sW}, {d}"); e(f"s_and_b32 {sT0}, {sT0}, 3"); e(f"s_mul_i32 {sT0}, {sT0}, {REG}")
        e(f"s_add_u32 {sT0}, {sT0}, {RB[d - 1] if E3 else (d - 1) * 12288}"); e(f"v_add_u32 {ra[d-1]}, {sT0}, {t0}")
    if not F4: wa_setup()
    e(f"s_mul_i32 {sT0}, {sRB}, 196608"); e(f"s_lshl_b32 {sT1}, {sCB}, 8"); e(f"s_add_u32 {sT0}, {sT0}, {sT1}")
    e(f"s_lshl_b32 {sT1}, {sW}, 6"); e(f"s_add_u32 {sT0}, {sT0}, {sT1}")
    e(f"v_and_b32 {u1}, 15, {vLane}"); e(f"v_lshlrev_b32 {vOut}, 11, {u1}"); e(f"v_add_u32 {vOut}, {sT0}, {vOut}")
    e(f"v_and_b32 {u1}, 1, {vg}"); e(f"v_lshl_add_u32 {vOut}, {u1}, 5, {vOut}")
    e(f"v_lshrrev_b32 {u1}, 1, {vg}"); e(f"v_lshl_add_u32 {vOut}, {u1}, 4, {vOut}")
    vZ = V(168, 4)
    if not F4:
        for i in range(4): e(f"v_mov_b32 {vZ[i]}, 0")
        e("s_nop 1")
        for k in range(12): e(f"v_mfma_f32_32x32x16_bf16 {A(16 * k, 16)}, {vZ}, {vZ}, 0")
    def rdA(slot, i):
        if E3: return [(lambda u=u: a.ds_read_tr(AF(i)[2 * u:2 * u + 2], (wl if slot & 1 else wa)[i], (32768 if slot < 2 else 0) + u * 4096)) for u in range(2)]
        return [(lambda u=u: a.ds_read_tr(AF(i)[2 * u:2 * u + 2], wa[i], slot * 8192 + u * 4096)) for u in range(2)]
    late2 = []
    if E3: late2 = a.out[mark1:]; del a.out[mark1:]
    def chk(n):
        e(f"v_cmp_ne_u32 vcc, {vPD}, {vTg}"); e(f"s_and_b32 {sT0}, vcc_lo, {sMK}"); e(f"s_cbranch_scc1 L2_slow{n}")
        a.label(f"L2_back{n}")
    if TP:
        chk(0)
        stamp(a, 1)
        run(issue_o(0)); run(issue_o(1)); run(issue_o(2))
        n3 = 8 if w3ops else 0
        for o in w3ops: o()
        for i in range(7):
            for r in rdA(0, i): r()
        a.out += late2
        e("s_cmp_lg_u32 s93, 0"); e("s_cbranch_scc1 L2_sigd")
        e(f"s_waitcnt vmcnt({18 + n3})"); signal("a")
        a.label("L2_sigd")
        a.wait(vm=6 + n3)
        stamp(a, 2)
    elif F4:
        if not E3: a.wait(vm=32 if OPT["fo"] == 1 else 0)
        chk(0)
        stamp(a, 1)
        run(issue_o(0)); run(issue_o(1)); run(issue_o(2))
        if not E3: a.wait(vm=18 + 24)
        for i in range(7):
            for r in rdA(0, i): r()
        a.out += late2
        a.wait(vm=6)
        stamp(a, 2)
    elif fused and OPT["fuse"] == 3:
        stamp(a, 1)
        e(f"s_mov_b32 {sIT}, 0")
        e(f"s_cmp_lg_u32 {sW}, 0"); e("s_cbranch_scc1 L2_skip")
        e("s_waitcnt vmcnt(32)")
        e("s_branch L2_chk")
        a.label("L2_poll")
        e(f"s_sleep {OPT['psleep']}")
        e(f"buffer_load_dword {vPD}, {vPA}, {SRDDBG}, s39 offen sc1")
        e("s_waitcnt vmcnt(0)")
        a.label("L2_chk")
        e(f"v_cmp_ne_u32 vcc, {vPD}, {vTag}"); e(f"s_add_u32 {sIT}, {sIT}, 1")
        e("s_cbranch_vccz L2_skip")
        e(f"s_cmp_lt_u32 {sIT}, 0x40000"); e("s_cbranch_scc1 L2_poll")
        a.label("L2_skip")
        e("s_barrier")
        stamp(a, 2)
        run(issue_o(0)); run(issue_o(1)); run(issue_o(2))
        a.wait_for(("w", 0))
        for i in range(7):
            for r in rdA(0, i): r()
        a.wait(vm=6)
        stamp(a, 3)
    elif fused:
        e(f"s_mov_b32 {SRDDBG[0]}, s16"); e(f"s_mov_b32 {SRDDBG[1]}, s17"); e(f"s_mov_b32 {SRDDBG[2]}, 256"); e(f"s_mov_b32 {SRDDBG[3]}, 0x20000")
        e(f"s_lshl_b32 {sT0}, {sB1}, 4"); e(f"s_lshr_b32 {sT1}, {sRB}, 1"); e(f"s_lshl_b32 {sT1}, {sT1}, 4")
        if OPT["fuse"] == 2: e(f"s_mov_b32 {sT0}, 0"); e(f"s_mov_b32 {sT1}, 0")
        e(f"v_mov_b32 {vt[0]}, 1"); e(f"v_mov_b32 {vt[1]}, 0"); e(f"s_mov_b32 {sIT}, 0")
        a.k2 = 1; stamp(a, 0)
        a.wait(vm=0); e("s_barrier")
        stamp(a, 1)
        e(f"s_cmp_lg_u32 {sW}, 0"); e("s_cbranch_scc1 L2_skip")
        e("s_mov_b64 exec, 1")
        e(f"buffer_atomic_add {vt[0]}, {vt[1]}, {SRDDBG}, {sT0} offen sc1")
        a.label("L2_poll")
        e(f"buffer_load_dword {vt[2]}, {vt[1]}, {SRDDBG}, {sT1} offen sc1")
        e("s_waitcnt vmcnt(0)")
        e(f"v_readfirstlane_b32 {sT2}, {vt[2]}"); e(f"s_add_u32 {sIT}, {sIT}, 1")
        e(f"s_cmp_ge_u32 {sT2}, {256 if OPT['fuse'] == 2 else 16}"); e("s_cbranch_scc1 L2_go")
        e(f"s_sleep {OPT['psleep']}")
        e(f"s_cmp_lt_u32 {sIT}, 0x40000"); e("s_cbranch_scc1 L2_poll")
        a.label("L2_go")
        e("s_mov_b64 exec, -1")
        a.label("L2_skip")
        for i in range(7):
            for r in rdA(0, i): r()
        e("s_barrier")
        stamp(a, 2)
        run(issue_o(0)); run(issue_o(1)); run(issue_o(2))
        a.wait(vm=0)
        stamp(a, 3)
    else:
        a.wait_for(("w", 0))
        stamp(a, 1)
        for i in range(7):
            for r in rdA(0, i): r()
    e(f"s_mov_b32 {sIT}, 0")
    def body():
        for u in range(4):
            G = Gaps()
            mf = [(lambda i=i, j=j: a.mfma16(AC(i, j), AF(i), BF(u, j), AC(i, j))) for i in range(8) for j in range(6)]
            m0_ = mf[0]; mf[0] = lambda m0_=m0_: (a.wait_for(BF(u, 5), lgkm=2), m0_())
            for k, r in enumerate(rdA(u, 7)): G.mem(k, r)
            G.mem(5, lambda: a.wait_for(("w", (u + 1) % 4), lgkm=0))
            for i in range(7):
                for k, r in enumerate(rdA((u + 1) % 4, i)): G.mem(6 * i + 6 + k, r)
            ops = issue_w(u) + issue_o((u + 3) % 4)
            if u == 0: G.mem(3, lambda: (e(f"s_cmp_eq_u32 {sIT}, 7"), e(f"s_cselect_b32 {SRDWO[2]}, 0, {SRDWO[2]}")))
            if u == 1: G.mem(3, lambda: (e(f"s_cmp_eq_u32 {sIT}, 7"), e(f"s_cselect_b32 {SRDOW[2]}, 0, {SRDOW[2]}")))
            if F4 and u == 0: G.mem(4, lambda: (e(f"s_add_u32 {sT1}, {sIT}, 3"), e(f"s_lshr_b32 {sT1}, {sT1}, 1"), e(f"s_bfm_b32 {sMK}, {sT1}, 0")))
            if F4 and u == 1: G.mem(4, lambda: (a.wait_for(vPD), chk(1)))
            if F4 and u == OPT["pollu"]: ops = ops + [lambda: a.bload(vPD, vPA, SRDF, sCL, 0, " sc1")]
            free = [g for i in range(1, 8) for g in range(6 * i + 2, 6 * i + 6)]
            for o, g in zip(ops, [free[(k * len(free)) // len(ops)] for k in range(len(ops))]): G.mem(g, o)
            G.run(mf)
    mark = len(a.out)
    body(); body(); sl, sv = list(a.lds), list(a.vm)
    del a.out[mark:]
    a.lds, a.vm = list(sl), list(sv)
    a.label("L2_loop")
    body()
    assert a.lds == sl and a.vm == sv, (a.vm, sv)
    e(f"s_add_u32 {sIT}, {sIT}, 1"); e(f"s_cmp_lt_u32 {sIT}, 8"); e("s_cbranch_scc1 L2_loop")
    a.wait(vm=0, lgkm=0)
    if not fused: stamp(a, 2); stamp(a, 3)
    if F4: stamp(a, 3)
    stamp(a, 4)
    e("s_nop 7")
    for d in range(1, 4):
        for j in range(6):
            for b in range(2):
                c = (d - 1) * 12 + j * 2 + b
                if E3: a.ds_write_b128(rw[d - 1], AC(2 * d + b, j), (c >> 3) * 32768 - RB[d - 1] + (c & 7) * 1024)
                else: a.ds_write_b128(vRW, AC(2 * d + b, j), c * 1024)
    R = lambda b, j: V(40 + 8 * j + 4 * b, 4)
    for j in range(6):
        for b in range(2):
            for i in range(4): e(f"v_accvgpr_read_b32 {R(b, j)[i]}, {AC(b, j)[i]}")
    a.wait(lgkm=0); e("s_barrier")
    T = lambda d, b, j: V(96 + 48 * d + 8 * j + 4 * b, 4)
    for j in range(6):
        for d in range(3):
            for b in range(2):
                c = d * 12 + j * 2 + b
                a.ds_read_b128(T(d, b, j), ra[d], ((c >> 3) * 32768 - RB[d] + (c & 7) * 1024) if E3 else (j * 2 + b) * 1024)
    for j in range(6):
        for d in range(3):
            for b in range(2):
                a.wait_for(T(d, b, j))
                for i in range(2): e(f"v_pk_add_f32 {R(b, j)[2*i:2*i+2]}, {R(b, j)[2*i:2*i+2]}, {T(d, b, j)[2*i:2*i+2]}")
        D = V(10 + 4 * j, 4)
        e(f"v_cvt_pk_bf16_f32 {D[0]}, {R(0, j)[0]}, {R(0, j)[1]}"); e(f"v_cvt_pk_bf16_f32 {D[1]}, {R(0, j)[2]}, {R(0, j)[3]}")
        e(f"v_cvt_pk_bf16_f32 {D[2]}, {R(1, j)[0]}, {R(1, j)[1]}"); e(f"v_cvt_pk_bf16_f32 {D[3]}, {R(1, j)[2]}, {R(1, j)[3]}")
        e(f"s_mov_b32 {sT0}, {j * 32768}"); e("s_nop 0")
        e(f"v_permlane16_swap_b32 {D[0]}, {D[2]}"); e(f"v_permlane16_swap_b32 {D[1]}, {D[3]}")
        a.bstore(D, vOut, SRDOUT, sT0, 0, (" " + OPT["ost2"].replace("+", " ")) if OPT["ost2"] else "")
    dump_stamps(a, 6, 0x4100000, sW, vt[0], vt[1])
    a.k2 = 0
    if OPT["leak"]:
        lk = OPT["leak"]
        if lk < 100:
            e(f"v_readfirstlane_b32 s93, v{241 + 2 * (lk % 10)}"); e(f"v_readfirstlane_b32 s94, v{241 + 2 * (lk // 10)}")
        elif lk < 200:
            e(f"s_mov_b32 s93, s{61 + 2 * (lk % 10)}"); e(f"s_mov_b32 s94, s{61 + 2 * ((lk // 10) % 10)}")
        else:
            e("v_readfirstlane_b32 s93, v251"); e("s_mov_b32 s94, s61")
        e("s_nop 4"); e("s_sub_u32 s93, s93, s94"); e("s_lshl_b32 s93, s93, 2"); e("s_min_u32 s93, s93, 100000")
        e("s_memrealtime s[98:99]"); e("s_waitcnt lgkmcnt(0)"); e("s_add_u32 s93, s93, s98")
        a.label("L2_spin")
        e("s_memrealtime s[98:99]"); e("s_waitcnt lgkmcnt(0)"); e("s_sub_u32 s94, s93, s98"); e("s_cmp_gt_i32 s94, 0"); e("s_cbranch_scc1 L2_spin")
    if fused:
        dump1()
        yield None
        for n in range(2):
            if TP and n == 0:
                a.label("L2_slow0")
                e("s_waitcnt vmcnt(0)"); signal("b"); e("s_mov_b32 s93, 1"); e("s_branch L2_slow0x")
                n = "0w"
            a.label(f"L2_slow{n}")
            e(f"s_sleep {OPT['psleep']}")
            if n == "0w": a.label("L2_slow0x")
            e(f"buffer_load_dword {vPD}, {vPA}, {SRDF}, {sCL} offen sc1"); e("s_waitcnt vmcnt(0)")
            e(f"s_add_u32 {sPC}, {sPC}, 1"); e(f"s_cmp_ge_u32 {sPC}, 0x40000"); e(f"s_cbranch_scc1 L2_back{str(n)[0]}")
            e(f"v_cmp_ne_u32 vcc, {vPD}, {vTg}"); e(f"s_and_b32 {sT0}, vcc_lo, {sMK}"); e(f"s_cbranch_scc1 L2_slow{n}")
            e(f"s_branch L2_back{str(n)[0]}")
        yield None
    else:
        a.label("L2_end")
        e("s_endpgm")
        yield a.text()


def kernel0():
    a = Asm(); e = a.e
    a.label("mha_pre_kernel")
    e("s_cmp_ge_u32 s2, 256"); e("s_cbranch_scc1 L0_end")
    e("s_load_dwordx16 s[4:19], s[0:1], 0"); e("s_waitcnt lgkmcnt(0)")
    e("s_mov_b32 s20, s4"); e("s_mov_b32 s21, s5"); e("s_mov_b32 s22, 6291456"); e("s_mov_b32 s23, 0x20000")
    e("s_mov_b32 s24, s10"); e("s_mov_b32 s25, s11"); e("s_mov_b32 s26, 8388608"); e("s_mov_b32 s27, 0x20000")
    e("v_lshlrev_b32 v1, 7, v0"); e("s_lshl_b32 s3, s2, 15")
    e("buffer_load_dword v2, v1, s[20:23], s3 offen"); e("buffer_load_dword v3, v1, s[24:27], s3 offen")
    e("s_waitcnt vmcnt(0)")
    a.label("L0_end"); e("s_endpgm")
    return a.text()

def main():
    launches = []
    if OPT["fuse"]:
        s = HEADER + "; @launch kernel=mha_qattn_kernel grid=(256,1,1) block=(256,1,1) lds=163840\n"
        s += '.amdgcn_target "amdgcn-amd-amdhsa--gfx950"\n.text\n'
        s += ".globl mha_qattn_kernel\n.p2align 8\n.type mha_qattn_kernel,@function\n" + kernel1() + "L_text_end:\n"
        s += kd("mha_qattn_kernel", 512, 256)
        open(sys.argv[1], "w").write(s)
        return
    if OPT["only"] in (None, "k1"): launches.append("; @launch kernel=mha_qattn_kernel grid=(256,1,1) block=(256,1,1) lds=163840")
    if OPT["only"] in (None, "k2"): launches.append("; @launch kernel=mha_oproj_kernel grid=(256,1,1) block=(256,1,1) lds=163840")
    s = HEADER + "\n".join(launches) + "\n"
    s += '.amdgcn_target "amdgcn-amd-amdhsa--gfx950"\n.text\n'
    s += ".globl mha_qattn_kernel\n.p2align 8\n.type mha_qattn_kernel,@function\n" + kernel1()
    s += ".globl mha_oproj_kernel\n.p2align 8\n.type mha_oproj_kernel,@function\n" + next(kernel2(None)) + "L_text_end:\n"
    s += kd("mha_qattn_kernel", 512, 256) + kd("mha_oproj_kernel", 512, 256)
    open(sys.argv[1], "w").write(s)
main()
```

```python
import sys, math, struct
from asmlib import *

OPT = dict(kv_nt=1, only=None, dbgQ=0, prof=0, kvskip=0, wo_touch=3, n2=0, rotH=0, p1end=26, ost="", codepf=0, k2skip=0, map2=1, pre=0, askip=0, p2nt=1, p2s=3, p2e=30, early=1, xw_touch=0, leak=0, rotW=0, krot=0, ost2="", itst=0, bwait=16, bdrop=0, qmode=0, tl=64, fuse=1, psleep=2, osc=1, bmap=0, evw=16, h16=0, dg0=20, verbose=0, d4=8, x5g=0, bnoc=0, xmap=0, only01=0, p2b=49152, pollu=2, fo=0, fint=4, hperm=0, cbrot=0, wvx=0, cbtab='0x76345210', e30=20, e31=20, pj=5, w3l=0, thr=0, thrp=0, tp=0, sig=0, rotp='1,1,2,4,3')
for a_ in sys.argv[2:]:
    k, v = a_.split("=")
    assert k in OPT, k
    OPT[k] = int(v) if v.lstrip("-").isdigit() else v

def f32bits(x): return struct.unpack("<I", struct.pack("<f", x))[0]
CSCALE = math.log2(math.e) / math.sqrt(128.0)
THRESH = 2.0 ** 30
FLOFF = 0x2000000

HEADER = """; Kernarg layout for this problem (64 bytes, ptrs only, base s[0:1]):
"""

def stamp(a, i, lvl=1):
    if not OPT["prof"]: return
    if OPT["prof"] == 2 and lvl == 1 and i >= 2 and not getattr(a, "k2", 0): return
    if OPT["prof"] == 1 and lvl == 2: return
    if OPT["prof"] == 3 and not (lvl == 1 and i == (5 if getattr(a, "k2", 0) else 0)): return
    a.e("s_memtime s[98:99]"); a.e("s_memrealtime s[100:101]")
    a.e("s_waitcnt lgkmcnt(0)"); a.lds = []
    if getattr(a, "k2", 0): a.e(f"v_mov_b32 v{240+2*i}, s98"); a.e(f"v_mov_b32 v{241+2*i}, s100")
    else: a.e(f"s_mov_b32 s{60+2*i}, s98"); a.e(f"s_mov_b32 s{61+2*i}, s100")
def dump_stamps(a, n, wsoff, sW, vtmp, vaddr, last=True):
    if not OPT["prof"]: return
    e = a.e
    e("s_waitcnt vmcnt(0)")
    if last: stamp(a, n - 1)
    e("s_mov_b32 s88, s18"); e("s_mov_b32 s89, s19"); e("s_mov_b32 s90, 0x10000000"); e("s_mov_b32 s91, 0x20000")
    e(f"s_lshl_b32 s92, s2, 2"); e(f"s_add_u32 s92, s92, {sW}"); e("s_lshl_b32 s92, s92, 6"); e(f"s_add_u32 s92, s92, {wsoff}")
    e(f"v_mov_b32 {vaddr}, 0")
    for i in range(2 * n):
        e(f"v_mov_b32 {vtmp}, " + (f"v{240+i}" if getattr(a, "k2", 0) else f"s{60+i}"))
        e(f"buffer_store_dword {vtmp}, {vaddr}, s[88:91], s92 offen offset:{4*i}")
    e("s_waitcnt vmcnt(0)")

def code_prefetch(a, vLane, vtmp, vdst, start_label, nbytes, sW):
    e = a.e
    e("s_getpc_b64 s[84:85]")
    a.label(f"{start_label}_pc")
    e(f"s_sub_u32 s84, s84, {start_label}_pc-{start_label}"); e("s_subb_u32 s85, s85, 0")
    e(f"s_mov_b32 s86, L_text_end-{start_label}"); e("s_mov_b32 s87, 0x20000")
    e(f"v_lshlrev_b32 {vtmp}, 7, {vLane}"); e(f"s_lshl_b32 s93, {sW}, 13")
    for blk in range((nbytes + 32767) // 32768):
        a.bload(vdst, vtmp, S(84, 4), "s93", 0)
        e("s_add_u32 s93, s93, 32768")

def kernel1():
    a = Asm(); e = a.e
    SRDX, SRDW, SRDKV, SRDO, SRDWO = S(20, 4), S(24, 4), S(28, 4), S(32, 4), S(80, 4)
    sW, sB, sHP, sQH, sHS = S(36), S(37), S(38), S(40), S(41)
    sT0, sT1, sT2, sIT = S(42), S(43), S(44), S(45)
    sXK, sWK = S(46), S(47)
    sM0X, sM0W = S(48), S(49)
    sKVO, sKVO2, sM0KV = S(50), S(51), S(52)
    sTHR, sC = S(53), S(54, 2)
    sOO, sCnt, sKV0, sPass, sP1 = S(56), S(57), S(58), S(59), S(39)
    sDL, sSL0, sS = S(79), S(78), S(72)
    vLane = V(1)
    vt = [V(i) for i in range(2, 10)]
    xa = [[V(10 + 2 * s + k) for k in range(2)] for s in range(2)]
    wa = [V(14 + k) for k in range(8)]
    xv = [V(22 + k) for k in range(6)]
    wv = [V(28 + k) for k in range(4)]
    ka = [V(32 + k) for k in range(8)]
    va = [V(40 + k) for k in range(8)]
    kvv = [V(48 + k) for k in range(4)]
    vl = [V(52 + k) for k in range(6)]
    vKW, vOS, vTA, vTD, vFL = V(58), V(59), V(60), V(61), V(62)
    vZ = V(10, 4)
    ACC = lambda i, j: V(64 + 64 * (j >> 1) + 8 * i + 4 * (j & 1), 4)
    QF = lambda j, ks: V(64 + 32 * (j >> 1) + 8 * ks + 4 * (j & 1), 4)
    NEG = lambda j: V(160 + 4 * j, 4)
    SB = lambda i: V(184 + 8 * i, 8)
    PB = lambda i: V(200 + 4 * i, 4)
    TMP = lambda j: V(184 + 4 * j, 4)
    X5 = lambda p: V(208 + 4 * p, 4)
    R2 = lambda j: V(232 + 2 * j, 2)
    OA = lambda db, j: A(4 * (8 * j + db), 4)
    KF = lambda n: A(192 + 4 * n, 4)
    VF = lambda db: A(224 + 4 * db, 4)
    AF = lambda i: A(128 + 4 * i, 4)
    BF = lambda st, j: A((160 if st == 0 else 224) + 4 * j, 4)
    P1R = lambda t, p: A(4 * (8 * t + p), 4)
    XBASE = 65536
    F4 = OPT["fuse"] == 4
    E3 = F4 and OPT["fo"] == 3
    SRDF, SRDD, sFLO, vTag, vZero, vZ4 = S(84, 4), S(88, 4), S(73), V(63), V(0), V(252, 4)
    nt = " nt" if OPT["kv_nt"] else ""

    a.label("mha_qattn_kernel")
    e("s_cmp_ge_u32 s2, 256"); e("s_cbranch_scc1 L1_end")
    e("s_load_dwordx16 s[4:19], s[0:1], 0")
    e(f"v_lshrrev_b32 {vt[0]}, 6, v0"); e(f"v_and_b32 {vLane}, 63, v0")
    e("s_and_b32 s3, s2, 7"); e(f"s_lshr_b32 {sT0}, s2, 3")
    e(f"v_readfirstlane_b32 {sW}, {vt[0]}")
    e(f"s_and_b32 {sT1}, s3, 1"); e(f"s_and_b32 {sT2}, {sT0}, 7")
    if OPT["bmap"] == 0: e(f"s_lshl_b32 {sT1}, {sT1}, 3")
    if OPT["bmap"] == 1: e(f"s_lshl_b32 {sT2}, {sT2}, 1")
    if OPT["bmap"] == 2: e(f"s_xor_b32 {sT1}, {sT1}, 1"); e(f"s_lshl_b32 {sT1}, {sT1}, 3")
    e(f"s_add_u32 {sB}, {sT1}, {sT2}")
    e(f"s_lshr_b32 {sT1}, s3, 1"); e(f"s_lshl_b32 {sT1}, {sT1}, 2"); e(f"s_lshr_b32 {sHP}, {sT0}, 3")
    if OPT["hperm"]:
        e(f"s_lshr_b32 {sT2}, {sHP}, 1"); e(f"s_not_b32 {sHP}, {sHP}"); e(f"s_and_b32 {sHP}, {sHP}, 1"); e(f"s_lshl_b32 {sHP}, {sHP}, 1"); e(f"s_add_u32 {sHP}, {sHP}, {sT2}")
    e(f"s_add_u32 {sHP}, {sHP}, {sT1}")
    if OPT["xmap"] == 1:
        e(f"s_lshr_b32 {sT1}, s3, 1"); e(f"s_lshl_b32 {sT1}, {sT1}, 2"); e(f"s_and_b32 {sT2}, {sT0}, 3"); e(f"s_add_u32 {sB}, {sT1}, {sT2}")
        e(f"s_and_b32 {sT1}, s3, 1"); e(f"s_lshl_b32 {sT1}, {sT1}, 3"); e(f"s_lshr_b32 {sHP}, {sT0}, 2"); e(f"s_add_u32 {sHP}, {sHP}, {sT1}")
    if OPT["xmap"] == 2:
        e(f"s_lshl_b32 {sT1}, s3, 1"); e(f"s_and_b32 {sT2}, {sT0}, 1"); e(f"s_add_u32 {sB}, {sT1}, {sT2}"); e(f"s_lshr_b32 {sHP}, {sT0}, 1")
    if OPT["xmap"] == 3:
        e(f"s_and_b32 {sB}, {sT0}, 15"); e(f"s_lshl_b32 {sT1}, s3, 1"); e(f"s_lshr_b32 {sHP}, {sT0}, 4"); e(f"s_add_u32 {sHP}, {sHP}, {sT1}")
    if OPT["xmap"] in (4, 5):
        e(f"s_lshr_b32 {sT1}, s3, 2"); e(f"s_lshl_b32 {sT1}, {sT1}, 3"); e(f"s_and_b32 {sT2}, {sT0}, 7"); e(f"s_add_u32 {sB}, {sT1}, {sT2}")
        e(f"s_and_b32 {sT1}, s3, 2"); e(f"s_lshl_b32 {sT1}, {sT1}, 2"); e(f"s_and_b32 {sT2}, s3, 1"); e(f"s_lshl1_add_u32 {sHP}, {sT2}, {sT1}")
        e(f"s_lshr_b32 {sT1}, {sT0}, 4"); e(f"s_lshl2_add_u32 {sHP}, {sT1}, {sHP}")
        e(f"s_bfe_u32 {sT1}, {sT0}, 0x10003")
        if OPT["xmap"] == 4: e(f"s_xor_b32 {sT1}, {sT1}, 1")
        e(f"s_add_u32 {sHP}, {sHP}, {sT1}")
    if OPT["xmap"] in (6, 7):
        e(f"s_lshr_b32 {sT1}, s3, 2"); e(f"s_lshl_b32 {sT1}, {sT1}, 3"); e(f"s_and_b32 {sT2}, {sT0}, 7"); e(f"s_add_u32 {sB}, {sT1}, {sT2}")
        e(f"s_and_b32 {sT1}, s3, 2"); e(f"s_lshl_b32 {sT1}, {sT1}, 1"); e(f"s_and_b32 {sT2}, s3, 1"); e(f"s_lshl3_add_u32 {sHP}, {sT2}, {sT1}")
        e(f"s_lshr_b32 {sT1}, {sT0}, 3")
        if OPT["xmap"] == 6: e(f"s_xor_b32 {sT1}, {sT1}, 1")
        e(f"s_add_u32 {sHP}, {sHP}, {sT1}")
    e(f"s_and_b32 {sQH}, {sW}, 1"); e(f"s_lshr_b32 {sHS}, {sW}, 1")
    t0, t1, t2, t3, t4, t5 = vt[:6]
    e(f"v_lshrrev_b32 {t2}, 4, {vLane}")
    e(f"v_and_b32 {t1}, 15, {vLane}")
    e(f"v_lshlrev_b32 {t3}, 1, {t2}"); e(f"v_xor_b32 {t1}, {t1}, {t3}")
    e(f"s_lshl_b32 {sT0}, {sQH}, 4"); e(f"v_add_u32 {t0}, {sT0}, {t2}")
    e(f"v_lshlrev_b32 {t0}, 13, {t0}")
    e(f"s_lshl_b32 {sT0}, {sHS}, 8"); e(f"v_add_u32 {t0}, {sT0}, {t0}")
    for m in range(4):
        e(f"v_xor_b32 {t3}, {8 * (m >> 1)}, {t1}"); e(f"v_lshl_add_u32 {t3}, {t3}, 4, {t0}")
        e(f"v_add_u32 {wv[m]}, {m * 32768 - m * 1024}, {t3}")
    e(f"v_lshrrev_b32 {t0}, 3, {vLane}")
    e(f"v_and_b32 {t1}, 7, {vLane}"); e(f"v_xor_b32 {t1}, {t1}, {t2}")
    e(f"s_mul_i32 {sT0}, {sW}, 48"); e(f"v_add_u32 {t0}, {sT0}, {t0}"); e(f"v_lshlrev_b32 {t0}, 11, {t0}")
    for m in range(6):
        e(f"v_xor_b32 {t3}, {4 * (m & 1)}, {t1}"); e(f"v_lshl_add_u32 {t3}, {t3}, 4, {t0}")
        e(f"v_add_u32 {xv[m]}, {m * 16384 - (m % 3) * 1024}, {t3}")
    e(f"s_mul_i32 {sM0X}, {sW}, 6144"); e(f"s_add_u32 {sM0X}, {sM0X}, {XBASE}")
    e(f"s_lshl_b32 {sM0W}, {sW}, 12")
    e("s_waitcnt lgkmcnt(0)")
    stamp(a, 0)
    e(f"s_lshl_b32 {sT0}, {sHP}, 9")
    e(f"s_add_u32 {SRDW[0]}, s10, {sT0}"); e(f"s_addc_u32 {SRDW[1]}, s11, 0")
    e(f"s_sub_u32 {SRDW[2]}, 8388608, {sT0}"); e(f"s_mov_b32 {SRDW[3]}, 0x20000")
    e(f"s_mul_i32 {sT0}, {sB}, 393216")
    e(f"s_add_u32 {SRDX[0]}, s4, {sT0}"); e(f"s_addc_u32 {SRDX[1]}, s5, 0")
    e(f"s_mov_b32 {SRDX[2]}, 393216"); e(f"s_mov_b32 {SRDX[3]}, 0x20000")

    if OPT["askip"]: e(f"s_mov_b32 {SRDX[2]}, 0"); e(f"s_mov_b32 {SRDW[2]}, 0")
    sKR, sKRW = S(76), S(77)
    if OPT["krot"]:
        e(f"s_lshr_b32 {sT0}, s2, 3"); e(f"s_and_b32 {sT1}, {sT0}, 7"); e(f"s_lshr_b32 {sT0}, {sT0}, 3"); e(f"s_lshl_b32 {sT0}, {sT0}, 1")
        e(f"s_add_u32 {sT0}, {sT0}, {sT1}"); e(f"s_and_b32 {sT0}, {sT0}, 7")
        if OPT["krot"] == 2: e(f"s_and_b32 {sT0}, {sT0}, 1"); e(f"s_lshl_b32 {sT0}, {sT0}, 2")
        if OPT["krot"] == 3: e(f"s_and_b32 {sT0}, {sT0}, 3"); e(f"s_lshl_b32 {sT0}, {sT0}, 1")
        e(f"s_lshl_b32 {sKR}, {sT0}, 8"); e(f"s_lshl_b32 {sKRW}, {sT0}, 20")
    def dma_x(c, part):
        if OPT["krot"]:
            ops = [lambda: (e(f"s_add_u32 m0, {sM0X}, {(c % 4) * 24576 + part * 3072}"), e(f"s_add_u32 {sXK}, {sKR}, {c * 128}"), e(f"s_and_b32 {sXK}, {sXK}, 2047"))]
        else:
            ops = [lambda: (e(f"s_add_u32 m0, {sM0X}, {(c % 4) * 24576 + part * 3072}"), e(f"s_movk_i32 {sXK}, {c * 128}"))]
        for m in range(3):
            ops.append(lambda m=m: a.dma(xv[3 * part + m], SRDX, sXK, m * 1024, tag=("x", c)))
        return ops
    def dma_w(s):
        if OPT["krot"]:
            ops = [lambda: (e(f"s_add_u32 m0, {sM0W}, {(s % 4) * 16384}"), e(f"s_add_u32 {sWK}, {sKRW}, {s * 262144}"), e(f"s_and_b32 {sWK}, {sWK}, 8388607"))]
        else:
            ops = [lambda: (e(f"s_add_u32 m0, {sM0W}, {(s % 4) * 16384}"), e(f"s_mov_b32 {sWK}, {s * 262144}"))]
        for m in range(4):
            ops.append(lambda m=m: a.dma(wv[m], SRDW, sWK, m * 1024, tag=("w", s)))
        return ops
    def run(ops):
        for o in ops: o()
    run(dma_w(0)); run(dma_x(0, 0)); run(dma_x(0, 1)); run(dma_w(1)); run(dma_w(2)); run(dma_x(1, 0)); run(dma_x(1, 1)); run(dma_w(3))
    if OPT["codepf"]: code_prefetch(a, vLane, vTA, vTD, "mha_qattn_kernel", OPT["codepf"] * 1024, sW)
    run(dma_x(2, 0)); run(dma_x(2, 1)); run(dma_x(3, 0)); run(dma_x(3, 1))
    e(f"s_lshl_b32 {sT0}, {sB}, 5"); e(f"s_lshl_b32 {sT1}, {sHP}, 1"); e(f"s_add_u32 {sT0}, {sT0}, {sT1}")
    e(f"s_add_u32 {sT0}, {sT0}, {sHS}"); e(f"s_lshl_b32 {sT0}, {sT0}, 18")
    e(f"s_cmp_eq_u32 {sQH}, 0"); e(f"s_cselect_b32 {sT1}, s6, s8"); e(f"s_cselect_b32 {sT2}, s7, s9")
    e(f"s_add_u32 {SRDKV[0]}, {sT1}, {sT0}"); e(f"s_addc_u32 {SRDKV[1]}, {sT2}, 0")
    NR = 0 if OPT["kvskip"] else 262144
    e(f"s_mov_b32 {SRDKV[2]}, {NR}"); e(f"s_mov_b32 {SRDKV[3]}, 0x20000")
    e(f"s_mov_b32 {SRDO[0]}, s18"); e(f"s_mov_b32 {SRDO[1]}, s19")
    e(f"s_mov_b32 {SRDO[2]}, 25165824"); e(f"s_mov_b32 {SRDO[3]}, 0x20000")
    e(f"s_mov_b32 {sTHR}, {f32bits(THRESH):#x}")
    e(f"s_mov_b32 {sC[0]}, {f32bits(CSCALE):#x}"); e(f"s_mov_b32 {sC[1]}, {f32bits(CSCALE):#x}")
    e(f"s_mul_i32 {sKV0}, {sHS}, {OPT['rotH'] * 8192}"); e(f"s_mov_b32 {sPass}, 0")
    if OPT["rotW"] == 1:
        e(f"s_lshr_b32 {sKV0}, s2, 3"); e(f"s_lshl_b32 {sT1}, {sHS}, 2"); e(f"s_add_u32 {sKV0}, {sKV0}, {sT1}")
        e(f"s_and_b32 {sKV0}, {sKV0}, 7"); e(f"s_lshl_b32 {sKV0}, {sKV0}, 15")
    if OPT["rotW"] == 2:
        e(f"s_lshr_b32 {sKV0}, s2, 5"); e(f"s_add_u32 {sKV0}, {sKV0}, s2"); e(f"s_lshl_b32 {sT1}, {sHS}, 2"); e(f"s_add_u32 {sKV0}, {sKV0}, {sT1}")
        e(f"s_and_b32 {sKV0}, {sKV0}, 7"); e(f"s_lshl_b32 {sKV0}, {sKV0}, 15")
    if OPT["rotW"] == 3:
        e(f"s_lshr_b32 {sKV0}, s2, 3"); e(f"s_add_u32 {sKV0}, {sKV0}, s2"); e(f"s_lshr_b32 {sT1}, s2, 6"); e(f"s_add_u32 {sKV0}, {sKV0}, {sT1}")
        e(f"s_lshl_b32 {sT1}, {sHS}, 2"); e(f"s_add_u32 {sKV0}, {sKV0}, {sT1}")
        e(f"s_and_b32 {sKV0}, {sKV0}, 7"); e(f"s_lshl_b32 {sKV0}, {sKV0}, 15")
    if OPT["rotW"] == 7:
        e(f"s_lshr_b32 {sKV0}, {sB}, 3"); e(f"s_add_u32 {sKV0}, {sKV0}, {sB}"); e(f"s_lshr_b32 {sT1}, {sHP}, 2"); e(f"s_lshl1_add_u32 {sKV0}, {sT1}, {sKV0}")
        e(f"s_and_b32 {sT1}, {sHP}, 3"); e(f"s_add_u32 {sKV0}, {sKV0}, {sT1}"); e(f"s_lshl2_add_u32 {sKV0}, {sHS}, {sKV0}")
        e(f"s_and_b32 {sKV0}, {sKV0}, 7"); e(f"s_lshl_b32 {sKV0}, {sKV0}, 15")
    if OPT["rotW"] == 9:
        ca, cb, sb, cc, n = [int(z) for z in OPT["rotp"].split(",")]
        e(f"s_and_b32 {sKV0}, s2, 7"); e(f"s_mul_i32 {sKV0}, {sKV0}, {ca}"); e(f"s_lshr_b32 {sT1}, s2, {3 + sb}"); e(f"s_mul_i32 {sT1}, {sT1}, {cb}")
        e(f"s_add_u32 {sKV0}, {sKV0}, {sT1}"); e(f"s_mul_i32 {sT1}, {sHS}, {cc}"); e(f"s_add_u32 {sKV0}, {sKV0}, {sT1}")
        e(f"s_and_b32 {sKV0}, {sKV0}, {(1 << n) - 1}"); e(f"s_lshl_b32 {sKV0}, {sKV0}, {18 - n}")
    if OPT["rotW"] == 4:
        e(f"s_mul_i32 {sKV0}, s2, 5"); e(f"s_lshr_b32 {sT1}, s2, 5"); e(f"s_add_u32 {sKV0}, {sKV0}, {sT1}")
        e(f"s_lshl_b32 {sT1}, {sHS}, 4"); e(f"s_add_u32 {sKV0}, {sKV0}, {sT1}")
        e(f"s_and_b32 {sKV0}, {sKV0}, 31"); e(f"s_lshl_b32 {sKV0}, {sKV0}, 13")
    if OPT["rotW"] == 5:
        e(f"s_lshr_b32 {sKV0}, s2, 3"); e(f"s_lshl_b32 {sT1}, s2, 2"); e(f"s_add_u32 {sKV0}, {sKV0}, {sT1}")
        e(f"s_lshl_b32 {sT1}, {sHS}, 4"); e(f"s_add_u32 {sKV0}, {sKV0}, {sT1}")
        e(f"s_and_b32 {sKV0}, {sKV0}, 31"); e(f"s_lshl_b32 {sKV0}, {sKV0}, 13")
    if OPT["rotW"] == 6:
        e(f"s_lshl_b32 {sKV0}, s2, 1"); e(f"s_add_u32 {sKV0}, {sKV0}, {sHS}"); e(f"s_mul_i32 {sKV0}, {sKV0}, 0x9e3779b1")
        e(f"s_lshr_b32 {sKV0}, {sKV0}, 27"); e(f"s_lshl_b32 {sKV0}, {sKV0}, 13")
    e(f"s_mul_i32 {sDL}, {sHS}, 49152"); e(f"s_sub_u32 {sDL}, 131072, {sDL}")
    e(f"v_lshlrev_b32 {vTA}, 7, {vLane}")
    vT2 = V(0)
    e(f"v_lshrrev_b32 {vT2}, {int(math.log2(64 // OPT['tl']))}, {vLane}"); e(f"v_lshlrev_b32 {vT2}, 7, {vT2}")
    if OPT["wo_touch"]:
        e(f"s_mov_b32 {SRDWO[0]}, s12"); e(f"s_mov_b32 {SRDWO[1]}, s13"); e(f"s_mov_b32 {SRDWO[2]}, 8388608"); e(f"s_mov_b32 {SRDWO[3]}, 0x20000")
    if OPT["xw_touch"]:
        e(f"s_lshl_b32 {sT2}, s2, 2"); e(f"s_add_u32 {sT2}, {sT2}, {sW}"); e(f"s_lshl_b32 {sT2}, {sT2}, 13")
        e("s_mov_b32 s84, s10"); e("s_mov_b32 s85, s11"); e("s_mov_b32 s86, 8388608"); e("s_mov_b32 s87, 0x20000")
        a.bload(vTD, vTA, S(84, 4), sT2, 0)
        e("s_mov_b32 s84, s4"); e("s_mov_b32 s85, s5"); e("s_mov_b32 s86, 6291456")
        a.bload(vTD, vTA, S(84, 4), sT2, 0)
    vh, vg, vr, vc1, vc0, vql, u0, u1 = vt
    e(f"v_lshrrev_b32 {vg}, 4, {vLane}"); e(f"v_bfe_u32 {vr}, {vLane}, 2, 2"); e(f"v_and_b32 {vc0}, 3, {vLane}")
    e(f"v_lshl_add_u32 {u0}, {vg}, 3, {vr}"); e(f"v_lshlrev_b32 {u0}, 8, {u0}")
    e(f"s_lshl_b32 {sT0}, {sHS}, 13"); e(f"v_add_u32 {u0}, {sT0}, {u0}")
    e(f"v_lshl_add_u32 {u0}, {vc0}, 3, {u0}"); e(f"v_lshl_add_u32 {u0}, {vr}, 5, {u0}")
    e(f"v_and_b32 {u1}, 1, {vg}"); e(f"v_lshl_add_u32 {wa[0]}, {u1}, 7, {u0}")
    for i in range(1, 8): e(f"v_xor_b32 {wa[i]}, {32 * i}, {wa[0]}")
    e(f"v_and_b32 {vql}, 15, {vLane}")
    e(f"s_mul_i32 {sT1}, {sQH}, 12288"); e(f"s_add_u32 {sT1}, {sT1}, {XBASE}")
    e(f"v_lshlrev_b32 {u0}, 7, {vql}"); e(f"v_add_u32 {u0}, {sT1}, {u0}")
    e(f"v_lshrrev_b32 {u1}, 1, {vql}"); e(f"v_xor_b32 {u1}, {u1}, {vg}")
    e(f"v_lshl_add_u32 {xa[0][0]}, {u1}, 4, {u0}"); e(f"v_xor_b32 {xa[0][1]}, 64, {xa[0][0]}")
    for k in range(2): e(f"v_add_u32 {xa[1][k]}, 49152, {xa[0][k]}")
    e(f"v_lshlrev_b32 {vh}, {sQH}, {vg}")
    e(f"v_xor_b32 {vh}, {vh}, {vql}"); e(f"v_lshlrev_b32 {u0}, 8, {vg}")
    e(f"v_lshl_add_u32 {kvv[0]}, {vh}, 4, {u0}")
    e(f"s_cmp_eq_u32 {sQH}, 0")
    for j in range(1, 4):
        e(f"s_cselect_b32 {sT1}, {4 * j}, {8 * (j & 1)}"); e(f"s_mul_i32 {sT1}, {sT1}, 16"); e(f"v_xor_b32 {kvv[j]}, {sT1}, {kvv[0]}")

    def late_setup():
        ops = []
        E = lambda s: ops.append(lambda: e(s))
        E(f"v_lshrrev_b32 {vg}, 4, {vLane}"); E(f"v_bfe_u32 {vr}, {vLane}, 2, 2"); E(f"v_and_b32 {vc0}, 3, {vLane}")
        E(f"v_and_b32 {vql}, 15, {vLane}"); E(f"v_lshrrev_b32 {vc1}, 2, {vLane}")
        E(f"s_lshl_b32 {sT0}, {sHS}, 16"); E(f"s_add_u32 {sT1}, {sT0}, 8192")
        E(f"v_lshlrev_b32 {u0}, 8, {vc1}"); E(f"v_add_u32 {u0}, {sT1}, {u0}"); E(f"v_lshl_add_u32 {u0}, {vc0}, 3, {u0}")
        E(f"v_and_b32 {u1}, 7, {vc1}"); E(f"v_lshl_add_u32 {va[0]}, {u1}, 5, {u0}")
        for db in range(1, 8): E(f"v_xor_b32 {va[db]}, {32 * db}, {va[0]}")
        E(f"v_lshlrev_b32 {u0}, 8, {vql}"); E(f"v_add_u32 {u0}, {sT0}, {u0}")
        E(f"v_and_b32 {u1}, 1, {vg}"); E(f"v_lshl_add_u32 {u0}, {u1}, 3, {u0}")
        E(f"v_lshrrev_b32 {u1}, 1, {vg}"); E(f"v_xor_b32 {u1}, {u1}, {vql}"); E(f"v_lshl_add_u32 {ka[0]}, {u1}, 4, {u0}")
        for s in range(1, 8): E(f"v_xor_b32 {ka[s]}, {32 * s}, {ka[0]}")
        E(f"s_lshl_b32 {sM0KV}, {sQH}, 13"); E(f"s_add_u32 {sM0KV}, {sM0KV}, {sT0}")
        E(f"v_lshlrev_b32 {vOS}, 4, {vLane}"); E(f"v_add_u32 {vKW}, {sM0KV}, {vOS}"); E(f"s_add_u32 {sS}, {sM0KV}, {sDL}")
        E(f"s_lshl_b32 {sOO}, {sB}, 1"); E(f"s_add_u32 {sOO}, {sOO}, {sQH}"); E(f"s_mul_i32 {sOO}, {sOO}, {6 * 131072}")
        sSG = sHP
        if OPT["sig"]:
            sSG = S(93)
            E(f"s_bfe_u32 {sT1}, {sHP}, 0x20001"); E(f"s_lshr_b32 {sSG}, {sHP}, 3"); E(f"s_lshl1_add_u32 {sT1}, {sT1}, {sSG}")
            E(f"s_and_b32 {sSG}, {sHP}, 1"); E(f"s_lshl1_add_u32 {sSG}, {sT1}, {sSG}")
        E(f"s_lshl_b32 {sT1}, {sSG}, 1"); E(f"s_add_u32 {sT1}, {sT1}, {sHS}"); E(f"s_lshl_b32 {sT1}, {sT1}, 12"); E(f"s_add_u32 {sOO}, {sOO}, {sT1}")
        E(f"s_lshl_b32 {sT1}, {sW}, 2"); E(f"s_add_u32 {sT1}, {sT1}, {65536 if E3 else 163776}"); E(f"v_mov_b32 {vFL}, {sT1}")
        for q in range(6): E(f"v_mov_b32 {vl[q]}, 0")
        if F4:
            E(f"v_mov_b32 {vZero}, 0")
            E(f"s_lshl_b32 {sT1}, {sB}, 12"); E(f"s_lshl_b32 {sFLO}, {sSG}, 2"); E(f"s_add_u32 {sT1}, {sT1}, {sFLO}"); E(f"s_add_u32 {sFLO}, {sT1}, {FLOFF}")
            ops.append(lambda: (e(f"s_or_b32 {sT1}, s2, {sW}"), e(f"s_cselect_b32 {SRDF[2]}, 0, {FLOFF + 65536}"), e(f"s_cselect_b32 {SRDD[2]}, 0, 4")))
            E(f"s_mov_b32 {SRDF[0]}, s18"); E(f"s_mov_b32 {SRDF[1]}, s19"); E(f"s_mov_b32 {SRDF[3]}, 0x20000")
            E(f"s_mov_b32 {SRDD[0]}, s16"); E(f"s_mov_b32 {SRDD[1]}, s17"); E(f"s_mov_b32 {SRDD[3]}, 0x20000")
        return ops
    def rdK(n, pi, slot): return lambda: a.ds_read_b64(KF(n)[2 * pi:2 * pi + 2], ka[2 * (n >> 1) + pi], slot * 16384 + (n & 1) * 4096)
    def rdV(db, uu, slot): return lambda: a.ds_read_tr(VF(db)[2 * uu:2 * uu + 2], va[db], slot * 16384 + uu * 4096)

    def rdA(s, i): return [(lambda u=u: a.ds_read_tr(AF(i)[2 * u:2 * u + 2], wa[i], (s % 4) * 16384 + u * 1024)) for u in range(2)]
    def rdB(s, j):
        xs = (s // 2) % 4
        return lambda: a.ds_read_b128(BF(s % 2, j), xa[xs // 2][s % 2], (xs % 2) * 24576 + j * 2048)
    p1list = [(t, p) for t in range(4) for p in range(8)]
    def p1_ops(k):
        t, p = p1list[k]
        ops = []
        if p % 4 == 0:
            ops.append(lambda: (e(f"s_add_u32 {sP1}, {sKV0}, {t * 8192 + (p // 4) * 4096}"), e(f"s_and_b32 {sP1}, {sP1}, 262143")))
        ops.append(lambda: a.bload(P1R(t, p), kvv[p % 4], SRDKV, sP1, (p % 4) * 1024, nt))
        return ops
    p1_at = {}
    for k in range(32): p1_at.setdefault(k * OPT["p1end"] // 32, []).append(k)
    p2_at = {}
    for k in range(OPT["n2"]): p2_at.setdefault(OPT["p2s"] + (k * (OPT["p2e"] - OPT["p2s"])) // OPT["n2"], []).append(k)
    conv = []
    for J in range(3):
        for ks in range(4):
            for jj in range(2):
                j = 2 * J + jj
                X, Y, D = ACC(2 * ks, j), ACC(2 * ks + 1, j), QF(j, ks)
                for R in (X, Y):
                    for k in range(4): conv.append((J, lambda r=R[k]: e(f"v_mul_f32 {r}, {sC[0]}, {r}")))
                conv.append((J, lambda X=X, D=D: e(f"v_cvt_pk_bf16_f32 {D[0]}, {X[0]}, {X[1]}")))
                conv.append((J, lambda X=X, D=D: e(f"v_cvt_pk_bf16_f32 {D[1]}, {X[2]}, {X[3]}")))
                conv.append((J, lambda Y=Y, D=D: e(f"v_cvt_pk_bf16_f32 {D[2]}, {Y[0]}, {Y[1]}")))
                conv.append((J, lambda Y=Y, D=D: e(f"v_cvt_pk_bf16_f32 {D[3]}, {Y[2]}, {Y[3]}")))

    a.wait_for(("w", 0), ("x", 0)); e("s_barrier")
    stamp(a, 1)
    for j in range(6):
        rdB(0, j)()
        for r in rdA(0, j): r()
    for r in rdA(0, 6): r()
    late = late_setup()
    free = [g for i in range(3, 8) for g in range(6 * i + 2, 6 * i + 6)]
    for s in range(32):
        if s in (8, 16, 24): stamp(a, 1 + s // 8, 2)
        G = Gaps()
        last = s == 31
        order = [(i, j) for j in range(6) for i in range(8)] if last else [(i, j) for i in range(8) for j in range(6)]
        mf = [(lambda i=i, j=j: a.mfma16(ACC(i, j), AF(i), BF(s % 2, j), ACC(i, j) if s else 0)) for i, j in order]
        if s:
            m0_ = mf[0]; mf[0] = lambda m0_=m0_: (a.wait_for(lgkm=2), m0_())
        for u, r in enumerate(rdA(s, 7)): G.mem(u, r)
        def bar(s=s):
            if s < 31: a.wait_for(("w", s + 1), ("x", (s + 1) // 2), lgkm=0)
            else: a.wait_for(lgkm=0)
            e("s_barrier")
        G.mem(7, bar)
        if not last:
            for u, r in enumerate(rdA(s + 1, 0)): G.mem(8 + u, r)
            for i in range(1, 7):
                for u, r in enumerate(rdA(s + 1, i)): G.mem(6 * i + 6 + u, r)
            for j, g in enumerate([10, 11, 14, 15, 16, 17]): G.mem(g, rdB(s + 1, j))
        ops = []
        if s + 4 < 32: ops += dma_w(s + 4)
        c = (s - 1) // 2 + 4
        if s >= 1 and c < 16: ops += dma_x(c, (s - 1) % 2)
        for k in p1_at.get(s, []): ops += p1_ops(k)
        for k in p2_at.get(s, []):
            ops.append(lambda k=k: (e(f"s_add_u32 {sT2}, {sKV0}, {OPT['p2b'] + k * OPT['tl'] * 128}"), e(f"s_and_b32 {sT2}, {sT2}, 262143")))
            ops.append(lambda: a.bload(vTD, vT2, SRDKV, sT2, 0, " nt" if OPT["p2nt"] else ""))
        if F4 and s == 2: ops.append(lambda: a.bload(vTag, vZero, SRDF, sFLO, 0, " sc1"))
        if F4 and s == 10:
            ops.append(lambda: (a.wait_for(vTag), e(f"v_add_u32 {vTag}, 0x9e3779b9, {vTag}"), e(f"v_or_b32 {vTag}, 1, {vTag}")))
            ops.append(lambda: a.bstore(vTag, vZero, SRDD, 0, 0, " sc1"))
        if F4 and s == 12:
            ops.append(lambda: (e(f"s_cmp_eq_u32 {sW}, 0"), e(f"s_cselect_b32 {SRDD[2]}, 4, 0"), e(f"s_mov_b32 {SRDF[2]}, {FLOFF + 65536}")))
        if s == 2 and OPT["wo_touch"] == 1:
            ops.append(lambda: (e(f"s_lshl_b32 {sT2}, s2, 2"), e(f"s_add_u32 {sT2}, {sT2}, {sW}"), e(f"s_lshl_b32 {sT2}, {sT2}, 13")))
            ops.append(lambda: a.bload(vTD, vTA, SRDWO, sT2, 0))
        if last:
            for half in range(2):
                ops.append(lambda half=half: (e(f"s_add_u32 {sP1}, {sKV0}, {32768 + half * 4096}"), e(f"s_and_b32 {sP1}, {sP1}, 262143"), e(f"s_add_u32 m0, {sS}, {half * 4096}")))
                for j in range(4): ops.append(lambda j=j: a.dma(kvv[j], SRDKV, sP1, j * 1024, nt))
        if s >= 28:
            t = s - 28
            ops += [(lambda p=p: a.ds_write_b128(vKW, P1R(t, p), t * 16384 + p * 1024)) for p in range(8)]
        if s >= 30:
            ops += [rdK(n, pi, 0) for n in range(4 * (s - 30), 4 * (s - 30) + 4) for pi in range(2)]
        if last:
            for i in range(4): G.valu(4 + i, lambda i=i: e(f"v_mov_b32 {vZ[i]}, 0"))
        fr = free if not last else list(range(OPT['d4'], OPT['d4'] + 28))
        assert len(ops) <= len(fr), (s, len(ops))
        for o, g in zip(ops, [fr[(k * len(fr)) // len(ops)] for k in range(len(ops))]): G.mem(g, o)
        if s == 0:
            for k, o in enumerate(late): G.valu(8 + k // 2, o)
        if last:
            g = 0
            n = 0
            while conv and g < 48:
                J = conv[0][0]
                g = max(g, 16 * J + 18)
                if g >= 48: break
                G.valu(g, conv.pop(0)[1]); n += 1
                if n % 2 == 0: g += 1
        G.run(mf)
    stamp(a, 2); stamp(a, 5, 2)
    if OPT["only01"]: e("s_waitcnt vmcnt(0) lgkmcnt(0)"); e(f"s_cmp_eq_u32 {sHS}, 1"); e("s_cbranch_scc1 L1_end")
    e("s_nop 3")
    def xlane(op, m, tmp):
        return [lambda: e(f"v_mov_b32 {tmp}, {m}"), lambda: e("s_nop 1"), lambda: e(f"v_permlane16_swap_b32 {m}, {tmp}"), lambda: e("s_nop 1"),
                lambda: e(f"{op} {m}, {m}, {tmp}"),
                lambda: e(f"v_mov_b32 {tmp}, {m}"), lambda: e("s_nop 1"), lambda: e(f"v_permlane32_swap_b32 {m}, {tmp}"), lambda: e("s_nop 1"),
                lambda: e(f"{op} {m}, {m}, {tmp}")]
    def rowmax_ops(j, m, tmp):
        X, Y = NEG(j), TMP(j)
        return [lambda: e(f"v_max3_f32 {m}, {X[0]}, {X[1]}, {X[2]}"), lambda: e(f"v_max3_f32 {m}, {m}, {X[3]}, {Y[0]}"),
                lambda: e(f"v_max3_f32 {m}, {m}, {Y[1]}, {Y[2]}"), lambda: e(f"v_max_f32 {m}, {m}, {Y[3]}")] + xlane("v_max_f32", m, tmp)
    def negfill_ops(j, m):
        return [(lambda i=i: e(f"v_sub_f32 {NEG(j)[i]}, 0, {m}")) for i in range(4)]
    a.wait_for(lgkm=0)
    zm = [(lambda k=k: a.e(f"v_mfma_f32_32x32x16_bf16 {A(16 * k, 16)}, {vZ}, {vZ}, 0")) for k in list(range(12)) + [14, 15]]
    zm4 = [(lambda k=k: a.e(f"v_mfma_f32_32x32x16_bf16 {A(16 * k, 16)}, {vZ4}, {vZ4}, 0")) for k in list(range(12)) + [14, 15]]
    G = Gaps()
    G.spread([(o, 4) for _, o in conv], list(range(14))); conv = []
    G.run(zm)
    e("s_nop 1")
    sm = [(lambda j=j, n=n: a.mfma16(TMP(j) if n & 1 else NEG(j), KF(n), QF(j, n >> 1), (TMP(j) if n & 1 else NEG(j)) if n > 1 else 0))
          for j in range(6) for n in range(8)]

    NS = 96
    used = [0] * NS
    memg = {}
    def M(g, it, cost=4): memg.setdefault(g % NS, []).append(it); used[g % NS] += cost
    M(5, ("kill",), 12); M(6, ("m0", 0)); M(7, ("bar",), 8)
    for db in range(8): M(8 + db, ("v", db, 0)); M(12 + db, ("v", db, 1))
    for n in range(8): M(80 + n, ("k", n, 0)); M(84 + n, ("k", n, 1))
    dg = OPT["dg0"]
    for k in range(4): M(dg + 2 * k, ("dma", 0, k)); M(dg + 10 + 2 * k, ("dma", 1, k))
    M(dg + 8, ("m0", 1)); M(dg + 19, ("adv",), 12)
    for g in (95, 3, 23, 27): used[g] += 4
    valg = {}
    def place(j, seq, lo, hi):
        for L in range(8, 41, 4):
            u2 = list(used); g = lo; out = []
            for op, c, mn in seq:
                g = max(g, mn)
                while g <= hi and u2[g % NS] + c > L: g += 1
                if g > hi: break
                u2[g % NS] += c; out.append((op, g))
            else:
                used[:] = u2
                for op, g in out: valg.setdefault(g, []).append((j, op))
                return dict(out)
        raise Exception("no fit")
    pos = {}
    for j in range(6):
        b = 16 * j
        crit = [("e0", 8, b + 8), ("e1", 8, 0), ("e2", 8, 0), ("c0", 4, 0), ("e3", 8, 0), ("e4", 8, b + 10), ("c1", 4, 0), ("e5", 8, 0), ("e6", 8, 0),
                ("c2", 4, 0), ("e7", 8, 0), ("a0", 4, 0), ("c3", 4, 0)]
        pos[j] = place(j, crit, b + 8, b + 22)
    for j in range(6):
        b = 16 * j
        place(j, [(f"a{k}", 4, pos[j][f"e{k}"] + 1) for k in range(1, 8)], b + 9, b + 30)
    if OPT["verbose"]: print("gap load", used, "over", sum(max(0, x - 12) for x in used))
    def sm_op(j, op):
        Sx, Px, k = SB(j % 2), PB(j % 2), int(op[1])
        if op[0] == "e": e(f"v_exp_f32 {Sx[k]}, {Sx[k]}")
        if op[0] == "a": e(f"v_add_f32 {vl[j]}, {vl[j]}, {Sx[k]}")
        if op[0] == "c": e(f"v_cvt_pk_bf16_f32 {Px[k]}, {Sx[2 * k]}, {Sx[2 * k + 1]}")
    tail = [(g, j, op) for g in sorted(valg) if g >= NS for j, op in valg[g]]
    tail_e = {(j, int(op[1])) for g, j, op in tail if op[0] == "e"}
    init = [(lambda j=j, k=k: e(f"v_mov_b32 {SB(j % 2)[k]}, {'0xf149f2ca' if (j, k) in tail_e else 0}")) for j in (4, 5) for k in range(8)]
    init += [(lambda k=k: e(f"v_mov_b32 {PB(1)[k]}, 0")) for k in range(4)]

    G = Gaps()
    for j in range(5):
        G.spread([(o, 4) for o in rowmax_ops(j, vt[0], vt[1]) + negfill_ops(j, vt[0])], list(range(8 * j + 9, min(48, 8 * j + 17))))
    G.spread([(o, 4) for o in init[0:8]], list(range(26, 34)))
    G.spread([(o, 4) for o in init[8:16]], list(range(42, 48)))
    sSL = [S(94 + u) for u in range(4)]
    def stream_init():
        e(f"s_sub_u32 {sCnt}, 0, {sQH}")
        e(f"s_lshl_b32 {sT0}, {sQH}, 13"); e(f"s_add_u32 {sKVO}, {sKV0}, 49152"); e(f"s_sub_u32 {sKVO}, {sKVO}, {sT0}"); e(f"s_and_b32 {sKVO}, {sKVO}, 262143")
        e(f"s_add_u32 {sKVO2}, {sKVO}, 4096"); e(f"s_mov_b32 {sIT}, 0")
    def x5_ops():
        ops = []
        for p in range(8):
            if p % 4 == 0: ops.append(lambda p=p: (e(f"s_add_u32 {sP1}, {sKV0}, {5 * 8192 + (p // 4) * 4096}"), e(f"s_and_b32 {sP1}, {sP1}, 262143")))
            ops.append(lambda p=p: e(f"buffer_load_dwordx4 {X5(p)}, {kvv[p % 4]}, {SRDKV}, {sP1} offen" + (f" offset:{(p % 4) * 1024}" if p % 4 else "") + nt))
        return ops
    for k, o in enumerate(x5_ops()): G.mem(OPT["x5g"] + k // 2, o)
    G.mem(6, stream_init)
    if OPT["wo_touch"] == 3:
        G.mem(7, lambda: (e(f"s_lshl_b32 {sT2}, s2, 2"), e(f"s_add_u32 {sT2}, {sT2}, {sW}"), e(f"s_lshl_b32 {sT2}, {sT2}, 13")))
        G.mem(8, lambda: a.bload(vTD, vTA, SRDWO, sT2, 0))
    for u in range(4):
        G.mem(9 + u, lambda u=u: (e(f"s_sub_u32 {sT0}, {u}, {sQH}"), e(f"s_and_b32 {sT0}, {sT0}, 3"), e(f"s_lshl_b32 {sT0}, {sT0}, 14"), e(f"s_add_u32 {sSL[u]}, {sM0KV}, {sT0}")))
    G.mem(13, lambda: (e(f"s_mov_b32 {sSL0}, {sSL[0]}"), e(f"s_cmp_lg_u32 {sQH}, 0"), e("s_cselect_b64 vcc, -1, 0")))
    G.valu(14, lambda: e(f"v_add_u32 {vKW}, {sDL}, {vKW}"))
    G.run(sm)
    e("s_nop 7")
    for o in rowmax_ops(5, vt[0], vt[1]) + negfill_ops(5, vt[0]) + init[16:]: o()
    e("s_nop 1")

    def dma_kv(slot):
        ops = []
        for half in range(2):
            ops.append(lambda half=half: (e(f"s_add_u32 m0, {slot}, {half * 4096}"), e("s_nop 0")))
            for j in range(4):
                ops.append(lambda j=j, half=half: a.dma(kvv[j], SRDKV, sKVO2 if half else sKVO, j * 1024, nt))
        ops.append(lambda: (e(f"s_add_u32 {sKVO}, {sKVO}, 8192"), e(f"s_and_b32 {sKVO}, {sKVO}, 262143"), e(f"s_add_u32 {sKVO2}, {sKVO}, 4096")))
        return ops
    PVg = lambda j: [(lambda db=db: a.mfma16(OA(db, j), VF(db), PB(j % 2), OA(db, j))) for db in range(8)]
    lblc = [0]
    def only(kind, f):
        lblc[0] += 1; L = f"L1_only{lblc[0]}"
        e(f"s_cbranch_vcc{'z' if kind else 'nz'} {L}"); f(); a.label(L)
    def dma_half(u, half):
        e(f"s_add_u32 m0, {sSL[u]}, {half * 4096}"); e("s_nop 0")
        for j in range(4): e(f"buffer_load_dwordx4 {kvv[j]}, {SRDKV}, {sKVO2 if half else sKVO} offen" + (f" offset:{j * 1024}" if j else "") + nt + " lds")
    def x5_write():
        for p in range(8): e(f"ds_write_b128 {vKW}, {X5(p)}" + (f" offset:{p * 1024}" if p else ""))
    def tileB(u, vs=None, ks=None, dma=True, adv=True, kill=False, vm=OPT["bwait"], extra={}, nok=False):
        vs = u if vs is None else vs
        ks = (u + 1) % 4 if ks is None else ks
        mf = []
        for j in range(6):
            for n in range(8):
                D = SB(j % 2)[4 * (n & 1):4 * (n & 1) + 4]
                mf.append(lambda n=n, D=D, j=j: a.mfma16(D, KF(n), QF(j, n >> 1), D if n > 1 else NEG(j)))
            mf += PVg((j + 5) % 6)
        for idx, regs in ((0, [KF(n) for n in range(4)]), (4, [KF(n) for n in range(8)]), (24, [VF(d) for d in range(4)]), (28, [VF(d) for d in range(8)])):
            mf[idx] = (lambda f=mf[idx], regs=regs: (a.wait_for(*regs), f()))
        for g in range(NS):
            if not OPT["bnoc"] & 1: mf[g]()
            for it in memg.get(g, []):
                k = it[0]
                if OPT["bnoc"] & 2 and k in "vk": continue
                if k == "kill" and kill: e(f"s_cmp_lt_u32 {sCnt}, 22"); e(f"s_cselect_b32 {SRDKV[2]}, {NR}, 0"); e(f"s_add_u32 {sCnt}, {sCnt}, 1")
                if k == "m0" and dma: e(f"s_add_u32 m0, {sSL[u]}, {it[1] * 4096}")
                if k == "bar":
                    if vm is not None: a.wait(vm=vm)
                    if kill and OPT["thr"]:
                        lblc[0] += 1
                        e(f"s_bitcmp1_b32 s2, 0"); e(f"s_cbranch_scc{OPT['thrp']} L1_thr{lblc[0]}"); e(f"s_waitcnt vmcnt({OPT['thr']})"); a.label(f"L1_thr{lblc[0]}")
                    e("s_barrier")
                if k == "v": rdV(it[1], it[2], vs)()
                if k == "k" and not nok: rdK(it[1], it[2], ks)()
                if k == "dma" and dma: a.dma(kvv[it[2]], SRDKV, sKVO2 if it[1] else sKVO, it[2] * 1024, nt)
                if k == "adv" and adv: e(f"s_add_u32 {sKVO}, {sKVO}, 8192"); e(f"s_and_b32 {sKVO}, {sKVO}, 262143"); e(f"s_add_u32 {sKVO2}, {sKVO}, 4096")
            for f in extra.get(g, []): f()
            for j, op in valg.get(g + NS, []) + valg.get(g, []):
                if not OPT["bnoc"] & 4: sm_op(j, op)
        if OPT["bnoc"] & 1: a.wait(lgkm=0)
    stamp(a, 3)
    shift = lambda op, g0: {g0 + k: [lambda r=r: e(f"{op} {r}, {r}, {sDL}" if op == "v_subrev_u32" else f"{op} {r}, {sDL}, {r}")] for k, r in enumerate(ka + va)}
    shift = lambda op, g0: {g0 + k: [lambda r=r: e(f"{op} {r}, {sDL}, {r}")] for k, r in enumerate(ka + va)}
    e("s_waitcnt lgkmcnt(0)"); a.lds = []
    a.label("L1_tile0")
    tileB(0, dma=False, vm=None, extra={dg: [lambda: only(0, lambda: dma_half(0, 0))], dg + 10: [lambda: only(0, lambda: dma_half(0, 1))]})
    K2 = kernel2(a) if OPT["fuse"] else None
    x1, x2 = {}, {}
    if F4:
        early = next(K2)
        x1 = {50: [lambda: e(f"buffer_load_dword {vTag}, {vZero}, {SRDD}, 0 offen sc1")]}
        gl = [(x1, g) for g in range(30, 94, 2)] + [(x2, g) for g in range(30, 94, 2)]
        for k, un in enumerate(early):
            x, g = gl[k * len(gl) // len(early)]
            x.setdefault(g, []).append(lambda un=un: [e(t) for t in un])
    tileB(1, vm=None, extra=x1)
    tileB(2, vm=None, extra=x2)
    tileB(3, ks=0, vm=32, extra=shift("v_add_u32", 44))
    tileB(0, vs=0, ks=0, dma=False, adv=False, vm=32,
          extra={29: [lambda: only(0, x5_write)], 45: [lambda: (a.wait(vm=24, lgkm=0), e("s_barrier"))], 46: [lambda: only(1, x5_write)],
                 50: [lambda: only(1, lambda: dma_half(0, 0))], 60: [lambda: only(1, lambda: dma_half(0, 1))],
                 62: [lambda: (e(f"s_cmp_eq_u32 {sQH}, 0"), e(f"s_cselect_b32 {sSL[0]}, {sSL0}, {sS}"))]})
    tileB(0, vs=0, ks=0, dma=False, adv=False, vm=24, extra=shift("v_subrev_u32", 44))
    def bodyB():
        for u in range(4): tileB(u, kill=True, extra={40: [lambda: e(f"s_mov_b32 {sSL[0]}, {sSL0}")]} if u == 1 else {})
    steady = list(a.lds)
    a.label("L1_loopB")
    bodyB()
    assert a.lds == steady
    e(f"s_add_u32 {sIT}, {sIT}, 1"); e(f"s_cmp_lt_u32 {sIT}, 6"); e("s_cbranch_scc1 L1_loopB")
    x30, x31 = {}, {}
    if E3:
        fl4 = next(K2)
        for k, o in enumerate(fl4[0]): x30.setdefault(OPT["e30"] + 2 * k, []).append(o)
        for k, o in enumerate(fl4[1] + fl4[2]): x31.setdefault(OPT["e31"] + 2 * k, []).append(o)
    tileB(0, dma=False, adv=False, vm=16, extra=x30)
    tileB(1, dma=False, adv=False, vm=8 if E3 else 0, nok=True, extra=x31)
    stamp(a, 4)
    for g, j, op in tail: sm_op(j, op)
    e("s_nop 1")
    def lsum_ops(j):
        sp = "s[98:99]" if j == 0 else "s[100:101]"
        ops = xlane("v_add_f32", vl[j], vt[1]) + [lambda: e(f"v_cmp_ngt_f32 {sp}, {sTHR}, {vl[j]}"), lambda: e(f"v_rcp_f32 {R2(j)[0]}, {vl[j]}"),
                                                  lambda: e(f"v_rcp_f32 {R2(j)[1]}, {vl[j]}")]
        if j: ops.append(lambda: e("s_or_b64 s[98:99], s[98:99], s[100:101]"))
        return ops
    G = Gaps()
    G.spread([(o, 4) for j in range(2) for o in lsum_ops(j)], list(range(0, 8)))
    G.run(PVg(5))
    for j in range(2, 6):
        for o in lsum_ops(j): o()
    e("s_cmp_lg_u64 s[98:99], 0"); e(f"s_cselect_b32 {sT0}, 1, 0"); e(f"s_andn2_b32 {sT0}, {sT0}, {sPass}")
    if OPT["bnoc"]: e(f"s_mov_b32 {sT0}, 0")
    e(f"v_mov_b32 {vt[1]}, {sT0}"); e(f"ds_write_b32 {vFL}, {vt[1]}"); a.lds.append(set())
    if F4:
        e(f"v_readfirstlane_b32 s93, {vTag}"); e(f"s_or_b32 s93, s93, {sW}"); e("s_cbranch_scc0 L1_tagslow")
        a.label("L1_tagok")
        e(f"ds_write_b32 {vFL}, {vTag} offset:16"); a.lds.append(set())
    ostf = (" " + OPT["ost"].replace("+", " ")) if OPT["ost"] else ""
    fill = []
    cnt = [0]
    def ev(t):
        e(t); cnt[0] += 1
        if fill and cnt[0] % (OPT["fint"] if F4 else 3) == 0: fill.pop(0)()
    for j in range(6):
        if j == 1:
            a.wait(lgkm=0, vm=None if E3 else 4); e("s_barrier")
            if F4: vZ = V(244, 4)
            e(f"v_and_b32 {vt[0]}, 0xfffffff0, {vFL}"); a.ds_read_b128(vZ, vt[0], 0)
            if F4: e(f"ds_read_b32 {vTag}, {vt[0]} offset:16"); a.lds.append(vTag.regs())
        if j == 2:
            a.wait(lgkm=0)
            e(f"v_or3_b32 {vt[0]}, {vZ[0]}, {vZ[1]}, {vZ[2]}"); e(f"v_or_b32 {vt[0]}, {vt[0]}, {vZ[3]}"); e("s_nop 0")
            e(f"v_readfirstlane_b32 {sT1}, {vt[0]}"); e(f"s_cmp_lg_u32 {sT1}, 0")
            if not (OPT["only01"] or OPT["bnoc"] or OPT["kvskip"] or OPT["askip"]): e("s_cbranch_scc1 L1_fallback")
            if K2 and OPT["fuse"] < 3: next(K2); fill = next(K2)
            if E3: next(K2); fill = [] if OPT["w3l"] else fl4[3]
            elif F4:
                fl4 = next(K2)
                if OPT["fo"] == 2: fill = fl4
            if OPT["fuse"] == 3:
                e(f"s_mov_b32 {SRDWO[0]}, s18"); e(f"s_mov_b32 {SRDWO[1]}, s19"); e(f"s_mov_b32 {SRDWO[2]}, {FLOFF + 65536}"); e(f"s_mov_b32 {SRDWO[3]}, 0x20000")
                e(f"s_lshl_b32 {sT1}, {sB}, 12"); e(f"s_lshl_b32 {sT2}, {sHP}, 2"); e(f"s_add_u32 {sT1}, {sT1}, {sT2}"); e(f"s_add_u32 {sP1}, {sT1}, {FLOFF}")
                e(f"v_lshlrev_b32 {vTA}, 8, {vLane}"); e(f"v_mov_b32 {vTD}, 0x5eedf1a6")
        if E3 and j == OPT["pj"]: next(K2)
        e(f"s_add_u32 {sT0}, {sOO}, {j * 131072}")
        for m in range(4):
            T = V(208 + 8 * (m % 2), 8); D = V(224 + 4 * (m % 2), 4)
            for i in range(8): ev(f"v_accvgpr_read_b32 {T[i]}, {OA(2 * m + (i >> 2), j)[i & 3]}")
            for i in range(4): ev(f"v_pk_mul_f32 {T[2*i:2*i+2]}, {T[2*i:2*i+2]}, {R2(j)}")
            for i in range(4): ev(f"v_cvt_pk_bf16_f32 {D[i]}, {T[2*i]}, {T[2*i+1]}")
            a.bstore(D, vOS, SRDO, sT0, m * 1024, ostf)
        if F4: zm4[2 * j](); zm4[2 * j + 1]()
    assert not fill
    if E3 and OPT["tp"]:
        def signal(t):
            e("s_barrier")
            e(f"s_cmp_lg_u32 {sW}, 0"); e(f"s_cbranch_scc1 L1_nosig{t}")
            e("s_mov_b64 exec, 0xffff")
            e(f"buffer_store_dword v38, v179, {SRDF}, {sFLO} offen sc1")
            e("s_mov_b64 exec, -1")
            a.label(f"L1_nosig{t}")
        K2.send((signal, fl4[3] if OPT["w3l"] else [], lambda: stamp(a, 5), lambda: dump_stamps(a, 6, 0x4000000, sW, vt[0], vt[1], last=False)))
    elif F4:
        e(f"v_lshlrev_b32 v179, 8, {vLane}")
        if OPT["fo"] == 0:
            for o in fl4: o()
        if not E3: next(K2)
        a.wait(vm=32 if OPT["fo"] == 0 else 0); e("s_barrier")
        stamp(a, 5)
        e(f"s_cmp_lg_u32 {sW}, 0"); e("s_cbranch_scc1 L1_nosig")
        e("s_mov_b64 exec, 0xffff")
        e(f"buffer_store_dword v38, v179, {SRDF}, {sFLO} offen sc1")
        e("s_mov_b64 exec, -1")
        a.label("L1_nosig")
        if E3 and OPT["pj"] == 6: next(K2)
        if E3 and OPT["w3l"]:
            for o in fl4[3]: o()
        if E3 and OPT["pj"] == 6: a.wait(vm=8 if OPT["w3l"] else 0)
        K2.send(lambda: dump_stamps(a, 6, 0x4000000, sW, vt[0], vt[1], last=False))
    if F4: pass
    elif OPT["fuse"] == 3:
        a.wait(vm=0); e("s_barrier")
        stamp(a, 5)
        e(f"s_cmp_lg_u32 {sW}, 0"); e("s_cbranch_scc1 L1_nosig")
        e("s_mov_b64 exec, 0xffff")
        e(f"buffer_store_dword {vTD}, {vTA}, {SRDWO}, {sP1} offen sc1")
        e("s_mov_b64 exec, -1")
        a.label("L1_nosig")
        next(K2); fill = next(K2)
        K2.send((fill, lambda: dump_stamps(a, 6, 0x4000000, sW, vt[0], vt[1], last=False)))
    elif K2:
        stamp(a, 5)
        K2.send((sB, lambda: dump_stamps(a, 6, 0x4000000, sW, vt[0], vt[1], last=False)))
    else:
        dump_stamps(a, 6, 0x4000000, sW, vt[0], vt[1])
    a.label("L1_end"); e("s_endpgm")
    if F4:
        next(K2)
        a.label("L1_tagslow")
        e("s_mov_b32 s75, 0")
        a.label("L1_tagloop")
        e("s_sleep 8"); e(f"buffer_load_dword {vTag}, {vZero}, {SRDD}, 0 offen sc1"); e("s_waitcnt vmcnt(0)")
        e(f"v_readfirstlane_b32 s93, {vTag}"); e("s_add_u32 s75, s75, 1"); e("s_cmp_lg_u32 s93, 0"); e("s_cbranch_scc1 L1_tagok")
        e("s_cmp_lt_u32 s75, 0x40000"); e("s_cbranch_scc1 L1_tagloop")
        e("s_branch L1_tagok")
    a.label("L1_fallback")
    a.lds = []; a.vm = []
    e("s_waitcnt vmcnt(0) lgkmcnt(0)"); e("s_barrier")
    e(f"s_mov_b32 {sPass}, 1"); e(f"s_mov_b32 {SRDKV[2]}, {NR}")
    for q in range(6): e(f"v_mov_b32 {vl[q]}, 0xff800000")
    e(f"s_mov_b32 {sKVO}, 0"); e(f"s_mov_b32 {sKVO2}, 4096"); e(f"s_mov_b32 {sIT}, 0")
    a.label("L1_fb_loop")
    for o in dma_kv(sM0KV): o()
    e("s_waitcnt vmcnt(0)"); e("s_barrier")
    for n in range(8):
        for pi in range(2): rdK(n, pi, 0)()
    for f in sm: f()
    e("s_nop 15")
    for j in range(6):
        for o in rowmax_ops(j, vt[0], vt[1]): o()
        e(f"v_max_f32 {vl[j]}, {vl[j]}, {vt[0]}")
    e("s_barrier")
    e(f"s_add_u32 {sIT}, {sIT}, 1"); e(f"s_cmp_lt_u32 {sIT}, 32"); e("s_cbranch_scc1 L1_fb_loop")
    e(f"s_mov_b32 {sKVO}, {sKV0}"); e(f"s_add_u32 {sKVO2}, {sKVO}, 4096")
    for t in range(4):
        e(f"s_add_u32 {sT0}, {sM0KV}, {t * 16384}")
        for o in dma_kv(sT0): o()
    for o in dma_kv(sS): o()
    for o in x5_ops(): o()
    e(f"s_mov_b32 {sSL[0]}, {sSL0}")
    for j in range(6):
        for o in negfill_ops(j, vl[j]): o()
        e(f"v_mov_b32 {vl[j]}, 0")
    if not F4:
        for i in range(4): e(f"v_mov_b32 {vZ[i]}, 0")
    for o in init: o()
    e("s_nop 1")
    for f in (zm4 if F4 else zm): f()
    stream_init()
    e("s_waitcnt vmcnt(0)"); e("s_barrier")
    for n in range(8):
        for pi in range(2): rdK(n, pi, 0)()
    e("s_waitcnt lgkmcnt(0)"); e("s_nop 15")
    e("s_branch L1_tile0")
    return a.text()

def kernel2(a):
    fused = a is not None
    if not fused: a = Asm()
    e = a.e
    SRDWO, SRDOW, SRDOUT, SRDDBG = S(20, 4), S(24, 4), S(28, 4), S(80, 4)
    sW, sRB, sCB, sT0, sT1, sT2, sIT = S(36), S(46), S(47), S(48), S(49), S(50), S(45)
    sWOo, sOo, sM0 = S(76), S(77), S(78)
    vLane = V(1); vt = [V(i) for i in range(2, 10)]
    wa = [V(10 + k) for k in range(8)]
    wv = [V(18 + k) for k in range(8)]
    ov = [V(26 + k) for k in range(6)]
    ra = [V(32 + k) for k in range(3)]
    vRW, vOut = V(35), V(36)
    AC = lambda i, j: A(4 * (j * 8 + i), 4)
    AF = lambda i: V(40 + 4 * i, 4)
    BF = lambda sl, j: V(72 + 24 * sl + 4 * j, 4)
    REG = 36864
    osc = " sc1" if (fused and OPT["osc"]) else ""
    F4 = fused and OPT["fuse"] == 4
    if F4:
        sT2, sM0 = S(75), S(74)
        vt[0] = V(4)
        SRDF, sCL, sMK, sPC, vPD, vTg, vPA = S(84, 4), S(79), S(50), S(75), V(37), V(38), V(39)
    E3 = F4 and OPT["fo"] == 3
    if E3: sCL = S(92); REG = 8192
    TP = E3 and OPT["tp"]
    SLB = [131072, 32768, 98304, 0] if E3 else [0, 8192, 16384, 24576]
    wl = [V(168 + k) for k in range(8)]; rw = [V(176 + k) for k in range(3)]
    mark0 = len(a.out)
    if not fused:
        a.k2 = 1
        a.label("mha_oproj_kernel")
        e("s_cmp_ge_u32 s2, 256"); e("s_cbranch_scc1 L2_end")
        e("s_load_dwordx16 s[4:19], s[0:1], 0")
        e(f"v_lshrrev_b32 {vt[0]}, 6, v0"); e(f"v_and_b32 {vLane}, 63, v0")
        e(f"v_readfirstlane_b32 {sW}, {vt[0]}")
    e(f"s_and_b32 {sT2}, s2, 7"); e(f"s_lshr_b32 {sT0}, s2, 3")
    if OPT["map2"] in (0, 2):
        e(f"s_lshr_b32 {sT1}, {sT2}, 1"); e(f"s_lshl_b32 {sT1}, {sT1}, 3"); e(f"s_and_b32 {sRB}, {sT0}, 7")
        e(f"s_add_u32 {sRB}, {sT1}, {sRB}")
        e(f"s_and_b32 {sT1}, {sT2}, 1"); e(f"s_lshl_b32 {sT1}, {sT1}, 2"); e(f"s_lshr_b32 {sCB}, {sT0}, 3"); e(f"s_add_u32 {sCB}, {sCB}, {sT1}")
        if OPT["map2"] == 2:
            e(f"s_lshl_b32 {sCB}, {sCB}, 2"); e(f"s_lshr_b32 {sCB}, {OPT['cbtab']}, {sCB}"); e(f"s_and_b32 {sCB}, {sCB}, 7")
    else:
        e(f"s_lshl_b32 {sT1}, {sT2}, 2"); e(f"s_and_b32 {sT2}, {sT0}, 3"); e(f"s_add_u32 {sRB}, {sT1}, {sT2}")
        e(f"s_lshr_b32 {sCB}, {sT0}, 2")
        if OPT["cbrot"]: e(f"s_add_u32 {sCB}, {sCB}, {OPT['cbrot']}"); e(f"s_and_b32 {sCB}, {sCB}, 7")
    t0, t1, t2, t3 = wa[:4]
    e(f"v_lshrrev_b32 {t2}, 4, {vLane}"); e(f"v_and_b32 {t1}, 15, {vLane}")
    e(f"v_lshlrev_b32 {t3}, 1, {t2}"); e(f"v_xor_b32 {t1}, {t1}, {t3}")
    e(f"v_lshlrev_b32 {t0}, 11, {t2}"); e(f"v_lshl_add_u32 {wv[0]}, {t1}, 4, {t0}")
    e(f"v_xor_b32 {t1}, 128, {wv[0]}")
    for m in range(1, 8): e(f"v_add_u32 {wv[m]}, {m * 8192 - (m % 4) * 1024}, {t1 if m & 1 else wv[0]}")
    if OPT["wvx"] == 1:
        e(f"v_and_b32 {t1}, 15, {vLane}"); e(f"v_lshlrev_b32 {t0}, 14, {t2}"); e(f"v_lshl_add_u32 {wv[0]}, {t1}, 4, {t0}")
        for m in range(1, 8): e(f"v_add_u32 {wv[m]}, {m * 2048 - (m % 4) * 1024}, {wv[0]}")
    if OPT["wvx"] == 5:
        e(f"v_and_b32 {t1}, 15, {vLane}"); e(f"v_lshlrev_b32 {t0}, 12, {t2}"); e(f"v_lshl_add_u32 {wv[0]}, {t1}, 4, {t0}")
        for m in range(1, 8): e(f"v_add_u32 {wv[m]}, {((m & 1) + 8 * (m >> 1)) * 2048 - (m % 4) * 1024}, {wv[0]}")
    if OPT["wvx"] == 6:
        e(f"v_and_b32 {t1}, 15, {vLane}"); e(f"v_lshlrev_b32 {t0}, 13, {t2}"); e(f"v_lshl_add_u32 {wv[0]}, {t1}, 4, {t0}")
        for m in range(1, 8): e(f"v_add_u32 {wv[m]}, {((m & 3) + 16 * (m >> 2)) * 2048 - (m % 4) * 1024}, {wv[0]}")
    if OPT["wvx"] in (7, 8, 9):
        r_ = {7: 0, 8: 2, 9: 2}[OPT["wvx"]]
        e(f"s_add_u32 {sT0}, {sCB}, {r_}"); e(f"s_and_b32 {sT0}, {sT0}, 7"); e(f"s_add_u32 {sT0}, {sT0}, 8"); e(f"s_sub_u32 {sT0}, {sT0}, {sCB}"); e(f"s_lshl_b32 {sT0}, {sT0}, 7")
        e(f"v_bfe_u32 {t1}, {vLane}, 3, 1"); e(f"v_mul_lo_u32 {t1}, {t1}, {sT0}"); e(f"v_and_b32 {t3}, 7, {vLane}"); e(f"v_lshl_add_u32 {t1}, {t3}, 4, {t1}")
        e(f"s_lshl_b32 {sT0}, {sCB}, 7"); e(f"s_sub_u32 {sT0}, 4096, {sT0}"); e(f"v_add_u32 {t1}, {sT0}, {t1}")
        e(f"v_lshlrev_b32 {t0}, {14 if OPT['wvx'] == 9 else 11}, {t2}"); e(f"v_add_u32 {wv[0]}, {t1}, {t0}")
        for m in range(1, 8): e(f"v_add_u32 {wv[m]}, {m * (2048 if OPT['wvx'] == 9 else 8192) - (m % 4) * 1024}, {wv[0]}")
    if OPT["wvx"] == 2:
        e(f"v_and_b32 {t1}, 7, {vLane}"); e(f"v_lshrrev_b32 {t0}, 3, {vLane}"); e(f"v_lshlrev_b32 {t0}, 11, {t0}"); e(f"v_lshl_add_u32 {wv[0]}, {t1}, 4, {t0}")
        for m in range(1, 8): e(f"v_add_u32 {wv[m]}, {(m >> 1) * 16384 + (m & 1) * 128 - (m % 4) * 1024 + 4096}, {wv[0]}")
        e(f"v_add_u32 {wv[0]}, 4096, {wv[0]}")
    if OPT["wvx"] == 3:
        e(f"v_and_b32 {t1}, 15, {vLane}"); e(f"v_lshlrev_b32 {t0}, 11, {t2}"); e(f"v_lshl_add_u32 {wv[0]}, {t1}, 4, {t0}")
        for m in range(1, 8): e(f"v_add_u32 {wv[m]}, {m * 8192 - (m % 4) * 1024}, {wv[0]}")
    if OPT["wvx"] == 4:
        e(f"v_lshlrev_b32 {wv[0]}, 4, {vLane}"); e(f"s_mul_i32 {sT0}, {sCB}, {8192 - 256}"); e(f"v_add_u32 {wv[0]}, {sT0}, {wv[0]}")
        for m in range(1, 8): e(f"v_add_u32 {wv[m]}, {m * 1024 - (m % 4) * 1024}, {wv[0]}")
    e(f"s_mul_i32 {sM0}, {sW}, {REG}")
    e(f"s_lshl_b32 {sWOo}, {sW}, {20 if OPT['sig'] else 21}"); e(f"s_lshl_b32 {sOo}, {sW}, 15")
    def ovs():
        e(f"s_mul_i32 {sT0}, {sRB}, 786432"); e(f"v_lshlrev_b32 {vt[0]}, 4, {vLane}")
        e(f"v_add_u32 {ov[0]}, {sT0}, {vt[0]}")
        for j in range(1, 6): e(f"v_add_u32 {ov[j]}, {j * 131072}, {ov[0]}")
    if not fused:
        ovs()
        e("s_waitcnt lgkmcnt(0)")
        stamp(a, 0)
    e(f"s_lshl_b32 {sT0}, {sCB}, 8")
    e(f"s_add_u32 {SRDWO[0]}, s12, {sT0}"); e(f"s_addc_u32 {SRDWO[1]}, s13, 0")
    e(f"s_sub_u32 {SRDWO[2]}, 8388608, {sT0}"); e(f"s_mov_b32 {SRDWO[3]}, 0x20000")
    e(f"s_mov_b32 {SRDOW[0]}, s18"); e(f"s_mov_b32 {SRDOW[1]}, s19")
    e(f"s_mov_b32 {SRDOW[2]}, 25165824"); e(f"s_mov_b32 {SRDOW[3]}, 0x20000")
    if OPT["k2skip"] & 1: e(f"s_mov_b32 {SRDWO[2]}, 0")
    if OPT["k2skip"] & 2: e(f"s_mov_b32 {SRDOW[2]}, 0")
    def issue_w(slot):
        ops = []
        for h in range(2):
            ops.append(lambda h=h: e(f"s_add_u32 m0, {sM0}, {SLB[slot] + h * 4096}"))
            for m in range(4): ops.append(lambda m=m, h=h: a.dma(wv[4 * h + m], SRDWO, sWOo, m * 1024, tag=("w", slot)))
        ops.append(lambda: e(f"s_add_u32 {sWOo}, {sWOo}, 65536"))
        return ops
    def issue_o(slot):
        ops = [(lambda j=j: a.bload(BF(slot, j), ov[j], SRDOW, sOo, 0, osc)) for j in range(6)]
        ops.append(lambda: e(f"s_add_u32 {sOo}, {sOo}, 1024"))
        return ops
    def run(ops):
        for o in ops:
            n = len(a.out); o()
            if "m0" in a.out[-1]: e("s_nop 0")
    def wa_setup():
        e(f"v_lshrrev_b32 {vg}, 4, {vLane}"); e(f"v_lshrrev_b32 {vr}, 2, {vLane}"); e(f"v_and_b32 {vc}, 3, {vLane}")
        e(f"v_and_b32 {u1}, 7, {vr}"); e(f"v_lshlrev_b32 {u0}, 8, {vr}")
        e(f"v_add_u32 {u0}, {sM0}, {u0}"); e(f"v_lshl_add_u32 {u0}, {vc}, 3, {u0}"); e(f"v_lshl_add_u32 {u0}, {u1}, 5, {u0}")
        if E3: e(f"v_add_u32 {u0}, 98304, {u0}")
        for d in range(4):
            e(f"s_add_u32 {sT0}, {sW}, {d}"); e(f"s_and_b32 {sT0}, {sT0}, 3"); e(f"s_lshl_b32 {sT0}, {sT0}, 6")
            e(f"v_xor_b32 {wa[2*d]}, {sT0}, {u0}"); e(f"v_xor_b32 {wa[2*d+1]}, 32, {wa[2*d]}")
    vg, vr, vc, u0, u1 = vt[3:8]
    if F4:
        ovs(); wa_setup()
        for i in range(4): e(f"v_mov_b32 v{252 + i}, 0")
        def scl():
            e(f"s_lshr_b32 {sT0}, {sRB}, 1"); e(f"s_lshl_b32 {sT0}, {sT0}, 4"); e(f"s_lshl_b32 {sT1}, {sCB}, 1"); e(f"s_add_u32 {sT0}, {sT0}, {sT1}")
            e(f"s_and_b32 {sT1}, {sRB}, 1"); e(f"s_add_u32 {sT0}, {sT0}, {sT1}"); e(f"s_lshl_b32 {sT0}, {sT0}, 8"); e(f"s_lshl_b32 {sT1}, {sW}, 4")
            e(f"s_add_u32 {sT0}, {sT0}, {sT1}"); e(f"s_add_u32 {sCL}, {sT0}, {FLOFF}")
        if E3: scl()
        lines = [t[1:] for t in a.out[mark0:]]; del a.out[mark0:]
        units = []
        for t in lines:
            if t.startswith(("s_addc", "s_cselect")): units[-1].append(t)
            else: units.append([t])
        yield units
        fills = issue_w(0) + issue_w(1) + issue_w(2) + issue_w(3)
        if E3: yield [[(lambda o=o: run([o])) for o in issue_w(k)] for k in range(4)]
        else:
            yield [(lambda o=o: run([o])) for o in fills]
            scl()
        e(f"v_and_b32 {vPA}, 3, {vLane}"); e(f"v_lshlrev_b32 {vPA}, 2, {vPA}"); e(f"v_mov_b32 {vTg}, v63")
        e(f"s_mov_b32 {sPC}, 0"); e(f"s_mov_b32 {sMK}, 1")
        if E3:
            for k in range(8): e(f"v_add_u32 {wl[k]}, 0xfffe8000, {wa[k]}")
            if TP: e(f"v_lshlrev_b32 v179, 8, {vLane}"); e("s_mov_b32 s93, 0")
            yield None
            e(f"buffer_load_dword {vPD}, {vPA}, {SRDF}, {sCL} offen sc1"); a.vm.append(vPD.regs())
        dump1 = yield None
        if TP:
            signal, w3ops, st5, dump1 = dump1
            a.wait_for(vPD); st5()
        a.k2 = 1; stamp(a, 0)
        if not E3: e(f"buffer_load_dword {vPD}, {vPA}, {SRDF}, {sCL} offen sc1")
        if OPT["fo"] == 1: run(fills)
    elif fused:
        yield None
        sB1, dump1 = yield issue_w(0) + issue_w(1) + issue_w(2) + issue_w(3)
        if OPT["fuse"] == 3:
            vTag, vPA, vPD = V(61), V(60), V(59)
            a.k2 = 1; stamp(a, 0)
            e(f"s_lshr_b32 {sT0}, {sRB}, 1"); e(f"s_lshl_b32 {sT0}, {sT0}, 4"); e(f"s_lshl_b32 {sT1}, {sCB}, 1"); e(f"s_add_u32 {sT0}, {sT0}, {sT1}")
            e(f"s_and_b32 {sT1}, {sRB}, 1"); e(f"s_add_u32 {sT0}, {sT0}, {sT1}"); e(f"s_lshl_b32 {sT0}, {sT0}, 8"); e(f"s_add_u32 s39, {sT0}, {FLOFF}")
            e(f"v_and_b32 {vPA}, 15, {vLane}"); e(f"v_lshlrev_b32 {vPA}, 2, {vPA}")
            e(f"s_cmp_lg_u32 {sW}, 0"); e("s_cbranch_scc1 L2_np0")
            e(f"buffer_load_dword {vPD}, {vPA}, {SRDDBG}, s39 offen sc1")
            a.label("L2_np0")
            run(sB1)
        ovs()
    else:
        run(issue_w(0)); run(issue_o(0)); run(issue_w(1)); run(issue_o(1))
        if OPT["codepf"]: code_prefetch(a, vLane, V(173), V(172), "mha_oproj_kernel", 16384, sW)
        run(issue_w(2)); run(issue_o(2)); run(issue_w(3))
    t0 = vt[0]
    mark1 = len(a.out)
    e(f"s_mov_b32 {SRDOUT[0]}, s14"); e(f"s_mov_b32 {SRDOUT[1]}, s15")
    e(f"s_mov_b32 {SRDOUT[2]}, 6291456"); e(f"s_mov_b32 {SRDOUT[3]}, 0x20000")
    e(f"v_add_u32 {vRW}, {sM0}, {t0}")
    RB = [0, 32768, 98304]
    if E3: e(f"v_add_u32 {rw[1]}, {RB[1]}, {vRW}"); e(f"v_add_u32 {rw[2]}, {RB[2]}, {vRW}"); rw[0] = vRW
    for d in range(1, 4):
        e(f"s_sub_u32 {sT0}, {sW}, {d}"); e(f"s_and_b32 {sT0}, {sT0}, 3"); e(f"s_mul_i32 {sT0}, {sT0}, {REG}")
        e(f"s_add_u32 {sT0}, {sT0}, {RB[d - 1] if E3 else (d - 1) * 12288}"); e(f"v_add_u32 {ra[d-1]}, {sT0}, {t0}")
    if not F4: wa_setup()
    e(f"s_mul_i32 {sT0}, {sRB}, 196608"); e(f"s_lshl_b32 {sT1}, {sCB}, 8"); e(f"s_add_u32 {sT0}, {sT0}, {sT1}")
    e(f"s_lshl_b32 {sT1}, {sW}, 6"); e(f"s_add_u32 {sT0}, {sT0}, {sT1}")
    e(f"v_and_b32 {u1}, 15, {vLane}"); e(f"v_lshlrev_b32 {vOut}, 11, {u1}"); e(f"v_add_u32 {vOut}, {sT0}, {vOut}")
    e(f"v_and_b32 {u1}, 1, {vg}"); e(f"v_lshl_add_u32 {vOut}, {u1}, 5, {vOut}")
    e(f"v_lshrrev_b32 {u1}, 1, {vg}"); e(f"v_lshl_add_u32 {vOut}, {u1}, 4, {vOut}")
    vZ = V(168, 4)
    if not F4:
        for i in range(4): e(f"v_mov_b32 {vZ[i]}, 0")
        e("s_nop 1")
        for k in range(12): e(f"v_mfma_f32_32x32x16_bf16 {A(16 * k, 16)}, {vZ}, {vZ}, 0")
    def rdA(slot, i):
        if E3: return [(lambda u=u: a.ds_read_tr(AF(i)[2 * u:2 * u + 2], (wl if slot & 1 else wa)[i], (32768 if slot < 2 else 0) + u * 4096)) for u in range(2)]
        return [(lambda u=u: a.ds_read_tr(AF(i)[2 * u:2 * u + 2], wa[i], slot * 8192 + u * 4096)) for u in range(2)]
    late2 = []
    if E3: late2 = a.out[mark1:]; del a.out[mark1:]
    def chk(n):
        e(f"v_cmp_ne_u32 vcc, {vPD}, {vTg}"); e(f"s_and_b32 {sT0}, vcc_lo, {sMK}"); e(f"s_cbranch_scc1 L2_slow{n}")
        a.label(f"L2_back{n}")
    if TP:
        chk(0)
        stamp(a, 1)
        run(issue_o(0)); run(issue_o(1)); run(issue_o(2))
        n3 = 8 if w3ops else 0
        for o in w3ops: o()
        for i in range(7):
            for r in rdA(0, i): r()
        a.out += late2
        e("s_cmp_lg_u32 s93, 0"); e("s_cbranch_scc1 L2_sigd")
        e(f"s_waitcnt vmcnt({18 + n3})"); signal("a")
        a.label("L2_sigd")
        a.wait(vm=6 + n3)
        stamp(a, 2)
    elif F4:
        if not E3: a.wait(vm=32 if OPT["fo"] == 1 else 0)
        chk(0)
        stamp(a, 1)
        run(issue_o(0)); run(issue_o(1)); run(issue_o(2))
        if not E3: a.wait(vm=18 + 24)
        for i in range(7):
            for r in rdA(0, i): r()
        a.out += late2
        a.wait(vm=6)
        stamp(a, 2)
    elif fused and OPT["fuse"] == 3:
        stamp(a, 1)
        e(f"s_mov_b32 {sIT}, 0")
        e(f"s_cmp_lg_u32 {sW}, 0"); e("s_cbranch_scc1 L2_skip")
        e("s_waitcnt vmcnt(32)")
        e("s_branch L2_chk")
        a.label("L2_poll")
        e(f"s_sleep {OPT['psleep']}")
        e(f"buffer_load_dword {vPD}, {vPA}, {SRDDBG}, s39 offen sc1")
        e("s_waitcnt vmcnt(0)")
        a.label("L2_chk")
        e(f"v_cmp_ne_u32 vcc, {vPD}, {vTag}"); e(f"s_add_u32 {sIT}, {sIT}, 1")
        e("s_cbranch_vccz L2_skip")
        e(f"s_cmp_lt_u32 {sIT}, 0x40000"); e("s_cbranch_scc1 L2_poll")
        a.label("L2_skip")
        e("s_barrier")
        stamp(a, 2)
        run(issue_o(0)); run(issue_o(1)); run(issue_o(2))
        a.wait_for(("w", 0))
        for i in range(7):
            for r in rdA(0, i): r()
        a.wait(vm=6)
        stamp(a, 3)
    elif fused:
        e(f"s_mov_b32 {SRDDBG[0]}, s16"); e(f"s_mov_b32 {SRDDBG[1]}, s17"); e(f"s_mov_b32 {SRDDBG[2]}, 256"); e(f"s_mov_b32 {SRDDBG[3]}, 0x20000")
        e(f"s_lshl_b32 {sT0}, {sB1}, 4"); e(f"s_lshr_b32 {sT1}, {sRB}, 1"); e(f"s_lshl_b32 {sT1}, {sT1}, 4")
        if OPT["fuse"] == 2: e(f"s_mov_b32 {sT0}, 0"); e(f"s_mov_b32 {sT1}, 0")
        e(f"v_mov_b32 {vt[0]}, 1"); e(f"v_mov_b32 {vt[1]}, 0"); e(f"s_mov_b32 {sIT}, 0")
        a.k2 = 1; stamp(a, 0)
        a.wait(vm=0); e("s_barrier")
        stamp(a, 1)
        e(f"s_cmp_lg_u32 {sW}, 0"); e("s_cbranch_scc1 L2_skip")
        e("s_mov_b64 exec, 1")
        e(f"buffer_atomic_add {vt[0]}, {vt[1]}, {SRDDBG}, {sT0} offen sc1")
        a.label("L2_poll")
        e(f"buffer_load_dword {vt[2]}, {vt[1]}, {SRDDBG}, {sT1} offen sc1")
        e("s_waitcnt vmcnt(0)")
        e(f"v_readfirstlane_b32 {sT2}, {vt[2]}"); e(f"s_add_u32 {sIT}, {sIT}, 1")
        e(f"s_cmp_ge_u32 {sT2}, {256 if OPT['fuse'] == 2 else 16}"); e("s_cbranch_scc1 L2_go")
        e(f"s_sleep {OPT['psleep']}")
        e(f"s_cmp_lt_u32 {sIT}, 0x40000"); e("s_cbranch_scc1 L2_poll")
        a.label("L2_go")
        e("s_mov_b64 exec, -1")
        a.label("L2_skip")
        for i in range(7):
            for r in rdA(0, i): r()
        e("s_barrier")
        stamp(a, 2)
        run(issue_o(0)); run(issue_o(1)); run(issue_o(2))
        a.wait(vm=0)
        stamp(a, 3)
    else:
        a.wait_for(("w", 0))
        stamp(a, 1)
        for i in range(7):
            for r in rdA(0, i): r()
    e(f"s_mov_b32 {sIT}, 0")
    def body():
        for u in range(4):
            G = Gaps()
            mf = [(lambda i=i, j=j: a.mfma16(AC(i, j), AF(i), BF(u, j), AC(i, j))) for i in range(8) for j in range(6)]
            m0_ = mf[0]; mf[0] = lambda m0_=m0_: (a.wait_for(BF(u, 5), lgkm=2), m0_())
            for k, r in enumerate(rdA(u, 7)): G.mem(k, r)
            G.mem(5, lambda: a.wait_for(("w", (u + 1) % 4), lgkm=0))
            for i in range(7):
                for k, r in enumerate(rdA((u + 1) % 4, i)): G.mem(6 * i + 6 + k, r)
            ops = issue_w(u) + issue_o((u + 3) % 4)
            if u == 0: G.mem(3, lambda: (e(f"s_cmp_eq_u32 {sIT}, 7"), e(f"s_cselect_b32 {SRDWO[2]}, 0, {SRDWO[2]}")))
            if u == 1: G.mem(3, lambda: (e(f"s_cmp_eq_u32 {sIT}, 7"), e(f"s_cselect_b32 {SRDOW[2]}, 0, {SRDOW[2]}")))
            if F4 and u == 0: G.mem(4, lambda: (e(f"s_add_u32 {sT1}, {sIT}, 3"), e(f"s_lshr_b32 {sT1}, {sT1}, 1"), e(f"s_bfm_b32 {sMK}, {sT1}, 0")))
            if F4 and u == 1: G.mem(4, lambda: (a.wait_for(vPD), chk(1)))
            if OPT["sig"] and u == 0: G.mem(2, lambda: (e(f"s_cmp_eq_u32 {sIT}, 3"), e(f"s_cselect_b32 {sT1}, {6 * 524288}, 0"), e(f"s_add_u32 {sWOo}, {sWOo}, {sT1}")))
            if F4 and u == OPT["pollu"]: ops = ops + [lambda: a.bload(vPD, vPA, SRDF, sCL, 0, " sc1")]
            free = [g for i in range(1, 8) for g in range(6 * i + 2, 6 * i + 6)]
            for o, g in zip(ops, [free[(k * len(free)) // len(ops)] for k in range(len(ops))]): G.mem(g, o)
            G.run(mf)
    mark = len(a.out)
    body(); body(); sl, sv = list(a.lds), list(a.vm)
    del a.out[mark:]
    a.lds, a.vm = list(sl), list(sv)
    a.label("L2_loop")
    body()
    assert a.lds == sl and a.vm == sv, (a.vm, sv)
    e(f"s_add_u32 {sIT}, {sIT}, 1"); e(f"s_cmp_lt_u32 {sIT}, 8"); e("s_cbranch_scc1 L2_loop")
    a.wait(vm=0, lgkm=0)
    if not fused: stamp(a, 2); stamp(a, 3)
    if F4: stamp(a, 3)
    stamp(a, 4)
    e("s_nop 7")
    for d in range(1, 4):
        for j in range(6):
            for b in range(2):
                c = (d - 1) * 12 + j * 2 + b
                if E3: a.ds_write_b128(rw[d - 1], AC(2 * d + b, j), (c >> 3) * 32768 - RB[d - 1] + (c & 7) * 1024)
                else: a.ds_write_b128(vRW, AC(2 * d + b, j), c * 1024)
    R = lambda b, j: V(40 + 8 * j + 4 * b, 4)
    for j in range(6):
        for b in range(2):
            for i in range(4): e(f"v_accvgpr_read_b32 {R(b, j)[i]}, {AC(b, j)[i]}")
    a.wait(lgkm=0); e("s_barrier")
    T = lambda d, b, j: V(96 + 48 * d + 8 * j + 4 * b, 4)
    for j in range(6):
        for d in range(3):
            for b in range(2):
                c = d * 12 + j * 2 + b
                a.ds_read_b128(T(d, b, j), ra[d], ((c >> 3) * 32768 - RB[d] + (c & 7) * 1024) if E3 else (j * 2 + b) * 1024)
    for j in range(6):
        for d in range(3):
            for b in range(2):
                a.wait_for(T(d, b, j))
                for i in range(2): e(f"v_pk_add_f32 {R(b, j)[2*i:2*i+2]}, {R(b, j)[2*i:2*i+2]}, {T(d, b, j)[2*i:2*i+2]}")
        D = V(10 + 4 * j, 4)
        e(f"v_cvt_pk_bf16_f32 {D[0]}, {R(0, j)[0]}, {R(0, j)[1]}"); e(f"v_cvt_pk_bf16_f32 {D[1]}, {R(0, j)[2]}, {R(0, j)[3]}")
        e(f"v_cvt_pk_bf16_f32 {D[2]}, {R(1, j)[0]}, {R(1, j)[1]}"); e(f"v_cvt_pk_bf16_f32 {D[3]}, {R(1, j)[2]}, {R(1, j)[3]}")
        e(f"s_mov_b32 {sT0}, {j * 32768}"); e("s_nop 0")
        e(f"v_permlane16_swap_b32 {D[0]}, {D[2]}"); e(f"v_permlane16_swap_b32 {D[1]}, {D[3]}")
        a.bstore(D, vOut, SRDOUT, sT0, 0, (" " + OPT["ost2"].replace("+", " ")) if OPT["ost2"] else "")
    dump_stamps(a, 6, 0x4100000, sW, vt[0], vt[1])
    a.k2 = 0
    if OPT["leak"]:
        lk = OPT["leak"]
        if lk < 100:
            e(f"v_readfirstlane_b32 s93, v{241 + 2 * (lk % 10)}"); e(f"v_readfirstlane_b32 s94, v{241 + 2 * (lk // 10)}")
        elif lk < 200:
            e(f"s_mov_b32 s93, s{61 + 2 * (lk % 10)}"); e(f"s_mov_b32 s94, s{61 + 2 * ((lk // 10) % 10)}")
        else:
            e("v_readfirstlane_b32 s93, v251"); e("s_mov_b32 s94, s61")
        e("s_nop 4"); e("s_sub_u32 s93, s93, s94"); e("s_lshl_b32 s93, s93, 2"); e("s_min_u32 s93, s93, 100000")
        e("s_memrealtime s[98:99]"); e("s_waitcnt lgkmcnt(0)"); e("s_add_u32 s93, s93, s98")
        a.label("L2_spin")
        e("s_memrealtime s[98:99]"); e("s_waitcnt lgkmcnt(0)"); e("s_sub_u32 s94, s93, s98"); e("s_cmp_gt_i32 s94, 0"); e("s_cbranch_scc1 L2_spin")
    if fused:
        dump1()
        yield None
        for n in range(2):
            if TP and n == 0:
                a.label("L2_slow0")
                e("s_waitcnt vmcnt(0)"); signal("b"); e("s_mov_b32 s93, 1"); e("s_branch L2_slow0x")
                n = "0w"
            a.label(f"L2_slow{n}")
            e(f"s_sleep {OPT['psleep']}")
            if n == "0w": a.label("L2_slow0x")
            e(f"buffer_load_dword {vPD}, {vPA}, {SRDF}, {sCL} offen sc1"); e("s_waitcnt vmcnt(0)")
            e(f"s_add_u32 {sPC}, {sPC}, 1"); e(f"s_cmp_ge_u32 {sPC}, 0x40000"); e(f"s_cbranch_scc1 L2_back{str(n)[0]}")
            e(f"v_cmp_ne_u32 vcc, {vPD}, {vTg}"); e(f"s_and_b32 {sT0}, vcc_lo, {sMK}"); e(f"s_cbranch_scc1 L2_slow{n}")
            e(f"s_branch L2_back{str(n)[0]}")
        yield None
    else:
        a.label("L2_end")
        e("s_endpgm")
        yield a.text()


def kernel0():
    a = Asm(); e = a.e
    a.label("mha_pre_kernel")
    e("s_cmp_ge_u32 s2, 256"); e("s_cbranch_scc1 L0_end")
    e("s_load_dwordx16 s[4:19], s[0:1], 0"); e("s_waitcnt lgkmcnt(0)")
    e("s_mov_b32 s20, s4"); e("s_mov_b32 s21, s5"); e("s_mov_b32 s22, 6291456"); e("s_mov_b32 s23, 0x20000")
    e("s_mov_b32 s24, s10"); e("s_mov_b32 s25, s11"); e("s_mov_b32 s26, 8388608"); e("s_mov_b32 s27, 0x20000")
    e("v_lshlrev_b32 v1, 7, v0"); e("s_lshl_b32 s3, s2, 15")
    e("buffer_load_dword v2, v1, s[20:23], s3 offen"); e("buffer_load_dword v3, v1, s[24:27], s3 offen")
    e("s_waitcnt vmcnt(0)")
    a.label("L0_end"); e("s_endpgm")
    return a.text()

def main():
    launches = []
    if OPT["fuse"]:
        s = HEADER + "; @launch kernel=mha_qattn_kernel grid=(256,1,1) block=(256,1,1) lds=163840\n"
        s += '.amdgcn_target "amdgcn-amd-amdhsa--gfx950"\n.text\n'
        s += ".globl mha_qattn_kernel\n.p2align 8\n.type mha_qattn_kernel,@function\n" + kernel1() + "L_text_end:\n"
        s += kd("mha_qattn_kernel", 512, 256)
        open(sys.argv[1], "w").write(s)
        return
    if OPT["only"] in (None, "k1"): launches.append("; @launch kernel=mha_qattn_kernel grid=(256,1,1) block=(256,1,1) lds=163840")
    if OPT["only"] in (None, "k2"): launches.append("; @launch kernel=mha_oproj_kernel grid=(256,1,1) block=(256,1,1) lds=163840")
    s = HEADER + "\n".join(launches) + "\n"
    s += '.amdgcn_target "amdgcn-amd-amdhsa--gfx950"\n.text\n'
    s += ".globl mha_qattn_kernel\n.p2align 8\n.type mha_qattn_kernel,@function\n" + kernel1()
    s += ".globl mha_oproj_kernel\n.p2align 8\n.type mha_oproj_kernel,@function\n" + next(kernel2(None)) + "L_text_end:\n"
    s += kd("mha_qattn_kernel", 512, 256) + kd("mha_oproj_kernel", 512, 256)
    open(sys.argv[1], "w").write(s)
main()
```

```python
import sys, math, struct
from asmlib import *

OPT = dict(kv_nt=1, only=None, dbgQ=0, prof=0, kvskip=0, wo_touch=3, n2=0, rotH=0, p1end=26, ost="", codepf=0, k2skip=0, map2=1, pre=0, askip=0, p2nt=1, p2s=3, p2e=30, early=1, xw_touch=0, leak=0, rotW=0, krot=0, ost2="", itst=0, bwait=16, bdrop=0, qmode=0, tl=64, fuse=1, psleep=2, osc=1, bmap=0, evw=16, h16=0, dg0=20, verbose=0, d4=8, x5g=0, bnoc=0, xmap=0, only01=0, p2b=49152, pollu=2, fo=0, fint=4, hperm=0, cbrot=0, wvx=0, cbtab='0x76345210', e30=20, e31=20, pj=5, w3l=0, thr=0, thrp=0, tp=0, sig=0, rotp='1,1,2,4,3', tlbw=0, tlbg=64, tlbm=3, peel=0, pdl=8)
for a_ in sys.argv[2:]:
    k, v = a_.split("=")
    assert k in OPT, k
    OPT[k] = int(v) if v.lstrip("-").isdigit() else v

def f32bits(x): return struct.unpack("<I", struct.pack("<f", x))[0]
CSCALE = math.log2(math.e) / math.sqrt(128.0)
THRESH = 2.0 ** 30
FLOFF = 0x2000000

HEADER = """; Kernarg layout for this problem (64 bytes, ptrs only, base s[0:1]):
"""

def stamp(a, i, lvl=1):
    if not OPT["prof"]: return
    if OPT["prof"] == 2 and lvl == 1 and i >= 2 and not getattr(a, "k2", 0): return
    if OPT["prof"] == 1 and lvl == 2: return
    if OPT["prof"] == 3 and not (lvl == 1 and i == (5 if getattr(a, "k2", 0) else 0)): return
    a.e("s_memtime s[98:99]"); a.e("s_memrealtime s[100:101]")
    a.e("s_waitcnt lgkmcnt(0)"); a.lds = []
    if getattr(a, "k2", 0): a.e(f"v_mov_b32 v{240+2*i}, s98"); a.e(f"v_mov_b32 v{241+2*i}, s100")
    else: a.e(f"s_mov_b32 s{60+2*i}, s98"); a.e(f"s_mov_b32 s{61+2*i}, s100")
def dump_stamps(a, n, wsoff, sW, vtmp, vaddr, last=True):
    if not OPT["prof"]: return
    e = a.e
    e("s_waitcnt vmcnt(0)")
    if last: stamp(a, n - 1)
    e("s_mov_b32 s88, s18"); e("s_mov_b32 s89, s19"); e("s_mov_b32 s90, 0x10000000"); e("s_mov_b32 s91, 0x20000")
    e(f"s_lshl_b32 s92, s2, 2"); e(f"s_add_u32 s92, s92, {sW}"); e("s_lshl_b32 s92, s92, 6"); e(f"s_add_u32 s92, s92, {wsoff}")
    e(f"v_mov_b32 {vaddr}, 0")
    for i in range(2 * n):
        e(f"v_mov_b32 {vtmp}, " + (f"v{240+i}" if getattr(a, "k2", 0) else f"s{60+i}"))
        e(f"buffer_store_dword {vtmp}, {vaddr}, s[88:91], s92 offen offset:{4*i}")
    e("s_waitcnt vmcnt(0)")

def code_prefetch(a, vLane, vtmp, vdst, start_label, nbytes, sW):
    e = a.e
    e("s_getpc_b64 s[84:85]")
    a.label(f"{start_label}_pc")
    e(f"s_sub_u32 s84, s84, {start_label}_pc-{start_label}"); e("s_subb_u32 s85, s85, 0")
    e(f"s_mov_b32 s86, L_text_end-{start_label}"); e("s_mov_b32 s87, 0x20000")
    e(f"v_lshlrev_b32 {vtmp}, 7, {vLane}"); e(f"s_lshl_b32 s93, {sW}, 13")
    for blk in range((nbytes + 32767) // 32768):
        a.bload(vdst, vtmp, S(84, 4), "s93", 0)
        e("s_add_u32 s93, s93, 32768")

def kernel1():
    a = Asm(); e = a.e
    SRDX, SRDW, SRDKV, SRDO, SRDWO = S(20, 4), S(24, 4), S(28, 4), S(32, 4), S(80, 4)
    sW, sB, sHP, sQH, sHS = S(36), S(37), S(38), S(40), S(41)
    sT0, sT1, sT2, sIT = S(42), S(43), S(44), S(45)
    sXK, sWK = S(46), S(47)
    sM0X, sM0W = S(48), S(49)
    sKVO, sKVO2, sM0KV = S(50), S(51), S(52)
    sTHR, sC = S(53), S(54, 2)
    sOO, sCnt, sKV0, sPass, sP1 = S(56), S(57), S(58), S(59), S(39)
    sDL, sSL0, sS = S(79), S(78), S(72)
    vLane = V(1)
    vt = [V(i) for i in range(2, 10)]
    xa = [[V(10 + 2 * s + k) for k in range(2)] for s in range(2)]
    wa = [V(14 + k) for k in range(8)]
    xv = [V(22 + k) for k in range(6)]
    wv = [V(28 + k) for k in range(4)]
    ka = [V(32 + k) for k in range(8)]
    va = [V(40 + k) for k in range(8)]
    kvv = [V(48 + k) for k in range(4)]
    vl = [V(52 + k) for k in range(6)]
    vKW, vOS, vTA, vTD, vFL = V(58), V(59), V(60), V(61), V(62)
    vZ = V(10, 4)
    ACC = lambda i, j: V(64 + 64 * (j >> 1) + 8 * i + 4 * (j & 1), 4)
    QF = lambda j, ks: V(64 + 32 * (j >> 1) + 8 * ks + 4 * (j & 1), 4)
    NEG = lambda j: V(160 + 4 * j, 4)
    SB = lambda i: V(184 + 8 * i, 8)
    PB = lambda i: V(200 + 4 * i, 4)
    TMP = lambda j: V(184 + 4 * j, 4)
    X5 = lambda p: V(208 + 4 * p, 4)
    R2 = lambda j: V(232 + 2 * j, 2)
    OA = lambda db, j: A(4 * (8 * j + db), 4)
    KF = lambda n: A(192 + 4 * n, 4)
    VF = lambda db: A(224 + 4 * db, 4)
    AF = lambda i: A(128 + 4 * i, 4)
    BF = lambda st, j: A((160 if st == 0 else 224) + 4 * j, 4)
    P1R = lambda t, p: A(4 * (8 * t + p), 4)
    XBASE = 65536
    F4 = OPT["fuse"] == 4
    E3 = F4 and OPT["fo"] == 3
    SRDF, SRDD, sFLO, vTag, vZero, vZ4 = S(84, 4), S(88, 4), S(73), V(63), V(0), V(252, 4)
    nt = " nt" if OPT["kv_nt"] else ""

    a.label("mha_qattn_kernel")
    e("s_cmp_ge_u32 s2, 256"); e("s_cbranch_scc1 L1_end")
    e("s_load_dwordx16 s[4:19], s[0:1], 0")
    e(f"v_lshrrev_b32 {vt[0]}, 6, v0"); e(f"v_and_b32 {vLane}, 63, v0")
    e("s_and_b32 s3, s2, 7"); e(f"s_lshr_b32 {sT0}, s2, 3")
    e(f"v_readfirstlane_b32 {sW}, {vt[0]}")
    e(f"s_and_b32 {sT1}, s3, 1"); e(f"s_and_b32 {sT2}, {sT0}, 7")
    if OPT["bmap"] == 0: e(f"s_lshl_b32 {sT1}, {sT1}, 3")
    if OPT["bmap"] == 1: e(f"s_lshl_b32 {sT2}, {sT2}, 1")
    if OPT["bmap"] == 2: e(f"s_xor_b32 {sT1}, {sT1}, 1"); e(f"s_lshl_b32 {sT1}, {sT1}, 3")
    e(f"s_add_u32 {sB}, {sT1}, {sT2}")
    e(f"s_lshr_b32 {sT1}, s3, 1"); e(f"s_lshl_b32 {sT1}, {sT1}, 2"); e(f"s_lshr_b32 {sHP}, {sT0}, 3")
    if OPT["hperm"]:
        e(f"s_lshr_b32 {sT2}, {sHP}, 1"); e(f"s_not_b32 {sHP}, {sHP}"); e(f"s_and_b32 {sHP}, {sHP}, 1"); e(f"s_lshl_b32 {sHP}, {sHP}, 1"); e(f"s_add_u32 {sHP}, {sHP}, {sT2}")
    e(f"s_add_u32 {sHP}, {sHP}, {sT1}")
    if OPT["xmap"] == 1:
        e(f"s_lshr_b32 {sT1}, s3, 1"); e(f"s_lshl_b32 {sT1}, {sT1}, 2"); e(f"s_and_b32 {sT2}, {sT0}, 3"); e(f"s_add_u32 {sB}, {sT1}, {sT2}")
        e(f"s_and_b32 {sT1}, s3, 1"); e(f"s_lshl_b32 {sT1}, {sT1}, 3"); e(f"s_lshr_b32 {sHP}, {sT0}, 2"); e(f"s_add_u32 {sHP}, {sHP}, {sT1}")
    if OPT["xmap"] == 2:
        e(f"s_lshl_b32 {sT1}, s3, 1"); e(f"s_and_b32 {sT2}, {sT0}, 1"); e(f"s_add_u32 {sB}, {sT1}, {sT2}"); e(f"s_lshr_b32 {sHP}, {sT0}, 1")
    if OPT["xmap"] == 3:
        e(f"s_and_b32 {sB}, {sT0}, 15"); e(f"s_lshl_b32 {sT1}, s3, 1"); e(f"s_lshr_b32 {sHP}, {sT0}, 4"); e(f"s_add_u32 {sHP}, {sHP}, {sT1}")
    if OPT["xmap"] in (4, 5):
        e(f"s_lshr_b32 {sT1}, s3, 2"); e(f"s_lshl_b32 {sT1}, {sT1}, 3"); e(f"s_and_b32 {sT2}, {sT0}, 7"); e(f"s_add_u32 {sB}, {sT1}, {sT2}")
        e(f"s_and_b32 {sT1}, s3, 2"); e(f"s_lshl_b32 {sT1}, {sT1}, 2"); e(f"s_and_b32 {sT2}, s3, 1"); e(f"s_lshl1_add_u32 {sHP}, {sT2}, {sT1}")
        e(f"s_lshr_b32 {sT1}, {sT0}, 4"); e(f"s_lshl2_add_u32 {sHP}, {sT1}, {sHP}")
        e(f"s_bfe_u32 {sT1}, {sT0}, 0x10003")
        if OPT["xmap"] == 4: e(f"s_xor_b32 {sT1}, {sT1}, 1")
        e(f"s_add_u32 {sHP}, {sHP}, {sT1}")
    if OPT["xmap"] in (6, 7):
        e(f"s_lshr_b32 {sT1}, s3, 2"); e(f"s_lshl_b32 {sT1}, {sT1}, 3"); e(f"s_and_b32 {sT2}, {sT0}, 7"); e(f"s_add_u32 {sB}, {sT1}, {sT2}")
        e(f"s_and_b32 {sT1}, s3, 2"); e(f"s_lshl_b32 {sT1}, {sT1}, 1"); e(f"s_and_b32 {sT2}, s3, 1"); e(f"s_lshl3_add_u32 {sHP}, {sT2}, {sT1}")
        e(f"s_lshr_b32 {sT1}, {sT0}, 3")
        if OPT["xmap"] == 6: e(f"s_xor_b32 {sT1}, {sT1}, 1")
        e(f"s_add_u32 {sHP}, {sHP}, {sT1}")
    e(f"s_and_b32 {sQH}, {sW}, 1"); e(f"s_lshr_b32 {sHS}, {sW}, 1")
    t0, t1, t2, t3, t4, t5 = vt[:6]
    e(f"v_lshrrev_b32 {t2}, 4, {vLane}")
    e(f"v_and_b32 {t1}, 15, {vLane}")
    e(f"v_lshlrev_b32 {t3}, 1, {t2}"); e(f"v_xor_b32 {t1}, {t1}, {t3}")
    e(f"s_lshl_b32 {sT0}, {sQH}, 4"); e(f"v_add_u32 {t0}, {sT0}, {t2}")
    e(f"v_lshlrev_b32 {t0}, 13, {t0}")
    e(f"s_lshl_b32 {sT0}, {sHS}, 8"); e(f"v_add_u32 {t0}, {sT0}, {t0}")
    for m in range(4):
        e(f"v_xor_b32 {t3}, {8 * (m >> 1)}, {t1}"); e(f"v_lshl_add_u32 {t3}, {t3}, 4, {t0}")
        e(f"v_add_u32 {wv[m]}, {m * 32768 - m * 1024}, {t3}")
    e(f"v_lshrrev_b32 {t0}, 3, {vLane}")
    e(f"v_and_b32 {t1}, 7, {vLane}"); e(f"v_xor_b32 {t1}, {t1}, {t2}")
    e(f"s_mul_i32 {sT0}, {sW}, 48"); e(f"v_add_u32 {t0}, {sT0}, {t0}"); e(f"v_lshlrev_b32 {t0}, 11, {t0}")
    for m in range(6):
        e(f"v_xor_b32 {t3}, {4 * (m & 1)}, {t1}"); e(f"v_lshl_add_u32 {t3}, {t3}, 4, {t0}")
        e(f"v_add_u32 {xv[m]}, {m * 16384 - (m % 3) * 1024}, {t3}")
    e(f"s_mul_i32 {sM0X}, {sW}, 6144"); e(f"s_add_u32 {sM0X}, {sM0X}, {XBASE}")
    e(f"s_lshl_b32 {sM0W}, {sW}, 12")
    e("s_waitcnt lgkmcnt(0)")
    stamp(a, 0)
    e(f"s_lshl_b32 {sT0}, {sHP}, 9")
    e(f"s_add_u32 {SRDW[0]}, s10, {sT0}"); e(f"s_addc_u32 {SRDW[1]}, s11, 0")
    e(f"s_sub_u32 {SRDW[2]}, 8388608, {sT0}"); e(f"s_mov_b32 {SRDW[3]}, 0x20000")
    e(f"s_mul_i32 {sT0}, {sB}, 393216")
    e(f"s_add_u32 {SRDX[0]}, s4, {sT0}"); e(f"s_addc_u32 {SRDX[1]}, s5, 0")
    e(f"s_mov_b32 {SRDX[2]}, 393216"); e(f"s_mov_b32 {SRDX[3]}, 0x20000")

    if OPT["askip"]: e(f"s_mov_b32 {SRDX[2]}, 0"); e(f"s_mov_b32 {SRDW[2]}, 0")
    sKR, sKRW = S(76), S(77)
    if OPT["krot"]:
        e(f"s_lshr_b32 {sT0}, s2, 3"); e(f"s_and_b32 {sT1}, {sT0}, 7"); e(f"s_lshr_b32 {sT0}, {sT0}, 3"); e(f"s_lshl_b32 {sT0}, {sT0}, 1")
        e(f"s_add_u32 {sT0}, {sT0}, {sT1}"); e(f"s_and_b32 {sT0}, {sT0}, 7")
        if OPT["krot"] == 2: e(f"s_and_b32 {sT0}, {sT0}, 1"); e(f"s_lshl_b32 {sT0}, {sT0}, 2")
        if OPT["krot"] == 3: e(f"s_and_b32 {sT0}, {sT0}, 3"); e(f"s_lshl_b32 {sT0}, {sT0}, 1")
        e(f"s_lshl_b32 {sKR}, {sT0}, 8"); e(f"s_lshl_b32 {sKRW}, {sT0}, 20")
    def dma_x(c, part):
        if OPT["krot"]:
            ops = [lambda: (e(f"s_add_u32 m0, {sM0X}, {(c % 4) * 24576 + part * 3072}"), e(f"s_add_u32 {sXK}, {sKR}, {c * 128}"), e(f"s_and_b32 {sXK}, {sXK}, 2047"))]
        else:
            ops = [lambda: (e(f"s_add_u32 m0, {sM0X}, {(c % 4) * 24576 + part * 3072}"), e(f"s_movk_i32 {sXK}, {c * 128}"))]
        for m in range(3):
            ops.append(lambda m=m: a.dma(xv[3 * part + m], SRDX, sXK, m * 1024, tag=("x", c)))
        return ops
    def dma_w(s):
        if OPT["krot"]:
            ops = [lambda: (e(f"s_add_u32 m0, {sM0W}, {(s % 4) * 16384}"), e(f"s_add_u32 {sWK}, {sKRW}, {s * 262144}"), e(f"s_and_b32 {sWK}, {sWK}, 8388607"))]
        else:
            ops = [lambda: (e(f"s_add_u32 m0, {sM0W}, {(s % 4) * 16384}"), e(f"s_mov_b32 {sWK}, {s * 262144}"))]
        for m in range(4):
            ops.append(lambda m=m: a.dma(wv[m], SRDW, sWK, m * 1024, tag=("w", s)))
        return ops
    def run(ops):
        for o in ops: o()
    run(dma_w(0)); run(dma_x(0, 0)); run(dma_x(0, 1)); run(dma_w(1)); run(dma_w(2)); run(dma_x(1, 0)); run(dma_x(1, 1)); run(dma_w(3))
    if OPT["codepf"]: code_prefetch(a, vLane, vTA, vTD, "mha_qattn_kernel", OPT["codepf"] * 1024, sW)
    run(dma_x(2, 0)); run(dma_x(2, 1)); run(dma_x(3, 0)); run(dma_x(3, 1))
    e(f"s_lshl_b32 {sT0}, {sB}, 5"); e(f"s_lshl_b32 {sT1}, {sHP}, 1"); e(f"s_add_u32 {sT0}, {sT0}, {sT1}")
    e(f"s_add_u32 {sT0}, {sT0}, {sHS}"); e(f"s_lshl_b32 {sT0}, {sT0}, 18")
    e(f"s_cmp_eq_u32 {sQH}, 0"); e(f"s_cselect_b32 {sT1}, s6, s8"); e(f"s_cselect_b32 {sT2}, s7, s9")
    e(f"s_add_u32 {SRDKV[0]}, {sT1}, {sT0}"); e(f"s_addc_u32 {SRDKV[1]}, {sT2}, 0")
    NR = 0 if OPT["kvskip"] else 262144
    e(f"s_mov_b32 {SRDKV[2]}, {NR}"); e(f"s_mov_b32 {SRDKV[3]}, 0x20000")
    e(f"s_mov_b32 {SRDO[0]}, s18"); e(f"s_mov_b32 {SRDO[1]}, s19")
    e(f"s_mov_b32 {SRDO[2]}, 25165824"); e(f"s_mov_b32 {SRDO[3]}, 0x20000")
    e(f"s_mov_b32 {sTHR}, {f32bits(THRESH):#x}")
    e(f"s_mov_b32 {sC[0]}, {f32bits(CSCALE):#x}"); e(f"s_mov_b32 {sC[1]}, {f32bits(CSCALE):#x}")
    e(f"s_mul_i32 {sKV0}, {sHS}, {OPT['rotH'] * 8192}"); e(f"s_mov_b32 {sPass}, 0")
    if OPT["rotW"] == 1:
        e(f"s_lshr_b32 {sKV0}, s2, 3"); e(f"s_lshl_b32 {sT1}, {sHS}, 2"); e(f"s_add_u32 {sKV0}, {sKV0}, {sT1}")
        e(f"s_and_b32 {sKV0}, {sKV0}, 7"); e(f"s_lshl_b32 {sKV0}, {sKV0}, 15")
    if OPT["rotW"] == 2:
        e(f"s_lshr_b32 {sKV0}, s2, 5"); e(f"s_add_u32 {sKV0}, {sKV0}, s2"); e(f"s_lshl_b32 {sT1}, {sHS}, 2"); e(f"s_add_u32 {sKV0}, {sKV0}, {sT1}")
        e(f"s_and_b32 {sKV0}, {sKV0}, 7"); e(f"s_lshl_b32 {sKV0}, {sKV0}, 15")
    if OPT["rotW"] == 3:
        e(f"s_lshr_b32 {sKV0}, s2, 3"); e(f"s_add_u32 {sKV0}, {sKV0}, s2"); e(f"s_lshr_b32 {sT1}, s2, 6"); e(f"s_add_u32 {sKV0}, {sKV0}, {sT1}")
        e(f"s_lshl_b32 {sT1}, {sHS}, 2"); e(f"s_add_u32 {sKV0}, {sKV0}, {sT1}")
        e(f"s_and_b32 {sKV0}, {sKV0}, 7"); e(f"s_lshl_b32 {sKV0}, {sKV0}, 15")
    if OPT["rotW"] == 7:
        e(f"s_lshr_b32 {sKV0}, {sB}, 3"); e(f"s_add_u32 {sKV0}, {sKV0}, {sB}"); e(f"s_lshr_b32 {sT1}, {sHP}, 2"); e(f"s_lshl1_add_u32 {sKV0}, {sT1}, {sKV0}")
        e(f"s_and_b32 {sT1}, {sHP}, 3"); e(f"s_add_u32 {sKV0}, {sKV0}, {sT1}"); e(f"s_lshl2_add_u32 {sKV0}, {sHS}, {sKV0}")
        e(f"s_and_b32 {sKV0}, {sKV0}, 7"); e(f"s_lshl_b32 {sKV0}, {sKV0}, 15")
    if OPT["rotW"] == 9:
        ca, cb, sb, cc, n = [int(z) for z in OPT["rotp"].split(",")]
        e(f"s_and_b32 {sKV0}, s2, 7"); e(f"s_mul_i32 {sKV0}, {sKV0}, {ca}"); e(f"s_lshr_b32 {sT1}, s2, {3 + sb}"); e(f"s_mul_i32 {sT1}, {sT1}, {cb}")
        e(f"s_add_u32 {sKV0}, {sKV0}, {sT1}"); e(f"s_mul_i32 {sT1}, {sHS}, {cc}"); e(f"s_add_u32 {sKV0}, {sKV0}, {sT1}")
        e(f"s_and_b32 {sKV0}, {sKV0}, {(1 << n) - 1}"); e(f"s_lshl_b32 {sKV0}, {sKV0}, {18 - n}")
    if OPT["rotW"] == 4:
        e(f"s_mul_i32 {sKV0}, s2, 5"); e(f"s_lshr_b32 {sT1}, s2, 5"); e(f"s_add_u32 {sKV0}, {sKV0}, {sT1}")
        e(f"s_lshl_b32 {sT1}, {sHS}, 4"); e(f"s_add_u32 {sKV0}, {sKV0}, {sT1}")
        e(f"s_and_b32 {sKV0}, {sKV0}, 31"); e(f"s_lshl_b32 {sKV0}, {sKV0}, 13")
    if OPT["rotW"] == 5:
        e(f"s_lshr_b32 {sKV0}, s2, 3"); e(f"s_lshl_b32 {sT1}, s2, 2"); e(f"s_add_u32 {sKV0}, {sKV0}, {sT1}")
        e(f"s_lshl_b32 {sT1}, {sHS}, 4"); e(f"s_add_u32 {sKV0}, {sKV0}, {sT1}")
        e(f"s_and_b32 {sKV0}, {sKV0}, 31"); e(f"s_lshl_b32 {sKV0}, {sKV0}, 13")
    if OPT["rotW"] == 6:
        e(f"s_lshl_b32 {sKV0}, s2, 1"); e(f"s_add_u32 {sKV0}, {sKV0}, {sHS}"); e(f"s_mul_i32 {sKV0}, {sKV0}, 0x9e3779b1")
        e(f"s_lshr_b32 {sKV0}, {sKV0}, 27"); e(f"s_lshl_b32 {sKV0}, {sKV0}, 13")
    e(f"s_mul_i32 {sDL}, {sHS}, 49152"); e(f"s_sub_u32 {sDL}, 131072, {sDL}")
    e(f"v_lshlrev_b32 {vTA}, 7, {vLane}")
    vT2 = V(0)
    e(f"v_lshrrev_b32 {vT2}, {int(math.log2(64 // OPT['tl']))}, {vLane}"); e(f"v_lshlrev_b32 {vT2}, 7, {vT2}")
    if OPT["wo_touch"]:
        e(f"s_mov_b32 {SRDWO[0]}, s12"); e(f"s_mov_b32 {SRDWO[1]}, s13"); e(f"s_mov_b32 {SRDWO[2]}, 8388608"); e(f"s_mov_b32 {SRDWO[3]}, 0x20000")
    if OPT["xw_touch"]:
        e(f"s_lshl_b32 {sT2}, s2, 2"); e(f"s_add_u32 {sT2}, {sT2}, {sW}"); e(f"s_lshl_b32 {sT2}, {sT2}, 13")
        e("s_mov_b32 s84, s10"); e("s_mov_b32 s85, s11"); e("s_mov_b32 s86, 8388608"); e("s_mov_b32 s87, 0x20000")
        a.bload(vTD, vTA, S(84, 4), sT2, 0)
        e("s_mov_b32 s84, s4"); e("s_mov_b32 s85, s5"); e("s_mov_b32 s86, 6291456")
        a.bload(vTD, vTA, S(84, 4), sT2, 0)
    vh, vg, vr, vc1, vc0, vql, u0, u1 = vt
    e(f"v_lshrrev_b32 {vg}, 4, {vLane}"); e(f"v_bfe_u32 {vr}, {vLane}, 2, 2"); e(f"v_and_b32 {vc0}, 3, {vLane}")
    e(f"v_lshl_add_u32 {u0}, {vg}, 3, {vr}"); e(f"v_lshlrev_b32 {u0}, 8, {u0}")
    e(f"s_lshl_b32 {sT0}, {sHS}, 13"); e(f"v_add_u32 {u0}, {sT0}, {u0}")
    e(f"v_lshl_add_u32 {u0}, {vc0}, 3, {u0}"); e(f"v_lshl_add_u32 {u0}, {vr}, 5, {u0}")
    e(f"v_and_b32 {u1}, 1, {vg}"); e(f"v_lshl_add_u32 {wa[0]}, {u1}, 7, {u0}")
    for i in range(1, 8): e(f"v_xor_b32 {wa[i]}, {32 * i}, {wa[0]}")
    e(f"v_and_b32 {vql}, 15, {vLane}")
    e(f"s_mul_i32 {sT1}, {sQH}, 12288"); e(f"s_add_u32 {sT1}, {sT1}, {XBASE}")
    e(f"v_lshlrev_b32 {u0}, 7, {vql}"); e(f"v_add_u32 {u0}, {sT1}, {u0}")
    e(f"v_lshrrev_b32 {u1}, 1, {vql}"); e(f"v_xor_b32 {u1}, {u1}, {vg}")
    e(f"v_lshl_add_u32 {xa[0][0]}, {u1}, 4, {u0}"); e(f"v_xor_b32 {xa[0][1]}, 64, {xa[0][0]}")
    for k in range(2): e(f"v_add_u32 {xa[1][k]}, 49152, {xa[0][k]}")
    e(f"v_lshlrev_b32 {vh}, {sQH}, {vg}")
    e(f"v_xor_b32 {vh}, {vh}, {vql}"); e(f"v_lshlrev_b32 {u0}, 8, {vg}")
    e(f"v_lshl_add_u32 {kvv[0]}, {vh}, 4, {u0}")
    e(f"s_cmp_eq_u32 {sQH}, 0")
    for j in range(1, 4):
        e(f"s_cselect_b32 {sT1}, {4 * j}, {8 * (j & 1)}"); e(f"s_mul_i32 {sT1}, {sT1}, 16"); e(f"v_xor_b32 {kvv[j]}, {sT1}, {kvv[0]}")

    def late_setup():
        ops = []
        E = lambda s: ops.append(lambda: e(s))
        E(f"v_lshrrev_b32 {vg}, 4, {vLane}"); E(f"v_bfe_u32 {vr}, {vLane}, 2, 2"); E(f"v_and_b32 {vc0}, 3, {vLane}")
        E(f"v_and_b32 {vql}, 15, {vLane}"); E(f"v_lshrrev_b32 {vc1}, 2, {vLane}")
        E(f"s_lshl_b32 {sT0}, {sHS}, 16"); E(f"s_add_u32 {sT1}, {sT0}, 8192")
        E(f"v_lshlrev_b32 {u0}, 8, {vc1}"); E(f"v_add_u32 {u0}, {sT1}, {u0}"); E(f"v_lshl_add_u32 {u0}, {vc0}, 3, {u0}")
        E(f"v_and_b32 {u1}, 7, {vc1}"); E(f"v_lshl_add_u32 {va[0]}, {u1}, 5, {u0}")
        for db in range(1, 8): E(f"v_xor_b32 {va[db]}, {32 * db}, {va[0]}")
        E(f"v_lshlrev_b32 {u0}, 8, {vql}"); E(f"v_add_u32 {u0}, {sT0}, {u0}")
        E(f"v_and_b32 {u1}, 1, {vg}"); E(f"v_lshl_add_u32 {u0}, {u1}, 3, {u0}")
        E(f"v_lshrrev_b32 {u1}, 1, {vg}"); E(f"v_xor_b32 {u1}, {u1}, {vql}"); E(f"v_lshl_add_u32 {ka[0]}, {u1}, 4, {u0}")
        for s in range(1, 8): E(f"v_xor_b32 {ka[s]}, {32 * s}, {ka[0]}")
        E(f"s_lshl_b32 {sM0KV}, {sQH}, 13"); E(f"s_add_u32 {sM0KV}, {sM0KV}, {sT0}")
        E(f"v_lshlrev_b32 {vOS}, 4, {vLane}"); E(f"v_add_u32 {vKW}, {sM0KV}, {vOS}"); E(f"s_add_u32 {sS}, {sM0KV}, {sDL}")
        E(f"s_lshl_b32 {sOO}, {sB}, 1"); E(f"s_add_u32 {sOO}, {sOO}, {sQH}"); E(f"s_mul_i32 {sOO}, {sOO}, {6 * 131072}")
        sSG = sHP
        if OPT["sig"]:
            sSG = S(93)
            E(f"s_bfe_u32 {sT1}, {sHP}, 0x20001"); E(f"s_lshr_b32 {sSG}, {sHP}, 3"); E(f"s_lshl1_add_u32 {sT1}, {sT1}, {sSG}")
            E(f"s_and_b32 {sSG}, {sHP}, 1"); E(f"s_lshl1_add_u32 {sSG}, {sT1}, {sSG}")
        E(f"s_lshl_b32 {sT1}, {sSG}, 1"); E(f"s_add_u32 {sT1}, {sT1}, {sHS}"); E(f"s_lshl_b32 {sT1}, {sT1}, 12"); E(f"s_add_u32 {sOO}, {sOO}, {sT1}")
        E(f"s_lshl_b32 {sT1}, {sW}, 2"); E(f"s_add_u32 {sT1}, {sT1}, {65536 if E3 else 163776}"); E(f"v_mov_b32 {vFL}, {sT1}")
        for q in range(6): E(f"v_mov_b32 {vl[q]}, 0")
        if F4:
            E(f"v_mov_b32 {vZero}, 0")
            E(f"s_lshl_b32 {sT1}, {sB}, 12"); E(f"s_lshl_b32 {sFLO}, {sSG}, 2"); E(f"s_add_u32 {sT1}, {sT1}, {sFLO}"); E(f"s_add_u32 {sFLO}, {sT1}, {FLOFF}")
            ops.append(lambda: (e(f"s_or_b32 {sT1}, s2, {sW}"), e(f"s_cselect_b32 {SRDF[2]}, 0, {FLOFF + 65536}"), e(f"s_cselect_b32 {SRDD[2]}, 0, 4")))
            E(f"s_mov_b32 {SRDF[0]}, s18"); E(f"s_mov_b32 {SRDF[1]}, s19"); E(f"s_mov_b32 {SRDF[3]}, 0x20000")
            E(f"s_mov_b32 {SRDD[0]}, s16"); E(f"s_mov_b32 {SRDD[1]}, s17"); E(f"s_mov_b32 {SRDD[3]}, 0x20000")
        return ops
    def rdK(n, pi, slot): return lambda: a.ds_read_b64(KF(n)[2 * pi:2 * pi + 2], ka[2 * (n >> 1) + pi], slot * 16384 + (n & 1) * 4096)
    def rdV(db, uu, slot): return lambda: a.ds_read_tr(VF(db)[2 * uu:2 * uu + 2], va[db], slot * 16384 + uu * 4096)

    def rdA(s, i): return [(lambda u=u: a.ds_read_tr(AF(i)[2 * u:2 * u + 2], wa[i], (s % 4) * 16384 + u * 1024)) for u in range(2)]
    def rdB(s, j):
        xs = (s // 2) % 4
        return lambda: a.ds_read_b128(BF(s % 2, j), xa[xs // 2][s % 2], (xs % 2) * 24576 + j * 2048)
    p1list = [(t, p) for t in range(4) for p in range(8)]
    def p1_ops(k):
        t, p = p1list[k]
        ops = []
        if p % 4 == 0:
            ops.append(lambda: (e(f"s_add_u32 {sP1}, {sKV0}, {t * 8192 + (p // 4) * 4096}"), e(f"s_and_b32 {sP1}, {sP1}, 262143")))
        ops.append(lambda: a.bload(P1R(t, p), kvv[p % 4], SRDKV, sP1, (p % 4) * 1024, nt))
        return ops
    p1_at = {}
    for k in range(32): p1_at.setdefault(k * OPT["p1end"] // 32, []).append(k)
    p2_at = {}
    for k in range(OPT["n2"]): p2_at.setdefault(OPT["p2s"] + (k * (OPT["p2e"] - OPT["p2s"])) // OPT["n2"], []).append(k)
    conv = []
    for J in range(3):
        for ks in range(4):
            for jj in range(2):
                j = 2 * J + jj
                X, Y, D = ACC(2 * ks, j), ACC(2 * ks + 1, j), QF(j, ks)
                for R in (X, Y):
                    for k in range(4): conv.append((J, lambda r=R[k]: e(f"v_mul_f32 {r}, {sC[0]}, {r}")))
                conv.append((J, lambda X=X, D=D: e(f"v_cvt_pk_bf16_f32 {D[0]}, {X[0]}, {X[1]}")))
                conv.append((J, lambda X=X, D=D: e(f"v_cvt_pk_bf16_f32 {D[1]}, {X[2]}, {X[3]}")))
                conv.append((J, lambda Y=Y, D=D: e(f"v_cvt_pk_bf16_f32 {D[2]}, {Y[0]}, {Y[1]}")))
                conv.append((J, lambda Y=Y, D=D: e(f"v_cvt_pk_bf16_f32 {D[3]}, {Y[2]}, {Y[3]}")))

    a.wait_for(("w", 0), ("x", 0)); e("s_barrier")
    stamp(a, 1)
    for j in range(6):
        rdB(0, j)()
        for r in rdA(0, j): r()
    for r in rdA(0, 6): r()
    late = late_setup()
    free = [g for i in range(3, 8) for g in range(6 * i + 2, 6 * i + 6)]
    for s in range(32):
        if s in (8, 16, 24): stamp(a, 1 + s // 8, 2)
        G = Gaps()
        last = s == 31
        order = [(i, j) for j in range(6) for i in range(8)] if last else [(i, j) for i in range(8) for j in range(6)]
        mf = [(lambda i=i, j=j: a.mfma16(ACC(i, j), AF(i), BF(s % 2, j), ACC(i, j) if s else 0)) for i, j in order]
        if s:
            m0_ = mf[0]; mf[0] = lambda m0_=m0_: (a.wait_for(lgkm=2), m0_())
        for u, r in enumerate(rdA(s, 7)): G.mem(u, r)
        def bar(s=s):
            if s < 31: a.wait_for(("w", s + 1), ("x", (s + 1) // 2), lgkm=0)
            else: a.wait_for(lgkm=0)
            e("s_barrier")
        G.mem(7, bar)
        if not last:
            for u, r in enumerate(rdA(s + 1, 0)): G.mem(8 + u, r)
            for i in range(1, 7):
                for u, r in enumerate(rdA(s + 1, i)): G.mem(6 * i + 6 + u, r)
            for j, g in enumerate([10, 11, 14, 15, 16, 17]): G.mem(g, rdB(s + 1, j))
        ops = []
        if s + 4 < 32: ops += dma_w(s + 4)
        c = (s - 1) // 2 + 4
        if s >= 1 and c < 16: ops += dma_x(c, (s - 1) % 2)
        for k in p1_at.get(s, []): ops += p1_ops(k)
        for k in p2_at.get(s, []):
            ops.append(lambda k=k: (e(f"s_add_u32 {sT2}, {sKV0}, {OPT['p2b'] + k * OPT['tl'] * 128}"), e(f"s_and_b32 {sT2}, {sT2}, 262143")))
            ops.append(lambda: a.bload(vTD, vT2, SRDKV, sT2, 0, " nt" if OPT["p2nt"] else ""))
        if F4 and s == 2: ops.append(lambda: a.bload(vTag, vZero, SRDF, sFLO, 0, " sc1"))
        if F4 and s == 10:
            ops.append(lambda: (a.wait_for(vTag), e(f"v_add_u32 {vTag}, 0x9e3779b9, {vTag}"), e(f"v_or_b32 {vTag}, 1, {vTag}")))
            ops.append(lambda: a.bstore(vTag, vZero, SRDD, 0, 0, " sc1"))
        if F4 and s == 12:
            ops.append(lambda: (e(f"s_cmp_eq_u32 {sW}, 0"), e(f"s_cselect_b32 {SRDD[2]}, 4, 0"), e(f"s_mov_b32 {SRDF[2]}, {FLOFF + 65536}")))
        if s == 2 and OPT["wo_touch"] == 1:
            ops.append(lambda: (e(f"s_lshl_b32 {sT2}, s2, 2"), e(f"s_add_u32 {sT2}, {sT2}, {sW}"), e(f"s_lshl_b32 {sT2}, {sT2}, 13")))
            ops.append(lambda: a.bload(vTD, vTA, SRDWO, sT2, 0))
        if last:
            for half in range(2):
                ops.append(lambda half=half: (e(f"s_add_u32 {sP1}, {sKV0}, {32768 + half * 4096}"), e(f"s_and_b32 {sP1}, {sP1}, 262143"), e(f"s_add_u32 m0, {sS}, {half * 4096}")))
                for j in range(4): ops.append(lambda j=j: a.dma(kvv[j], SRDKV, sP1, j * 1024, nt))
        if s >= 28:
            t = s - 28
            ops += [(lambda p=p: a.ds_write_b128(vKW, P1R(t, p), t * 16384 + p * 1024)) for p in range(8)]
        if s >= 30:
            ops += [rdK(n, pi, 0) for n in range(4 * (s - 30), 4 * (s - 30) + 4) for pi in range(2)]
        if last:
            for i in range(4): G.valu(4 + i, lambda i=i: e(f"v_mov_b32 {vZ[i]}, 0"))
        fr = free if not last else list(range(OPT['d4'], OPT['d4'] + 28))
        assert len(ops) <= len(fr), (s, len(ops))
        for o, g in zip(ops, [fr[(k * len(fr)) // len(ops)] for k in range(len(ops))]): G.mem(g, o)
        if s == 0:
            for k, o in enumerate(late): G.valu(8 + k // 2, o)
        if last:
            g = 0
            n = 0
            while conv and g < 48:
                J = conv[0][0]
                g = max(g, 16 * J + 18)
                if g >= 48: break
                G.valu(g, conv.pop(0)[1]); n += 1
                if n % 2 == 0: g += 1
        G.run(mf)
    stamp(a, 2); stamp(a, 5, 2)
    if OPT["only01"]: e("s_waitcnt vmcnt(0) lgkmcnt(0)"); e(f"s_cmp_eq_u32 {sHS}, 1"); e("s_cbranch_scc1 L1_end")
    e("s_nop 3")
    def xlane(op, m, tmp):
        return [lambda: e(f"v_mov_b32 {tmp}, {m}"), lambda: e("s_nop 1"), lambda: e(f"v_permlane16_swap_b32 {m}, {tmp}"), lambda: e("s_nop 1"),
                lambda: e(f"{op} {m}, {m}, {tmp}"),
                lambda: e(f"v_mov_b32 {tmp}, {m}"), lambda: e("s_nop 1"), lambda: e(f"v_permlane32_swap_b32 {m}, {tmp}"), lambda: e("s_nop 1"),
                lambda: e(f"{op} {m}, {m}, {tmp}")]
    def rowmax_ops(j, m, tmp):
        X, Y = NEG(j), TMP(j)
        return [lambda: e(f"v_max3_f32 {m}, {X[0]}, {X[1]}, {X[2]}"), lambda: e(f"v_max3_f32 {m}, {m}, {X[3]}, {Y[0]}"),
                lambda: e(f"v_max3_f32 {m}, {m}, {Y[1]}, {Y[2]}"), lambda: e(f"v_max_f32 {m}, {m}, {Y[3]}")] + xlane("v_max_f32", m, tmp)
    def negfill_ops(j, m):
        return [(lambda i=i: e(f"v_sub_f32 {NEG(j)[i]}, 0, {m}")) for i in range(4)]
    a.wait_for(lgkm=0)
    zm = [(lambda k=k: a.e(f"v_mfma_f32_32x32x16_bf16 {A(16 * k, 16)}, {vZ}, {vZ}, 0")) for k in list(range(12)) + [14, 15]]
    zm4 = [(lambda k=k: a.e(f"v_mfma_f32_32x32x16_bf16 {A(16 * k, 16)}, {vZ4}, {vZ4}, 0")) for k in list(range(12)) + [14, 15]]
    G = Gaps()
    G.spread([(o, 4) for _, o in conv], list(range(14))); conv = []
    G.run(zm)
    e("s_nop 1")
    sm = [(lambda j=j, n=n: a.mfma16(TMP(j) if n & 1 else NEG(j), KF(n), QF(j, n >> 1), (TMP(j) if n & 1 else NEG(j)) if n > 1 else 0))
          for j in range(6) for n in range(8)]

    NS = 96
    used = [0] * NS
    memg = {}
    def M(g, it, cost=4): memg.setdefault(g % NS, []).append(it); used[g % NS] += cost
    M(5, ("kill",), 12); M(6, ("m0", 0)); M(7, ("bar",), 8)
    for db in range(8): M(8 + db, ("v", db, 0)); M(12 + db, ("v", db, 1))
    for n in range(8): M(80 + n, ("k", n, 0)); M(84 + n, ("k", n, 1))
    dg = OPT["dg0"]
    for k in range(4): M(dg + 2 * k, ("dma", 0, k)); M(dg + 10 + 2 * k, ("dma", 1, k))
    M(dg + 8, ("m0", 1)); M(dg + 19, ("adv",), 12)
    for g in (95, 3, 23, 27): used[g] += 4
    valg = {}
    def place(j, seq, lo, hi):
        for L in range(8, 41, 4):
            u2 = list(used); g = lo; out = []
            for op, c, mn in seq:
                g = max(g, mn)
                while g <= hi and u2[g % NS] + c > L: g += 1
                if g > hi: break
                u2[g % NS] += c; out.append((op, g))
            else:
                used[:] = u2
                for op, g in out: valg.setdefault(g, []).append((j, op))
                return dict(out)
        raise Exception("no fit")
    pos = {}
    for j in range(6):
        b = 16 * j
        crit = [("e0", 8, b + 8), ("e1", 8, 0), ("e2", 8, 0), ("c0", 4, 0), ("e3", 8, 0), ("e4", 8, b + 10), ("c1", 4, 0), ("e5", 8, 0), ("e6", 8, 0),
                ("c2", 4, 0), ("e7", 8, 0), ("a0", 4, 0), ("c3", 4, 0)]
        pos[j] = place(j, crit, b + 8, b + 22)
    for j in range(6):
        b = 16 * j
        place(j, [(f"a{k}", 4, pos[j][f"e{k}"] + 1) for k in range(1, 8)], b + 9, b + 30)
    if OPT["verbose"]: print("gap load", used, "over", sum(max(0, x - 12) for x in used))
    def sm_op(j, op):
        Sx, Px, k = SB(j % 2), PB(j % 2), int(op[1])
        if op[0] == "e": e(f"v_exp_f32 {Sx[k]}, {Sx[k]}")
        if op[0] == "a": e(f"v_add_f32 {vl[j]}, {vl[j]}, {Sx[k]}")
        if op[0] == "c": e(f"v_cvt_pk_bf16_f32 {Px[k]}, {Sx[2 * k]}, {Sx[2 * k + 1]}")
    tail = [(g, j, op) for g in sorted(valg) if g >= NS for j, op in valg[g]]
    tail_e = {(j, int(op[1])) for g, j, op in tail if op[0] == "e"}
    init = [(lambda j=j, k=k: e(f"v_mov_b32 {SB(j % 2)[k]}, {'0xf149f2ca' if (j, k) in tail_e else 0}")) for j in (4, 5) for k in range(8)]
    init += [(lambda k=k: e(f"v_mov_b32 {PB(1)[k]}, 0")) for k in range(4)]

    G = Gaps()
    for j in range(5):
        G.spread([(o, 4) for o in rowmax_ops(j, vt[0], vt[1]) + negfill_ops(j, vt[0])], list(range(8 * j + 9, min(48, 8 * j + 17))))
    G.spread([(o, 4) for o in init[0:8]], list(range(26, 34)))
    G.spread([(o, 4) for o in init[8:16]], list(range(42, 48)))
    sSL = [S(94 + u) for u in range(4)]
    def stream_init():
        e(f"s_sub_u32 {sCnt}, 0, {sQH}")
        e(f"s_lshl_b32 {sT0}, {sQH}, 13"); e(f"s_add_u32 {sKVO}, {sKV0}, 49152"); e(f"s_sub_u32 {sKVO}, {sKVO}, {sT0}"); e(f"s_and_b32 {sKVO}, {sKVO}, 262143")
        e(f"s_add_u32 {sKVO2}, {sKVO}, 4096"); e(f"s_mov_b32 {sIT}, 0")
    def x5_ops():
        ops = []
        for p in range(8):
            if p % 4 == 0: ops.append(lambda p=p: (e(f"s_add_u32 {sP1}, {sKV0}, {5 * 8192 + (p // 4) * 4096}"), e(f"s_and_b32 {sP1}, {sP1}, 262143")))
            ops.append(lambda p=p: e(f"buffer_load_dwordx4 {X5(p)}, {kvv[p % 4]}, {SRDKV}, {sP1} offen" + (f" offset:{(p % 4) * 1024}" if p % 4 else "") + nt))
        return ops
    for k, o in enumerate(x5_ops()): G.mem(OPT["x5g"] + k // 2, o)
    G.mem(6, stream_init)
    if OPT["wo_touch"] == 3:
        G.mem(7, lambda: (e(f"s_lshl_b32 {sT2}, s2, 2"), e(f"s_add_u32 {sT2}, {sT2}, {sW}"), e(f"s_lshl_b32 {sT2}, {sT2}, 13")))
        G.mem(8, lambda: a.bload(vTD, vTA, SRDWO, sT2, 0))
    for u in range(4):
        G.mem(9 + u, lambda u=u: (e(f"s_sub_u32 {sT0}, {u}, {sQH}"), e(f"s_and_b32 {sT0}, {sT0}, 3"), e(f"s_lshl_b32 {sT0}, {sT0}, 14"), e(f"s_add_u32 {sSL[u]}, {sM0KV}, {sT0}")))
    G.mem(13, lambda: (e(f"s_mov_b32 {sSL0}, {sSL[0]}"), e(f"s_cmp_lg_u32 {sQH}, 0"), e("s_cselect_b64 vcc, -1, 0")))
    G.valu(14, lambda: e(f"v_add_u32 {vKW}, {sDL}, {vKW}"))
    G.run(sm)
    e("s_nop 7")
    for o in rowmax_ops(5, vt[0], vt[1]) + negfill_ops(5, vt[0]) + init[16:]: o()
    e("s_nop 1")

    def dma_kv(slot):
        ops = []
        for half in range(2):
            ops.append(lambda half=half: (e(f"s_add_u32 m0, {slot}, {half * 4096}"), e("s_nop 0")))
            for j in range(4):
                ops.append(lambda j=j, half=half: a.dma(kvv[j], SRDKV, sKVO2 if half else sKVO, j * 1024, nt))
        ops.append(lambda: (e(f"s_add_u32 {sKVO}, {sKVO}, 8192"), e(f"s_and_b32 {sKVO}, {sKVO}, 262143"), e(f"s_add_u32 {sKVO2}, {sKVO}, 4096")))
        return ops
    PVg = lambda j: [(lambda db=db: a.mfma16(OA(db, j), VF(db), PB(j % 2), OA(db, j))) for db in range(8)]
    lblc = [0]
    def only(kind, f):
        lblc[0] += 1; L = f"L1_only{lblc[0]}"
        e(f"s_cbranch_vcc{'z' if kind else 'nz'} {L}"); f(); a.label(L)
    def dma_half(u, half):
        e(f"s_add_u32 m0, {sSL[u]}, {half * 4096}"); e("s_nop 0")
        for j in range(4): e(f"buffer_load_dwordx4 {kvv[j]}, {SRDKV}, {sKVO2 if half else sKVO} offen" + (f" offset:{j * 1024}" if j else "") + nt + " lds")
    def x5_write():
        for p in range(8): e(f"ds_write_b128 {vKW}, {X5(p)}" + (f" offset:{p * 1024}" if p else ""))
    def tileB(u, vs=None, ks=None, dma=True, adv=True, kill=False, vm=OPT["bwait"], extra={}, nok=False):
        vs = u if vs is None else vs
        ks = (u + 1) % 4 if ks is None else ks
        mf = []
        for j in range(6):
            for n in range(8):
                D = SB(j % 2)[4 * (n & 1):4 * (n & 1) + 4]
                mf.append(lambda n=n, D=D, j=j: a.mfma16(D, KF(n), QF(j, n >> 1), D if n > 1 else NEG(j)))
            mf += PVg((j + 5) % 6)
        for idx, regs in ((0, [KF(n) for n in range(4)]), (4, [KF(n) for n in range(8)]), (24, [VF(d) for d in range(4)]), (28, [VF(d) for d in range(8)])):
            mf[idx] = (lambda f=mf[idx], regs=regs: (a.wait_for(*regs), f()))
        for g in range(NS):
            if not OPT["bnoc"] & 1: mf[g]()
            for it in memg.get(g, []):
                k = it[0]
                if OPT["bnoc"] & 2 and k in "vk": continue
                if k == "kill" and kill: e(f"s_cmp_lt_u32 {sCnt}, 22"); e(f"s_cselect_b32 {SRDKV[2]}, {NR}, 0"); e(f"s_add_u32 {sCnt}, {sCnt}, 1")
                if k == "m0" and dma: e(f"s_add_u32 m0, {sSL[u]}, {it[1] * 4096}")
                if k == "bar":
                    if vm is not None: a.wait(vm=vm)
                    if kill and OPT["thr"]:
                        lblc[0] += 1
                        e(f"s_bitcmp1_b32 s2, 0"); e(f"s_cbranch_scc{OPT['thrp']} L1_thr{lblc[0]}"); e(f"s_waitcnt vmcnt({OPT['thr']})"); a.label(f"L1_thr{lblc[0]}")
                    e("s_barrier")
                if k == "v": rdV(it[1], it[2], vs)()
                if k == "k" and not nok: rdK(it[1], it[2], ks)()
                if k == "dma" and dma: a.dma(kvv[it[2]], SRDKV, sKVO2 if it[1] else sKVO, it[2] * 1024, nt)
                if k == "adv" and adv: e(f"s_add_u32 {sKVO}, {sKVO}, 8192"); e(f"s_and_b32 {sKVO}, {sKVO}, 262143"); e(f"s_add_u32 {sKVO2}, {sKVO}, 4096")
            for f in extra.get(g, []): f()
            for j, op in valg.get(g + NS, []) + valg.get(g, []):
                if not OPT["bnoc"] & 4: sm_op(j, op)
        if OPT["bnoc"] & 1: a.wait(lgkm=0)
    stamp(a, 3)
    shift = lambda op, g0: {g0 + k: [lambda r=r: e(f"{op} {r}, {r}, {sDL}" if op == "v_subrev_u32" else f"{op} {r}, {sDL}, {r}")] for k, r in enumerate(ka + va)}
    shift = lambda op, g0: {g0 + k: [lambda r=r: e(f"{op} {r}, {sDL}, {r}")] for k, r in enumerate(ka + va)}
    e("s_waitcnt lgkmcnt(0)"); a.lds = []
    a.label("L1_tile0")
    tileB(0, dma=False, vm=None, extra={dg: [lambda: only(0, lambda: dma_half(0, 0))], dg + 10: [lambda: only(0, lambda: dma_half(0, 1))]})
    K2 = kernel2(a) if OPT["fuse"] else None
    x1, x2 = {}, {}
    if F4:
        early = next(K2)
        x1 = {50: [lambda: e(f"buffer_load_dword {vTag}, {vZero}, {SRDD}, 0 offen sc1")]}
        gl = [(x1, g) for g in range(30, 94, 2)] + [(x2, g) for g in range(30, 94, 2)]
        for k, un in enumerate(early):
            x, g = gl[k * len(gl) // len(early)]
            x.setdefault(g, []).append(lambda un=un: [e(t) for t in un])
    tileB(1, vm=None, extra=x1)
    tileB(2, vm=None, extra=x2)
    tileB(3, ks=0, vm=32, extra=shift("v_add_u32", 44))
    tileB(0, vs=0, ks=0, dma=False, adv=False, vm=32,
          extra={29: [lambda: only(0, x5_write)], 45: [lambda: (a.wait(vm=24, lgkm=0), e("s_barrier"))], 46: [lambda: only(1, x5_write)],
                 50: [lambda: only(1, lambda: dma_half(0, 0))], 60: [lambda: only(1, lambda: dma_half(0, 1))],
                 62: [lambda: (e(f"s_cmp_eq_u32 {sQH}, 0"), e(f"s_cselect_b32 {sSL[0]}, {sSL0}, {sS}"))]})
    def tlb_ops(g0):
        d = {}
        if OPT["tlbm"] & 2:
            d[g0] = [lambda: (e(f"v_mul_u32_u24 {vTA}, 0xc00, {vLane}"), e(f"v_mov_b32 {vTD}, s46"), e(f"v_mul_u32_u24 {vTD}, 0x30000, {vTD}"), e(f"v_add_u32 {vTA}, {vTA}, {vTD}"))]
            d[g0 + 1] = [lambda: e(f"global_load_dword {vTD}, {vTA}, s[14:15]")]
        if OPT["tlbm"] & 1:
            d[g0 + 3] = [lambda: (e(f"v_and_b32 {vTA}, 7, {vLane}"), e(f"v_lshlrev_b32 {vTA}, 17, {vTA}"))]
            d[g0 + 4] = [lambda: e(f"buffer_load_dword {vTD}, {vTA}, {SRDO}, {sOO} offen")]
        return d
    x4 = shift("v_subrev_u32", 44)
    if OPT["tlbw"] == 2:
        for g, o in tlb_ops(OPT["tlbg"]).items(): x4.setdefault(g, []).extend(o)
    tileB(0, vs=0, ks=0, dma=False, adv=False, vm=24, extra=x4)
    def bodyB():
        for u in range(4): tileB(u, kill=True, extra={40: [lambda: e(f"s_mov_b32 {sSL[0]}, {sSL0}")]} if u == 1 else {})
    steady = list(a.lds)
    a.label("L1_loopB")
    bodyB()
    assert a.lds == steady
    e(f"s_add_u32 {sIT}, {sIT}, 1"); e(f"s_cmp_lt_u32 {sIT}, 6"); e("s_cbranch_scc1 L1_loopB")
    x30, x31 = {}, {}
    if E3:
        fl4 = next(K2)
        for k, o in enumerate(fl4[0]): x30.setdefault(OPT["e30"] + 2 * k, []).append(o)
        for k, o in enumerate(fl4[1] + fl4[2]): x31.setdefault(OPT["e31"] + 2 * k, []).append(o)
    if OPT["tlbw"] == 1:
        for g, o in tlb_ops(OPT["tlbg"]).items(): x30[g] = o + x30.get(g, [])
    tileB(0, dma=False, adv=False, vm=16, extra=x30)
    tileB(1, dma=False, adv=False, vm=8 if E3 else 0, nok=True, extra=x31)
    stamp(a, 4)
    for g, j, op in tail: sm_op(j, op)
    e("s_nop 1")
    def lsum_ops(j):
        sp = "s[98:99]" if j == 0 else "s[100:101]"
        ops = xlane("v_add_f32", vl[j], vt[1]) + [lambda: e(f"v_cmp_ngt_f32 {sp}, {sTHR}, {vl[j]}"), lambda: e(f"v_rcp_f32 {R2(j)[0]}, {vl[j]}"),
                                                  lambda: e(f"v_rcp_f32 {R2(j)[1]}, {vl[j]}")]
        if j: ops.append(lambda: e("s_or_b64 s[98:99], s[98:99], s[100:101]"))
        return ops
    G = Gaps()
    G.spread([(o, 4) for j in range(2) for o in lsum_ops(j)], list(range(0, 8)))
    G.run(PVg(5))
    for j in range(2, 6):
        for o in lsum_ops(j): o()
    e("s_cmp_lg_u64 s[98:99], 0"); e(f"s_cselect_b32 {sT0}, 1, 0"); e(f"s_andn2_b32 {sT0}, {sT0}, {sPass}")
    if OPT["bnoc"]: e(f"s_mov_b32 {sT0}, 0")
    e(f"v_mov_b32 {vt[1]}, {sT0}"); e(f"ds_write_b32 {vFL}, {vt[1]}"); a.lds.append(set())
    if F4:
        e(f"v_readfirstlane_b32 s93, {vTag}"); e(f"s_or_b32 s93, s93, {sW}"); e("s_cbranch_scc0 L1_tagslow")
        a.label("L1_tagok")
        e(f"ds_write_b32 {vFL}, {vTag} offset:16"); a.lds.append(set())
    ostf = (" " + OPT["ost"].replace("+", " ")) if OPT["ost"] else ""
    fill = []
    cnt = [0]
    def ev(t):
        e(t); cnt[0] += 1
        if fill and cnt[0] % (OPT["fint"] if F4 else 3) == 0: fill.pop(0)()
    for j in range(6):
        if j == 1:
            a.wait(lgkm=0, vm=None if E3 else 4); e("s_barrier")
            if F4: vZ = V(244, 4)
            e(f"v_and_b32 {vt[0]}, 0xfffffff0, {vFL}"); a.ds_read_b128(vZ, vt[0], 0)
            if F4: e(f"ds_read_b32 {vTag}, {vt[0]} offset:16"); a.lds.append(vTag.regs())
        if j == 2:
            a.wait(lgkm=0)
            e(f"v_or3_b32 {vt[0]}, {vZ[0]}, {vZ[1]}, {vZ[2]}"); e(f"v_or_b32 {vt[0]}, {vt[0]}, {vZ[3]}"); e("s_nop 0")
            e(f"v_readfirstlane_b32 {sT1}, {vt[0]}"); e(f"s_cmp_lg_u32 {sT1}, 0")
            if not (OPT["only01"] or OPT["bnoc"] or OPT["kvskip"] or OPT["askip"]): e("s_cbranch_scc1 L1_fallback")
            if K2 and OPT["fuse"] < 3: next(K2); fill = next(K2)
            if E3: next(K2); fill = [] if OPT["w3l"] else fl4[3]
            elif F4:
                fl4 = next(K2)
                if OPT["fo"] == 2: fill = fl4
            if OPT["fuse"] == 3:
                e(f"s_mov_b32 {SRDWO[0]}, s18"); e(f"s_mov_b32 {SRDWO[1]}, s19"); e(f"s_mov_b32 {SRDWO[2]}, {FLOFF + 65536}"); e(f"s_mov_b32 {SRDWO[3]}, 0x20000")
                e(f"s_lshl_b32 {sT1}, {sB}, 12"); e(f"s_lshl_b32 {sT2}, {sHP}, 2"); e(f"s_add_u32 {sT1}, {sT1}, {sT2}"); e(f"s_add_u32 {sP1}, {sT1}, {FLOFF}")
                e(f"v_lshlrev_b32 {vTA}, 8, {vLane}"); e(f"v_mov_b32 {vTD}, 0x5eedf1a6")
        if E3 and j == OPT["pj"]: next(K2)
        e(f"s_add_u32 {sT0}, {sOO}, {j * 131072}")
        for m in range(4):
            T = V(208 + 8 * (m % 2), 8); D = V(224 + 4 * (m % 2), 4)
            for i in range(8): ev(f"v_accvgpr_read_b32 {T[i]}, {OA(2 * m + (i >> 2), j)[i & 3]}")
            for i in range(4): ev(f"v_pk_mul_f32 {T[2*i:2*i+2]}, {T[2*i:2*i+2]}, {R2(j)}")
            for i in range(4): ev(f"v_cvt_pk_bf16_f32 {D[i]}, {T[2*i]}, {T[2*i+1]}")
            a.bstore(D, vOS, SRDO, sT0, m * 1024, ostf)
        if F4: zm4[2 * j](); zm4[2 * j + 1]()
    assert not fill
    if E3 and OPT["tp"]:
        def signal(t):
            e("s_barrier")
            e(f"s_cmp_lg_u32 {sW}, 0"); e(f"s_cbranch_scc1 L1_nosig{t}")
            e("s_mov_b64 exec, 0xffff")
            e(f"buffer_store_dword v38, v179, {SRDF}, {sFLO} offen sc1")
            e("s_mov_b64 exec, -1")
            a.label(f"L1_nosig{t}")
        K2.send((signal, fl4[3] if OPT["w3l"] else [], lambda: stamp(a, 5), lambda: dump_stamps(a, 6, 0x4000000, sW, vt[0], vt[1], last=False)))
    elif F4:
        e(f"v_lshlrev_b32 v179, 8, {vLane}")
        if OPT["fo"] == 0:
            for o in fl4: o()
        if not E3: next(K2)
        a.wait(vm=32 if OPT["fo"] == 0 else 0); e("s_barrier")
        stamp(a, 5)
        e(f"s_cmp_lg_u32 {sW}, 0"); e("s_cbranch_scc1 L1_nosig")
        e("s_mov_b64 exec, 0xffff")
        e(f"buffer_store_dword v38, v179, {SRDF}, {sFLO} offen sc1")
        e("s_mov_b64 exec, -1")
        a.label("L1_nosig")
        if E3 and OPT["pj"] == 6: next(K2)
        if E3 and OPT["w3l"]:
            for o in fl4[3]: o()
        if E3 and OPT["pj"] == 6: a.wait(vm=8 if OPT["w3l"] else 0)
        K2.send(lambda: dump_stamps(a, 6, 0x4000000, sW, vt[0], vt[1], last=False))
    if F4: pass
    elif OPT["fuse"] == 3:
        a.wait(vm=0); e("s_barrier")
        stamp(a, 5)
        e(f"s_cmp_lg_u32 {sW}, 0"); e("s_cbranch_scc1 L1_nosig")
        e("s_mov_b64 exec, 0xffff")
        e(f"buffer_store_dword {vTD}, {vTA}, {SRDWO}, {sP1} offen sc1")
        e("s_mov_b64 exec, -1")
        a.label("L1_nosig")
        next(K2); fill = next(K2)
        K2.send((fill, lambda: dump_stamps(a, 6, 0x4000000, sW, vt[0], vt[1], last=False)))
    elif K2:
        stamp(a, 5)
        K2.send((sB, lambda: dump_stamps(a, 6, 0x4000000, sW, vt[0], vt[1], last=False)))
    else:
        dump_stamps(a, 6, 0x4000000, sW, vt[0], vt[1])
    a.label("L1_end"); e("s_endpgm")
    if F4:
        next(K2)
        a.label("L1_tagslow")
        e("s_mov_b32 s75, 0")
        a.label("L1_tagloop")
        e("s_sleep 8"); e(f"buffer_load_dword {vTag}, {vZero}, {SRDD}, 0 offen sc1"); e("s_waitcnt vmcnt(0)")
        e(f"v_readfirstlane_b32 s93, {vTag}"); e("s_add_u32 s75, s75, 1"); e("s_cmp_lg_u32 s93, 0"); e("s_cbranch_scc1 L1_tagok")
        e("s_cmp_lt_u32 s75, 0x40000"); e("s_cbranch_scc1 L1_tagloop")
        e("s_branch L1_tagok")
    a.label("L1_fallback")
    a.lds = []; a.vm = []
    e("s_waitcnt vmcnt(0) lgkmcnt(0)"); e("s_barrier")
    e(f"s_mov_b32 {sPass}, 1"); e(f"s_mov_b32 {SRDKV[2]}, {NR}")
    for q in range(6): e(f"v_mov_b32 {vl[q]}, 0xff800000")
    e(f"s_mov_b32 {sKVO}, 0"); e(f"s_mov_b32 {sKVO2}, 4096"); e(f"s_mov_b32 {sIT}, 0")
    a.label("L1_fb_loop")
    for o in dma_kv(sM0KV): o()
    e("s_waitcnt vmcnt(0)"); e("s_barrier")
    for n in range(8):
        for pi in range(2): rdK(n, pi, 0)()
    for f in sm: f()
    e("s_nop 15")
    for j in range(6):
        for o in rowmax_ops(j, vt[0], vt[1]): o()
        e(f"v_max_f32 {vl[j]}, {vl[j]}, {vt[0]}")
    e("s_barrier")
    e(f"s_add_u32 {sIT}, {sIT}, 1"); e(f"s_cmp_lt_u32 {sIT}, 32"); e("s_cbranch_scc1 L1_fb_loop")
    e(f"s_mov_b32 {sKVO}, {sKV0}"); e(f"s_add_u32 {sKVO2}, {sKVO}, 4096")
    for t in range(4):
        e(f"s_add_u32 {sT0}, {sM0KV}, {t * 16384}")
        for o in dma_kv(sT0): o()
    for o in dma_kv(sS): o()
    for o in x5_ops(): o()
    e(f"s_mov_b32 {sSL[0]}, {sSL0}")
    for j in range(6):
        for o in negfill_ops(j, vl[j]): o()
        e(f"v_mov_b32 {vl[j]}, 0")
    if not F4:
        for i in range(4): e(f"v_mov_b32 {vZ[i]}, 0")
    for o in init: o()
    e("s_nop 1")
    for f in (zm4 if F4 else zm): f()
    stream_init()
    e("s_waitcnt vmcnt(0)"); e("s_barrier")
    for n in range(8):
        for pi in range(2): rdK(n, pi, 0)()
    e("s_waitcnt lgkmcnt(0)"); e("s_nop 15")
    e("s_branch L1_tile0")
    return a.text()

def kernel2(a):
    fused = a is not None
    if not fused: a = Asm()
    e = a.e
    SRDWO, SRDOW, SRDOUT, SRDDBG = S(20, 4), S(24, 4), S(28, 4), S(80, 4)
    sW, sRB, sCB, sT0, sT1, sT2, sIT = S(36), S(46), S(47), S(48), S(49), S(50), S(45)
    sWOo, sOo, sM0 = S(76), S(77), S(78)
    vLane = V(1); vt = [V(i) for i in range(2, 10)]
    wa = [V(10 + k) for k in range(8)]
    wv = [V(18 + k) for k in range(8)]
    ov = [V(26 + k) for k in range(6)]
    ra = [V(32 + k) for k in range(3)]
    vRW, vOut = V(35), V(36)
    AC = lambda i, j: A(4 * (j * 8 + i), 4)
    AF = lambda i: V(40 + 4 * i, 4)
    BF = lambda sl, j: V(72 + 24 * sl + 4 * j, 4)
    REG = 36864
    osc = " sc1" if (fused and OPT["osc"]) else ""
    F4 = fused and OPT["fuse"] == 4
    if F4:
        sT2, sM0 = S(75), S(74)
        vt[0] = V(4)
        SRDF, sCL, sMK, sPC, vPD, vTg, vPA = S(84, 4), S(79), S(50), S(75), V(37), V(38), V(39)
    E3 = F4 and OPT["fo"] == 3
    if E3: sCL = S(92); REG = 8192
    TP = E3 and OPT["tp"]
    SLB = [131072, 32768, 98304, 0] if E3 else [0, 8192, 16384, 24576]
    wl = [V(168 + k) for k in range(8)]; rw = [V(176 + k) for k in range(3)]
    mark0 = len(a.out)
    if not fused:
        a.k2 = 1
        a.label("mha_oproj_kernel")
        e("s_cmp_ge_u32 s2, 256"); e("s_cbranch_scc1 L2_end")
        e("s_load_dwordx16 s[4:19], s[0:1], 0")
        e(f"v_lshrrev_b32 {vt[0]}, 6, v0"); e(f"v_and_b32 {vLane}, 63, v0")
        e(f"v_readfirstlane_b32 {sW}, {vt[0]}")
    e(f"s_and_b32 {sT2}, s2, 7"); e(f"s_lshr_b32 {sT0}, s2, 3")
    if OPT["map2"] in (0, 2):
        e(f"s_lshr_b32 {sT1}, {sT2}, 1"); e(f"s_lshl_b32 {sT1}, {sT1}, 3"); e(f"s_and_b32 {sRB}, {sT0}, 7")
        e(f"s_add_u32 {sRB}, {sT1}, {sRB}")
        e(f"s_and_b32 {sT1}, {sT2}, 1"); e(f"s_lshl_b32 {sT1}, {sT1}, 2"); e(f"s_lshr_b32 {sCB}, {sT0}, 3"); e(f"s_add_u32 {sCB}, {sCB}, {sT1}")
        if OPT["map2"] == 2:
            e(f"s_lshl_b32 {sCB}, {sCB}, 2"); e(f"s_lshr_b32 {sCB}, {OPT['cbtab']}, {sCB}"); e(f"s_and_b32 {sCB}, {sCB}, 7")
    else:
        e(f"s_lshl_b32 {sT1}, {sT2}, 2"); e(f"s_and_b32 {sT2}, {sT0}, 3"); e(f"s_add_u32 {sRB}, {sT1}, {sT2}")
        e(f"s_lshr_b32 {sCB}, {sT0}, 2")
        if OPT["cbrot"]: e(f"s_add_u32 {sCB}, {sCB}, {OPT['cbrot']}"); e(f"s_and_b32 {sCB}, {sCB}, 7")
    t0, t1, t2, t3 = wa[:4]
    e(f"v_lshrrev_b32 {t2}, 4, {vLane}"); e(f"v_and_b32 {t1}, 15, {vLane}")
    e(f"v_lshlrev_b32 {t3}, 1, {t2}"); e(f"v_xor_b32 {t1}, {t1}, {t3}")
    e(f"v_lshlrev_b32 {t0}, 11, {t2}"); e(f"v_lshl_add_u32 {wv[0]}, {t1}, 4, {t0}")
    e(f"v_xor_b32 {t1}, 128, {wv[0]}")
    for m in range(1, 8): e(f"v_add_u32 {wv[m]}, {m * 8192 - (m % 4) * 1024}, {t1 if m & 1 else wv[0]}")
    if OPT["wvx"] == 1:
        e(f"v_and_b32 {t1}, 15, {vLane}"); e(f"v_lshlrev_b32 {t0}, 14, {t2}"); e(f"v_lshl_add_u32 {wv[0]}, {t1}, 4, {t0}")
        for m in range(1, 8): e(f"v_add_u32 {wv[m]}, {m * 2048 - (m % 4) * 1024}, {wv[0]}")
    if OPT["wvx"] == 5:
        e(f"v_and_b32 {t1}, 15, {vLane}"); e(f"v_lshlrev_b32 {t0}, 12, {t2}"); e(f"v_lshl_add_u32 {wv[0]}, {t1}, 4, {t0}")
        for m in range(1, 8): e(f"v_add_u32 {wv[m]}, {((m & 1) + 8 * (m >> 1)) * 2048 - (m % 4) * 1024}, {wv[0]}")
    if OPT["wvx"] == 6:
        e(f"v_and_b32 {t1}, 15, {vLane}"); e(f"v_lshlrev_b32 {t0}, 13, {t2}"); e(f"v_lshl_add_u32 {wv[0]}, {t1}, 4, {t0}")
        for m in range(1, 8): e(f"v_add_u32 {wv[m]}, {((m & 3) + 16 * (m >> 2)) * 2048 - (m % 4) * 1024}, {wv[0]}")
    if OPT["wvx"] in (7, 8, 9):
        r_ = {7: 0, 8: 2, 9: 2}[OPT["wvx"]]
        e(f"s_add_u32 {sT0}, {sCB}, {r_}"); e(f"s_and_b32 {sT0}, {sT0}, 7"); e(f"s_add_u32 {sT0}, {sT0}, 8"); e(f"s_sub_u32 {sT0}, {sT0}, {sCB}"); e(f"s_lshl_b32 {sT0}, {sT0}, 7")
        e(f"v_bfe_u32 {t1}, {vLane}, 3, 1"); e(f"v_mul_lo_u32 {t1}, {t1}, {sT0}"); e(f"v_and_b32 {t3}, 7, {vLane}"); e(f"v_lshl_add_u32 {t1}, {t3}, 4, {t1}")
        e(f"s_lshl_b32 {sT0}, {sCB}, 7"); e(f"s_sub_u32 {sT0}, 4096, {sT0}"); e(f"v_add_u32 {t1}, {sT0}, {t1}")
        e(f"v_lshlrev_b32 {t0}, {14 if OPT['wvx'] == 9 else 11}, {t2}"); e(f"v_add_u32 {wv[0]}, {t1}, {t0}")
        for m in range(1, 8): e(f"v_add_u32 {wv[m]}, {m * (2048 if OPT['wvx'] == 9 else 8192) - (m % 4) * 1024}, {wv[0]}")
    if OPT["wvx"] == 2:
        e(f"v_and_b32 {t1}, 7, {vLane}"); e(f"v_lshrrev_b32 {t0}, 3, {vLane}"); e(f"v_lshlrev_b32 {t0}, 11, {t0}"); e(f"v_lshl_add_u32 {wv[0]}, {t1}, 4, {t0}")
        for m in range(1, 8): e(f"v_add_u32 {wv[m]}, {(m >> 1) * 16384 + (m & 1) * 128 - (m % 4) * 1024 + 4096}, {wv[0]}")
        e(f"v_add_u32 {wv[0]}, 4096, {wv[0]}")
    if OPT["wvx"] == 3:
        e(f"v_and_b32 {t1}, 15, {vLane}"); e(f"v_lshlrev_b32 {t0}, 11, {t2}"); e(f"v_lshl_add_u32 {wv[0]}, {t1}, 4, {t0}")
        for m in range(1, 8): e(f"v_add_u32 {wv[m]}, {m * 8192 - (m % 4) * 1024}, {wv[0]}")
    if OPT["wvx"] == 4:
        e(f"v_lshlrev_b32 {wv[0]}, 4, {vLane}"); e(f"s_mul_i32 {sT0}, {sCB}, {8192 - 256}"); e(f"v_add_u32 {wv[0]}, {sT0}, {wv[0]}")
        for m in range(1, 8): e(f"v_add_u32 {wv[m]}, {m * 1024 - (m % 4) * 1024}, {wv[0]}")
    e(f"s_mul_i32 {sM0}, {sW}, {REG}")
    e(f"s_lshl_b32 {sWOo}, {sW}, {20 if OPT['sig'] else 21}"); e(f"s_lshl_b32 {sOo}, {sW}, 15")
    def ovs():
        e(f"s_mul_i32 {sT0}, {sRB}, 786432"); e(f"v_lshlrev_b32 {vt[0]}, 4, {vLane}")
        e(f"v_add_u32 {ov[0]}, {sT0}, {vt[0]}")
        for j in range(1, 6): e(f"v_add_u32 {ov[j]}, {j * 131072}, {ov[0]}")
    if not fused:
        ovs()
        e("s_waitcnt lgkmcnt(0)")
        stamp(a, 0)
    e(f"s_lshl_b32 {sT0}, {sCB}, 8")
    e(f"s_add_u32 {SRDWO[0]}, s12, {sT0}"); e(f"s_addc_u32 {SRDWO[1]}, s13, 0")
    e(f"s_sub_u32 {SRDWO[2]}, 8388608, {sT0}"); e(f"s_mov_b32 {SRDWO[3]}, 0x20000")
    e(f"s_mov_b32 {SRDOW[0]}, s18"); e(f"s_mov_b32 {SRDOW[1]}, s19")
    e(f"s_mov_b32 {SRDOW[2]}, 25165824"); e(f"s_mov_b32 {SRDOW[3]}, 0x20000")
    if OPT["k2skip"] & 1: e(f"s_mov_b32 {SRDWO[2]}, 0")
    if OPT["k2skip"] & 2: e(f"s_mov_b32 {SRDOW[2]}, 0")
    def issue_w(slot):
        ops = []
        for h in range(2):
            ops.append(lambda h=h: e(f"s_add_u32 m0, {sM0}, {SLB[slot] + h * 4096}"))
            for m in range(4): ops.append(lambda m=m, h=h: a.dma(wv[4 * h + m], SRDWO, sWOo, m * 1024, tag=("w", slot)))
        ops.append(lambda: e(f"s_add_u32 {sWOo}, {sWOo}, 65536"))
        return ops
    def issue_o(slot):
        ops = [(lambda j=j: a.bload(BF(slot, j), ov[j], SRDOW, sOo, 0, osc)) for j in range(6)]
        ops.append(lambda: e(f"s_add_u32 {sOo}, {sOo}, 1024"))
        return ops
    def run(ops):
        for o in ops:
            n = len(a.out); o()
            if "m0" in a.out[-1]: e("s_nop 0")
    def wa_setup():
        e(f"v_lshrrev_b32 {vg}, 4, {vLane}"); e(f"v_lshrrev_b32 {vr}, 2, {vLane}"); e(f"v_and_b32 {vc}, 3, {vLane}")
        e(f"v_and_b32 {u1}, 7, {vr}"); e(f"v_lshlrev_b32 {u0}, 8, {vr}")
        e(f"v_add_u32 {u0}, {sM0}, {u0}"); e(f"v_lshl_add_u32 {u0}, {vc}, 3, {u0}"); e(f"v_lshl_add_u32 {u0}, {u1}, 5, {u0}")
        if E3: e(f"v_add_u32 {u0}, 98304, {u0}")
        for d in range(4):
            e(f"s_add_u32 {sT0}, {sW}, {d}"); e(f"s_and_b32 {sT0}, {sT0}, 3"); e(f"s_lshl_b32 {sT0}, {sT0}, 6")
            e(f"v_xor_b32 {wa[2*d]}, {sT0}, {u0}"); e(f"v_xor_b32 {wa[2*d+1]}, 32, {wa[2*d]}")
    vg, vr, vc, u0, u1 = vt[3:8]
    if F4:
        ovs(); wa_setup()
        for i in range(4): e(f"v_mov_b32 v{252 + i}, 0")
        def scl():
            e(f"s_lshr_b32 {sT0}, {sRB}, 1"); e(f"s_lshl_b32 {sT0}, {sT0}, 4"); e(f"s_lshl_b32 {sT1}, {sCB}, 1"); e(f"s_add_u32 {sT0}, {sT0}, {sT1}")
            e(f"s_and_b32 {sT1}, {sRB}, 1"); e(f"s_add_u32 {sT0}, {sT0}, {sT1}"); e(f"s_lshl_b32 {sT0}, {sT0}, 8"); e(f"s_lshl_b32 {sT1}, {sW}, 4")
            e(f"s_add_u32 {sT0}, {sT0}, {sT1}"); e(f"s_add_u32 {sCL}, {sT0}, {FLOFF}")
        if E3: scl()
        lines = [t[1:] for t in a.out[mark0:]]; del a.out[mark0:]
        units = []
        for t in lines:
            if t.startswith(("s_addc", "s_cselect")): units[-1].append(t)
            else: units.append([t])
        yield units
        fills = issue_w(0) + issue_w(1) + issue_w(2) + issue_w(3)
        if E3: yield [[(lambda o=o: run([o])) for o in issue_w(k)] for k in range(4)]
        else:
            yield [(lambda o=o: run([o])) for o in fills]
            scl()
        e(f"v_and_b32 {vPA}, 3, {vLane}"); e(f"v_lshlrev_b32 {vPA}, 2, {vPA}"); e(f"v_mov_b32 {vTg}, v63")
        e(f"s_mov_b32 {sPC}, 0"); e(f"s_mov_b32 {sMK}, 1")
        if E3:
            for k in range(8): e(f"v_add_u32 {wl[k]}, 0xfffe8000, {wa[k]}")
            if TP: e(f"v_lshlrev_b32 v179, 8, {vLane}"); e("s_mov_b32 s93, 0")
            yield None
            e(f"buffer_load_dword {vPD}, {vPA}, {SRDF}, {sCL} offen sc1"); a.vm.append(vPD.regs())
        dump1 = yield None
        if TP:
            signal, w3ops, st5, dump1 = dump1
            a.wait_for(vPD); st5()
        a.k2 = 1; stamp(a, 0)
        if not E3: e(f"buffer_load_dword {vPD}, {vPA}, {SRDF}, {sCL} offen sc1")
        if OPT["fo"] == 1: run(fills)
    elif fused:
        yield None
        sB1, dump1 = yield issue_w(0) + issue_w(1) + issue_w(2) + issue_w(3)
        if OPT["fuse"] == 3:
            vTag, vPA, vPD = V(61), V(60), V(59)
            a.k2 = 1; stamp(a, 0)
            e(f"s_lshr_b32 {sT0}, {sRB}, 1"); e(f"s_lshl_b32 {sT0}, {sT0}, 4"); e(f"s_lshl_b32 {sT1}, {sCB}, 1"); e(f"s_add_u32 {sT0}, {sT0}, {sT1}")
            e(f"s_and_b32 {sT1}, {sRB}, 1"); e(f"s_add_u32 {sT0}, {sT0}, {sT1}"); e(f"s_lshl_b32 {sT0}, {sT0}, 8"); e(f"s_add_u32 s39, {sT0}, {FLOFF}")
            e(f"v_and_b32 {vPA}, 15, {vLane}"); e(f"v_lshlrev_b32 {vPA}, 2, {vPA}")
            e(f"s_cmp_lg_u32 {sW}, 0"); e("s_cbranch_scc1 L2_np0")
            e(f"buffer_load_dword {vPD}, {vPA}, {SRDDBG}, s39 offen sc1")
            a.label("L2_np0")
            run(sB1)
        ovs()
    else:
        run(issue_w(0)); run(issue_o(0)); run(issue_w(1)); run(issue_o(1))
        if OPT["codepf"]: code_prefetch(a, vLane, V(173), V(172), "mha_oproj_kernel", 16384, sW)
        run(issue_w(2)); run(issue_o(2)); run(issue_w(3))
    t0 = vt[0]
    mark1 = len(a.out)
    e(f"s_mov_b32 {SRDOUT[0]}, s14"); e(f"s_mov_b32 {SRDOUT[1]}, s15")
    e(f"s_mov_b32 {SRDOUT[2]}, 6291456"); e(f"s_mov_b32 {SRDOUT[3]}, 0x20000")
    e(f"v_add_u32 {vRW}, {sM0}, {t0}")
    RB = [0, 32768, 98304]
    if E3: e(f"v_add_u32 {rw[1]}, {RB[1]}, {vRW}"); e(f"v_add_u32 {rw[2]}, {RB[2]}, {vRW}"); rw[0] = vRW
    for d in range(1, 4):
        e(f"s_sub_u32 {sT0}, {sW}, {d}"); e(f"s_and_b32 {sT0}, {sT0}, 3"); e(f"s_mul_i32 {sT0}, {sT0}, {REG}")
        e(f"s_add_u32 {sT0}, {sT0}, {RB[d - 1] if E3 else (d - 1) * 12288}"); e(f"v_add_u32 {ra[d-1]}, {sT0}, {t0}")
    if not F4: wa_setup()
    e(f"s_mul_i32 {sT0}, {sRB}, 196608"); e(f"s_lshl_b32 {sT1}, {sCB}, 8"); e(f"s_add_u32 {sT0}, {sT0}, {sT1}")
    e(f"s_lshl_b32 {sT1}, {sW}, 6"); e(f"s_add_u32 {sT0}, {sT0}, {sT1}")
    e(f"v_and_b32 {u1}, 15, {vLane}"); e(f"v_lshlrev_b32 {vOut}, 11, {u1}"); e(f"v_add_u32 {vOut}, {sT0}, {vOut}")
    e(f"v_and_b32 {u1}, 1, {vg}"); e(f"v_lshl_add_u32 {vOut}, {u1}, 5, {vOut}")
    e(f"v_lshrrev_b32 {u1}, 1, {vg}"); e(f"v_lshl_add_u32 {vOut}, {u1}, 4, {vOut}")
    vZ = V(168, 4)
    if not F4:
        for i in range(4): e(f"v_mov_b32 {vZ[i]}, 0")
        e("s_nop 1")
        for k in range(12): e(f"v_mfma_f32_32x32x16_bf16 {A(16 * k, 16)}, {vZ}, {vZ}, 0")
    def rdA(slot, i):
        if E3: return [(lambda u=u: a.ds_read_tr(AF(i)[2 * u:2 * u + 2], (wl if slot & 1 else wa)[i], (32768 if slot < 2 else 0) + u * 4096)) for u in range(2)]
        return [(lambda u=u: a.ds_read_tr(AF(i)[2 * u:2 * u + 2], wa[i], slot * 8192 + u * 4096)) for u in range(2)]
    late2 = []
    if E3: late2 = a.out[mark1:]; del a.out[mark1:]
    def chk(n):
        e(f"v_cmp_ne_u32 vcc, {vPD}, {vTg}"); e(f"s_and_b32 {sT0}, vcc_lo, {sMK}"); e(f"s_cbranch_scc1 L2_slow{n}")
        a.label(f"L2_back{n}")
    if TP:
        chk(0)
        stamp(a, 1)
        run(issue_o(0)); run(issue_o(1)); run(issue_o(2))
        n3 = 8 if w3ops else 0
        for o in w3ops: o()
        for i in range(7):
            for r in rdA(0, i): r()
        a.out += late2
        e("s_cmp_lg_u32 s93, 0"); e("s_cbranch_scc1 L2_sigd")
        e(f"s_waitcnt vmcnt({18 + n3})"); signal("a")
        a.label("L2_sigd")
        a.wait(vm=6 + n3)
        stamp(a, 2)
    elif F4:
        if not E3: a.wait(vm=32 if OPT["fo"] == 1 else 0)
        chk(0)
        stamp(a, 1)
        run(issue_o(0)); run(issue_o(1)); run(issue_o(2))
        if not E3: a.wait(vm=18 + 24)
        for i in range(7):
            for r in rdA(0, i): r()
        a.out += late2
        a.wait(vm=6)
        stamp(a, 2)
    elif fused and OPT["fuse"] == 3:
        stamp(a, 1)
        e(f"s_mov_b32 {sIT}, 0")
        e(f"s_cmp_lg_u32 {sW}, 0"); e("s_cbranch_scc1 L2_skip")
        e("s_waitcnt vmcnt(32)")
        e("s_branch L2_chk")
        a.label("L2_poll")
        e(f"s_sleep {OPT['psleep']}")
        e(f"buffer_load_dword {vPD}, {vPA}, {SRDDBG}, s39 offen sc1")
        e("s_waitcnt vmcnt(0)")
        a.label("L2_chk")
        e(f"v_cmp_ne_u32 vcc, {vPD}, {vTag}"); e(f"s_add_u32 {sIT}, {sIT}, 1")
        e("s_cbranch_vccz L2_skip")
        e(f"s_cmp_lt_u32 {sIT}, 0x40000"); e("s_cbranch_scc1 L2_poll")
        a.label("L2_skip")
        e("s_barrier")
        stamp(a, 2)
        run(issue_o(0)); run(issue_o(1)); run(issue_o(2))
        a.wait_for(("w", 0))
        for i in range(7):
            for r in rdA(0, i): r()
        a.wait(vm=6)
        stamp(a, 3)
    elif fused:
        e(f"s_mov_b32 {SRDDBG[0]}, s16"); e(f"s_mov_b32 {SRDDBG[1]}, s17"); e(f"s_mov_b32 {SRDDBG[2]}, 256"); e(f"s_mov_b32 {SRDDBG[3]}, 0x20000")
        e(f"s_lshl_b32 {sT0}, {sB1}, 4"); e(f"s_lshr_b32 {sT1}, {sRB}, 1"); e(f"s_lshl_b32 {sT1}, {sT1}, 4")
        if OPT["fuse"] == 2: e(f"s_mov_b32 {sT0}, 0"); e(f"s_mov_b32 {sT1}, 0")
        e(f"v_mov_b32 {vt[0]}, 1"); e(f"v_mov_b32 {vt[1]}, 0"); e(f"s_mov_b32 {sIT}, 0")
        a.k2 = 1; stamp(a, 0)
        a.wait(vm=0); e("s_barrier")
        stamp(a, 1)
        e(f"s_cmp_lg_u32 {sW}, 0"); e("s_cbranch_scc1 L2_skip")
        e("s_mov_b64 exec, 1")
        e(f"buffer_atomic_add {vt[0]}, {vt[1]}, {SRDDBG}, {sT0} offen sc1")
        a.label("L2_poll")
        e(f"buffer_load_dword {vt[2]}, {vt[1]}, {SRDDBG}, {sT1} offen sc1")
        e("s_waitcnt vmcnt(0)")
        e(f"v_readfirstlane_b32 {sT2}, {vt[2]}"); e(f"s_add_u32 {sIT}, {sIT}, 1")
        e(f"s_cmp_ge_u32 {sT2}, {256 if OPT['fuse'] == 2 else 16}"); e("s_cbranch_scc1 L2_go")
        e(f"s_sleep {OPT['psleep']}")
        e(f"s_cmp_lt_u32 {sIT}, 0x40000"); e("s_cbranch_scc1 L2_poll")
        a.label("L2_go")
        e("s_mov_b64 exec, -1")
        a.label("L2_skip")
        for i in range(7):
            for r in rdA(0, i): r()
        e("s_barrier")
        stamp(a, 2)
        run(issue_o(0)); run(issue_o(1)); run(issue_o(2))
        a.wait(vm=0)
        stamp(a, 3)
    else:
        a.wait_for(("w", 0))
        stamp(a, 1)
        for i in range(7):
            for r in rdA(0, i): r()
    e(f"s_mov_b32 {sIT}, 0")
    PEEL = E3 and OPT["peel"]
    def red_w(i, j):
        d, b = i >> 1, i & 1
        c = (d - 1) * 12 + j * 2 + b
        a.ds_write_b128(rw[d - 1], AC(i, j), (c >> 3) * 32768 - RB[d - 1] + (c & 7) * 1024)
    def body(last=False):
        for u in range(4):
            G = Gaps()
            order = [(i, j) for i in ([2, 3, 4, 5, 6, 7, 0, 1] if last and u == 3 else range(8)) for j in range(6)]
            mf = [(lambda i=i, j=j: a.mfma16(AC(i, j), AF(i), BF(u, j), AC(i, j))) for i, j in order]
            m0_ = mf[0]; mf[0] = lambda m0_=m0_: (a.wait_for(BF(u, 5), lgkm=2), m0_())
            for k, r in enumerate(rdA(u, 7)): G.mem(k, r)
            if last and u == 3:
                G.mem(5, lambda: a.wait(lgkm=0))
                for k, (i, j) in enumerate(order[:36]): G.mem(k + OPT["pdl"], lambda i=i, j=j: red_w(i, j))
                G.run(mf)
                continue
            G.mem(5, lambda: a.wait_for(("w", (u + 1) % 4), lgkm=0))
            for i in range(7):
                for k, r in enumerate(rdA((u + 1) % 4, i)): G.mem(6 * i + 6 + k, r)
            ops = issue_w(u) + issue_o((u + 3) % 4)
            if last: ops = issue_o(3) if u == 0 else []
            if u == 0 and not PEEL: G.mem(3, lambda: (e(f"s_cmp_eq_u32 {sIT}, 7"), e(f"s_cselect_b32 {SRDWO[2]}, 0, {SRDWO[2]}")))
            if u == 1 and not PEEL: G.mem(3, lambda: (e(f"s_cmp_eq_u32 {sIT}, 7"), e(f"s_cselect_b32 {SRDOW[2]}, 0, {SRDOW[2]}")))
            if F4 and u == 0 and not last: G.mem(4, lambda: (e(f"s_add_u32 {sT1}, {sIT}, 3"), e(f"s_lshr_b32 {sT1}, {sT1}, 1"), e(f"s_bfm_b32 {sMK}, {sT1}, 0")))
            if F4 and u == 1 and not last: G.mem(4, lambda: (a.wait_for(vPD), chk(1)))
            if OPT["sig"] and u == 0 and not last: G.mem(2, lambda: (e(f"s_cmp_eq_u32 {sIT}, 3"), e(f"s_cselect_b32 {sT1}, {6 * 524288}, 0"), e(f"s_add_u32 {sWOo}, {sWOo}, {sT1}")))
            if F4 and u == OPT["pollu"] and not last: ops = ops + [lambda: a.bload(vPD, vPA, SRDF, sCL, 0, " sc1")]
            free = [g for i in range(1, 8) for g in range(6 * i + 2, 6 * i + 6)]
            if last: free = free[:12]
            for o, g in zip(ops, [free[(k * len(free)) // len(ops)] for k in range(len(ops))]): G.mem(g, o)
            G.run(mf)
    mark = len(a.out)
    body(); body(); sl, sv = list(a.lds), list(a.vm)
    del a.out[mark:]
    a.lds, a.vm = list(sl), list(sv)
    a.label("L2_loop")
    body()
    assert a.lds == sl and a.vm == sv, (a.vm, sv)
    e(f"s_add_u32 {sIT}, {sIT}, 1"); e(f"s_cmp_lt_u32 {sIT}, {7 if PEEL else 8}"); e("s_cbranch_scc1 L2_loop")
    if PEEL: body(True)
    else: a.wait(vm=0, lgkm=0)
    if not fused: stamp(a, 2); stamp(a, 3)
    if F4: stamp(a, 3)
    stamp(a, 4)
    e("s_nop 7")
    for d in range(1, 4):
        for j in range(6):
            for b in range(2):
                c = (d - 1) * 12 + j * 2 + b
                if PEEL: continue
                if E3: a.ds_write_b128(rw[d - 1], AC(2 * d + b, j), (c >> 3) * 32768 - RB[d - 1] + (c & 7) * 1024)
                else: a.ds_write_b128(vRW, AC(2 * d + b, j), c * 1024)
    R = lambda b, j: V(40 + 8 * j + 4 * b, 4)
    for j in range(6):
        for b in range(2):
            for i in range(4): e(f"v_accvgpr_read_b32 {R(b, j)[i]}, {AC(b, j)[i]}")
    a.wait(lgkm=0); e("s_barrier")
    T = lambda d, b, j: V(96 + 48 * d + 8 * j + 4 * b, 4)
    for j in range(6):
        for d in range(3):
            for b in range(2):
                c = d * 12 + j * 2 + b
                a.ds_read_b128(T(d, b, j), ra[d], ((c >> 3) * 32768 - RB[d] + (c & 7) * 1024) if E3 else (j * 2 + b) * 1024)
    for j in range(6):
        for d in range(3):
            for b in range(2):
                a.wait_for(T(d, b, j))
                for i in range(2): e(f"v_pk_add_f32 {R(b, j)[2*i:2*i+2]}, {R(b, j)[2*i:2*i+2]}, {T(d, b, j)[2*i:2*i+2]}")
        D = V(10 + 4 * j, 4)
        e(f"v_cvt_pk_bf16_f32 {D[0]}, {R(0, j)[0]}, {R(0, j)[1]}"); e(f"v_cvt_pk_bf16_f32 {D[1]}, {R(0, j)[2]}, {R(0, j)[3]}")
        e(f"v_cvt_pk_bf16_f32 {D[2]}, {R(1, j)[0]}, {R(1, j)[1]}"); e(f"v_cvt_pk_bf16_f32 {D[3]}, {R(1, j)[2]}, {R(1, j)[3]}")
        e(f"s_mov_b32 {sT0}, {j * 32768}"); e("s_nop 0")
        e(f"v_permlane16_swap_b32 {D[0]}, {D[2]}"); e(f"v_permlane16_swap_b32 {D[1]}, {D[3]}")
        a.bstore(D, vOut, SRDOUT, sT0, 0, (" " + OPT["ost2"].replace("+", " ")) if OPT["ost2"] else "")
    dump_stamps(a, 6, 0x4100000, sW, vt[0], vt[1])
    a.k2 = 0
    if OPT["leak"]:
        lk = OPT["leak"]
        if lk < 100:
            e(f"v_readfirstlane_b32 s93, v{241 + 2 * (lk % 10)}"); e(f"v_readfirstlane_b32 s94, v{241 + 2 * (lk // 10)}")
        elif lk < 200:
            e(f"s_mov_b32 s93, s{61 + 2 * (lk % 10)}"); e(f"s_mov_b32 s94, s{61 + 2 * ((lk // 10) % 10)}")
        else:
            e("v_readfirstlane_b32 s93, v251"); e("s_mov_b32 s94, s61")
        e("s_nop 4"); e("s_sub_u32 s93, s93, s94"); e("s_lshl_b32 s93, s93, 2"); e("s_min_u32 s93, s93, 100000")
        e("s_memrealtime s[98:99]"); e("s_waitcnt lgkmcnt(0)"); e("s_add_u32 s93, s93, s98")
        a.label("L2_spin")
        e("s_memrealtime s[98:99]"); e("s_waitcnt lgkmcnt(0)"); e("s_sub_u32 s94, s93, s98"); e("s_cmp_gt_i32 s94, 0"); e("s_cbranch_scc1 L2_spin")
    if fused:
        dump1()
        yield None
        for n in range(2):
            if TP and n == 0:
                a.label("L2_slow0")
                e("s_waitcnt vmcnt(0)"); signal("b"); e("s_mov_b32 s93, 1"); e("s_branch L2_slow0x")
                n = "0w"
            a.label(f"L2_slow{n}")
            e(f"s_sleep {OPT['psleep']}")
            if n == "0w": a.label("L2_slow0x")
            e(f"buffer_load_dword {vPD}, {vPA}, {SRDF}, {sCL} offen sc1"); e("s_waitcnt vmcnt(0)")
            e(f"s_add_u32 {sPC}, {sPC}, 1"); e(f"s_cmp_ge_u32 {sPC}, 0x40000"); e(f"s_cbranch_scc1 L2_back{str(n)[0]}")
            e(f"v_cmp_ne_u32 vcc, {vPD}, {vTg}"); e(f"s_and_b32 {sT0}, vcc_lo, {sMK}"); e(f"s_cbranch_scc1 L2_slow{n}")
            e(f"s_branch L2_back{str(n)[0]}")
        yield None
    else:
        a.label("L2_end")
        e("s_endpgm")
        yield a.text()


def kernel0():
    a = Asm(); e = a.e
    a.label("mha_pre_kernel")
    e("s_cmp_ge_u32 s2, 256"); e("s_cbranch_scc1 L0_end")
    e("s_load_dwordx16 s[4:19], s[0:1], 0"); e("s_waitcnt lgkmcnt(0)")
    e("s_mov_b32 s20, s4"); e("s_mov_b32 s21, s5"); e("s_mov_b32 s22, 6291456"); e("s_mov_b32 s23, 0x20000")
    e("s_mov_b32 s24, s10"); e("s_mov_b32 s25, s11"); e("s_mov_b32 s26, 8388608"); e("s_mov_b32 s27, 0x20000")
    e("v_lshlrev_b32 v1, 7, v0"); e("s_lshl_b32 s3, s2, 15")
    e("buffer_load_dword v2, v1, s[20:23], s3 offen"); e("buffer_load_dword v3, v1, s[24:27], s3 offen")
    e("s_waitcnt vmcnt(0)")
    a.label("L0_end"); e("s_endpgm")
    return a.text()

def main():
    launches = []
    if OPT["fuse"]:
        s = HEADER + "; @launch kernel=mha_qattn_kernel grid=(256,1,1) block=(256,1,1) lds=163840\n"
        s += '.amdgcn_target "amdgcn-amd-amdhsa--gfx950"\n.text\n'
        s += ".globl mha_qattn_kernel\n.p2align 8\n.type mha_qattn_kernel,@function\n" + kernel1() + "L_text_end:\n"
        s += kd("mha_qattn_kernel", 512, 256)
        open(sys.argv[1], "w").write(s)
        return
    if OPT["only"] in (None, "k1"): launches.append("; @launch kernel=mha_qattn_kernel grid=(256,1,1) block=(256,1,1) lds=163840")
    if OPT["only"] in (None, "k2"): launches.append("; @launch kernel=mha_oproj_kernel grid=(256,1,1) block=(256,1,1) lds=163840")
    s = HEADER + "\n".join(launches) + "\n"
    s += '.amdgcn_target "amdgcn-amd-amdhsa--gfx950"\n.text\n'
    s += ".globl mha_qattn_kernel\n.p2align 8\n.type mha_qattn_kernel,@function\n" + kernel1()
    s += ".globl mha_oproj_kernel\n.p2align 8\n.type mha_oproj_kernel,@function\n" + next(kernel2(None)) + "L_text_end:\n"
    s += kd("mha_qattn_kernel", 512, 256) + kd("mha_oproj_kernel", 512, 256)
    open(sys.argv[1], "w").write(s)
main()
```

```python
import sys, math, struct
from asmlib import *

OPT = dict(kv_nt=1, only=None, dbgQ=0, prof=0, kvskip=0, wo_touch=3, n2=0, rotH=0, p1end=26, ost="", codepf=0, k2skip=0, map2=1, pre=0, askip=0, p2nt=1, p2s=3, p2e=30, early=1, xw_touch=0, leak=0, rotW=0, krot=0, ost2="", itst=0, bwait=16, bdrop=0, qmode=0, tl=64, fuse=1, psleep=2, osc=1, bmap=0, evw=16, h16=0, dg0=20, verbose=0, d4=8, x5g=0, bnoc=0, xmap=0, only01=0, p2b=49152, pollu=2, fo=0, fint=4, hperm=0, cbrot=0, wvx=0, cbtab='0x76345210', e30=20, e31=20, pj=5, w3l=0, thr=0, thrp=0, tp=0, sig=0, rotp='1,1,2,4,3', tlbw=0, tlbg=64, tlbm=3, peel=0, pdl=8)
for a_ in sys.argv[2:]:
    k, v = a_.split("=")
    assert k in OPT, k
    OPT[k] = int(v) if v.lstrip("-").isdigit() else v

def f32bits(x): return struct.unpack("<I", struct.pack("<f", x))[0]
CSCALE = math.log2(math.e) / math.sqrt(128.0)
THRESH = 2.0 ** 30
FLOFF = 0x2000000

HEADER = """; Kernarg layout for this problem (64 bytes, ptrs only, base s[0:1]):
"""

def stamp(a, i, lvl=1):
    if not OPT["prof"]: return
    if OPT["prof"] == 2 and lvl == 1 and i >= 2 and not getattr(a, "k2", 0): return
    if OPT["prof"] == 1 and lvl == 2: return
    if OPT["prof"] == 3 and not (lvl == 1 and i == (5 if getattr(a, "k2", 0) else 0)): return
    a.e("s_memtime s[98:99]"); a.e("s_memrealtime s[100:101]")
    a.e("s_waitcnt lgkmcnt(0)"); a.lds = []
    if getattr(a, "k2", 0): a.e(f"v_mov_b32 v{240+2*i}, s98"); a.e(f"v_mov_b32 v{241+2*i}, s100")
    else: a.e(f"s_mov_b32 s{60+2*i}, s98"); a.e(f"s_mov_b32 s{61+2*i}, s100")
def dump_stamps(a, n, wsoff, sW, vtmp, vaddr, last=True):
    if not OPT["prof"]: return
    e = a.e
    e("s_waitcnt vmcnt(0)")
    if last: stamp(a, n - 1)
    e("s_mov_b32 s88, s18"); e("s_mov_b32 s89, s19"); e("s_mov_b32 s90, 0x10000000"); e("s_mov_b32 s91, 0x20000")
    e(f"s_lshl_b32 s92, s2, 2"); e(f"s_add_u32 s92, s92, {sW}"); e("s_lshl_b32 s92, s92, 6"); e(f"s_add_u32 s92, s92, {wsoff}")
    e(f"v_mov_b32 {vaddr}, 0")
    for i in range(2 * n):
        e(f"v_mov_b32 {vtmp}, " + (f"v{240+i}" if getattr(a, "k2", 0) else f"s{60+i}"))
        e(f"buffer_store_dword {vtmp}, {vaddr}, s[88:91], s92 offen offset:{4*i}")
    e("s_waitcnt vmcnt(0)")

def code_prefetch(a, vLane, vtmp, vdst, start_label, nbytes, sW):
    e = a.e
    e("s_getpc_b64 s[84:85]")
    a.label(f"{start_label}_pc")
    e(f"s_sub_u32 s84, s84, {start_label}_pc-{start_label}"); e("s_subb_u32 s85, s85, 0")
    e(f"s_mov_b32 s86, L_text_end-{start_label}"); e("s_mov_b32 s87, 0x20000")
    e(f"v_lshlrev_b32 {vtmp}, 7, {vLane}"); e(f"s_lshl_b32 s93, {sW}, 13")
    for blk in range((nbytes + 32767) // 32768):
        a.bload(vdst, vtmp, S(84, 4), "s93", 0)
        e("s_add_u32 s93, s93, 32768")

def kernel1():
    a = Asm(); e = a.e
    SRDX, SRDW, SRDKV, SRDO, SRDWO = S(20, 4), S(24, 4), S(28, 4), S(32, 4), S(80, 4)
    sW, sB, sHP, sQH, sHS = S(36), S(37), S(38), S(40), S(41)
    sT0, sT1, sT2, sIT = S(42), S(43), S(44), S(45)
    sXK, sWK = S(46), S(47)
    sM0X, sM0W = S(48), S(49)
    sKVO, sKVO2, sM0KV = S(50), S(51), S(52)
    sTHR, sC = S(53), S(54, 2)
    sOO, sCnt, sKV0, sPass, sP1 = S(56), S(57), S(58), S(59), S(39)
    sDL, sSL0, sS = S(79), S(78), S(72)
    vLane = V(1)
    vt = [V(i) for i in range(2, 10)]
    xa = [[V(10 + 2 * s + k) for k in range(2)] for s in range(2)]
    wa = [V(14 + k) for k in range(8)]
    xv = [V(22 + k) for k in range(6)]
    wv = [V(28 + k) for k in range(4)]
    ka = [V(32 + k) for k in range(8)]
    va = [V(40 + k) for k in range(8)]
    kvv = [V(48 + k) for k in range(4)]
    vl = [V(52 + k) for k in range(6)]
    vKW, vOS, vTA, vTD, vFL = V(58), V(59), V(60), V(61), V(62)
    vZ = V(10, 4)
    ACC = lambda i, j: V(64 + 64 * (j >> 1) + 8 * i + 4 * (j & 1), 4)
    QF = lambda j, ks: V(64 + 32 * (j >> 1) + 8 * ks + 4 * (j & 1), 4)
    NEG = lambda j: V(160 + 4 * j, 4)
    SB = lambda i: V(184 + 8 * i, 8)
    PB = lambda i: V(200 + 4 * i, 4)
    TMP = lambda j: V(184 + 4 * j, 4)
    X5 = lambda p: V(208 + 4 * p, 4)
    R2 = lambda j: V(232 + 2 * j, 2)
    OA = lambda db, j: A(4 * (8 * j + db), 4)
    KF = lambda n: A(192 + 4 * n, 4)
    VF = lambda db: A(224 + 4 * db, 4)
    AF = lambda i: A(128 + 4 * i, 4)
    BF = lambda st, j: A((160 if st == 0 else 224) + 4 * j, 4)
    P1R = lambda t, p: A(4 * (8 * t + p), 4)
    XBASE = 65536
    F4 = OPT["fuse"] == 4
    E3 = F4 and OPT["fo"] == 3
    SRDF, SRDD, sFLO, vTag, vZero, vZ4 = S(84, 4), S(88, 4), S(73), V(63), V(0), V(252, 4)
    nt = " nt" if OPT["kv_nt"] else ""

    a.label("mha_qattn_kernel")
    e("s_cmp_ge_u32 s2, 256"); e("s_cbranch_scc1 L1_end")
    e("s_load_dwordx16 s[4:19], s[0:1], 0")
    e(f"v_lshrrev_b32 {vt[0]}, 6, v0"); e(f"v_and_b32 {vLane}, 63, v0")
    e("s_and_b32 s3, s2, 7"); e(f"s_lshr_b32 {sT0}, s2, 3")
    e(f"v_readfirstlane_b32 {sW}, {vt[0]}")
    e(f"s_and_b32 {sT1}, s3, 1"); e(f"s_and_b32 {sT2}, {sT0}, 7")
    if OPT["bmap"] == 0: e(f"s_lshl_b32 {sT1}, {sT1}, 3")
    if OPT["bmap"] == 1: e(f"s_lshl_b32 {sT2}, {sT2}, 1")
    if OPT["bmap"] == 2: e(f"s_xor_b32 {sT1}, {sT1}, 1"); e(f"s_lshl_b32 {sT1}, {sT1}, 3")
    e(f"s_add_u32 {sB}, {sT1}, {sT2}")
    e(f"s_lshr_b32 {sT1}, s3, 1"); e(f"s_lshl_b32 {sT1}, {sT1}, 2"); e(f"s_lshr_b32 {sHP}, {sT0}, 3")
    if OPT["hperm"]:
        e(f"s_lshr_b32 {sT2}, {sHP}, 1"); e(f"s_not_b32 {sHP}, {sHP}"); e(f"s_and_b32 {sHP}, {sHP}, 1"); e(f"s_lshl_b32 {sHP}, {sHP}, 1"); e(f"s_add_u32 {sHP}, {sHP}, {sT2}")
    e(f"s_add_u32 {sHP}, {sHP}, {sT1}")
    if OPT["xmap"] == 1:
        e(f"s_lshr_b32 {sT1}, s3, 1"); e(f"s_lshl_b32 {sT1}, {sT1}, 2"); e(f"s_and_b32 {sT2}, {sT0}, 3"); e(f"s_add_u32 {sB}, {sT1}, {sT2}")
        e(f"s_and_b32 {sT1}, s3, 1"); e(f"s_lshl_b32 {sT1}, {sT1}, 3"); e(f"s_lshr_b32 {sHP}, {sT0}, 2"); e(f"s_add_u32 {sHP}, {sHP}, {sT1}")
    if OPT["xmap"] == 2:
        e(f"s_lshl_b32 {sT1}, s3, 1"); e(f"s_and_b32 {sT2}, {sT0}, 1"); e(f"s_add_u32 {sB}, {sT1}, {sT2}"); e(f"s_lshr_b32 {sHP}, {sT0}, 1")
    if OPT["xmap"] == 3:
        e(f"s_and_b32 {sB}, {sT0}, 15"); e(f"s_lshl_b32 {sT1}, s3, 1"); e(f"s_lshr_b32 {sHP}, {sT0}, 4"); e(f"s_add_u32 {sHP}, {sHP}, {sT1}")
    if OPT["xmap"] in (4, 5):
        e(f"s_lshr_b32 {sT1}, s3, 2"); e(f"s_lshl_b32 {sT1}, {sT1}, 3"); e(f"s_and_b32 {sT2}, {sT0}, 7"); e(f"s_add_u32 {sB}, {sT1}, {sT2}")
        e(f"s_and_b32 {sT1}, s3, 2"); e(f"s_lshl_b32 {sT1}, {sT1}, 2"); e(f"s_and_b32 {sT2}, s3, 1"); e(f"s_lshl1_add_u32 {sHP}, {sT2}, {sT1}")
        e(f"s_lshr_b32 {sT1}, {sT0}, 4"); e(f"s_lshl2_add_u32 {sHP}, {sT1}, {sHP}")
        e(f"s_bfe_u32 {sT1}, {sT0}, 0x10003")
        if OPT["xmap"] == 4: e(f"s_xor_b32 {sT1}, {sT1}, 1")
        e(f"s_add_u32 {sHP}, {sHP}, {sT1}")
    if OPT["xmap"] in (6, 7):
        e(f"s_lshr_b32 {sT1}, s3, 2"); e(f"s_lshl_b32 {sT1}, {sT1}, 3"); e(f"s_and_b32 {sT2}, {sT0}, 7"); e(f"s_add_u32 {sB}, {sT1}, {sT2}")
        e(f"s_and_b32 {sT1}, s3, 2"); e(f"s_lshl_b32 {sT1}, {sT1}, 1"); e(f"s_and_b32 {sT2}, s3, 1"); e(f"s_lshl3_add_u32 {sHP}, {sT2}, {sT1}")
        e(f"s_lshr_b32 {sT1}, {sT0}, 3")
        if OPT["xmap"] == 6: e(f"s_xor_b32 {sT1}, {sT1}, 1")
        e(f"s_add_u32 {sHP}, {sHP}, {sT1}")
    e(f"s_and_b32 {sQH}, {sW}, 1"); e(f"s_lshr_b32 {sHS}, {sW}, 1")
    t0, t1, t2, t3, t4, t5 = vt[:6]
    e(f"v_lshrrev_b32 {t2}, 4, {vLane}")
    e(f"v_and_b32 {t1}, 15, {vLane}")
    e(f"v_lshlrev_b32 {t3}, 1, {t2}"); e(f"v_xor_b32 {t1}, {t1}, {t3}")
    e(f"s_lshl_b32 {sT0}, {sQH}, 4"); e(f"v_add_u32 {t0}, {sT0}, {t2}")
    e(f"v_lshlrev_b32 {t0}, 13, {t0}")
    e(f"s_lshl_b32 {sT0}, {sHS}, 8"); e(f"v_add_u32 {t0}, {sT0}, {t0}")
    for m in range(4):
        e(f"v_xor_b32 {t3}, {8 * (m >> 1)}, {t1}"); e(f"v_lshl_add_u32 {t3}, {t3}, 4, {t0}")
        e(f"v_add_u32 {wv[m]}, {m * 32768 - m * 1024}, {t3}")
    e(f"v_lshrrev_b32 {t0}, 3, {vLane}")
    e(f"v_and_b32 {t1}, 7, {vLane}"); e(f"v_xor_b32 {t1}, {t1}, {t2}")
    e(f"s_mul_i32 {sT0}, {sW}, 48"); e(f"v_add_u32 {t0}, {sT0}, {t0}"); e(f"v_lshlrev_b32 {t0}, 11, {t0}")
    for m in range(6):
        e(f"v_xor_b32 {t3}, {4 * (m & 1)}, {t1}"); e(f"v_lshl_add_u32 {t3}, {t3}, 4, {t0}")
        e(f"v_add_u32 {xv[m]}, {m * 16384 - (m % 3) * 1024}, {t3}")
    e(f"s_mul_i32 {sM0X}, {sW}, 6144"); e(f"s_add_u32 {sM0X}, {sM0X}, {XBASE}")
    e(f"s_lshl_b32 {sM0W}, {sW}, 12")
    e("s_waitcnt lgkmcnt(0)")
    stamp(a, 0)
    e(f"s_lshl_b32 {sT0}, {sHP}, 9")
    e(f"s_add_u32 {SRDW[0]}, s10, {sT0}"); e(f"s_addc_u32 {SRDW[1]}, s11, 0")
    e(f"s_sub_u32 {SRDW[2]}, 8388608, {sT0}"); e(f"s_mov_b32 {SRDW[3]}, 0x20000")
    e(f"s_mul_i32 {sT0}, {sB}, 393216")
    e(f"s_add_u32 {SRDX[0]}, s4, {sT0}"); e(f"s_addc_u32 {SRDX[1]}, s5, 0")
    e(f"s_mov_b32 {SRDX[2]}, 393216"); e(f"s_mov_b32 {SRDX[3]}, 0x20000")

    if OPT["askip"]: e(f"s_mov_b32 {SRDX[2]}, 0"); e(f"s_mov_b32 {SRDW[2]}, 0")
    sKR, sKRW = S(76), S(77)
    if OPT["krot"]:
        e(f"s_lshr_b32 {sT0}, s2, 3"); e(f"s_and_b32 {sT1}, {sT0}, 7"); e(f"s_lshr_b32 {sT0}, {sT0}, 3"); e(f"s_lshl_b32 {sT0}, {sT0}, 1")
        e(f"s_add_u32 {sT0}, {sT0}, {sT1}"); e(f"s_and_b32 {sT0}, {sT0}, 7")
        if OPT["krot"] == 2: e(f"s_and_b32 {sT0}, {sT0}, 1"); e(f"s_lshl_b32 {sT0}, {sT0}, 2")
        if OPT["krot"] == 3: e(f"s_and_b32 {sT0}, {sT0}, 3"); e(f"s_lshl_b32 {sT0}, {sT0}, 1")
        e(f"s_lshl_b32 {sKR}, {sT0}, 8"); e(f"s_lshl_b32 {sKRW}, {sT0}, 20")
    def dma_x(c, part):
        if OPT["krot"]:
            ops = [lambda: (e(f"s_add_u32 m0, {sM0X}, {(c % 4) * 24576 + part * 3072}"), e(f"s_add_u32 {sXK}, {sKR}, {c * 128}"), e(f"s_and_b32 {sXK}, {sXK}, 2047"))]
        else:
            ops = [lambda: (e(f"s_add_u32 m0, {sM0X}, {(c % 4) * 24576 + part * 3072}"), e(f"s_movk_i32 {sXK}, {c * 128}"))]
        for m in range(3):
            ops.append(lambda m=m: a.dma(xv[3 * part + m], SRDX, sXK, m * 1024, tag=("x", c)))
        return ops
    def dma_w(s):
        if OPT["krot"]:
            ops = [lambda: (e(f"s_add_u32 m0, {sM0W}, {(s % 4) * 16384}"), e(f"s_add_u32 {sWK}, {sKRW}, {s * 262144}"), e(f"s_and_b32 {sWK}, {sWK}, 8388607"))]
        else:
            ops = [lambda: (e(f"s_add_u32 m0, {sM0W}, {(s % 4) * 16384}"), e(f"s_mov_b32 {sWK}, {s * 262144}"))]
        for m in range(4):
            ops.append(lambda m=m: a.dma(wv[m], SRDW, sWK, m * 1024, tag=("w", s)))
        return ops
    def run(ops):
        for o in ops: o()
    run(dma_w(0)); run(dma_x(0, 0)); run(dma_x(0, 1)); run(dma_w(1)); run(dma_w(2)); run(dma_x(1, 0)); run(dma_x(1, 1)); run(dma_w(3))
    if OPT["codepf"]: code_prefetch(a, vLane, vTA, vTD, "mha_qattn_kernel", OPT["codepf"] * 1024, sW)
    run(dma_x(2, 0)); run(dma_x(2, 1)); run(dma_x(3, 0)); run(dma_x(3, 1))
    e(f"s_lshl_b32 {sT0}, {sB}, 5"); e(f"s_lshl_b32 {sT1}, {sHP}, 1"); e(f"s_add_u32 {sT0}, {sT0}, {sT1}")
    e(f"s_add_u32 {sT0}, {sT0}, {sHS}"); e(f"s_lshl_b32 {sT0}, {sT0}, 18")
    e(f"s_cmp_eq_u32 {sQH}, 0"); e(f"s_cselect_b32 {sT1}, s6, s8"); e(f"s_cselect_b32 {sT2}, s7, s9")
    e(f"s_add_u32 {SRDKV[0]}, {sT1}, {sT0}"); e(f"s_addc_u32 {SRDKV[1]}, {sT2}, 0")
    NR = 0 if OPT["kvskip"] else 262144
    e(f"s_mov_b32 {SRDKV[2]}, {NR}"); e(f"s_mov_b32 {SRDKV[3]}, 0x20000")
    e(f"s_mov_b32 {SRDO[0]}, s18"); e(f"s_mov_b32 {SRDO[1]}, s19")
    e(f"s_mov_b32 {SRDO[2]}, 25165824"); e(f"s_mov_b32 {SRDO[3]}, 0x20000")
    e(f"s_mov_b32 {sTHR}, {f32bits(THRESH):#x}")
    e(f"s_mov_b32 {sC[0]}, {f32bits(CSCALE):#x}"); e(f"s_mov_b32 {sC[1]}, {f32bits(CSCALE):#x}")
    e(f"s_mul_i32 {sKV0}, {sHS}, {OPT['rotH'] * 8192}"); e(f"s_mov_b32 {sPass}, 0")
    if OPT["rotW"] == 1:
        e(f"s_lshr_b32 {sKV0}, s2, 3"); e(f"s_lshl_b32 {sT1}, {sHS}, 2"); e(f"s_add_u32 {sKV0}, {sKV0}, {sT1}")
        e(f"s_and_b32 {sKV0}, {sKV0}, 7"); e(f"s_lshl_b32 {sKV0}, {sKV0}, 15")
    if OPT["rotW"] == 2:
        e(f"s_lshr_b32 {sKV0}, s2, 5"); e(f"s_add_u32 {sKV0}, {sKV0}, s2"); e(f"s_lshl_b32 {sT1}, {sHS}, 2"); e(f"s_add_u32 {sKV0}, {sKV0}, {sT1}")
        e(f"s_and_b32 {sKV0}, {sKV0}, 7"); e(f"s_lshl_b32 {sKV0}, {sKV0}, 15")
    if OPT["rotW"] == 3:
        e(f"s_lshr_b32 {sKV0}, s2, 3"); e(f"s_add_u32 {sKV0}, {sKV0}, s2"); e(f"s_lshr_b32 {sT1}, s2, 6"); e(f"s_add_u32 {sKV0}, {sKV0}, {sT1}")
        e(f"s_lshl_b32 {sT1}, {sHS}, 2"); e(f"s_add_u32 {sKV0}, {sKV0}, {sT1}")
        e(f"s_and_b32 {sKV0}, {sKV0}, 7"); e(f"s_lshl_b32 {sKV0}, {sKV0}, 15")
    if OPT["rotW"] == 7:
        e(f"s_lshr_b32 {sKV0}, {sB}, 3"); e(f"s_add_u32 {sKV0}, {sKV0}, {sB}"); e(f"s_lshr_b32 {sT1}, {sHP}, 2"); e(f"s_lshl1_add_u32 {sKV0}, {sT1}, {sKV0}")
        e(f"s_and_b32 {sT1}, {sHP}, 3"); e(f"s_add_u32 {sKV0}, {sKV0}, {sT1}"); e(f"s_lshl2_add_u32 {sKV0}, {sHS}, {sKV0}")
        e(f"s_and_b32 {sKV0}, {sKV0}, 7"); e(f"s_lshl_b32 {sKV0}, {sKV0}, 15")
    if OPT["rotW"] == 9:
        ca, cb, sb, cc, n = [int(z) for z in OPT["rotp"].split(",")]
        e(f"s_and_b32 {sKV0}, s2, 7"); e(f"s_mul_i32 {sKV0}, {sKV0}, {ca}"); e(f"s_lshr_b32 {sT1}, s2, {3 + sb}"); e(f"s_mul_i32 {sT1}, {sT1}, {cb}")
        e(f"s_add_u32 {sKV0}, {sKV0}, {sT1}"); e(f"s_mul_i32 {sT1}, {sHS}, {cc}"); e(f"s_add_u32 {sKV0}, {sKV0}, {sT1}")
        e(f"s_and_b32 {sKV0}, {sKV0}, {(1 << n) - 1}"); e(f"s_lshl_b32 {sKV0}, {sKV0}, {18 - n}")
    if OPT["rotW"] == 4:
        e(f"s_mul_i32 {sKV0}, s2, 5"); e(f"s_lshr_b32 {sT1}, s2, 5"); e(f"s_add_u32 {sKV0}, {sKV0}, {sT1}")
        e(f"s_lshl_b32 {sT1}, {sHS}, 4"); e(f"s_add_u32 {sKV0}, {sKV0}, {sT1}")
        e(f"s_and_b32 {sKV0}, {sKV0}, 31"); e(f"s_lshl_b32 {sKV0}, {sKV0}, 13")
    if OPT["rotW"] == 5:
        e(f"s_lshr_b32 {sKV0}, s2, 3"); e(f"s_lshl_b32 {sT1}, s2, 2"); e(f"s_add_u32 {sKV0}, {sKV0}, {sT1}")
        e(f"s_lshl_b32 {sT1}, {sHS}, 4"); e(f"s_add_u32 {sKV0}, {sKV0}, {sT1}")
        e(f"s_and_b32 {sKV0}, {sKV0}, 31"); e(f"s_lshl_b32 {sKV0}, {sKV0}, 13")
    if OPT["rotW"] == 6:
        e(f"s_lshl_b32 {sKV0}, s2, 1"); e(f"s_add_u32 {sKV0}, {sKV0}, {sHS}"); e(f"s_mul_i32 {sKV0}, {sKV0}, 0x9e3779b1")
        e(f"s_lshr_b32 {sKV0}, {sKV0}, 27"); e(f"s_lshl_b32 {sKV0}, {sKV0}, 13")
    e(f"s_mul_i32 {sDL}, {sHS}, 49152"); e(f"s_sub_u32 {sDL}, 131072, {sDL}")
    e(f"v_lshlrev_b32 {vTA}, 7, {vLane}")
    vT2 = V(0)
    e(f"v_lshrrev_b32 {vT2}, {int(math.log2(64 // OPT['tl']))}, {vLane}"); e(f"v_lshlrev_b32 {vT2}, 7, {vT2}")
    if OPT["wo_touch"]:
        e(f"s_mov_b32 {SRDWO[0]}, s12"); e(f"s_mov_b32 {SRDWO[1]}, s13"); e(f"s_mov_b32 {SRDWO[2]}, 8388608"); e(f"s_mov_b32 {SRDWO[3]}, 0x20000")
    if OPT["xw_touch"]:
        e(f"s_lshl_b32 {sT2}, s2, 2"); e(f"s_add_u32 {sT2}, {sT2}, {sW}"); e(f"s_lshl_b32 {sT2}, {sT2}, 13")
        e("s_mov_b32 s84, s10"); e("s_mov_b32 s85, s11"); e("s_mov_b32 s86, 8388608"); e("s_mov_b32 s87, 0x20000")
        a.bload(vTD, vTA, S(84, 4), sT2, 0)
        e("s_mov_b32 s84, s4"); e("s_mov_b32 s85, s5"); e("s_mov_b32 s86, 6291456")
        a.bload(vTD, vTA, S(84, 4), sT2, 0)
    vh, vg, vr, vc1, vc0, vql, u0, u1 = vt
    e(f"v_lshrrev_b32 {vg}, 4, {vLane}"); e(f"v_bfe_u32 {vr}, {vLane}, 2, 2"); e(f"v_and_b32 {vc0}, 3, {vLane}")
    e(f"v_lshl_add_u32 {u0}, {vg}, 3, {vr}"); e(f"v_lshlrev_b32 {u0}, 8, {u0}")
    e(f"s_lshl_b32 {sT0}, {sHS}, 13"); e(f"v_add_u32 {u0}, {sT0}, {u0}")
    e(f"v_lshl_add_u32 {u0}, {vc0}, 3, {u0}"); e(f"v_lshl_add_u32 {u0}, {vr}, 5, {u0}")
    e(f"v_and_b32 {u1}, 1, {vg}"); e(f"v_lshl_add_u32 {wa[0]}, {u1}, 7, {u0}")
    for i in range(1, 8): e(f"v_xor_b32 {wa[i]}, {32 * i}, {wa[0]}")
    e(f"v_and_b32 {vql}, 15, {vLane}")
    e(f"s_mul_i32 {sT1}, {sQH}, 12288"); e(f"s_add_u32 {sT1}, {sT1}, {XBASE}")
    e(f"v_lshlrev_b32 {u0}, 7, {vql}"); e(f"v_add_u32 {u0}, {sT1}, {u0}")
    e(f"v_lshrrev_b32 {u1}, 1, {vql}"); e(f"v_xor_b32 {u1}, {u1}, {vg}")
    e(f"v_lshl_add_u32 {xa[0][0]}, {u1}, 4, {u0}"); e(f"v_xor_b32 {xa[0][1]}, 64, {xa[0][0]}")
    for k in range(2): e(f"v_add_u32 {xa[1][k]}, 49152, {xa[0][k]}")
    e(f"v_lshlrev_b32 {vh}, {sQH}, {vg}")
    e(f"v_xor_b32 {vh}, {vh}, {vql}"); e(f"v_lshlrev_b32 {u0}, 8, {vg}")
    e(f"v_lshl_add_u32 {kvv[0]}, {vh}, 4, {u0}")
    e(f"s_cmp_eq_u32 {sQH}, 0")
    for j in range(1, 4):
        e(f"s_cselect_b32 {sT1}, {4 * j}, {8 * (j & 1)}"); e(f"s_mul_i32 {sT1}, {sT1}, 16"); e(f"v_xor_b32 {kvv[j]}, {sT1}, {kvv[0]}")

    def late_setup():
        ops = []
        E = lambda s: ops.append(lambda: e(s))
        E(f"v_lshrrev_b32 {vg}, 4, {vLane}"); E(f"v_bfe_u32 {vr}, {vLane}, 2, 2"); E(f"v_and_b32 {vc0}, 3, {vLane}")
        E(f"v_and_b32 {vql}, 15, {vLane}"); E(f"v_lshrrev_b32 {vc1}, 2, {vLane}")
        E(f"s_lshl_b32 {sT0}, {sHS}, 16"); E(f"s_add_u32 {sT1}, {sT0}, 8192")
        E(f"v_lshlrev_b32 {u0}, 8, {vc1}"); E(f"v_add_u32 {u0}, {sT1}, {u0}"); E(f"v_lshl_add_u32 {u0}, {vc0}, 3, {u0}")
        E(f"v_and_b32 {u1}, 7, {vc1}"); E(f"v_lshl_add_u32 {va[0]}, {u1}, 5, {u0}")
        for db in range(1, 8): E(f"v_xor_b32 {va[db]}, {32 * db}, {va[0]}")
        E(f"v_lshlrev_b32 {u0}, 8, {vql}"); E(f"v_add_u32 {u0}, {sT0}, {u0}")
        E(f"v_and_b32 {u1}, 1, {vg}"); E(f"v_lshl_add_u32 {u0}, {u1}, 3, {u0}")
        E(f"v_lshrrev_b32 {u1}, 1, {vg}"); E(f"v_xor_b32 {u1}, {u1}, {vql}"); E(f"v_lshl_add_u32 {ka[0]}, {u1}, 4, {u0}")
        for s in range(1, 8): E(f"v_xor_b32 {ka[s]}, {32 * s}, {ka[0]}")
        E(f"s_lshl_b32 {sM0KV}, {sQH}, 13"); E(f"s_add_u32 {sM0KV}, {sM0KV}, {sT0}")
        E(f"v_lshlrev_b32 {vOS}, 4, {vLane}"); E(f"v_add_u32 {vKW}, {sM0KV}, {vOS}"); E(f"s_add_u32 {sS}, {sM0KV}, {sDL}")
        E(f"s_lshl_b32 {sOO}, {sB}, 1"); E(f"s_add_u32 {sOO}, {sOO}, {sQH}"); E(f"s_mul_i32 {sOO}, {sOO}, {6 * 131072}")
        sSG = sHP
        if OPT["sig"]:
            sSG = S(93)
            E(f"s_bfe_u32 {sT1}, {sHP}, 0x20001"); E(f"s_lshr_b32 {sSG}, {sHP}, 3"); E(f"s_lshl1_add_u32 {sT1}, {sT1}, {sSG}")
            E(f"s_and_b32 {sSG}, {sHP}, 1"); E(f"s_lshl1_add_u32 {sSG}, {sT1}, {sSG}")
        E(f"s_lshl_b32 {sT1}, {sSG}, 1"); E(f"s_add_u32 {sT1}, {sT1}, {sHS}"); E(f"s_lshl_b32 {sT1}, {sT1}, 12"); E(f"s_add_u32 {sOO}, {sOO}, {sT1}")
        E(f"s_lshl_b32 {sT1}, {sW}, 2"); E(f"s_add_u32 {sT1}, {sT1}, {65536 if E3 else 163776}"); E(f"v_mov_b32 {vFL}, {sT1}")
        for q in range(6): E(f"v_mov_b32 {vl[q]}, 0")
        if F4:
            E(f"v_mov_b32 {vZero}, 0")
            E(f"s_lshl_b32 {sT1}, {sB}, 12"); E(f"s_lshl_b32 {sFLO}, {sSG}, 2"); E(f"s_add_u32 {sT1}, {sT1}, {sFLO}"); E(f"s_add_u32 {sFLO}, {sT1}, {FLOFF}")
            ops.append(lambda: (e(f"s_or_b32 {sT1}, s2, {sW}"), e(f"s_cselect_b32 {SRDF[2]}, 0, {FLOFF + 65536}"), e(f"s_cselect_b32 {SRDD[2]}, 0, 4")))
            E(f"s_mov_b32 {SRDF[0]}, s18"); E(f"s_mov_b32 {SRDF[1]}, s19"); E(f"s_mov_b32 {SRDF[3]}, 0x20000")
            E(f"s_mov_b32 {SRDD[0]}, s16"); E(f"s_mov_b32 {SRDD[1]}, s17"); E(f"s_mov_b32 {SRDD[3]}, 0x20000")
        return ops
    def rdK(n, pi, slot): return lambda: a.ds_read_b64(KF(n)[2 * pi:2 * pi + 2], ka[2 * (n >> 1) + pi], slot * 16384 + (n & 1) * 4096)
    def rdV(db, uu, slot): return lambda: a.ds_read_tr(VF(db)[2 * uu:2 * uu + 2], va[db], slot * 16384 + uu * 4096)

    def rdA(s, i): return [(lambda u=u: a.ds_read_tr(AF(i)[2 * u:2 * u + 2], wa[i], (s % 4) * 16384 + u * 1024)) for u in range(2)]
    def rdB(s, j):
        xs = (s // 2) % 4
        return lambda: a.ds_read_b128(BF(s % 2, j), xa[xs // 2][s % 2], (xs % 2) * 24576 + j * 2048)
    p1list = [(t, p) for t in range(4) for p in range(8)]
    def p1_ops(k):
        t, p = p1list[k]
        ops = []
        if p % 4 == 0:
            ops.append(lambda: (e(f"s_add_u32 {sP1}, {sKV0}, {t * 8192 + (p // 4) * 4096}"), e(f"s_and_b32 {sP1}, {sP1}, 262143")))
        ops.append(lambda: a.bload(P1R(t, p), kvv[p % 4], SRDKV, sP1, (p % 4) * 1024, nt))
        return ops
    p1_at = {}
    for k in range(32): p1_at.setdefault(k * OPT["p1end"] // 32, []).append(k)
    p2_at = {}
    for k in range(OPT["n2"]): p2_at.setdefault(OPT["p2s"] + (k * (OPT["p2e"] - OPT["p2s"])) // OPT["n2"], []).append(k)
    conv = []
    for J in range(3):
        for ks in range(4):
            for jj in range(2):
                j = 2 * J + jj
                X, Y, D = ACC(2 * ks, j), ACC(2 * ks + 1, j), QF(j, ks)
                for R in (X, Y):
                    for k in range(4): conv.append((J, lambda r=R[k]: e(f"v_mul_f32 {r}, {sC[0]}, {r}")))
                conv.append((J, lambda X=X, D=D: e(f"v_cvt_pk_bf16_f32 {D[0]}, {X[0]}, {X[1]}")))
                conv.append((J, lambda X=X, D=D: e(f"v_cvt_pk_bf16_f32 {D[1]}, {X[2]}, {X[3]}")))
                conv.append((J, lambda Y=Y, D=D: e(f"v_cvt_pk_bf16_f32 {D[2]}, {Y[0]}, {Y[1]}")))
                conv.append((J, lambda Y=Y, D=D: e(f"v_cvt_pk_bf16_f32 {D[3]}, {Y[2]}, {Y[3]}")))

    a.wait_for(("w", 0), ("x", 0)); e("s_barrier")
    stamp(a, 1)
    for j in range(6):
        rdB(0, j)()
        for r in rdA(0, j): r()
    for r in rdA(0, 6): r()
    late = late_setup()
    free = [g for i in range(3, 8) for g in range(6 * i + 2, 6 * i + 6)]
    for s in range(32):
        if s in (8, 16, 24): stamp(a, 1 + s // 8, 2)
        G = Gaps()
        last = s == 31
        order = [(i, j) for j in range(6) for i in range(8)] if last else [(i, j) for i in range(8) for j in range(6)]
        mf = [(lambda i=i, j=j: a.mfma16(ACC(i, j), AF(i), BF(s % 2, j), ACC(i, j) if s else 0)) for i, j in order]
        if s:
            m0_ = mf[0]; mf[0] = lambda m0_=m0_: (a.wait_for(lgkm=2), m0_())
        for u, r in enumerate(rdA(s, 7)): G.mem(u, r)
        def bar(s=s):
            if s < 31: a.wait_for(("w", s + 1), ("x", (s + 1) // 2), lgkm=0)
            else: a.wait_for(lgkm=0)
            e("s_barrier")
        G.mem(7, bar)
        if not last:
            for u, r in enumerate(rdA(s + 1, 0)): G.mem(8 + u, r)
            for i in range(1, 7):
                for u, r in enumerate(rdA(s + 1, i)): G.mem(6 * i + 6 + u, r)
            for j, g in enumerate([10, 11, 14, 15, 16, 17]): G.mem(g, rdB(s + 1, j))
        ops = []
        if s + 4 < 32: ops += dma_w(s + 4)
        c = (s - 1) // 2 + 4
        if s >= 1 and c < 16: ops += dma_x(c, (s - 1) % 2)
        for k in p1_at.get(s, []): ops += p1_ops(k)
        for k in p2_at.get(s, []):
            ops.append(lambda k=k: (e(f"s_add_u32 {sT2}, {sKV0}, {OPT['p2b'] + k * OPT['tl'] * 128}"), e(f"s_and_b32 {sT2}, {sT2}, 262143")))
            ops.append(lambda: a.bload(vTD, vT2, SRDKV, sT2, 0, " nt" if OPT["p2nt"] else ""))
        if F4 and s == 2: ops.append(lambda: a.bload(vTag, vZero, SRDF, sFLO, 0, " sc1"))
        if F4 and s == 10:
            ops.append(lambda: (a.wait_for(vTag), e(f"v_add_u32 {vTag}, 0x9e3779b9, {vTag}"), e(f"v_or_b32 {vTag}, 1, {vTag}")))
            ops.append(lambda: a.bstore(vTag, vZero, SRDD, 0, 0, " sc1"))
        if F4 and s == 12:
            ops.append(lambda: (e(f"s_cmp_eq_u32 {sW}, 0"), e(f"s_cselect_b32 {SRDD[2]}, 4, 0"), e(f"s_mov_b32 {SRDF[2]}, {FLOFF + 65536}")))
        if s == 2 and OPT["wo_touch"] == 1:
            ops.append(lambda: (e(f"s_lshl_b32 {sT2}, s2, 2"), e(f"s_add_u32 {sT2}, {sT2}, {sW}"), e(f"s_lshl_b32 {sT2}, {sT2}, 13")))
            ops.append(lambda: a.bload(vTD, vTA, SRDWO, sT2, 0))
        if last:
            for half in range(2):
                ops.append(lambda half=half: (e(f"s_add_u32 {sP1}, {sKV0}, {32768 + half * 4096}"), e(f"s_and_b32 {sP1}, {sP1}, 262143"), e(f"s_add_u32 m0, {sS}, {half * 4096}")))
                for j in range(4): ops.append(lambda j=j: a.dma(kvv[j], SRDKV, sP1, j * 1024, nt))
        if s >= 28:
            t = s - 28
            ops += [(lambda p=p: a.ds_write_b128(vKW, P1R(t, p), t * 16384 + p * 1024)) for p in range(8)]
        if s >= 30:
            ops += [rdK(n, pi, 0) for n in range(4 * (s - 30), 4 * (s - 30) + 4) for pi in range(2)]
        if last:
            for i in range(4): G.valu(4 + i, lambda i=i: e(f"v_mov_b32 {vZ[i]}, 0"))
        fr = free if not last else list(range(OPT['d4'], OPT['d4'] + 28))
        assert len(ops) <= len(fr), (s, len(ops))
        for o, g in zip(ops, [fr[(k * len(fr)) // len(ops)] for k in range(len(ops))]): G.mem(g, o)
        if s == 0:
            for k, o in enumerate(late): G.valu(8 + k // 2, o)
        if last:
            g = 0
            n = 0
            while conv and g < 48:
                J = conv[0][0]
                g = max(g, 16 * J + 18)
                if g >= 48: break
                G.valu(g, conv.pop(0)[1]); n += 1
                if n % 2 == 0: g += 1
        G.run(mf)
    stamp(a, 2); stamp(a, 5, 2)
    if OPT["only01"]: e("s_waitcnt vmcnt(0) lgkmcnt(0)"); e(f"s_cmp_eq_u32 {sHS}, 1"); e("s_cbranch_scc1 L1_end")
    e("s_nop 3")
    def xlane(op, m, tmp):
        return [lambda: e(f"v_mov_b32 {tmp}, {m}"), lambda: e("s_nop 1"), lambda: e(f"v_permlane16_swap_b32 {m}, {tmp}"), lambda: e("s_nop 1"),
                lambda: e(f"{op} {m}, {m}, {tmp}"),
                lambda: e(f"v_mov_b32 {tmp}, {m}"), lambda: e("s_nop 1"), lambda: e(f"v_permlane32_swap_b32 {m}, {tmp}"), lambda: e("s_nop 1"),
                lambda: e(f"{op} {m}, {m}, {tmp}")]
    def rowmax_ops(j, m, tmp):
        X, Y = NEG(j), TMP(j)
        return [lambda: e(f"v_max3_f32 {m}, {X[0]}, {X[1]}, {X[2]}"), lambda: e(f"v_max3_f32 {m}, {m}, {X[3]}, {Y[0]}"),
                lambda: e(f"v_max3_f32 {m}, {m}, {Y[1]}, {Y[2]}"), lambda: e(f"v_max_f32 {m}, {m}, {Y[3]}")] + xlane("v_max_f32", m, tmp)
    def negfill_ops(j, m):
        return [(lambda i=i: e(f"v_sub_f32 {NEG(j)[i]}, 0, {m}")) for i in range(4)]
    a.wait_for(lgkm=0)
    zm = [(lambda k=k: a.e(f"v_mfma_f32_32x32x16_bf16 {A(16 * k, 16)}, {vZ}, {vZ}, 0")) for k in list(range(12)) + [14, 15]]
    zm4 = [(lambda k=k: a.e(f"v_mfma_f32_32x32x16_bf16 {A(16 * k, 16)}, {vZ4}, {vZ4}, 0")) for k in list(range(12)) + [14, 15]]
    G = Gaps()
    G.spread([(o, 4) for _, o in conv], list(range(14))); conv = []
    G.run(zm)
    e("s_nop 1")
    sm = [(lambda j=j, n=n: a.mfma16(TMP(j) if n & 1 else NEG(j), KF(n), QF(j, n >> 1), (TMP(j) if n & 1 else NEG(j)) if n > 1 else 0))
          for j in range(6) for n in range(8)]

    NS = 96
    used = [0] * NS
    memg = {}
    def M(g, it, cost=4): memg.setdefault(g % NS, []).append(it); used[g % NS] += cost
    M(5, ("kill",), 12); M(6, ("m0", 0)); M(7, ("bar",), 8)
    for db in range(8): M(8 + db, ("v", db, 0)); M(12 + db, ("v", db, 1))
    for n in range(8): M(80 + n, ("k", n, 0)); M(84 + n, ("k", n, 1))
    dg = OPT["dg0"]
    for k in range(4): M(dg + 2 * k, ("dma", 0, k)); M(dg + 10 + 2 * k, ("dma", 1, k))
    M(dg + 8, ("m0", 1)); M(dg + 19, ("adv",), 12)
    for g in (95, 3, 23, 27): used[g] += 4
    valg = {}
    def place(j, seq, lo, hi):
        for L in range(8, 41, 4):
            u2 = list(used); g = lo; out = []
            for op, c, mn in seq:
                g = max(g, mn)
                while g <= hi and u2[g % NS] + c > L: g += 1
                if g > hi: break
                u2[g % NS] += c; out.append((op, g))
            else:
                used[:] = u2
                for op, g in out: valg.setdefault(g, []).append((j, op))
                return dict(out)
        raise Exception("no fit")
    pos = {}
    for j in range(6):
        b = 16 * j
        crit = [("e0", 8, b + 8), ("e1", 8, 0), ("e2", 8, 0), ("c0", 4, 0), ("e3", 8, 0), ("e4", 8, b + 10), ("c1", 4, 0), ("e5", 8, 0), ("e6", 8, 0),
                ("c2", 4, 0), ("e7", 8, 0), ("a0", 4, 0), ("c3", 4, 0)]
        pos[j] = place(j, crit, b + 8, b + 22)
    for j in range(6):
        b = 16 * j
        place(j, [(f"a{k}", 4, pos[j][f"e{k}"] + 1) for k in range(1, 8)], b + 9, b + 30)
    if OPT["verbose"]: print("gap load", used, "over", sum(max(0, x - 12) for x in used))
    def sm_op(j, op):
        Sx, Px, k = SB(j % 2), PB(j % 2), int(op[1])
        if op[0] == "e": e(f"v_exp_f32 {Sx[k]}, {Sx[k]}")
        if op[0] == "a": e(f"v_add_f32 {vl[j]}, {vl[j]}, {Sx[k]}")
        if op[0] == "c": e(f"v_cvt_pk_bf16_f32 {Px[k]}, {Sx[2 * k]}, {Sx[2 * k + 1]}")
    tail = [(g, j, op) for g in sorted(valg) if g >= NS for j, op in valg[g]]
    tail_e = {(j, int(op[1])) for g, j, op in tail if op[0] == "e"}
    init = [(lambda j=j, k=k: e(f"v_mov_b32 {SB(j % 2)[k]}, {'0xf149f2ca' if (j, k) in tail_e else 0}")) for j in (4, 5) for k in range(8)]
    init += [(lambda k=k: e(f"v_mov_b32 {PB(1)[k]}, 0")) for k in range(4)]

    G = Gaps()
    for j in range(5):
        G.spread([(o, 4) for o in rowmax_ops(j, vt[0], vt[1]) + negfill_ops(j, vt[0])], list(range(8 * j + 9, min(48, 8 * j + 17))))
    G.spread([(o, 4) for o in init[0:8]], list(range(26, 34)))
    G.spread([(o, 4) for o in init[8:16]], list(range(42, 48)))
    sSL = [S(94 + u) for u in range(4)]
    def stream_init():
        e(f"s_sub_u32 {sCnt}, 0, {sQH}")
        e(f"s_lshl_b32 {sT0}, {sQH}, 13"); e(f"s_add_u32 {sKVO}, {sKV0}, 49152"); e(f"s_sub_u32 {sKVO}, {sKVO}, {sT0}"); e(f"s_and_b32 {sKVO}, {sKVO}, 262143")
        e(f"s_add_u32 {sKVO2}, {sKVO}, 4096"); e(f"s_mov_b32 {sIT}, 0")
    def x5_ops():
        ops = []
        for p in range(8):
            if p % 4 == 0: ops.append(lambda p=p: (e(f"s_add_u32 {sP1}, {sKV0}, {5 * 8192 + (p // 4) * 4096}"), e(f"s_and_b32 {sP1}, {sP1}, 262143")))
            ops.append(lambda p=p: e(f"buffer_load_dwordx4 {X5(p)}, {kvv[p % 4]}, {SRDKV}, {sP1} offen" + (f" offset:{(p % 4) * 1024}" if p % 4 else "") + nt))
        return ops
    for k, o in enumerate(x5_ops()): G.mem(OPT["x5g"] + k // 2, o)
    G.mem(6, stream_init)
    if OPT["wo_touch"] == 3:
        G.mem(7, lambda: (e(f"s_lshl_b32 {sT2}, s2, 2"), e(f"s_add_u32 {sT2}, {sT2}, {sW}"), e(f"s_lshl_b32 {sT2}, {sT2}, 13")))
        G.mem(8, lambda: a.bload(vTD, vTA, SRDWO, sT2, 0))
    for u in range(4):
        G.mem(9 + u, lambda u=u: (e(f"s_sub_u32 {sT0}, {u}, {sQH}"), e(f"s_and_b32 {sT0}, {sT0}, 3"), e(f"s_lshl_b32 {sT0}, {sT0}, 14"), e(f"s_add_u32 {sSL[u]}, {sM0KV}, {sT0}")))
    G.mem(13, lambda: (e(f"s_mov_b32 {sSL0}, {sSL[0]}"), e(f"s_cmp_lg_u32 {sQH}, 0"), e("s_cselect_b64 vcc, -1, 0")))
    G.valu(14, lambda: e(f"v_add_u32 {vKW}, {sDL}, {vKW}"))
    G.run(sm)
    e("s_nop 7")
    for o in rowmax_ops(5, vt[0], vt[1]) + negfill_ops(5, vt[0]) + init[16:]: o()
    e("s_nop 1")

    def dma_kv(slot):
        ops = []
        for half in range(2):
            ops.append(lambda half=half: (e(f"s_add_u32 m0, {slot}, {half * 4096}"), e("s_nop 0")))
            for j in range(4):
                ops.append(lambda j=j, half=half: a.dma(kvv[j], SRDKV, sKVO2 if half else sKVO, j * 1024, nt))
        ops.append(lambda: (e(f"s_add_u32 {sKVO}, {sKVO}, 8192"), e(f"s_and_b32 {sKVO}, {sKVO}, 262143"), e(f"s_add_u32 {sKVO2}, {sKVO}, 4096")))
        return ops
    PVg = lambda j: [(lambda db=db: a.mfma16(OA(db, j), VF(db), PB(j % 2), OA(db, j))) for db in range(8)]
    lblc = [0]
    def only(kind, f):
        lblc[0] += 1; L = f"L1_only{lblc[0]}"
        e(f"s_cbranch_vcc{'z' if kind else 'nz'} {L}"); f(); a.label(L)
    def dma_half(u, half):
        e(f"s_add_u32 m0, {sSL[u]}, {half * 4096}"); e("s_nop 0")
        for j in range(4): e(f"buffer_load_dwordx4 {kvv[j]}, {SRDKV}, {sKVO2 if half else sKVO} offen" + (f" offset:{j * 1024}" if j else "") + nt + " lds")
    def x5_write():
        for p in range(8): e(f"ds_write_b128 {vKW}, {X5(p)}" + (f" offset:{p * 1024}" if p else ""))
    def tileB(u, vs=None, ks=None, dma=True, adv=True, kill=False, vm=OPT["bwait"], extra={}, nok=False):
        vs = u if vs is None else vs
        ks = (u + 1) % 4 if ks is None else ks
        mf = []
        for j in range(6):
            for n in range(8):
                D = SB(j % 2)[4 * (n & 1):4 * (n & 1) + 4]
                mf.append(lambda n=n, D=D, j=j: a.mfma16(D, KF(n), QF(j, n >> 1), D if n > 1 else NEG(j)))
            mf += PVg((j + 5) % 6)
        for idx, regs in ((0, [KF(n) for n in range(4)]), (4, [KF(n) for n in range(8)]), (24, [VF(d) for d in range(4)]), (28, [VF(d) for d in range(8)])):
            mf[idx] = (lambda f=mf[idx], regs=regs: (a.wait_for(*regs), f()))
        for g in range(NS):
            if not OPT["bnoc"] & 1: mf[g]()
            for it in memg.get(g, []):
                k = it[0]
                if OPT["bnoc"] & 2 and k in "vk": continue
                if k == "kill" and kill: e(f"s_cmp_lt_u32 {sCnt}, 22"); e(f"s_cselect_b32 {SRDKV[2]}, {NR}, 0"); e(f"s_add_u32 {sCnt}, {sCnt}, 1")
                if k == "m0" and dma: e(f"s_add_u32 m0, {sSL[u]}, {it[1] * 4096}")
                if k == "bar":
                    if vm is not None: a.wait(vm=vm)
                    if kill and OPT["thr"]:
                        lblc[0] += 1
                        e(f"s_bitcmp1_b32 s2, 0"); e(f"s_cbranch_scc{OPT['thrp']} L1_thr{lblc[0]}"); e(f"s_waitcnt vmcnt({OPT['thr']})"); a.label(f"L1_thr{lblc[0]}")
                    e("s_barrier")
                if k == "v": rdV(it[1], it[2], vs)()
                if k == "k" and not nok: rdK(it[1], it[2], ks)()
                if k == "dma" and dma: a.dma(kvv[it[2]], SRDKV, sKVO2 if it[1] else sKVO, it[2] * 1024, nt)
                if k == "adv" and adv: e(f"s_add_u32 {sKVO}, {sKVO}, 8192"); e(f"s_and_b32 {sKVO}, {sKVO}, 262143"); e(f"s_add_u32 {sKVO2}, {sKVO}, 4096")
            for f in extra.get(g, []): f()
            for j, op in valg.get(g + NS, []) + valg.get(g, []):
                if not OPT["bnoc"] & 4: sm_op(j, op)
        if OPT["bnoc"] & 1: a.wait(lgkm=0)
    stamp(a, 3)
    shift = lambda op, g0: {g0 + k: [lambda r=r: e(f"{op} {r}, {r}, {sDL}" if op == "v_subrev_u32" else f"{op} {r}, {sDL}, {r}")] for k, r in enumerate(ka + va)}
    shift = lambda op, g0: {g0 + k: [lambda r=r: e(f"{op} {r}, {sDL}, {r}")] for k, r in enumerate(ka + va)}
    e("s_waitcnt lgkmcnt(0)"); a.lds = []
    a.label("L1_tile0")
    tileB(0, dma=False, vm=None, extra={dg: [lambda: only(0, lambda: dma_half(0, 0))], dg + 10: [lambda: only(0, lambda: dma_half(0, 1))]})
    K2 = kernel2(a) if OPT["fuse"] else None
    x1, x2 = {}, {}
    if F4:
        early = next(K2)
        x1 = {50: [lambda: e(f"buffer_load_dword {vTag}, {vZero}, {SRDD}, 0 offen sc1")]}
        gl = [(x1, g) for g in range(30, 94, 2)] + [(x2, g) for g in range(30, 94, 2)]
        for k, un in enumerate(early):
            x, g = gl[k * len(gl) // len(early)]
            x.setdefault(g, []).append(lambda un=un: [e(t) for t in un])
    tileB(1, vm=None, extra=x1)
    tileB(2, vm=None, extra=x2)
    tileB(3, ks=0, vm=32, extra=shift("v_add_u32", 44))
    tileB(0, vs=0, ks=0, dma=False, adv=False, vm=32,
          extra={29: [lambda: only(0, x5_write)], 45: [lambda: (a.wait(vm=24, lgkm=0), e("s_barrier"))], 46: [lambda: only(1, x5_write)],
                 50: [lambda: only(1, lambda: dma_half(0, 0))], 60: [lambda: only(1, lambda: dma_half(0, 1))],
                 62: [lambda: (e(f"s_cmp_eq_u32 {sQH}, 0"), e(f"s_cselect_b32 {sSL[0]}, {sSL0}, {sS}"))]})
    def tlb_ops(g0):
        d = {}
        if OPT["tlbm"] & 2:
            d[g0] = [lambda: (e(f"v_mul_u32_u24 {vTA}, 0xc00, {vLane}"), e(f"v_mov_b32 {vTD}, s46"), e(f"v_mul_u32_u24 {vTD}, 0x30000, {vTD}"), e(f"v_add_u32 {vTA}, {vTA}, {vTD}"))]
            d[g0 + 1] = [lambda: e(f"global_load_dword {vTD}, {vTA}, s[14:15]")]
        if OPT["tlbm"] & 1:
            d[g0 + 3] = [lambda: (e(f"v_and_b32 {vTA}, 7, {vLane}"), e(f"v_lshlrev_b32 {vTA}, 17, {vTA}"))]
            d[g0 + 4] = [lambda: e(f"buffer_load_dword {vTD}, {vTA}, {SRDO}, {sOO} offen")]
        return d
    x4 = shift("v_subrev_u32", 44)
    if OPT["tlbw"] == 2:
        for g, o in tlb_ops(OPT["tlbg"]).items(): x4.setdefault(g, []).extend(o)
    tileB(0, vs=0, ks=0, dma=False, adv=False, vm=24, extra=x4)
    def bodyB():
        for u in range(4): tileB(u, kill=True, extra={40: [lambda: e(f"s_mov_b32 {sSL[0]}, {sSL0}")]} if u == 1 else {})
    steady = list(a.lds)
    a.label("L1_loopB")
    bodyB()
    assert a.lds == steady
    e(f"s_add_u32 {sIT}, {sIT}, 1"); e(f"s_cmp_lt_u32 {sIT}, 6"); e("s_cbranch_scc1 L1_loopB")
    x30, x31 = {}, {}
    if E3:
        fl4 = next(K2)
        for k, o in enumerate(fl4[0]): x30.setdefault(OPT["e30"] + 2 * k, []).append(o)
        for k, o in enumerate(fl4[1] + fl4[2]): x31.setdefault(OPT["e31"] + 2 * k, []).append(o)
    if OPT["tlbw"] == 1:
        for g, o in tlb_ops(OPT["tlbg"]).items(): x30[g] = o + x30.get(g, [])
    tileB(0, dma=False, adv=False, vm=16, extra=x30)
    tileB(1, dma=False, adv=False, vm=8 if E3 else 0, nok=True, extra=x31)
    stamp(a, 4)
    for g, j, op in tail: sm_op(j, op)
    e("s_nop 1")
    def lsum_ops(j):
        sp = "s[98:99]" if j == 0 else "s[100:101]"
        ops = xlane("v_add_f32", vl[j], vt[1]) + [lambda: e(f"v_cmp_ngt_f32 {sp}, {sTHR}, {vl[j]}"), lambda: e(f"v_rcp_f32 {R2(j)[0]}, {vl[j]}"),
                                                  lambda: e(f"v_rcp_f32 {R2(j)[1]}, {vl[j]}")]
        if j: ops.append(lambda: e("s_or_b64 s[98:99], s[98:99], s[100:101]"))
        return ops
    G = Gaps()
    G.spread([(o, 4) for j in range(2) for o in lsum_ops(j)], list(range(0, 8)))
    G.run(PVg(5))
    for j in range(2, 6):
        for o in lsum_ops(j): o()
    e("s_cmp_lg_u64 s[98:99], 0"); e(f"s_cselect_b32 {sT0}, 1, 0"); e(f"s_andn2_b32 {sT0}, {sT0}, {sPass}")
    if OPT["bnoc"]: e(f"s_mov_b32 {sT0}, 0")
    e(f"v_mov_b32 {vt[1]}, {sT0}"); e(f"ds_write_b32 {vFL}, {vt[1]}"); a.lds.append(set())
    if F4:
        e(f"v_readfirstlane_b32 s93, {vTag}"); e(f"s_or_b32 s93, s93, {sW}"); e("s_cbranch_scc0 L1_tagslow")
        a.label("L1_tagok")
        e(f"ds_write_b32 {vFL}, {vTag} offset:16"); a.lds.append(set())
    ostf = (" " + OPT["ost"].replace("+", " ")) if OPT["ost"] else ""
    fill = []
    cnt = [0]
    def ev(t):
        e(t); cnt[0] += 1
        if fill and cnt[0] % (OPT["fint"] if F4 else 3) == 0: fill.pop(0)()
    for j in range(6):
        if j == 1:
            a.wait(lgkm=0, vm=None if E3 else 4); e("s_barrier")
            if F4: vZ = V(244, 4)
            e(f"v_and_b32 {vt[0]}, 0xfffffff0, {vFL}"); a.ds_read_b128(vZ, vt[0], 0)
            if F4: e(f"ds_read_b32 {vTag}, {vt[0]} offset:16"); a.lds.append(vTag.regs())
        if j == 2:
            a.wait(lgkm=0)
            e(f"v_or3_b32 {vt[0]}, {vZ[0]}, {vZ[1]}, {vZ[2]}"); e(f"v_or_b32 {vt[0]}, {vt[0]}, {vZ[3]}"); e("s_nop 0")
            e(f"v_readfirstlane_b32 {sT1}, {vt[0]}"); e(f"s_cmp_lg_u32 {sT1}, 0")
            if not (OPT["only01"] or OPT["bnoc"] or OPT["kvskip"] or OPT["askip"]): e("s_cbranch_scc1 L1_fallback")
            if K2 and OPT["fuse"] < 3: next(K2); fill = next(K2)
            if E3: next(K2); fill = [] if OPT["w3l"] else fl4[3]
            elif F4:
                fl4 = next(K2)
                if OPT["fo"] == 2: fill = fl4
            if OPT["fuse"] == 3:
                e(f"s_mov_b32 {SRDWO[0]}, s18"); e(f"s_mov_b32 {SRDWO[1]}, s19"); e(f"s_mov_b32 {SRDWO[2]}, {FLOFF + 65536}"); e(f"s_mov_b32 {SRDWO[3]}, 0x20000")
                e(f"s_lshl_b32 {sT1}, {sB}, 12"); e(f"s_lshl_b32 {sT2}, {sHP}, 2"); e(f"s_add_u32 {sT1}, {sT1}, {sT2}"); e(f"s_add_u32 {sP1}, {sT1}, {FLOFF}")
                e(f"v_lshlrev_b32 {vTA}, 8, {vLane}"); e(f"v_mov_b32 {vTD}, 0x5eedf1a6")
        if E3 and j == max(OPT["pj"], 2): next(K2)
        if E3 and OPT["pj"] < 2 and j == OPT["pj"]:
            e(f"v_and_b32 {vTA}, 3, {vLane}"); e(f"v_lshlrev_b32 {vTA}, 2, {vTA}"); a.bload(vTD, vTA, SRDF, S(92), 0, " sc1")
        e(f"s_add_u32 {sT0}, {sOO}, {j * 131072}")
        for m in range(4):
            T = V(208 + 8 * (m % 2), 8); D = V(224 + 4 * (m % 2), 4)
            for i in range(8): ev(f"v_accvgpr_read_b32 {T[i]}, {OA(2 * m + (i >> 2), j)[i & 3]}")
            for i in range(4): ev(f"v_pk_mul_f32 {T[2*i:2*i+2]}, {T[2*i:2*i+2]}, {R2(j)}")
            for i in range(4): ev(f"v_cvt_pk_bf16_f32 {D[i]}, {T[2*i]}, {T[2*i+1]}")
            a.bstore(D, vOS, SRDO, sT0, m * 1024, ostf)
        if F4: zm4[2 * j](); zm4[2 * j + 1]()
    assert not fill
    if E3 and OPT["tp"]:
        def signal(t):
            e("s_barrier")
            e(f"s_cmp_lg_u32 {sW}, 0"); e(f"s_cbranch_scc1 L1_nosig{t}")
            e("s_mov_b64 exec, 0xffff")
            e(f"buffer_store_dword v38, v179, {SRDF}, {sFLO} offen sc1")
            e("s_mov_b64 exec, -1")
            a.label(f"L1_nosig{t}")
        K2.send((signal, fl4[3] if OPT["w3l"] else [], lambda: stamp(a, 5), lambda: dump_stamps(a, 6, 0x4000000, sW, vt[0], vt[1], last=False)))
    elif F4:
        e(f"v_lshlrev_b32 v179, 8, {vLane}")
        if OPT["fo"] == 0:
            for o in fl4: o()
        if not E3: next(K2)
        a.wait(vm=32 if OPT["fo"] == 0 else 0); e("s_barrier")
        stamp(a, 5)
        e(f"s_cmp_lg_u32 {sW}, 0"); e("s_cbranch_scc1 L1_nosig")
        e("s_mov_b64 exec, 0xffff")
        e(f"buffer_store_dword v38, v179, {SRDF}, {sFLO} offen sc1")
        e("s_mov_b64 exec, -1")
        a.label("L1_nosig")
        if E3 and OPT["pj"] == 6: next(K2)
        if E3 and OPT["w3l"]:
            for o in fl4[3]: o()
        if E3 and OPT["pj"] == 6: a.wait(vm=8 if OPT["w3l"] else 0)
        K2.send(lambda: dump_stamps(a, 6, 0x4000000, sW, vt[0], vt[1], last=False))
    if F4: pass
    elif OPT["fuse"] == 3:
        a.wait(vm=0); e("s_barrier")
        stamp(a, 5)
        e(f"s_cmp_lg_u32 {sW}, 0"); e("s_cbranch_scc1 L1_nosig")
        e("s_mov_b64 exec, 0xffff")
        e(f"buffer_store_dword {vTD}, {vTA}, {SRDWO}, {sP1} offen sc1")
        e("s_mov_b64 exec, -1")
        a.label("L1_nosig")
        next(K2); fill = next(K2)
        K2.send((fill, lambda: dump_stamps(a, 6, 0x4000000, sW, vt[0], vt[1], last=False)))
    elif K2:
        stamp(a, 5)
        K2.send((sB, lambda: dump_stamps(a, 6, 0x4000000, sW, vt[0], vt[1], last=False)))
    else:
        dump_stamps(a, 6, 0x4000000, sW, vt[0], vt[1])
    a.label("L1_end"); e("s_endpgm")
    if F4:
        next(K2)
        a.label("L1_tagslow")
        e("s_mov_b32 s75, 0")
        a.label("L1_tagloop")
        e("s_sleep 8"); e(f"buffer_load_dword {vTag}, {vZero}, {SRDD}, 0 offen sc1"); e("s_waitcnt vmcnt(0)")
        e(f"v_readfirstlane_b32 s93, {vTag}"); e("s_add_u32 s75, s75, 1"); e("s_cmp_lg_u32 s93, 0"); e("s_cbranch_scc1 L1_tagok")
        e("s_cmp_lt_u32 s75, 0x40000"); e("s_cbranch_scc1 L1_tagloop")
        e("s_branch L1_tagok")
    a.label("L1_fallback")
    a.lds = []; a.vm = []
    e("s_waitcnt vmcnt(0) lgkmcnt(0)"); e("s_barrier")
    e(f"s_mov_b32 {sPass}, 1"); e(f"s_mov_b32 {SRDKV[2]}, {NR}")
    for q in range(6): e(f"v_mov_b32 {vl[q]}, 0xff800000")
    e(f"s_mov_b32 {sKVO}, 0"); e(f"s_mov_b32 {sKVO2}, 4096"); e(f"s_mov_b32 {sIT}, 0")
    a.label("L1_fb_loop")
    for o in dma_kv(sM0KV): o()
    e("s_waitcnt vmcnt(0)"); e("s_barrier")
    for n in range(8):
        for pi in range(2): rdK(n, pi, 0)()
    for f in sm: f()
    e("s_nop 15")
    for j in range(6):
        for o in rowmax_ops(j, vt[0], vt[1]): o()
        e(f"v_max_f32 {vl[j]}, {vl[j]}, {vt[0]}")
    e("s_barrier")
    e(f"s_add_u32 {sIT}, {sIT}, 1"); e(f"s_cmp_lt_u32 {sIT}, 32"); e("s_cbranch_scc1 L1_fb_loop")
    e(f"s_mov_b32 {sKVO}, {sKV0}"); e(f"s_add_u32 {sKVO2}, {sKVO}, 4096")
    for t in range(4):
        e(f"s_add_u32 {sT0}, {sM0KV}, {t * 16384}")
        for o in dma_kv(sT0): o()
    for o in dma_kv(sS): o()
    for o in x5_ops(): o()
    e(f"s_mov_b32 {sSL[0]}, {sSL0}")
    for j in range(6):
        for o in negfill_ops(j, vl[j]): o()
        e(f"v_mov_b32 {vl[j]}, 0")
    if not F4:
        for i in range(4): e(f"v_mov_b32 {vZ[i]}, 0")
    for o in init: o()
    e("s_nop 1")
    for f in (zm4 if F4 else zm): f()
    stream_init()
    e("s_waitcnt vmcnt(0)"); e("s_barrier")
    for n in range(8):
        for pi in range(2): rdK(n, pi, 0)()
    e("s_waitcnt lgkmcnt(0)"); e("s_nop 15")
    e("s_branch L1_tile0")
    return a.text()

def kernel2(a):
    fused = a is not None
    if not fused: a = Asm()
    e = a.e
    SRDWO, SRDOW, SRDOUT, SRDDBG = S(20, 4), S(24, 4), S(28, 4), S(80, 4)
    sW, sRB, sCB, sT0, sT1, sT2, sIT = S(36), S(46), S(47), S(48), S(49), S(50), S(45)
    sWOo, sOo, sM0 = S(76), S(77), S(78)
    vLane = V(1); vt = [V(i) for i in range(2, 10)]
    wa = [V(10 + k) for k in range(8)]
    wv = [V(18 + k) for k in range(8)]
    ov = [V(26 + k) for k in range(6)]
    ra = [V(32 + k) for k in range(3)]
    vRW, vOut = V(35), V(36)
    AC = lambda i, j: A(4 * (j * 8 + i), 4)
    AF = lambda i: V(40 + 4 * i, 4)
    BF = lambda sl, j: V(72 + 24 * sl + 4 * j, 4)
    REG = 36864
    osc = " sc1" if (fused and OPT["osc"]) else ""
    F4 = fused and OPT["fuse"] == 4
    if F4:
        sT2, sM0 = S(75), S(74)
        vt[0] = V(4)
        SRDF, sCL, sMK, sPC, vPD, vTg, vPA = S(84, 4), S(79), S(50), S(75), V(37), V(38), V(39)
    E3 = F4 and OPT["fo"] == 3
    if E3: sCL = S(92); REG = 8192
    TP = E3 and OPT["tp"]
    SLB = [131072, 32768, 98304, 0] if E3 else [0, 8192, 16384, 24576]
    wl = [V(168 + k) for k in range(8)]; rw = [V(176 + k) for k in range(3)]
    mark0 = len(a.out)
    if not fused:
        a.k2 = 1
        a.label("mha_oproj_kernel")
        e("s_cmp_ge_u32 s2, 256"); e("s_cbranch_scc1 L2_end")
        e("s_load_dwordx16 s[4:19], s[0:1], 0")
        e(f"v_lshrrev_b32 {vt[0]}, 6, v0"); e(f"v_and_b32 {vLane}, 63, v0")
        e(f"v_readfirstlane_b32 {sW}, {vt[0]}")
    e(f"s_and_b32 {sT2}, s2, 7"); e(f"s_lshr_b32 {sT0}, s2, 3")
    if OPT["map2"] in (0, 2):
        e(f"s_lshr_b32 {sT1}, {sT2}, 1"); e(f"s_lshl_b32 {sT1}, {sT1}, 3"); e(f"s_and_b32 {sRB}, {sT0}, 7")
        e(f"s_add_u32 {sRB}, {sT1}, {sRB}")
        e(f"s_and_b32 {sT1}, {sT2}, 1"); e(f"s_lshl_b32 {sT1}, {sT1}, 2"); e(f"s_lshr_b32 {sCB}, {sT0}, 3"); e(f"s_add_u32 {sCB}, {sCB}, {sT1}")
        if OPT["map2"] == 2:
            e(f"s_lshl_b32 {sCB}, {sCB}, 2"); e(f"s_lshr_b32 {sCB}, {OPT['cbtab']}, {sCB}"); e(f"s_and_b32 {sCB}, {sCB}, 7")
    else:
        e(f"s_lshl_b32 {sT1}, {sT2}, 2"); e(f"s_and_b32 {sT2}, {sT0}, 3"); e(f"s_add_u32 {sRB}, {sT1}, {sT2}")
        e(f"s_lshr_b32 {sCB}, {sT0}, 2")
        if OPT["cbrot"]: e(f"s_add_u32 {sCB}, {sCB}, {OPT['cbrot']}"); e(f"s_and_b32 {sCB}, {sCB}, 7")
    t0, t1, t2, t3 = wa[:4]
    e(f"v_lshrrev_b32 {t2}, 4, {vLane}"); e(f"v_and_b32 {t1}, 15, {vLane}")
    e(f"v_lshlrev_b32 {t3}, 1, {t2}"); e(f"v_xor_b32 {t1}, {t1}, {t3}")
    e(f"v_lshlrev_b32 {t0}, 11, {t2}"); e(f"v_lshl_add_u32 {wv[0]}, {t1}, 4, {t0}")
    e(f"v_xor_b32 {t1}, 128, {wv[0]}")
    for m in range(1, 8): e(f"v_add_u32 {wv[m]}, {m * 8192 - (m % 4) * 1024}, {t1 if m & 1 else wv[0]}")
    if OPT["wvx"] == 1:
        e(f"v_and_b32 {t1}, 15, {vLane}"); e(f"v_lshlrev_b32 {t0}, 14, {t2}"); e(f"v_lshl_add_u32 {wv[0]}, {t1}, 4, {t0}")
        for m in range(1, 8): e(f"v_add_u32 {wv[m]}, {m * 2048 - (m % 4) * 1024}, {wv[0]}")
    if OPT["wvx"] == 5:
        e(f"v_and_b32 {t1}, 15, {vLane}"); e(f"v_lshlrev_b32 {t0}, 12, {t2}"); e(f"v_lshl_add_u32 {wv[0]}, {t1}, 4, {t0}")
        for m in range(1, 8): e(f"v_add_u32 {wv[m]}, {((m & 1) + 8 * (m >> 1)) * 2048 - (m % 4) * 1024}, {wv[0]}")
    if OPT["wvx"] == 6:
        e(f"v_and_b32 {t1}, 15, {vLane}"); e(f"v_lshlrev_b32 {t0}, 13, {t2}"); e(f"v_lshl_add_u32 {wv[0]}, {t1}, 4, {t0}")
        for m in range(1, 8): e(f"v_add_u32 {wv[m]}, {((m & 3) + 16 * (m >> 2)) * 2048 - (m % 4) * 1024}, {wv[0]}")
    if OPT["wvx"] in (7, 8, 9):
        r_ = {7: 0, 8: 2, 9: 2}[OPT["wvx"]]
        e(f"s_add_u32 {sT0}, {sCB}, {r_}"); e(f"s_and_b32 {sT0}, {sT0}, 7"); e(f"s_add_u32 {sT0}, {sT0}, 8"); e(f"s_sub_u32 {sT0}, {sT0}, {sCB}"); e(f"s_lshl_b32 {sT0}, {sT0}, 7")
        e(f"v_bfe_u32 {t1}, {vLane}, 3, 1"); e(f"v_mul_lo_u32 {t1}, {t1}, {sT0}"); e(f"v_and_b32 {t3}, 7, {vLane}"); e(f"v_lshl_add_u32 {t1}, {t3}, 4, {t1}")
        e(f"s_lshl_b32 {sT0}, {sCB}, 7"); e(f"s_sub_u32 {sT0}, 4096, {sT0}"); e(f"v_add_u32 {t1}, {sT0}, {t1}")
        e(f"v_lshlrev_b32 {t0}, {14 if OPT['wvx'] == 9 else 11}, {t2}"); e(f"v_add_u32 {wv[0]}, {t1}, {t0}")
        for m in range(1, 8): e(f"v_add_u32 {wv[m]}, {m * (2048 if OPT['wvx'] == 9 else 8192) - (m % 4) * 1024}, {wv[0]}")
    if OPT["wvx"] == 2:
        e(f"v_and_b32 {t1}, 7, {vLane}"); e(f"v_lshrrev_b32 {t0}, 3, {vLane}"); e(f"v_lshlrev_b32 {t0}, 11, {t0}"); e(f"v_lshl_add_u32 {wv[0]}, {t1}, 4, {t0}")
        for m in range(1, 8): e(f"v_add_u32 {wv[m]}, {(m >> 1) * 16384 + (m & 1) * 128 - (m % 4) * 1024 + 4096}, {wv[0]}")
        e(f"v_add_u32 {wv[0]}, 4096, {wv[0]}")
    if OPT["wvx"] == 3:
        e(f"v_and_b32 {t1}, 15, {vLane}"); e(f"v_lshlrev_b32 {t0}, 11, {t2}"); e(f"v_lshl_add_u32 {wv[0]}, {t1}, 4, {t0}")
        for m in range(1, 8): e(f"v_add_u32 {wv[m]}, {m * 8192 - (m % 4) * 1024}, {wv[0]}")
    if OPT["wvx"] == 4:
        e(f"v_lshlrev_b32 {wv[0]}, 4, {vLane}"); e(f"s_mul_i32 {sT0}, {sCB}, {8192 - 256}"); e(f"v_add_u32 {wv[0]}, {sT0}, {wv[0]}")
        for m in range(1, 8): e(f"v_add_u32 {wv[m]}, {m * 1024 - (m % 4) * 1024}, {wv[0]}")
    e(f"s_mul_i32 {sM0}, {sW}, {REG}")
    e(f"s_lshl_b32 {sWOo}, {sW}, {20 if OPT['sig'] else 21}"); e(f"s_lshl_b32 {sOo}, {sW}, 15")
    def ovs():
        e(f"s_mul_i32 {sT0}, {sRB}, 786432"); e(f"v_lshlrev_b32 {vt[0]}, 4, {vLane}")
        e(f"v_add_u32 {ov[0]}, {sT0}, {vt[0]}")
        for j in range(1, 6): e(f"v_add_u32 {ov[j]}, {j * 131072}, {ov[0]}")
    if not fused:
        ovs()
        e("s_waitcnt lgkmcnt(0)")
        stamp(a, 0)
    e(f"s_lshl_b32 {sT0}, {sCB}, 8")
    e(f"s_add_u32 {SRDWO[0]}, s12, {sT0}"); e(f"s_addc_u32 {SRDWO[1]}, s13, 0")
    e(f"s_sub_u32 {SRDWO[2]}, 8388608, {sT0}"); e(f"s_mov_b32 {SRDWO[3]}, 0x20000")
    e(f"s_mov_b32 {SRDOW[0]}, s18"); e(f"s_mov_b32 {SRDOW[1]}, s19")
    e(f"s_mov_b32 {SRDOW[2]}, 25165824"); e(f"s_mov_b32 {SRDOW[3]}, 0x20000")
    if OPT["k2skip"] & 1: e(f"s_mov_b32 {SRDWO[2]}, 0")
    if OPT["k2skip"] & 2: e(f"s_mov_b32 {SRDOW[2]}, 0")
    def issue_w(slot):
        ops = []
        for h in range(2):
            ops.append(lambda h=h: e(f"s_add_u32 m0, {sM0}, {SLB[slot] + h * 4096}"))
            for m in range(4): ops.append(lambda m=m, h=h: a.dma(wv[4 * h + m], SRDWO, sWOo, m * 1024, tag=("w", slot)))
        ops.append(lambda: e(f"s_add_u32 {sWOo}, {sWOo}, 65536"))
        return ops
    def issue_o(slot):
        ops = [(lambda j=j: a.bload(BF(slot, j), ov[j], SRDOW, sOo, 0, osc)) for j in range(6)]
        ops.append(lambda: e(f"s_add_u32 {sOo}, {sOo}, 1024"))
        return ops
    def run(ops):
        for o in ops:
            n = len(a.out); o()
            if "m0" in a.out[-1]: e("s_nop 0")
    def wa_setup():
        e(f"v_lshrrev_b32 {vg}, 4, {vLane}"); e(f"v_lshrrev_b32 {vr}, 2, {vLane}"); e(f"v_and_b32 {vc}, 3, {vLane}")
        e(f"v_and_b32 {u1}, 7, {vr}"); e(f"v_lshlrev_b32 {u0}, 8, {vr}")
        e(f"v_add_u32 {u0}, {sM0}, {u0}"); e(f"v_lshl_add_u32 {u0}, {vc}, 3, {u0}"); e(f"v_lshl_add_u32 {u0}, {u1}, 5, {u0}")
        if E3: e(f"v_add_u32 {u0}, 98304, {u0}")
        for d in range(4):
            e(f"s_add_u32 {sT0}, {sW}, {d}"); e(f"s_and_b32 {sT0}, {sT0}, 3"); e(f"s_lshl_b32 {sT0}, {sT0}, 6")
            e(f"v_xor_b32 {wa[2*d]}, {sT0}, {u0}"); e(f"v_xor_b32 {wa[2*d+1]}, 32, {wa[2*d]}")
    vg, vr, vc, u0, u1 = vt[3:8]
    if F4:
        ovs(); wa_setup()
        for i in range(4): e(f"v_mov_b32 v{252 + i}, 0")
        def scl():
            e(f"s_lshr_b32 {sT0}, {sRB}, 1"); e(f"s_lshl_b32 {sT0}, {sT0}, 4"); e(f"s_lshl_b32 {sT1}, {sCB}, 1"); e(f"s_add_u32 {sT0}, {sT0}, {sT1}")
            e(f"s_and_b32 {sT1}, {sRB}, 1"); e(f"s_add_u32 {sT0}, {sT0}, {sT1}"); e(f"s_lshl_b32 {sT0}, {sT0}, 8"); e(f"s_lshl_b32 {sT1}, {sW}, 4")
            e(f"s_add_u32 {sT0}, {sT0}, {sT1}"); e(f"s_add_u32 {sCL}, {sT0}, {FLOFF}")
        if E3: scl()
        lines = [t[1:] for t in a.out[mark0:]]; del a.out[mark0:]
        units = []
        for t in lines:
            if t.startswith(("s_addc", "s_cselect")): units[-1].append(t)
            else: units.append([t])
        yield units
        fills = issue_w(0) + issue_w(1) + issue_w(2) + issue_w(3)
        if E3: yield [[(lambda o=o: run([o])) for o in issue_w(k)] for k in range(4)]
        else:
            yield [(lambda o=o: run([o])) for o in fills]
            scl()
        e(f"v_and_b32 {vPA}, 3, {vLane}"); e(f"v_lshlrev_b32 {vPA}, 2, {vPA}"); e(f"v_mov_b32 {vTg}, v63")
        e(f"s_mov_b32 {sPC}, 0"); e(f"s_mov_b32 {sMK}, 1")
        if E3:
            for k in range(8): e(f"v_add_u32 {wl[k]}, 0xfffe8000, {wa[k]}")
            if TP: e(f"v_lshlrev_b32 v179, 8, {vLane}"); e("s_mov_b32 s93, 0")
            yield None
            if OPT["pj"] >= 2: e(f"buffer_load_dword {vPD}, {vPA}, {SRDF}, {sCL} offen sc1"); a.vm.append(vPD.regs())
        dump1 = yield None
        if TP:
            signal, w3ops, st5, dump1 = dump1
            if OPT["pj"] < 2: a.wait_for(V(61)); e(f"v_mov_b32 {vPD}, v61")
            else: a.wait_for(vPD)
            st5()
        a.k2 = 1; stamp(a, 0)
        if not E3: e(f"buffer_load_dword {vPD}, {vPA}, {SRDF}, {sCL} offen sc1")
        if OPT["fo"] == 1: run(fills)
    elif fused:
        yield None
        sB1, dump1 = yield issue_w(0) + issue_w(1) + issue_w(2) + issue_w(3)
        if OPT["fuse"] == 3:
            vTag, vPA, vPD = V(61), V(60), V(59)
            a.k2 = 1; stamp(a, 0)
            e(f"s_lshr_b32 {sT0}, {sRB}, 1"); e(f"s_lshl_b32 {sT0}, {sT0}, 4"); e(f"s_lshl_b32 {sT1}, {sCB}, 1"); e(f"s_add_u32 {sT0}, {sT0}, {sT1}")
            e(f"s_and_b32 {sT1}, {sRB}, 1"); e(f"s_add_u32 {sT0}, {sT0}, {sT1}"); e(f"s_lshl_b32 {sT0}, {sT0}, 8"); e(f"s_add_u32 s39, {sT0}, {FLOFF}")
            e(f"v_and_b32 {vPA}, 15, {vLane}"); e(f"v_lshlrev_b32 {vPA}, 2, {vPA}")
            e(f"s_cmp_lg_u32 {sW}, 0"); e("s_cbranch_scc1 L2_np0")
            e(f"buffer_load_dword {vPD}, {vPA}, {SRDDBG}, s39 offen sc1")
            a.label("L2_np0")
            run(sB1)
        ovs()
    else:
        run(issue_w(0)); run(issue_o(0)); run(issue_w(1)); run(issue_o(1))
        if OPT["codepf"]: code_prefetch(a, vLane, V(173), V(172), "mha_oproj_kernel", 16384, sW)
        run(issue_w(2)); run(issue_o(2)); run(issue_w(3))
    t0 = vt[0]
    mark1 = len(a.out)
    e(f"s_mov_b32 {SRDOUT[0]}, s14"); e(f"s_mov_b32 {SRDOUT[1]}, s15")
    e(f"s_mov_b32 {SRDOUT[2]}, 6291456"); e(f"s_mov_b32 {SRDOUT[3]}, 0x20000")
    e(f"v_add_u32 {vRW}, {sM0}, {t0}")
    RB = [0, 32768, 98304]
    if E3: e(f"v_add_u32 {rw[1]}, {RB[1]}, {vRW}"); e(f"v_add_u32 {rw[2]}, {RB[2]}, {vRW}"); rw[0] = vRW
    for d in range(1, 4):
        e(f"s_sub_u32 {sT0}, {sW}, {d}"); e(f"s_and_b32 {sT0}, {sT0}, 3"); e(f"s_mul_i32 {sT0}, {sT0}, {REG}")
        e(f"s_add_u32 {sT0}, {sT0}, {RB[d - 1] if E3 else (d - 1) * 12288}"); e(f"v_add_u32 {ra[d-1]}, {sT0}, {t0}")
    if not F4: wa_setup()
    e(f"s_mul_i32 {sT0}, {sRB}, 196608"); e(f"s_lshl_b32 {sT1}, {sCB}, 8"); e(f"s_add_u32 {sT0}, {sT0}, {sT1}")
    e(f"s_lshl_b32 {sT1}, {sW}, 6"); e(f"s_add_u32 {sT0}, {sT0}, {sT1}")
    e(f"v_and_b32 {u1}, 15, {vLane}"); e(f"v_lshlrev_b32 {vOut}, 11, {u1}"); e(f"v_add_u32 {vOut}, {sT0}, {vOut}")
    e(f"v_and_b32 {u1}, 1, {vg}"); e(f"v_lshl_add_u32 {vOut}, {u1}, 5, {vOut}")
    e(f"v_lshrrev_b32 {u1}, 1, {vg}"); e(f"v_lshl_add_u32 {vOut}, {u1}, 4, {vOut}")
    vZ = V(168, 4)
    if not F4:
        for i in range(4): e(f"v_mov_b32 {vZ[i]}, 0")
        e("s_nop 1")
        for k in range(12): e(f"v_mfma_f32_32x32x16_bf16 {A(16 * k, 16)}, {vZ}, {vZ}, 0")
    def rdA(slot, i):
        if E3: return [(lambda u=u: a.ds_read_tr(AF(i)[2 * u:2 * u + 2], (wl if slot & 1 else wa)[i], (32768 if slot < 2 else 0) + u * 4096)) for u in range(2)]
        return [(lambda u=u: a.ds_read_tr(AF(i)[2 * u:2 * u + 2], wa[i], slot * 8192 + u * 4096)) for u in range(2)]
    late2 = []
    if E3: late2 = a.out[mark1:]; del a.out[mark1:]
    def chk(n):
        e(f"v_cmp_ne_u32 vcc, {vPD}, {vTg}"); e(f"s_and_b32 {sT0}, vcc_lo, {sMK}"); e(f"s_cbranch_scc1 L2_slow{n}")
        a.label(f"L2_back{n}")
    if TP:
        chk(0)
        stamp(a, 1)
        run(issue_o(0)); run(issue_o(1)); run(issue_o(2))
        n3 = 8 if w3ops else 0
        for o in w3ops: o()
        for i in range(7):
            for r in rdA(0, i): r()
        a.out += late2
        e("s_cmp_lg_u32 s93, 0"); e("s_cbranch_scc1 L2_sigd")
        e(f"s_waitcnt vmcnt({18 + n3})"); signal("a")
        a.label("L2_sigd")
        a.wait(vm=6 + n3)
        stamp(a, 2)
    elif F4:
        if not E3: a.wait(vm=32 if OPT["fo"] == 1 else 0)
        chk(0)
        stamp(a, 1)
        run(issue_o(0)); run(issue_o(1)); run(issue_o(2))
        if not E3: a.wait(vm=18 + 24)
        for i in range(7):
            for r in rdA(0, i): r()
        a.out += late2
        a.wait(vm=6)
        stamp(a, 2)
    elif fused and OPT["fuse"] == 3:
        stamp(a, 1)
        e(f"s_mov_b32 {sIT}, 0")
        e(f"s_cmp_lg_u32 {sW}, 0"); e("s_cbranch_scc1 L2_skip")
        e("s_waitcnt vmcnt(32)")
        e("s_branch L2_chk")
        a.label("L2_poll")
        e(f"s_sleep {OPT['psleep']}")
        e(f"buffer_load_dword {vPD}, {vPA}, {SRDDBG}, s39 offen sc1")
        e("s_waitcnt vmcnt(0)")
        a.label("L2_chk")
        e(f"v_cmp_ne_u32 vcc, {vPD}, {vTag}"); e(f"s_add_u32 {sIT}, {sIT}, 1")
        e("s_cbranch_vccz L2_skip")
        e(f"s_cmp_lt_u32 {sIT}, 0x40000"); e("s_cbranch_scc1 L2_poll")
        a.label("L2_skip")
        e("s_barrier")
        stamp(a, 2)
        run(issue_o(0)); run(issue_o(1)); run(issue_o(2))
        a.wait_for(("w", 0))
        for i in range(7):
            for r in rdA(0, i): r()
        a.wait(vm=6)
        stamp(a, 3)
    elif fused:
        e(f"s_mov_b32 {SRDDBG[0]}, s16"); e(f"s_mov_b32 {SRDDBG[1]}, s17"); e(f"s_mov_b32 {SRDDBG[2]}, 256"); e(f"s_mov_b32 {SRDDBG[3]}, 0x20000")
        e(f"s_lshl_b32 {sT0}, {sB1}, 4"); e(f"s_lshr_b32 {sT1}, {sRB}, 1"); e(f"s_lshl_b32 {sT1}, {sT1}, 4")
        if OPT["fuse"] == 2: e(f"s_mov_b32 {sT0}, 0"); e(f"s_mov_b32 {sT1}, 0")
        e(f"v_mov_b32 {vt[0]}, 1"); e(f"v_mov_b32 {vt[1]}, 0"); e(f"s_mov_b32 {sIT}, 0")
        a.k2 = 1; stamp(a, 0)
        a.wait(vm=0); e("s_barrier")
        stamp(a, 1)
        e(f"s_cmp_lg_u32 {sW}, 0"); e("s_cbranch_scc1 L2_skip")
        e("s_mov_b64 exec, 1")
        e(f"buffer_atomic_add {vt[0]}, {vt[1]}, {SRDDBG}, {sT0} offen sc1")
        a.label("L2_poll")
        e(f"buffer_load_dword {vt[2]}, {vt[1]}, {SRDDBG}, {sT1} offen sc1")
        e("s_waitcnt vmcnt(0)")
        e(f"v_readfirstlane_b32 {sT2}, {vt[2]}"); e(f"s_add_u32 {sIT}, {sIT}, 1")
        e(f"s_cmp_ge_u32 {sT2}, {256 if OPT['fuse'] == 2 else 16}"); e("s_cbranch_scc1 L2_go")
        e(f"s_sleep {OPT['psleep']}")
        e(f"s_cmp_lt_u32 {sIT}, 0x40000"); e("s_cbranch_scc1 L2_poll")
        a.label("L2_go")
        e("s_mov_b64 exec, -1")
        a.label("L2_skip")
        for i in range(7):
            for r in rdA(0, i): r()
        e("s_barrier")
        stamp(a, 2)
        run(issue_o(0)); run(issue_o(1)); run(issue_o(2))
        a.wait(vm=0)
        stamp(a, 3)
    else:
        a.wait_for(("w", 0))
        stamp(a, 1)
        for i in range(7):
            for r in rdA(0, i): r()
    e(f"s_mov_b32 {sIT}, 0")
    PEEL = E3 and OPT["peel"]
    def red_w(i, j):
        d, b = i >> 1, i & 1
        c = (d - 1) * 12 + j * 2 + b
        a.ds_write_b128(rw[d - 1], AC(i, j), (c >> 3) * 32768 - RB[d - 1] + (c & 7) * 1024)
    def body(last=False):
        for u in range(4):
            G = Gaps()
            order = [(i, j) for i in ([2, 3, 4, 5, 6, 7, 0, 1] if last and u == 3 else range(8)) for j in range(6)]
            mf = [(lambda i=i, j=j: a.mfma16(AC(i, j), AF(i), BF(u, j), AC(i, j))) for i, j in order]
            m0_ = mf[0]; mf[0] = lambda m0_=m0_: (a.wait_for(BF(u, 5), lgkm=2), m0_())
            for k, r in enumerate(rdA(u, 7)): G.mem(k, r)
            if last and u == 3:
                G.mem(5, lambda: a.wait(lgkm=0))
                for k, (i, j) in enumerate(order[:36]): G.mem(k + OPT["pdl"], lambda i=i, j=j: red_w(i, j))
                G.run(mf)
                continue
            G.mem(5, lambda: a.wait_for(("w", (u + 1) % 4), lgkm=0))
            for i in range(7):
                for k, r in enumerate(rdA((u + 1) % 4, i)): G.mem(6 * i + 6 + k, r)
            ops = issue_w(u) + issue_o((u + 3) % 4)
            if last: ops = issue_o(3) if u == 0 else []
            if u == 0 and not PEEL: G.mem(3, lambda: (e(f"s_cmp_eq_u32 {sIT}, 7"), e(f"s_cselect_b32 {SRDWO[2]}, 0, {SRDWO[2]}")))
            if u == 1 and not PEEL: G.mem(3, lambda: (e(f"s_cmp_eq_u32 {sIT}, 7"), e(f"s_cselect_b32 {SRDOW[2]}, 0, {SRDOW[2]}")))
            if F4 and u == 0 and not last: G.mem(4, lambda: (e(f"s_add_u32 {sT1}, {sIT}, 3"), e(f"s_lshr_b32 {sT1}, {sT1}, 1"), e(f"s_bfm_b32 {sMK}, {sT1}, 0")))
            if F4 and u == 1 and not last: G.mem(4, lambda: (a.wait_for(vPD), chk(1)))
            if OPT["sig"] and u == 0 and not last: G.mem(2, lambda: (e(f"s_cmp_eq_u32 {sIT}, 3"), e(f"s_cselect_b32 {sT1}, {6 * 524288}, 0"), e(f"s_add_u32 {sWOo}, {sWOo}, {sT1}")))
            if F4 and u == OPT["pollu"] and not last: ops = ops + [lambda: a.bload(vPD, vPA, SRDF, sCL, 0, " sc1")]
            free = [g for i in range(1, 8) for g in range(6 * i + 2, 6 * i + 6)]
            if last: free = free[:12]
            for o, g in zip(ops, [free[(k * len(free)) // len(ops)] for k in range(len(ops))]): G.mem(g, o)
            G.run(mf)
    mark = len(a.out)
    body(); body(); sl, sv = list(a.lds), list(a.vm)
    del a.out[mark:]
    a.lds, a.vm = list(sl), list(sv)
    a.label("L2_loop")
    body()
    assert a.lds == sl and a.vm == sv, (a.vm, sv)
    e(f"s_add_u32 {sIT}, {sIT}, 1"); e(f"s_cmp_lt_u32 {sIT}, {7 if PEEL else 8}"); e("s_cbranch_scc1 L2_loop")
    if PEEL: body(True)
    else: a.wait(vm=0, lgkm=0)
    if not fused: stamp(a, 2); stamp(a, 3)
    if F4: stamp(a, 3)
    stamp(a, 4)
    if OPT["peel"] < 2: e("s_nop 7")
    for d in range(1, 4):
        for j in range(6):
            for b in range(2):
                c = (d - 1) * 12 + j * 2 + b
                if PEEL: continue
                if E3: a.ds_write_b128(rw[d - 1], AC(2 * d + b, j), (c >> 3) * 32768 - RB[d - 1] + (c & 7) * 1024)
                else: a.ds_write_b128(vRW, AC(2 * d + b, j), c * 1024)
    R = lambda b, j: V(40 + 8 * j + 4 * b, 4)
    def accr():
        for j in range(6):
            for b in range(2):
                for i in range(4): e(f"v_accvgpr_read_b32 {R(b, j)[i]}, {AC(b, j)[i]}")
    if OPT["peel"] < 2: accr()
    a.wait(lgkm=0); e("s_barrier")
    T = lambda d, b, j: V(96 + 48 * d + 8 * j + 4 * b, 4)
    for j in range(6):
        for d in range(3):
            for b in range(2):
                c = d * 12 + j * 2 + b
                a.ds_read_b128(T(d, b, j), ra[d], ((c >> 3) * 32768 - RB[d] + (c & 7) * 1024) if E3 else (j * 2 + b) * 1024)
    if OPT["peel"] >= 2: accr()
    for j in range(6):
        for d in range(3):
            for b in range(2):
                a.wait_for(T(d, b, j))
                for i in range(2): e(f"v_pk_add_f32 {R(b, j)[2*i:2*i+2]}, {R(b, j)[2*i:2*i+2]}, {T(d, b, j)[2*i:2*i+2]}")
        D = V(10 + 4 * j, 4)
        e(f"v_cvt_pk_bf16_f32 {D[0]}, {R(0, j)[0]}, {R(0, j)[1]}"); e(f"v_cvt_pk_bf16_f32 {D[1]}, {R(0, j)[2]}, {R(0, j)[3]}")
        e(f"v_cvt_pk_bf16_f32 {D[2]}, {R(1, j)[0]}, {R(1, j)[1]}"); e(f"v_cvt_pk_bf16_f32 {D[3]}, {R(1, j)[2]}, {R(1, j)[3]}")
        e(f"s_mov_b32 {sT0}, {j * 32768}"); e("s_nop 0")
        e(f"v_permlane16_swap_b32 {D[0]}, {D[2]}"); e(f"v_permlane16_swap_b32 {D[1]}, {D[3]}")
        a.bstore(D, vOut, SRDOUT, sT0, 0, (" " + OPT["ost2"].replace("+", " ")) if OPT["ost2"] else "")
    dump_stamps(a, 6, 0x4100000, sW, vt[0], vt[1])
    a.k2 = 0
    if OPT["leak"]:
        lk = OPT["leak"]
        if lk < 100:
            e(f"v_readfirstlane_b32 s93, v{241 + 2 * (lk % 10)}"); e(f"v_readfirstlane_b32 s94, v{241 + 2 * (lk // 10)}")
        elif lk < 200:
            e(f"s_mov_b32 s93, s{61 + 2 * (lk % 10)}"); e(f"s_mov_b32 s94, s{61 + 2 * ((lk // 10) % 10)}")
        else:
            e("v_readfirstlane_b32 s93, v251"); e("s_mov_b32 s94, s61")
        e("s_nop 4"); e("s_sub_u32 s93, s93, s94"); e("s_lshl_b32 s93, s93, 2"); e("s_min_u32 s93, s93, 100000")
        e("s_memrealtime s[98:99]"); e("s_waitcnt lgkmcnt(0)"); e("s_add_u32 s93, s93, s98")
        a.label("L2_spin")
        e("s_memrealtime s[98:99]"); e("s_waitcnt lgkmcnt(0)"); e("s_sub_u32 s94, s93, s98"); e("s_cmp_gt_i32 s94, 0"); e("s_cbranch_scc1 L2_spin")
    if fused:
        dump1()
        yield None
        for n in range(2):
            if TP and n == 0:
                a.label("L2_slow0")
                e("s_waitcnt vmcnt(0)"); signal("b"); e("s_mov_b32 s93, 1"); e("s_branch L2_slow0x")
                n = "0w"
            a.label(f"L2_slow{n}")
            e(f"s_sleep {OPT['psleep']}")
            if n == "0w": a.label("L2_slow0x")
            e(f"buffer_load_dword {vPD}, {vPA}, {SRDF}, {sCL} offen sc1"); e("s_waitcnt vmcnt(0)")
            e(f"s_add_u32 {sPC}, {sPC}, 1"); e(f"s_cmp_ge_u32 {sPC}, 0x40000"); e(f"s_cbranch_scc1 L2_back{str(n)[0]}")
            e(f"v_cmp_ne_u32 vcc, {vPD}, {vTg}"); e(f"s_and_b32 {sT0}, vcc_lo, {sMK}"); e(f"s_cbranch_scc1 L2_slow{n}")
            e(f"s_branch L2_back{str(n)[0]}")
        yield None
    else:
        a.label("L2_end")
        e("s_endpgm")
        yield a.text()


def kernel0():
    a = Asm(); e = a.e
    a.label("mha_pre_kernel")
    e("s_cmp_ge_u32 s2, 256"); e("s_cbranch_scc1 L0_end")
    e("s_load_dwordx16 s[4:19], s[0:1], 0"); e("s_waitcnt lgkmcnt(0)")
    e("s_mov_b32 s20, s4"); e("s_mov_b32 s21, s5"); e("s_mov_b32 s22, 6291456"); e("s_mov_b32 s23, 0x20000")
    e("s_mov_b32 s24, s10"); e("s_mov_b32 s25, s11"); e("s_mov_b32 s26, 8388608"); e("s_mov_b32 s27, 0x20000")
    e("v_lshlrev_b32 v1, 7, v0"); e("s_lshl_b32 s3, s2, 15")
    e("buffer_load_dword v2, v1, s[20:23], s3 offen"); e("buffer_load_dword v3, v1, s[24:27], s3 offen")
    e("s_waitcnt vmcnt(0)")
    a.label("L0_end"); e("s_endpgm")
    return a.text()

def main():
    launches = []
    if OPT["fuse"]:
        s = HEADER + "; @launch kernel=mha_qattn_kernel grid=(256,1,1) block=(256,1,1) lds=163840\n"
        s += '.amdgcn_target "amdgcn-amd-amdhsa--gfx950"\n.text\n'
        s += ".globl mha_qattn_kernel\n.p2align 8\n.type mha_qattn_kernel,@function\n" + kernel1() + "L_text_end:\n"
        s += kd("mha_qattn_kernel", 512, 256)
        open(sys.argv[1], "w").write(s)
        return
    if OPT["only"] in (None, "k1"): launches.append("; @launch kernel=mha_qattn_kernel grid=(256,1,1) block=(256,1,1) lds=163840")
    if OPT["only"] in (None, "k2"): launches.append("; @launch kernel=mha_oproj_kernel grid=(256,1,1) block=(256,1,1) lds=163840")
    s = HEADER + "\n".join(launches) + "\n"
    s += '.amdgcn_target "amdgcn-amd-amdhsa--gfx950"\n.text\n'
    s += ".globl mha_qattn_kernel\n.p2align 8\n.type mha_qattn_kernel,@function\n" + kernel1()
    s += ".globl mha_oproj_kernel\n.p2align 8\n.type mha_oproj_kernel,@function\n" + next(kernel2(None)) + "L_text_end:\n"
    s += kd("mha_qattn_kernel", 512, 256) + kd("mha_oproj_kernel", 512, 256)
    open(sys.argv[1], "w").write(s)
main()
```

```python
import sys, math, struct
from asmlib import *

OPT = dict(kv_nt=1, only=None, dbgQ=0, prof=0, kvskip=0, wo_touch=3, n2=0, rotH=0, p1end=26, ost="", codepf=0, k2skip=0, map2=1, pre=0, askip=0, p2nt=1, p2s=3, p2e=30, early=1, xw_touch=0, leak=0, rotW=0, krot=0, ost2="", itst=0, bwait=16, bdrop=0, qmode=0, tl=64, fuse=1, psleep=2, osc=1, bmap=0, evw=16, h16=0, dg0=20, verbose=0, d4=8, x5g=0, bnoc=0, xmap=0, only01=0, p2b=49152, pollu=2, fo=0, fint=4, hperm=0, cbrot=0, wvx=0, cbtab='0x76345210', e30=20, e31=20, pj=5, w3l=0, thr=0, thrp=0, tp=0, sig=0, rotp='1,1,2,4,3', tlbw=0, tlbg=64, tlbm=3, peel=0, pdl=8, pnt=0)
for a_ in sys.argv[2:]:
    k, v = a_.split("=")
    assert k in OPT, k
    OPT[k] = int(v) if v.lstrip("-").isdigit() else v

def f32bits(x): return struct.unpack("<I", struct.pack("<f", x))[0]
CSCALE = math.log2(math.e) / math.sqrt(128.0)
THRESH = 2.0 ** 30
FLOFF = 0x2000000

HEADER = """; Kernarg layout for this problem (64 bytes, ptrs only, base s[0:1]):
"""

def stamp(a, i, lvl=1):
    if not OPT["prof"]: return
    if OPT["prof"] == 2 and lvl == 1 and i >= 2 and not getattr(a, "k2", 0): return
    if OPT["prof"] == 1 and lvl == 2: return
    if OPT["prof"] == 3 and not (lvl == 1 and i == (5 if getattr(a, "k2", 0) else 0)): return
    a.e("s_memtime s[98:99]"); a.e("s_memrealtime s[100:101]")
    a.e("s_waitcnt lgkmcnt(0)"); a.lds = []
    if getattr(a, "k2", 0): a.e(f"v_mov_b32 v{240+2*i}, s98"); a.e(f"v_mov_b32 v{241+2*i}, s100")
    else: a.e(f"s_mov_b32 s{60+2*i}, s98"); a.e(f"s_mov_b32 s{61+2*i}, s100")
def dump_stamps(a, n, wsoff, sW, vtmp, vaddr, last=True):
    if not OPT["prof"]: return
    e = a.e
    e("s_waitcnt vmcnt(0)")
    if last: stamp(a, n - 1)
    e("s_mov_b32 s88, s18"); e("s_mov_b32 s89, s19"); e("s_mov_b32 s90, 0x10000000"); e("s_mov_b32 s91, 0x20000")
    e(f"s_lshl_b32 s92, s2, 2"); e(f"s_add_u32 s92, s92, {sW}"); e("s_lshl_b32 s92, s92, 6"); e(f"s_add_u32 s92, s92, {wsoff}")
    e(f"v_mov_b32 {vaddr}, 0")
    for i in range(2 * n):
        e(f"v_mov_b32 {vtmp}, " + (f"v{240+i}" if getattr(a, "k2", 0) else f"s{60+i}"))
        e(f"buffer_store_dword {vtmp}, {vaddr}, s[88:91], s92 offen offset:{4*i}")
    e("s_waitcnt vmcnt(0)")

def code_prefetch(a, vLane, vtmp, vdst, start_label, nbytes, sW):
    e = a.e
    e("s_getpc_b64 s[84:85]")
    a.label(f"{start_label}_pc")
    e(f"s_sub_u32 s84, s84, {start_label}_pc-{start_label}"); e("s_subb_u32 s85, s85, 0")
    e(f"s_mov_b32 s86, L_text_end-{start_label}"); e("s_mov_b32 s87, 0x20000")
    e(f"v_lshlrev_b32 {vtmp}, 7, {vLane}"); e(f"s_lshl_b32 s93, {sW}, 13")
    for blk in range((nbytes + 32767) // 32768):
        a.bload(vdst, vtmp, S(84, 4), "s93", 0)
        e("s_add_u32 s93, s93, 32768")

def kernel1():
    a = Asm(); e = a.e
    SRDX, SRDW, SRDKV, SRDO, SRDWO = S(20, 4), S(24, 4), S(28, 4), S(32, 4), S(80, 4)
    sW, sB, sHP, sQH, sHS = S(36), S(37), S(38), S(40), S(41)
    sT0, sT1, sT2, sIT = S(42), S(43), S(44), S(45)
    sXK, sWK = S(46), S(47)
    sM0X, sM0W = S(48), S(49)
    sKVO, sKVO2, sM0KV = S(50), S(51), S(52)
    sTHR, sC = S(53), S(54, 2)
    sOO, sCnt, sKV0, sPass, sP1 = S(56), S(57), S(58), S(59), S(39)
    sDL, sSL0, sS = S(79), S(78), S(72)
    vLane = V(1)
    vt = [V(i) for i in range(2, 10)]
    xa = [[V(10 + 2 * s + k) for k in range(2)] for s in range(2)]
    wa = [V(14 + k) for k in range(8)]
    xv = [V(22 + k) for k in range(6)]
    wv = [V(28 + k) for k in range(4)]
    ka = [V(32 + k) for k in range(8)]
    va = [V(40 + k) for k in range(8)]
    kvv = [V(48 + k) for k in range(4)]
    vl = [V(52 + k) for k in range(6)]
    vKW, vOS, vTA, vTD, vFL = V(58), V(59), V(60), V(61), V(62)
    vZ = V(10, 4)
    ACC = lambda i, j: V(64 + 64 * (j >> 1) + 8 * i + 4 * (j & 1), 4)
    QF = lambda j, ks: V(64 + 32 * (j >> 1) + 8 * ks + 4 * (j & 1), 4)
    NEG = lambda j: V(160 + 4 * j, 4)
    SB = lambda i: V(184 + 8 * i, 8)
    PB = lambda i: V(200 + 4 * i, 4)
    TMP = lambda j: V(184 + 4 * j, 4)
    X5 = lambda p: V(208 + 4 * p, 4)
    R2 = lambda j: V(232 + 2 * j, 2)
    OA = lambda db, j: A(4 * (8 * j + db), 4)
    KF = lambda n: A(192 + 4 * n, 4)
    VF = lambda db: A(224 + 4 * db, 4)
    AF = lambda i: A(128 + 4 * i, 4)
    BF = lambda st, j: A((160 if st == 0 else 224) + 4 * j, 4)
    P1R = lambda t, p: A(4 * (8 * t + p), 4)
    XBASE = 65536
    F4 = OPT["fuse"] == 4
    E3 = F4 and OPT["fo"] == 3
    SRDF, SRDD, sFLO, vTag, vZero, vZ4 = S(84, 4), S(88, 4), S(73), V(63), V(0), V(252, 4)
    nt = ["", " nt", " sc1 nt", " sc0 sc1 nt", " sc1", " sc0 nt"][OPT["kv_nt"]]

    a.label("mha_qattn_kernel")
    e("s_cmp_ge_u32 s2, 256"); e("s_cbranch_scc1 L1_end")
    e("s_load_dwordx16 s[4:19], s[0:1], 0")
    e(f"v_lshrrev_b32 {vt[0]}, 6, v0"); e(f"v_and_b32 {vLane}, 63, v0")
    e("s_and_b32 s3, s2, 7"); e(f"s_lshr_b32 {sT0}, s2, 3")
    e(f"v_readfirstlane_b32 {sW}, {vt[0]}")
    e(f"s_and_b32 {sT1}, s3, 1"); e(f"s_and_b32 {sT2}, {sT0}, 7")
    if OPT["bmap"] == 0: e(f"s_lshl_b32 {sT1}, {sT1}, 3")
    if OPT["bmap"] == 1: e(f"s_lshl_b32 {sT2}, {sT2}, 1")
    if OPT["bmap"] == 2: e(f"s_xor_b32 {sT1}, {sT1}, 1"); e(f"s_lshl_b32 {sT1}, {sT1}, 3")
    e(f"s_add_u32 {sB}, {sT1}, {sT2}")
    e(f"s_lshr_b32 {sT1}, s3, 1"); e(f"s_lshl_b32 {sT1}, {sT1}, 2"); e(f"s_lshr_b32 {sHP}, {sT0}, 3")
    if OPT["hperm"]:
        e(f"s_lshr_b32 {sT2}, {sHP}, 1"); e(f"s_not_b32 {sHP}, {sHP}"); e(f"s_and_b32 {sHP}, {sHP}, 1"); e(f"s_lshl_b32 {sHP}, {sHP}, 1"); e(f"s_add_u32 {sHP}, {sHP}, {sT2}")
    e(f"s_add_u32 {sHP}, {sHP}, {sT1}")
    if OPT["xmap"] == 1:
        e(f"s_lshr_b32 {sT1}, s3, 1"); e(f"s_lshl_b32 {sT1}, {sT1}, 2"); e(f"s_and_b32 {sT2}, {sT0}, 3"); e(f"s_add_u32 {sB}, {sT1}, {sT2}")
        e(f"s_and_b32 {sT1}, s3, 1"); e(f"s_lshl_b32 {sT1}, {sT1}, 3"); e(f"s_lshr_b32 {sHP}, {sT0}, 2"); e(f"s_add_u32 {sHP}, {sHP}, {sT1}")
    if OPT["xmap"] == 2:
        e(f"s_lshl_b32 {sT1}, s3, 1"); e(f"s_and_b32 {sT2}, {sT0}, 1"); e(f"s_add_u32 {sB}, {sT1}, {sT2}"); e(f"s_lshr_b32 {sHP}, {sT0}, 1")
    if OPT["xmap"] == 3:
        e(f"s_and_b32 {sB}, {sT0}, 15"); e(f"s_lshl_b32 {sT1}, s3, 1"); e(f"s_lshr_b32 {sHP}, {sT0}, 4"); e(f"s_add_u32 {sHP}, {sHP}, {sT1}")
    if OPT["xmap"] in (4, 5):
        e(f"s_lshr_b32 {sT1}, s3, 2"); e(f"s_lshl_b32 {sT1}, {sT1}, 3"); e(f"s_and_b32 {sT2}, {sT0}, 7"); e(f"s_add_u32 {sB}, {sT1}, {sT2}")
        e(f"s_and_b32 {sT1}, s3, 2"); e(f"s_lshl_b32 {sT1}, {sT1}, 2"); e(f"s_and_b32 {sT2}, s3, 1"); e(f"s_lshl1_add_u32 {sHP}, {sT2}, {sT1}")
        e(f"s_lshr_b32 {sT1}, {sT0}, 4"); e(f"s_lshl2_add_u32 {sHP}, {sT1}, {sHP}")
        e(f"s_bfe_u32 {sT1}, {sT0}, 0x10003")
        if OPT["xmap"] == 4: e(f"s_xor_b32 {sT1}, {sT1}, 1")
        e(f"s_add_u32 {sHP}, {sHP}, {sT1}")
    if OPT["xmap"] in (6, 7):
        e(f"s_lshr_b32 {sT1}, s3, 2"); e(f"s_lshl_b32 {sT1}, {sT1}, 3"); e(f"s_and_b32 {sT2}, {sT0}, 7"); e(f"s_add_u32 {sB}, {sT1}, {sT2}")
        e(f"s_and_b32 {sT1}, s3, 2"); e(f"s_lshl_b32 {sT1}, {sT1}, 1"); e(f"s_and_b32 {sT2}, s3, 1"); e(f"s_lshl3_add_u32 {sHP}, {sT2}, {sT1}")
        e(f"s_lshr_b32 {sT1}, {sT0}, 3")
        if OPT["xmap"] == 6: e(f"s_xor_b32 {sT1}, {sT1}, 1")
        e(f"s_add_u32 {sHP}, {sHP}, {sT1}")
    e(f"s_and_b32 {sQH}, {sW}, 1"); e(f"s_lshr_b32 {sHS}, {sW}, 1")
    t0, t1, t2, t3, t4, t5 = vt[:6]
    e(f"v_lshrrev_b32 {t2}, 4, {vLane}")
    e(f"v_and_b32 {t1}, 15, {vLane}")
    e(f"v_lshlrev_b32 {t3}, 1, {t2}"); e(f"v_xor_b32 {t1}, {t1}, {t3}")
    e(f"s_lshl_b32 {sT0}, {sQH}, 4"); e(f"v_add_u32 {t0}, {sT0}, {t2}")
    e(f"v_lshlrev_b32 {t0}, 13, {t0}")
    e(f"s_lshl_b32 {sT0}, {sHS}, 8"); e(f"v_add_u32 {t0}, {sT0}, {t0}")
    for m in range(4):
        e(f"v_xor_b32 {t3}, {8 * (m >> 1)}, {t1}"); e(f"v_lshl_add_u32 {t3}, {t3}, 4, {t0}")
        e(f"v_add_u32 {wv[m]}, {m * 32768 - m * 1024}, {t3}")
    e(f"v_lshrrev_b32 {t0}, 3, {vLane}")
    e(f"v_and_b32 {t1}, 7, {vLane}"); e(f"v_xor_b32 {t1}, {t1}, {t2}")
    e(f"s_mul_i32 {sT0}, {sW}, 48"); e(f"v_add_u32 {t0}, {sT0}, {t0}"); e(f"v_lshlrev_b32 {t0}, 11, {t0}")
    for m in range(6):
        e(f"v_xor_b32 {t3}, {4 * (m & 1)}, {t1}"); e(f"v_lshl_add_u32 {t3}, {t3}, 4, {t0}")
        e(f"v_add_u32 {xv[m]}, {m * 16384 - (m % 3) * 1024}, {t3}")
    e(f"s_mul_i32 {sM0X}, {sW}, 6144"); e(f"s_add_u32 {sM0X}, {sM0X}, {XBASE}")
    e(f"s_lshl_b32 {sM0W}, {sW}, 12")
    e("s_waitcnt lgkmcnt(0)")
    stamp(a, 0)
    e(f"s_lshl_b32 {sT0}, {sHP}, 9")
    e(f"s_add_u32 {SRDW[0]}, s10, {sT0}"); e(f"s_addc_u32 {SRDW[1]}, s11, 0")
    e(f"s_sub_u32 {SRDW[2]}, 8388608, {sT0}"); e(f"s_mov_b32 {SRDW[3]}, 0x20000")
    e(f"s_mul_i32 {sT0}, {sB}, 393216")
    e(f"s_add_u32 {SRDX[0]}, s4, {sT0}"); e(f"s_addc_u32 {SRDX[1]}, s5, 0")
    e(f"s_mov_b32 {SRDX[2]}, 393216"); e(f"s_mov_b32 {SRDX[3]}, 0x20000")

    if OPT["askip"]: e(f"s_mov_b32 {SRDX[2]}, 0"); e(f"s_mov_b32 {SRDW[2]}, 0")
    sKR, sKRW = S(76), S(77)
    if OPT["krot"]:
        e(f"s_lshr_b32 {sT0}, s2, 3"); e(f"s_and_b32 {sT1}, {sT0}, 7"); e(f"s_lshr_b32 {sT0}, {sT0}, 3"); e(f"s_lshl_b32 {sT0}, {sT0}, 1")
        e(f"s_add_u32 {sT0}, {sT0}, {sT1}"); e(f"s_and_b32 {sT0}, {sT0}, 7")
        if OPT["krot"] == 2: e(f"s_and_b32 {sT0}, {sT0}, 1"); e(f"s_lshl_b32 {sT0}, {sT0}, 2")
        if OPT["krot"] == 3: e(f"s_and_b32 {sT0}, {sT0}, 3"); e(f"s_lshl_b32 {sT0}, {sT0}, 1")
        e(f"s_lshl_b32 {sKR}, {sT0}, 8"); e(f"s_lshl_b32 {sKRW}, {sT0}, 20")
    def dma_x(c, part):
        if OPT["krot"]:
            ops = [lambda: (e(f"s_add_u32 m0, {sM0X}, {(c % 4) * 24576 + part * 3072}"), e(f"s_add_u32 {sXK}, {sKR}, {c * 128}"), e(f"s_and_b32 {sXK}, {sXK}, 2047"))]
        else:
            ops = [lambda: (e(f"s_add_u32 m0, {sM0X}, {(c % 4) * 24576 + part * 3072}"), e(f"s_movk_i32 {sXK}, {c * 128}"))]
        for m in range(3):
            ops.append(lambda m=m: a.dma(xv[3 * part + m], SRDX, sXK, m * 1024, " nt" if OPT["pnt"] & 1 else "", tag=("x", c)))
        return ops
    def dma_w(s):
        if OPT["krot"]:
            ops = [lambda: (e(f"s_add_u32 m0, {sM0W}, {(s % 4) * 16384}"), e(f"s_add_u32 {sWK}, {sKRW}, {s * 262144}"), e(f"s_and_b32 {sWK}, {sWK}, 8388607"))]
        else:
            ops = [lambda: (e(f"s_add_u32 m0, {sM0W}, {(s % 4) * 16384}"), e(f"s_mov_b32 {sWK}, {s * 262144}"))]
        for m in range(4):
            ops.append(lambda m=m: a.dma(wv[m], SRDW, sWK, m * 1024, " nt" if OPT["pnt"] & 2 else "", tag=("w", s)))
        return ops
    def run(ops):
        for o in ops: o()
    run(dma_w(0)); run(dma_x(0, 0)); run(dma_x(0, 1)); run(dma_w(1)); run(dma_w(2)); run(dma_x(1, 0)); run(dma_x(1, 1)); run(dma_w(3))
    if OPT["codepf"]: code_prefetch(a, vLane, vTA, vTD, "mha_qattn_kernel", OPT["codepf"] * 1024, sW)
    run(dma_x(2, 0)); run(dma_x(2, 1)); run(dma_x(3, 0)); run(dma_x(3, 1))
    e(f"s_lshl_b32 {sT0}, {sB}, 5"); e(f"s_lshl_b32 {sT1}, {sHP}, 1"); e(f"s_add_u32 {sT0}, {sT0}, {sT1}")
    e(f"s_add_u32 {sT0}, {sT0}, {sHS}"); e(f"s_lshl_b32 {sT0}, {sT0}, 18")
    e(f"s_cmp_eq_u32 {sQH}, 0"); e(f"s_cselect_b32 {sT1}, s6, s8"); e(f"s_cselect_b32 {sT2}, s7, s9")
    e(f"s_add_u32 {SRDKV[0]}, {sT1}, {sT0}"); e(f"s_addc_u32 {SRDKV[1]}, {sT2}, 0")
    NR = 0 if OPT["kvskip"] else 262144
    e(f"s_mov_b32 {SRDKV[2]}, {NR}"); e(f"s_mov_b32 {SRDKV[3]}, 0x20000")
    e(f"s_mov_b32 {SRDO[0]}, s18"); e(f"s_mov_b32 {SRDO[1]}, s19")
    e(f"s_mov_b32 {SRDO[2]}, 25165824"); e(f"s_mov_b32 {SRDO[3]}, 0x20000")
    e(f"s_mov_b32 {sTHR}, {f32bits(THRESH):#x}")
    e(f"s_mov_b32 {sC[0]}, {f32bits(CSCALE):#x}"); e(f"s_mov_b32 {sC[1]}, {f32bits(CSCALE):#x}")
    e(f"s_mul_i32 {sKV0}, {sHS}, {OPT['rotH'] * 8192}"); e(f"s_mov_b32 {sPass}, 0")
    if OPT["rotW"] == 1:
        e(f"s_lshr_b32 {sKV0}, s2, 3"); e(f"s_lshl_b32 {sT1}, {sHS}, 2"); e(f"s_add_u32 {sKV0}, {sKV0}, {sT1}")
        e(f"s_and_b32 {sKV0}, {sKV0}, 7"); e(f"s_lshl_b32 {sKV0}, {sKV0}, 15")
    if OPT["rotW"] == 2:
        e(f"s_lshr_b32 {sKV0}, s2, 5"); e(f"s_add_u32 {sKV0}, {sKV0}, s2"); e(f"s_lshl_b32 {sT1}, {sHS}, 2"); e(f"s_add_u32 {sKV0}, {sKV0}, {sT1}")
        e(f"s_and_b32 {sKV0}, {sKV0}, 7"); e(f"s_lshl_b32 {sKV0}, {sKV0}, 15")
    if OPT["rotW"] == 3:
        e(f"s_lshr_b32 {sKV0}, s2, 3"); e(f"s_add_u32 {sKV0}, {sKV0}, s2"); e(f"s_lshr_b32 {sT1}, s2, 6"); e(f"s_add_u32 {sKV0}, {sKV0}, {sT1}")
        e(f"s_lshl_b32 {sT1}, {sHS}, 2"); e(f"s_add_u32 {sKV0}, {sKV0}, {sT1}")
        e(f"s_and_b32 {sKV0}, {sKV0}, 7"); e(f"s_lshl_b32 {sKV0}, {sKV0}, 15")
    if OPT["rotW"] == 7:
        e(f"s_lshr_b32 {sKV0}, {sB}, 3"); e(f"s_add_u32 {sKV0}, {sKV0}, {sB}"); e(f"s_lshr_b32 {sT1}, {sHP}, 2"); e(f"s_lshl1_add_u32 {sKV0}, {sT1}, {sKV0}")
        e(f"s_and_b32 {sT1}, {sHP}, 3"); e(f"s_add_u32 {sKV0}, {sKV0}, {sT1}"); e(f"s_lshl2_add_u32 {sKV0}, {sHS}, {sKV0}")
        e(f"s_and_b32 {sKV0}, {sKV0}, 7"); e(f"s_lshl_b32 {sKV0}, {sKV0}, 15")
    if OPT["rotW"] == 9:
        ca, cb, sb, cc, n = [int(z) for z in OPT["rotp"].split(",")]
        e(f"s_and_b32 {sKV0}, s2, 7"); e(f"s_mul_i32 {sKV0}, {sKV0}, {ca}"); e(f"s_lshr_b32 {sT1}, s2, {3 + sb}"); e(f"s_mul_i32 {sT1}, {sT1}, {cb}")
        e(f"s_add_u32 {sKV0}, {sKV0}, {sT1}"); e(f"s_mul_i32 {sT1}, {sHS}, {cc}"); e(f"s_add_u32 {sKV0}, {sKV0}, {sT1}")
        e(f"s_and_b32 {sKV0}, {sKV0}, {(1 << n) - 1}"); e(f"s_lshl_b32 {sKV0}, {sKV0}, {18 - n}")
    if OPT["rotW"] == 4:
        e(f"s_mul_i32 {sKV0}, s2, 5"); e(f"s_lshr_b32 {sT1}, s2, 5"); e(f"s_add_u32 {sKV0}, {sKV0}, {sT1}")
        e(f"s_lshl_b32 {sT1}, {sHS}, 4"); e(f"s_add_u32 {sKV0}, {sKV0}, {sT1}")
        e(f"s_and_b32 {sKV0}, {sKV0}, 31"); e(f"s_lshl_b32 {sKV0}, {sKV0}, 13")
    if OPT["rotW"] == 5:
        e(f"s_lshr_b32 {sKV0}, s2, 3"); e(f"s_lshl_b32 {sT1}, s2, 2"); e(f"s_add_u32 {sKV0}, {sKV0}, {sT1}")
        e(f"s_lshl_b32 {sT1}, {sHS}, 4"); e(f"s_add_u32 {sKV0}, {sKV0}, {sT1}")
        e(f"s_and_b32 {sKV0}, {sKV0}, 31"); e(f"s_lshl_b32 {sKV0}, {sKV0}, 13")
    if OPT["rotW"] == 6:
        e(f"s_lshl_b32 {sKV0}, s2, 1"); e(f"s_add_u32 {sKV0}, {sKV0}, {sHS}"); e(f"s_mul_i32 {sKV0}, {sKV0}, 0x9e3779b1")
        e(f"s_lshr_b32 {sKV0}, {sKV0}, 27"); e(f"s_lshl_b32 {sKV0}, {sKV0}, 13")
    e(f"s_mul_i32 {sDL}, {sHS}, 49152"); e(f"s_sub_u32 {sDL}, 131072, {sDL}")
    e(f"v_lshlrev_b32 {vTA}, 7, {vLane}")
    vT2 = V(0)
    e(f"v_lshrrev_b32 {vT2}, {int(math.log2(64 // OPT['tl']))}, {vLane}"); e(f"v_lshlrev_b32 {vT2}, 7, {vT2}")
    if OPT["wo_touch"]:
        e(f"s_mov_b32 {SRDWO[0]}, s12"); e(f"s_mov_b32 {SRDWO[1]}, s13"); e(f"s_mov_b32 {SRDWO[2]}, 8388608"); e(f"s_mov_b32 {SRDWO[3]}, 0x20000")
    if OPT["xw_touch"]:
        e(f"s_lshl_b32 {sT2}, s2, 2"); e(f"s_add_u32 {sT2}, {sT2}, {sW}"); e(f"s_lshl_b32 {sT2}, {sT2}, 13")
        e("s_mov_b32 s84, s10"); e("s_mov_b32 s85, s11"); e("s_mov_b32 s86, 8388608"); e("s_mov_b32 s87, 0x20000")
        a.bload(vTD, vTA, S(84, 4), sT2, 0)
        e("s_mov_b32 s84, s4"); e("s_mov_b32 s85, s5"); e("s_mov_b32 s86, 6291456")
        a.bload(vTD, vTA, S(84, 4), sT2, 0)
    vh, vg, vr, vc1, vc0, vql, u0, u1 = vt
    e(f"v_lshrrev_b32 {vg}, 4, {vLane}"); e(f"v_bfe_u32 {vr}, {vLane}, 2, 2"); e(f"v_and_b32 {vc0}, 3, {vLane}")
    e(f"v_lshl_add_u32 {u0}, {vg}, 3, {vr}"); e(f"v_lshlrev_b32 {u0}, 8, {u0}")
    e(f"s_lshl_b32 {sT0}, {sHS}, 13"); e(f"v_add_u32 {u0}, {sT0}, {u0}")
    e(f"v_lshl_add_u32 {u0}, {vc0}, 3, {u0}"); e(f"v_lshl_add_u32 {u0}, {vr}, 5, {u0}")
    e(f"v_and_b32 {u1}, 1, {vg}"); e(f"v_lshl_add_u32 {wa[0]}, {u1}, 7, {u0}")
    for i in range(1, 8): e(f"v_xor_b32 {wa[i]}, {32 * i}, {wa[0]}")
    e(f"v_and_b32 {vql}, 15, {vLane}")
    e(f"s_mul_i32 {sT1}, {sQH}, 12288"); e(f"s_add_u32 {sT1}, {sT1}, {XBASE}")
    e(f"v_lshlrev_b32 {u0}, 7, {vql}"); e(f"v_add_u32 {u0}, {sT1}, {u0}")
    e(f"v_lshrrev_b32 {u1}, 1, {vql}"); e(f"v_xor_b32 {u1}, {u1}, {vg}")
    e(f"v_lshl_add_u32 {xa[0][0]}, {u1}, 4, {u0}"); e(f"v_xor_b32 {xa[0][1]}, 64, {xa[0][0]}")
    for k in range(2): e(f"v_add_u32 {xa[1][k]}, 49152, {xa[0][k]}")
    e(f"v_lshlrev_b32 {vh}, {sQH}, {vg}")
    e(f"v_xor_b32 {vh}, {vh}, {vql}"); e(f"v_lshlrev_b32 {u0}, 8, {vg}")
    e(f"v_lshl_add_u32 {kvv[0]}, {vh}, 4, {u0}")
    e(f"s_cmp_eq_u32 {sQH}, 0")
    for j in range(1, 4):
        e(f"s_cselect_b32 {sT1}, {4 * j}, {8 * (j & 1)}"); e(f"s_mul_i32 {sT1}, {sT1}, 16"); e(f"v_xor_b32 {kvv[j]}, {sT1}, {kvv[0]}")

    def late_setup():
        ops = []
        E = lambda s: ops.append(lambda: e(s))
        E(f"v_lshrrev_b32 {vg}, 4, {vLane}"); E(f"v_bfe_u32 {vr}, {vLane}, 2, 2"); E(f"v_and_b32 {vc0}, 3, {vLane}")
        E(f"v_and_b32 {vql}, 15, {vLane}"); E(f"v_lshrrev_b32 {vc1}, 2, {vLane}")
        E(f"s_lshl_b32 {sT0}, {sHS}, 16"); E(f"s_add_u32 {sT1}, {sT0}, 8192")
        E(f"v_lshlrev_b32 {u0}, 8, {vc1}"); E(f"v_add_u32 {u0}, {sT1}, {u0}"); E(f"v_lshl_add_u32 {u0}, {vc0}, 3, {u0}")
        E(f"v_and_b32 {u1}, 7, {vc1}"); E(f"v_lshl_add_u32 {va[0]}, {u1}, 5, {u0}")
        for db in range(1, 8): E(f"v_xor_b32 {va[db]}, {32 * db}, {va[0]}")
        E(f"v_lshlrev_b32 {u0}, 8, {vql}"); E(f"v_add_u32 {u0}, {sT0}, {u0}")
        E(f"v_and_b32 {u1}, 1, {vg}"); E(f"v_lshl_add_u32 {u0}, {u1}, 3, {u0}")
        E(f"v_lshrrev_b32 {u1}, 1, {vg}"); E(f"v_xor_b32 {u1}, {u1}, {vql}"); E(f"v_lshl_add_u32 {ka[0]}, {u1}, 4, {u0}")
        for s in range(1, 8): E(f"v_xor_b32 {ka[s]}, {32 * s}, {ka[0]}")
        E(f"s_lshl_b32 {sM0KV}, {sQH}, 13"); E(f"s_add_u32 {sM0KV}, {sM0KV}, {sT0}")
        E(f"v_lshlrev_b32 {vOS}, 4, {vLane}"); E(f"v_add_u32 {vKW}, {sM0KV}, {vOS}"); E(f"s_add_u32 {sS}, {sM0KV}, {sDL}")
        E(f"s_lshl_b32 {sOO}, {sB}, 1"); E(f"s_add_u32 {sOO}, {sOO}, {sQH}"); E(f"s_mul_i32 {sOO}, {sOO}, {6 * 131072}")
        sSG = sHP
        if OPT["sig"]:
            sSG = S(93)
            E(f"s_bfe_u32 {sT1}, {sHP}, 0x20001"); E(f"s_lshr_b32 {sSG}, {sHP}, 3"); E(f"s_lshl1_add_u32 {sT1}, {sT1}, {sSG}")
            E(f"s_and_b32 {sSG}, {sHP}, 1"); E(f"s_lshl1_add_u32 {sSG}, {sT1}, {sSG}")
        E(f"s_lshl_b32 {sT1}, {sSG}, 1"); E(f"s_add_u32 {sT1}, {sT1}, {sHS}"); E(f"s_lshl_b32 {sT1}, {sT1}, 12"); E(f"s_add_u32 {sOO}, {sOO}, {sT1}")
        E(f"s_lshl_b32 {sT1}, {sW}, 2"); E(f"s_add_u32 {sT1}, {sT1}, {65536 if E3 else 163776}"); E(f"v_mov_b32 {vFL}, {sT1}")
        for q in range(6): E(f"v_mov_b32 {vl[q]}, 0")
        if F4:
            E(f"v_mov_b32 {vZero}, 0")
            E(f"s_lshl_b32 {sT1}, {sB}, 12"); E(f"s_lshl_b32 {sFLO}, {sSG}, 2"); E(f"s_add_u32 {sT1}, {sT1}, {sFLO}"); E(f"s_add_u32 {sFLO}, {sT1}, {FLOFF}")
            ops.append(lambda: (e(f"s_or_b32 {sT1}, s2, {sW}"), e(f"s_cselect_b32 {SRDF[2]}, 0, {FLOFF + 65536}"), e(f"s_cselect_b32 {SRDD[2]}, 0, 4")))
            E(f"s_mov_b32 {SRDF[0]}, s18"); E(f"s_mov_b32 {SRDF[1]}, s19"); E(f"s_mov_b32 {SRDF[3]}, 0x20000")
            E(f"s_mov_b32 {SRDD[0]}, s16"); E(f"s_mov_b32 {SRDD[1]}, s17"); E(f"s_mov_b32 {SRDD[3]}, 0x20000")
        return ops
    def rdK(n, pi, slot): return lambda: a.ds_read_b64(KF(n)[2 * pi:2 * pi + 2], ka[2 * (n >> 1) + pi], slot * 16384 + (n & 1) * 4096)
    def rdV(db, uu, slot): return lambda: a.ds_read_tr(VF(db)[2 * uu:2 * uu + 2], va[db], slot * 16384 + uu * 4096)

    def rdA(s, i): return [(lambda u=u: a.ds_read_tr(AF(i)[2 * u:2 * u + 2], wa[i], (s % 4) * 16384 + u * 1024)) for u in range(2)]
    def rdB(s, j):
        xs = (s // 2) % 4
        return lambda: a.ds_read_b128(BF(s % 2, j), xa[xs // 2][s % 2], (xs % 2) * 24576 + j * 2048)
    p1list = [(t, p) for t in range(4) for p in range(8)]
    def p1_ops(k):
        t, p = p1list[k]
        ops = []
        if p % 4 == 0:
            ops.append(lambda: (e(f"s_add_u32 {sP1}, {sKV0}, {t * 8192 + (p // 4) * 4096}"), e(f"s_and_b32 {sP1}, {sP1}, 262143")))
        ops.append(lambda: a.bload(P1R(t, p), kvv[p % 4], SRDKV, sP1, (p % 4) * 1024, nt))
        return ops
    p1_at = {}
    for k in range(32): p1_at.setdefault(k * OPT["p1end"] // 32, []).append(k)
    p2_at = {}
    for k in range(OPT["n2"]): p2_at.setdefault(OPT["p2s"] + (k * (OPT["p2e"] - OPT["p2s"])) // OPT["n2"], []).append(k)
    conv = []
    for J in range(3):
        for ks in range(4):
            for jj in range(2):
                j = 2 * J + jj
                X, Y, D = ACC(2 * ks, j), ACC(2 * ks + 1, j), QF(j, ks)
                for R in (X, Y):
                    for k in range(4): conv.append((J, lambda r=R[k]: e(f"v_mul_f32 {r}, {sC[0]}, {r}")))
                conv.append((J, lambda X=X, D=D: e(f"v_cvt_pk_bf16_f32 {D[0]}, {X[0]}, {X[1]}")))
                conv.append((J, lambda X=X, D=D: e(f"v_cvt_pk_bf16_f32 {D[1]}, {X[2]}, {X[3]}")))
                conv.append((J, lambda Y=Y, D=D: e(f"v_cvt_pk_bf16_f32 {D[2]}, {Y[0]}, {Y[1]}")))
                conv.append((J, lambda Y=Y, D=D: e(f"v_cvt_pk_bf16_f32 {D[3]}, {Y[2]}, {Y[3]}")))

    a.wait_for(("w", 0), ("x", 0)); e("s_barrier")
    stamp(a, 1)
    for j in range(6):
        rdB(0, j)()
        for r in rdA(0, j): r()
    for r in rdA(0, 6): r()
    late = late_setup()
    free = [g for i in range(3, 8) for g in range(6 * i + 2, 6 * i + 6)]
    for s in range(32):
        if s in (8, 16, 24): stamp(a, 1 + s // 8, 2)
        G = Gaps()
        last = s == 31
        order = [(i, j) for j in range(6) for i in range(8)] if last else [(i, j) for i in range(8) for j in range(6)]
        mf = [(lambda i=i, j=j: a.mfma16(ACC(i, j), AF(i), BF(s % 2, j), ACC(i, j) if s else 0)) for i, j in order]
        if s:
            m0_ = mf[0]; mf[0] = lambda m0_=m0_: (a.wait_for(lgkm=2), m0_())
        for u, r in enumerate(rdA(s, 7)): G.mem(u, r)
        def bar(s=s):
            if s < 31: a.wait_for(("w", s + 1), ("x", (s + 1) // 2), lgkm=0)
            else: a.wait_for(lgkm=0)
            e("s_barrier")
        G.mem(7, bar)
        if not last:
            for u, r in enumerate(rdA(s + 1, 0)): G.mem(8 + u, r)
            for i in range(1, 7):
                for u, r in enumerate(rdA(s + 1, i)): G.mem(6 * i + 6 + u, r)
            for j, g in enumerate([10, 11, 14, 15, 16, 17]): G.mem(g, rdB(s + 1, j))
        ops = []
        if s + 4 < 32: ops += dma_w(s + 4)
        c = (s - 1) // 2 + 4
        if s >= 1 and c < 16: ops += dma_x(c, (s - 1) % 2)
        for k in p1_at.get(s, []): ops += p1_ops(k)
        for k in p2_at.get(s, []):
            ops.append(lambda k=k: (e(f"s_add_u32 {sT2}, {sKV0}, {OPT['p2b'] + k * OPT['tl'] * 128}"), e(f"s_and_b32 {sT2}, {sT2}, 262143")))
            ops.append(lambda: a.bload(vTD, vT2, SRDKV, sT2, 0, " nt" if OPT["p2nt"] else ""))
        if F4 and s == 2: ops.append(lambda: a.bload(vTag, vZero, SRDF, sFLO, 0, " sc1"))
        if F4 and s == 10:
            ops.append(lambda: (a.wait_for(vTag), e(f"v_add_u32 {vTag}, 0x9e3779b9, {vTag}"), e(f"v_or_b32 {vTag}, 1, {vTag}")))
            ops.append(lambda: a.bstore(vTag, vZero, SRDD, 0, 0, " sc1"))
        if F4 and s == 12:
            ops.append(lambda: (e(f"s_cmp_eq_u32 {sW}, 0"), e(f"s_cselect_b32 {SRDD[2]}, 4, 0"), e(f"s_mov_b32 {SRDF[2]}, {FLOFF + 65536}")))
        if s == 2 and OPT["wo_touch"] == 1:
            ops.append(lambda: (e(f"s_lshl_b32 {sT2}, s2, 2"), e(f"s_add_u32 {sT2}, {sT2}, {sW}"), e(f"s_lshl_b32 {sT2}, {sT2}, 13")))
            ops.append(lambda: a.bload(vTD, vTA, SRDWO, sT2, 0))
        if last:
            for half in range(2):
                ops.append(lambda half=half: (e(f"s_add_u32 {sP1}, {sKV0}, {32768 + half * 4096}"), e(f"s_and_b32 {sP1}, {sP1}, 262143"), e(f"s_add_u32 m0, {sS}, {half * 4096}")))
                for j in range(4): ops.append(lambda j=j: a.dma(kvv[j], SRDKV, sP1, j * 1024, nt))
        if s >= 28:
            t = s - 28
            ops += [(lambda p=p: a.ds_write_b128(vKW, P1R(t, p), t * 16384 + p * 1024)) for p in range(8)]
        if s >= 30:
            ops += [rdK(n, pi, 0) for n in range(4 * (s - 30), 4 * (s - 30) + 4) for pi in range(2)]
        if last:
            for i in range(4): G.valu(4 + i, lambda i=i: e(f"v_mov_b32 {vZ[i]}, 0"))
        fr = free if not last else list(range(OPT['d4'], OPT['d4'] + 28))
        assert len(ops) <= len(fr), (s, len(ops))
        for o, g in zip(ops, [fr[(k * len(fr)) // len(ops)] for k in range(len(ops))]): G.mem(g, o)
        if s == 0:
            for k, o in enumerate(late): G.valu(8 + k // 2, o)
        if last:
            g = 0
            n = 0
            while conv and g < 48:
                J = conv[0][0]
                g = max(g, 16 * J + 18)
                if g >= 48: break
                G.valu(g, conv.pop(0)[1]); n += 1
                if n % 2 == 0: g += 1
        G.run(mf)
    stamp(a, 2); stamp(a, 5, 2)
    if OPT["only01"]: e("s_waitcnt vmcnt(0) lgkmcnt(0)"); e(f"s_cmp_eq_u32 {sHS}, 1"); e("s_cbranch_scc1 L1_end")
    e("s_nop 3")
    def xlane(op, m, tmp):
        return [lambda: e(f"v_mov_b32 {tmp}, {m}"), lambda: e("s_nop 1"), lambda: e(f"v_permlane16_swap_b32 {m}, {tmp}"), lambda: e("s_nop 1"),
                lambda: e(f"{op} {m}, {m}, {tmp}"),
                lambda: e(f"v_mov_b32 {tmp}, {m}"), lambda: e("s_nop 1"), lambda: e(f"v_permlane32_swap_b32 {m}, {tmp}"), lambda: e("s_nop 1"),
                lambda: e(f"{op} {m}, {m}, {tmp}")]
    def rowmax_ops(j, m, tmp):
        X, Y = NEG(j), TMP(j)
        return [lambda: e(f"v_max3_f32 {m}, {X[0]}, {X[1]}, {X[2]}"), lambda: e(f"v_max3_f32 {m}, {m}, {X[3]}, {Y[0]}"),
                lambda: e(f"v_max3_f32 {m}, {m}, {Y[1]}, {Y[2]}"), lambda: e(f"v_max_f32 {m}, {m}, {Y[3]}")] + xlane("v_max_f32", m, tmp)
    def negfill_ops(j, m):
        return [(lambda i=i: e(f"v_sub_f32 {NEG(j)[i]}, 0, {m}")) for i in range(4)]
    a.wait_for(lgkm=0)
    zm = [(lambda k=k: a.e(f"v_mfma_f32_32x32x16_bf16 {A(16 * k, 16)}, {vZ}, {vZ}, 0")) for k in list(range(12)) + [14, 15]]
    zm4 = [(lambda k=k: a.e(f"v_mfma_f32_32x32x16_bf16 {A(16 * k, 16)}, {vZ4}, {vZ4}, 0")) for k in list(range(12)) + [14, 15]]
    G = Gaps()
    G.spread([(o, 4) for _, o in conv], list(range(14))); conv = []
    G.run(zm)
    e("s_nop 1")
    sm = [(lambda j=j, n=n: a.mfma16(TMP(j) if n & 1 else NEG(j), KF(n), QF(j, n >> 1), (TMP(j) if n & 1 else NEG(j)) if n > 1 else 0))
          for j in range(6) for n in range(8)]

    NS = 96
    used = [0] * NS
    memg = {}
    def M(g, it, cost=4): memg.setdefault(g % NS, []).append(it); used[g % NS] += cost
    M(5, ("kill",), 12); M(6, ("m0", 0)); M(7, ("bar",), 8)
    for db in range(8): M(8 + db, ("v", db, 0)); M(12 + db, ("v", db, 1))
    for n in range(8): M(80 + n, ("k", n, 0)); M(84 + n, ("k", n, 1))
    dg = OPT["dg0"]
    for k in range(4): M(dg + 2 * k, ("dma", 0, k)); M(dg + 10 + 2 * k, ("dma", 1, k))
    M(dg + 8, ("m0", 1)); M(dg + 19, ("adv",), 12)
    for g in (95, 3, 23, 27): used[g] += 4
    valg = {}
    def place(j, seq, lo, hi):
        for L in range(8, 41, 4):
            u2 = list(used); g = lo; out = []
            for op, c, mn in seq:
                g = max(g, mn)
                while g <= hi and u2[g % NS] + c > L: g += 1
                if g > hi: break
                u2[g % NS] += c; out.append((op, g))
            else:
                used[:] = u2
                for op, g in out: valg.setdefault(g, []).append((j, op))
                return dict(out)
        raise Exception("no fit")
    pos = {}
    for j in range(6):
        b = 16 * j
        crit = [("e0", 8, b + 8), ("e1", 8, 0), ("e2", 8, 0), ("c0", 4, 0), ("e3", 8, 0), ("e4", 8, b + 10), ("c1", 4, 0), ("e5", 8, 0), ("e6", 8, 0),
                ("c2", 4, 0), ("e7", 8, 0), ("a0", 4, 0), ("c3", 4, 0)]
        pos[j] = place(j, crit, b + 8, b + 22)
    for j in range(6):
        b = 16 * j
        place(j, [(f"a{k}", 4, pos[j][f"e{k}"] + 1) for k in range(1, 8)], b + 9, b + 30)
    if OPT["verbose"]: print("gap load", used, "over", sum(max(0, x - 12) for x in used))
    def sm_op(j, op):
        Sx, Px, k = SB(j % 2), PB(j % 2), int(op[1])
        if op[0] == "e": e(f"v_exp_f32 {Sx[k]}, {Sx[k]}")
        if op[0] == "a": e(f"v_add_f32 {vl[j]}, {vl[j]}, {Sx[k]}")
        if op[0] == "c": e(f"v_cvt_pk_bf16_f32 {Px[k]}, {Sx[2 * k]}, {Sx[2 * k + 1]}")
    tail = [(g, j, op) for g in sorted(valg) if g >= NS for j, op in valg[g]]
    tail_e = {(j, int(op[1])) for g, j, op in tail if op[0] == "e"}
    init = [(lambda j=j, k=k: e(f"v_mov_b32 {SB(j % 2)[k]}, {'0xf149f2ca' if (j, k) in tail_e else 0}")) for j in (4, 5) for k in range(8)]
    init += [(lambda k=k: e(f"v_mov_b32 {PB(1)[k]}, 0")) for k in range(4)]

    G = Gaps()
    for j in range(5):
        G.spread([(o, 4) for o in rowmax_ops(j, vt[0], vt[1]) + negfill_ops(j, vt[0])], list(range(8 * j + 9, min(48, 8 * j + 17))))
    G.spread([(o, 4) for o in init[0:8]], list(range(26, 34)))
    G.spread([(o, 4) for o in init[8:16]], list(range(42, 48)))
    sSL = [S(94 + u) for u in range(4)]
    def stream_init():
        e(f"s_sub_u32 {sCnt}, 0, {sQH}")
        e(f"s_lshl_b32 {sT0}, {sQH}, 13"); e(f"s_add_u32 {sKVO}, {sKV0}, 49152"); e(f"s_sub_u32 {sKVO}, {sKVO}, {sT0}"); e(f"s_and_b32 {sKVO}, {sKVO}, 262143")
        e(f"s_add_u32 {sKVO2}, {sKVO}, 4096"); e(f"s_mov_b32 {sIT}, 0")
    def x5_ops():
        ops = []
        for p in range(8):
            if p % 4 == 0: ops.append(lambda p=p: (e(f"s_add_u32 {sP1}, {sKV0}, {5 * 8192 + (p // 4) * 4096}"), e(f"s_and_b32 {sP1}, {sP1}, 262143")))
            ops.append(lambda p=p: e(f"buffer_load_dwordx4 {X5(p)}, {kvv[p % 4]}, {SRDKV}, {sP1} offen" + (f" offset:{(p % 4) * 1024}" if p % 4 else "") + nt))
        return ops
    for k, o in enumerate(x5_ops()): G.mem(OPT["x5g"] + k // 2, o)
    G.mem(6, stream_init)
    if OPT["wo_touch"] == 3:
        G.mem(7, lambda: (e(f"s_lshl_b32 {sT2}, s2, 2"), e(f"s_add_u32 {sT2}, {sT2}, {sW}"), e(f"s_lshl_b32 {sT2}, {sT2}, 13")))
        G.mem(8, lambda: a.bload(vTD, vTA, SRDWO, sT2, 0, " nt" if OPT["pnt"] & 4 else ""))
    for u in range(4):
        G.mem(9 + u, lambda u=u: (e(f"s_sub_u32 {sT0}, {u}, {sQH}"), e(f"s_and_b32 {sT0}, {sT0}, 3"), e(f"s_lshl_b32 {sT0}, {sT0}, 14"), e(f"s_add_u32 {sSL[u]}, {sM0KV}, {sT0}")))
    G.mem(13, lambda: (e(f"s_mov_b32 {sSL0}, {sSL[0]}"), e(f"s_cmp_lg_u32 {sQH}, 0"), e("s_cselect_b64 vcc, -1, 0")))
    G.valu(14, lambda: e(f"v_add_u32 {vKW}, {sDL}, {vKW}"))
    G.run(sm)
    e("s_nop 7")
    for o in rowmax_ops(5, vt[0], vt[1]) + negfill_ops(5, vt[0]) + init[16:]: o()
    e("s_nop 1")

    def dma_kv(slot):
        ops = []
        for half in range(2):
            ops.append(lambda half=half: (e(f"s_add_u32 m0, {slot}, {half * 4096}"), e("s_nop 0")))
            for j in range(4):
                ops.append(lambda j=j, half=half: a.dma(kvv[j], SRDKV, sKVO2 if half else sKVO, j * 1024, nt))
        ops.append(lambda: (e(f"s_add_u32 {sKVO}, {sKVO}, 8192"), e(f"s_and_b32 {sKVO}, {sKVO}, 262143"), e(f"s_add_u32 {sKVO2}, {sKVO}, 4096")))
        return ops
    PVg = lambda j: [(lambda db=db: a.mfma16(OA(db, j), VF(db), PB(j % 2), OA(db, j))) for db in range(8)]
    lblc = [0]
    def only(kind, f):
        lblc[0] += 1; L = f"L1_only{lblc[0]}"
        e(f"s_cbranch_vcc{'z' if kind else 'nz'} {L}"); f(); a.label(L)
    def dma_half(u, half):
        e(f"s_add_u32 m0, {sSL[u]}, {half * 4096}"); e("s_nop 0")
        for j in range(4): e(f"buffer_load_dwordx4 {kvv[j]}, {SRDKV}, {sKVO2 if half else sKVO} offen" + (f" offset:{j * 1024}" if j else "") + nt + " lds")
    def x5_write():
        for p in range(8): e(f"ds_write_b128 {vKW}, {X5(p)}" + (f" offset:{p * 1024}" if p else ""))
    def tileB(u, vs=None, ks=None, dma=True, adv=True, kill=False, vm=OPT["bwait"], extra={}, nok=False):
        vs = u if vs is None else vs
        ks = (u + 1) % 4 if ks is None else ks
        mf = []
        for j in range(6):
            for n in range(8):
                D = SB(j % 2)[4 * (n & 1):4 * (n & 1) + 4]
                mf.append(lambda n=n, D=D, j=j: a.mfma16(D, KF(n), QF(j, n >> 1), D if n > 1 else NEG(j)))
            mf += PVg((j + 5) % 6)
        for idx, regs in ((0, [KF(n) for n in range(4)]), (4, [KF(n) for n in range(8)]), (24, [VF(d) for d in range(4)]), (28, [VF(d) for d in range(8)])):
            mf[idx] = (lambda f=mf[idx], regs=regs: (a.wait_for(*regs), f()))
        for g in range(NS):
            if not OPT["bnoc"] & 1: mf[g]()
            for it in memg.get(g, []):
                k = it[0]
                if OPT["bnoc"] & 2 and k in "vk": continue
                if k == "kill" and kill: e(f"s_cmp_lt_u32 {sCnt}, 22"); e(f"s_cselect_b32 {SRDKV[2]}, {NR}, 0"); e(f"s_add_u32 {sCnt}, {sCnt}, 1")
                if k == "m0" and dma: e(f"s_add_u32 m0, {sSL[u]}, {it[1] * 4096}")
                if k == "bar":
                    if vm is not None: a.wait(vm=vm)
                    if kill and OPT["thr"]:
                        lblc[0] += 1
                        e(f"s_bitcmp1_b32 s2, 0"); e(f"s_cbranch_scc{OPT['thrp']} L1_thr{lblc[0]}"); e(f"s_waitcnt vmcnt({OPT['thr']})"); a.label(f"L1_thr{lblc[0]}")
                    e("s_barrier")
                if k == "v": rdV(it[1], it[2], vs)()
                if k == "k" and not nok: rdK(it[1], it[2], ks)()
                if k == "dma" and dma: a.dma(kvv[it[2]], SRDKV, sKVO2 if it[1] else sKVO, it[2] * 1024, nt)
                if k == "adv" and adv: e(f"s_add_u32 {sKVO}, {sKVO}, 8192"); e(f"s_and_b32 {sKVO}, {sKVO}, 262143"); e(f"s_add_u32 {sKVO2}, {sKVO}, 4096")
            for f in extra.get(g, []): f()
            for j, op in valg.get(g + NS, []) + valg.get(g, []):
                if not OPT["bnoc"] & 4: sm_op(j, op)
        if OPT["bnoc"] & 1: a.wait(lgkm=0)
    stamp(a, 3)
    shift = lambda op, g0: {g0 + k: [lambda r=r: e(f"{op} {r}, {r}, {sDL}" if op == "v_subrev_u32" else f"{op} {r}, {sDL}, {r}")] for k, r in enumerate(ka + va)}
    shift = lambda op, g0: {g0 + k: [lambda r=r: e(f"{op} {r}, {sDL}, {r}")] for k, r in enumerate(ka + va)}
    e("s_waitcnt lgkmcnt(0)"); a.lds = []
    a.label("L1_tile0")
    tileB(0, dma=False, vm=None, extra={dg: [lambda: only(0, lambda: dma_half(0, 0))], dg + 10: [lambda: only(0, lambda: dma_half(0, 1))]})
    K2 = kernel2(a) if OPT["fuse"] else None
    x1, x2 = {}, {}
    if F4:
        early = next(K2)
        x1 = {50: [lambda: e(f"buffer_load_dword {vTag}, {vZero}, {SRDD}, 0 offen sc1")]}
        gl = [(x1, g) for g in range(30, 94, 2)] + [(x2, g) for g in range(30, 94, 2)]
        for k, un in enumerate(early):
            x, g = gl[k * len(gl) // len(early)]
            x.setdefault(g, []).append(lambda un=un: [e(t) for t in un])
    tileB(1, vm=None, extra=x1)
    tileB(2, vm=None, extra=x2)
    tileB(3, ks=0, vm=32, extra=shift("v_add_u32", 44))
    tileB(0, vs=0, ks=0, dma=False, adv=False, vm=32,
          extra={29: [lambda: only(0, x5_write)], 45: [lambda: (a.wait(vm=24, lgkm=0), e("s_barrier"))], 46: [lambda: only(1, x5_write)],
                 50: [lambda: only(1, lambda: dma_half(0, 0))], 60: [lambda: only(1, lambda: dma_half(0, 1))],
                 62: [lambda: (e(f"s_cmp_eq_u32 {sQH}, 0"), e(f"s_cselect_b32 {sSL[0]}, {sSL0}, {sS}"))]})
    def tlb_ops(g0):
        d = {}
        if OPT["tlbm"] & 2:
            d[g0] = [lambda: (e(f"v_mul_u32_u24 {vTA}, 0xc00, {vLane}"), e(f"v_mov_b32 {vTD}, s46"), e(f"v_mul_u32_u24 {vTD}, 0x30000, {vTD}"), e(f"v_add_u32 {vTA}, {vTA}, {vTD}"))]
            d[g0 + 1] = [lambda: e(f"global_load_dword {vTD}, {vTA}, s[14:15]")]
        if OPT["tlbm"] & 1:
            d[g0 + 3] = [lambda: (e(f"v_and_b32 {vTA}, 7, {vLane}"), e(f"v_lshlrev_b32 {vTA}, 17, {vTA}"))]
            d[g0 + 4] = [lambda: e(f"buffer_load_dword {vTD}, {vTA}, {SRDO}, {sOO} offen")]
        return d
    x4 = shift("v_subrev_u32", 44)
    if OPT["tlbw"] == 2:
        for g, o in tlb_ops(OPT["tlbg"]).items(): x4.setdefault(g, []).extend(o)
    tileB(0, vs=0, ks=0, dma=False, adv=False, vm=24, extra=x4)
    def bodyB():
        for u in range(4): tileB(u, kill=True, extra={40: [lambda: e(f"s_mov_b32 {sSL[0]}, {sSL0}")]} if u == 1 else {})
    steady = list(a.lds)
    a.label("L1_loopB")
    bodyB()
    assert a.lds == steady
    e(f"s_add_u32 {sIT}, {sIT}, 1"); e(f"s_cmp_lt_u32 {sIT}, 6"); e("s_cbranch_scc1 L1_loopB")
    x30, x31 = {}, {}
    if E3:
        fl4 = next(K2)
        for k, o in enumerate(fl4[0]): x30.setdefault(OPT["e30"] + 2 * k, []).append(o)
        for k, o in enumerate(fl4[1] + fl4[2]): x31.setdefault(OPT["e31"] + 2 * k, []).append(o)
    if OPT["tlbw"] == 1:
        for g, o in tlb_ops(OPT["tlbg"]).items(): x30[g] = o + x30.get(g, [])
    tileB(0, dma=False, adv=False, vm=16, extra=x30)
    tileB(1, dma=False, adv=False, vm=8 if E3 else 0, nok=True, extra=x31)
    stamp(a, 4)
    for g, j, op in tail: sm_op(j, op)
    e("s_nop 1")
    def lsum_ops(j):
        sp = "s[98:99]" if j == 0 else "s[100:101]"
        ops = xlane("v_add_f32", vl[j], vt[1]) + [lambda: e(f"v_cmp_ngt_f32 {sp}, {sTHR}, {vl[j]}"), lambda: e(f"v_rcp_f32 {R2(j)[0]}, {vl[j]}"),
                                                  lambda: e(f"v_rcp_f32 {R2(j)[1]}, {vl[j]}")]
        if j: ops.append(lambda: e("s_or_b64 s[98:99], s[98:99], s[100:101]"))
        return ops
    G = Gaps()
    G.spread([(o, 4) for j in range(2) for o in lsum_ops(j)], list(range(0, 8)))
    G.run(PVg(5))
    for j in range(2, 6):
        for o in lsum_ops(j): o()
    e("s_cmp_lg_u64 s[98:99], 0"); e(f"s_cselect_b32 {sT0}, 1, 0"); e(f"s_andn2_b32 {sT0}, {sT0}, {sPass}")
    if OPT["bnoc"]: e(f"s_mov_b32 {sT0}, 0")
    e(f"v_mov_b32 {vt[1]}, {sT0}"); e(f"ds_write_b32 {vFL}, {vt[1]}"); a.lds.append(set())
    if F4:
        e(f"v_readfirstlane_b32 s93, {vTag}"); e(f"s_or_b32 s93, s93, {sW}"); e("s_cbranch_scc0 L1_tagslow")
        a.label("L1_tagok")
        e(f"ds_write_b32 {vFL}, {vTag} offset:16"); a.lds.append(set())
    ostf = (" " + OPT["ost"].replace("+", " ")) if OPT["ost"] else ""
    fill = []
    cnt = [0]
    def ev(t):
        e(t); cnt[0] += 1
        if fill and cnt[0] % (OPT["fint"] if F4 else 3) == 0: fill.pop(0)()
    for j in range(6):
        if j == 1:
            a.wait(lgkm=0, vm=None if E3 else 4); e("s_barrier")
            if F4: vZ = V(244, 4)
            e(f"v_and_b32 {vt[0]}, 0xfffffff0, {vFL}"); a.ds_read_b128(vZ, vt[0], 0)
            if F4: e(f"ds_read_b32 {vTag}, {vt[0]} offset:16"); a.lds.append(vTag.regs())
        if j == 2:
            a.wait(lgkm=0)
            e(f"v_or3_b32 {vt[0]}, {vZ[0]}, {vZ[1]}, {vZ[2]}"); e(f"v_or_b32 {vt[0]}, {vt[0]}, {vZ[3]}"); e("s_nop 0")
            e(f"v_readfirstlane_b32 {sT1}, {vt[0]}"); e(f"s_cmp_lg_u32 {sT1}, 0")
            if not (OPT["only01"] or OPT["bnoc"] or OPT["kvskip"] or OPT["askip"]): e("s_cbranch_scc1 L1_fallback")
            if K2 and OPT["fuse"] < 3: next(K2); fill = next(K2)
            if E3: next(K2); fill = [] if OPT["w3l"] else fl4[3]
            elif F4:
                fl4 = next(K2)
                if OPT["fo"] == 2: fill = fl4
            if OPT["fuse"] == 3:
                e(f"s_mov_b32 {SRDWO[0]}, s18"); e(f"s_mov_b32 {SRDWO[1]}, s19"); e(f"s_mov_b32 {SRDWO[2]}, {FLOFF + 65536}"); e(f"s_mov_b32 {SRDWO[3]}, 0x20000")
                e(f"s_lshl_b32 {sT1}, {sB}, 12"); e(f"s_lshl_b32 {sT2}, {sHP}, 2"); e(f"s_add_u32 {sT1}, {sT1}, {sT2}"); e(f"s_add_u32 {sP1}, {sT1}, {FLOFF}")
                e(f"v_lshlrev_b32 {vTA}, 8, {vLane}"); e(f"v_mov_b32 {vTD}, 0x5eedf1a6")
        if E3 and j == max(OPT["pj"], 2): next(K2)
        if E3 and OPT["pj"] < 2 and j == OPT["pj"]:
            e(f"v_and_b32 {vTA}, 3, {vLane}"); e(f"v_lshlrev_b32 {vTA}, 2, {vTA}"); a.bload(vTD, vTA, SRDF, S(92), 0, " sc1")
        e(f"s_add_u32 {sT0}, {sOO}, {j * 131072}")
        for m in range(4):
            T = V(208 + 8 * (m % 2), 8); D = V(224 + 4 * (m % 2), 4)
            for i in range(8): ev(f"v_accvgpr_read_b32 {T[i]}, {OA(2 * m + (i >> 2), j)[i & 3]}")
            for i in range(4): ev(f"v_pk_mul_f32 {T[2*i:2*i+2]}, {T[2*i:2*i+2]}, {R2(j)}")
            for i in range(4): ev(f"v_cvt_pk_bf16_f32 {D[i]}, {T[2*i]}, {T[2*i+1]}")
            a.bstore(D, vOS, SRDO, sT0, m * 1024, ostf)
        if F4: zm4[2 * j](); zm4[2 * j + 1]()
    assert not fill
    if E3 and OPT["tp"]:
        def signal(t):
            e("s_barrier")
            e(f"s_cmp_lg_u32 {sW}, 0"); e(f"s_cbranch_scc1 L1_nosig{t}")
            e("s_mov_b64 exec, 0xffff")
            e(f"buffer_store_dword v38, v179, {SRDF}, {sFLO} offen sc1")
            e("s_mov_b64 exec, -1")
            a.label(f"L1_nosig{t}")
        K2.send((signal, fl4[3] if OPT["w3l"] else [], lambda: stamp(a, 5), lambda: dump_stamps(a, 6, 0x4000000, sW, vt[0], vt[1], last=False)))
    elif F4:
        e(f"v_lshlrev_b32 v179, 8, {vLane}")
        if OPT["fo"] == 0:
            for o in fl4: o()
        if not E3: next(K2)
        a.wait(vm=32 if OPT["fo"] == 0 else 0); e("s_barrier")
        stamp(a, 5)
        e(f"s_cmp_lg_u32 {sW}, 0"); e("s_cbranch_scc1 L1_nosig")
        e("s_mov_b64 exec, 0xffff")
        e(f"buffer_store_dword v38, v179, {SRDF}, {sFLO} offen sc1")
        e("s_mov_b64 exec, -1")
        a.label("L1_nosig")
        if E3 and OPT["pj"] == 6: next(K2)
        if E3 and OPT["w3l"]:
            for o in fl4[3]: o()
        if E3 and OPT["pj"] == 6: a.wait(vm=8 if OPT["w3l"] else 0)
        K2.send(lambda: dump_stamps(a, 6, 0x4000000, sW, vt[0], vt[1], last=False))
    if F4: pass
    elif OPT["fuse"] == 3:
        a.wait(vm=0); e("s_barrier")
        stamp(a, 5)
        e(f"s_cmp_lg_u32 {sW}, 0"); e("s_cbranch_scc1 L1_nosig")
        e("s_mov_b64 exec, 0xffff")
        e(f"buffer_store_dword {vTD}, {vTA}, {SRDWO}, {sP1} offen sc1")
        e("s_mov_b64 exec, -1")
        a.label("L1_nosig")
        next(K2); fill = next(K2)
        K2.send((fill, lambda: dump_stamps(a, 6, 0x4000000, sW, vt[0], vt[1], last=False)))
    elif K2:
        stamp(a, 5)
        K2.send((sB, lambda: dump_stamps(a, 6, 0x4000000, sW, vt[0], vt[1], last=False)))
    else:
        dump_stamps(a, 6, 0x4000000, sW, vt[0], vt[1])
    a.label("L1_end"); e("s_endpgm")
    if F4:
        next(K2)
        a.label("L1_tagslow")
        e("s_mov_b32 s75, 0")
        a.label("L1_tagloop")
        e("s_sleep 8"); e(f"buffer_load_dword {vTag}, {vZero}, {SRDD}, 0 offen sc1"); e("s_waitcnt vmcnt(0)")
        e(f"v_readfirstlane_b32 s93, {vTag}"); e("s_add_u32 s75, s75, 1"); e("s_cmp_lg_u32 s93, 0"); e("s_cbranch_scc1 L1_tagok")
        e("s_cmp_lt_u32 s75, 0x40000"); e("s_cbranch_scc1 L1_tagloop")
        e("s_branch L1_tagok")
    a.label("L1_fallback")
    a.lds = []; a.vm = []
    e("s_waitcnt vmcnt(0) lgkmcnt(0)"); e("s_barrier")
    e(f"s_mov_b32 {sPass}, 1"); e(f"s_mov_b32 {SRDKV[2]}, {NR}")
    for q in range(6): e(f"v_mov_b32 {vl[q]}, 0xff800000")
    e(f"s_mov_b32 {sKVO}, 0"); e(f"s_mov_b32 {sKVO2}, 4096"); e(f"s_mov_b32 {sIT}, 0")
    a.label("L1_fb_loop")
    for o in dma_kv(sM0KV): o()
    e("s_waitcnt vmcnt(0)"); e("s_barrier")
    for n in range(8):
        for pi in range(2): rdK(n, pi, 0)()
    for f in sm: f()
    e("s_nop 15")
    for j in range(6):
        for o in rowmax_ops(j, vt[0], vt[1]): o()
        e(f"v_max_f32 {vl[j]}, {vl[j]}, {vt[0]}")
    e("s_barrier")
    e(f"s_add_u32 {sIT}, {sIT}, 1"); e(f"s_cmp_lt_u32 {sIT}, 32"); e("s_cbranch_scc1 L1_fb_loop")
    e(f"s_mov_b32 {sKVO}, {sKV0}"); e(f"s_add_u32 {sKVO2}, {sKVO}, 4096")
    for t in range(4):
        e(f"s_add_u32 {sT0}, {sM0KV}, {t * 16384}")
        for o in dma_kv(sT0): o()
    for o in dma_kv(sS): o()
    for o in x5_ops(): o()
    e(f"s_mov_b32 {sSL[0]}, {sSL0}")
    for j in range(6):
        for o in negfill_ops(j, vl[j]): o()
        e(f"v_mov_b32 {vl[j]}, 0")
    if not F4:
        for i in range(4): e(f"v_mov_b32 {vZ[i]}, 0")
    for o in init: o()
    e("s_nop 1")
    for f in (zm4 if F4 else zm): f()
    stream_init()
    e("s_waitcnt vmcnt(0)"); e("s_barrier")
    for n in range(8):
        for pi in range(2): rdK(n, pi, 0)()
    e("s_waitcnt lgkmcnt(0)"); e("s_nop 15")
    e("s_branch L1_tile0")
    return a.text()

def kernel2(a):
    fused = a is not None
    if not fused: a = Asm()
    e = a.e
    SRDWO, SRDOW, SRDOUT, SRDDBG = S(20, 4), S(24, 4), S(28, 4), S(80, 4)
    sW, sRB, sCB, sT0, sT1, sT2, sIT = S(36), S(46), S(47), S(48), S(49), S(50), S(45)
    sWOo, sOo, sM0 = S(76), S(77), S(78)
    vLane = V(1); vt = [V(i) for i in range(2, 10)]
    wa = [V(10 + k) for k in range(8)]
    wv = [V(18 + k) for k in range(8)]
    ov = [V(26 + k) for k in range(6)]
    ra = [V(32 + k) for k in range(3)]
    vRW, vOut = V(35), V(36)
    AC = lambda i, j: A(4 * (j * 8 + i), 4)
    AF = lambda i: V(40 + 4 * i, 4)
    BF = lambda sl, j: V(72 + 24 * sl + 4 * j, 4)
    REG = 36864
    osc = ["", " sc1", " sc1 nt"][OPT["osc"]] if fused else ""
    F4 = fused and OPT["fuse"] == 4
    if F4:
        sT2, sM0 = S(75), S(74)
        vt[0] = V(4)
        SRDF, sCL, sMK, sPC, vPD, vTg, vPA = S(84, 4), S(79), S(50), S(75), V(37), V(38), V(39)
    E3 = F4 and OPT["fo"] == 3
    if E3: sCL = S(92); REG = 8192
    TP = E3 and OPT["tp"]
    SLB = [131072, 32768, 98304, 0] if E3 else [0, 8192, 16384, 24576]
    wl = [V(168 + k) for k in range(8)]; rw = [V(176 + k) for k in range(3)]
    mark0 = len(a.out)
    if not fused:
        a.k2 = 1
        a.label("mha_oproj_kernel")
        e("s_cmp_ge_u32 s2, 256"); e("s_cbranch_scc1 L2_end")
        e("s_load_dwordx16 s[4:19], s[0:1], 0")
        e(f"v_lshrrev_b32 {vt[0]}, 6, v0"); e(f"v_and_b32 {vLane}, 63, v0")
        e(f"v_readfirstlane_b32 {sW}, {vt[0]}")
    e(f"s_and_b32 {sT2}, s2, 7"); e(f"s_lshr_b32 {sT0}, s2, 3")
    if OPT["map2"] in (0, 2):
        e(f"s_lshr_b32 {sT1}, {sT2}, 1"); e(f"s_lshl_b32 {sT1}, {sT1}, 3"); e(f"s_and_b32 {sRB}, {sT0}, 7")
        e(f"s_add_u32 {sRB}, {sT1}, {sRB}")
        e(f"s_and_b32 {sT1}, {sT2}, 1"); e(f"s_lshl_b32 {sT1}, {sT1}, 2"); e(f"s_lshr_b32 {sCB}, {sT0}, 3"); e(f"s_add_u32 {sCB}, {sCB}, {sT1}")
        if OPT["map2"] == 2:
            e(f"s_lshl_b32 {sCB}, {sCB}, 2"); e(f"s_lshr_b32 {sCB}, {OPT['cbtab']}, {sCB}"); e(f"s_and_b32 {sCB}, {sCB}, 7")
    else:
        e(f"s_lshl_b32 {sT1}, {sT2}, 2"); e(f"s_and_b32 {sT2}, {sT0}, 3"); e(f"s_add_u32 {sRB}, {sT1}, {sT2}")
        e(f"s_lshr_b32 {sCB}, {sT0}, 2")
        if OPT["cbrot"]: e(f"s_add_u32 {sCB}, {sCB}, {OPT['cbrot']}"); e(f"s_and_b32 {sCB}, {sCB}, 7")
    t0, t1, t2, t3 = wa[:4]
    e(f"v_lshrrev_b32 {t2}, 4, {vLane}"); e(f"v_and_b32 {t1}, 15, {vLane}")
    e(f"v_lshlrev_b32 {t3}, 1, {t2}"); e(f"v_xor_b32 {t1}, {t1}, {t3}")
    e(f"v_lshlrev_b32 {t0}, 11, {t2}"); e(f"v_lshl_add_u32 {wv[0]}, {t1}, 4, {t0}")
    e(f"v_xor_b32 {t1}, 128, {wv[0]}")
    for m in range(1, 8): e(f"v_add_u32 {wv[m]}, {m * 8192 - (m % 4) * 1024}, {t1 if m & 1 else wv[0]}")
    if OPT["wvx"] == 1:
        e(f"v_and_b32 {t1}, 15, {vLane}"); e(f"v_lshlrev_b32 {t0}, 14, {t2}"); e(f"v_lshl_add_u32 {wv[0]}, {t1}, 4, {t0}")
        for m in range(1, 8): e(f"v_add_u32 {wv[m]}, {m * 2048 - (m % 4) * 1024}, {wv[0]}")
    if OPT["wvx"] == 5:
        e(f"v_and_b32 {t1}, 15, {vLane}"); e(f"v_lshlrev_b32 {t0}, 12, {t2}"); e(f"v_lshl_add_u32 {wv[0]}, {t1}, 4, {t0}")
        for m in range(1, 8): e(f"v_add_u32 {wv[m]}, {((m & 1) + 8 * (m >> 1)) * 2048 - (m % 4) * 1024}, {wv[0]}")
    if OPT["wvx"] == 6:
        e(f"v_and_b32 {t1}, 15, {vLane}"); e(f"v_lshlrev_b32 {t0}, 13, {t2}"); e(f"v_lshl_add_u32 {wv[0]}, {t1}, 4, {t0}")
        for m in range(1, 8): e(f"v_add_u32 {wv[m]}, {((m & 3) + 16 * (m >> 2)) * 2048 - (m % 4) * 1024}, {wv[0]}")
    if OPT["wvx"] in (7, 8, 9):
        r_ = {7: 0, 8: 2, 9: 2}[OPT["wvx"]]
        e(f"s_add_u32 {sT0}, {sCB}, {r_}"); e(f"s_and_b32 {sT0}, {sT0}, 7"); e(f"s_add_u32 {sT0}, {sT0}, 8"); e(f"s_sub_u32 {sT0}, {sT0}, {sCB}"); e(f"s_lshl_b32 {sT0}, {sT0}, 7")
        e(f"v_bfe_u32 {t1}, {vLane}, 3, 1"); e(f"v_mul_lo_u32 {t1}, {t1}, {sT0}"); e(f"v_and_b32 {t3}, 7, {vLane}"); e(f"v_lshl_add_u32 {t1}, {t3}, 4, {t1}")
        e(f"s_lshl_b32 {sT0}, {sCB}, 7"); e(f"s_sub_u32 {sT0}, 4096, {sT0}"); e(f"v_add_u32 {t1}, {sT0}, {t1}")
        e(f"v_lshlrev_b32 {t0}, {14 if OPT['wvx'] == 9 else 11}, {t2}"); e(f"v_add_u32 {wv[0]}, {t1}, {t0}")
        for m in range(1, 8): e(f"v_add_u32 {wv[m]}, {m * (2048 if OPT['wvx'] == 9 else 8192) - (m % 4) * 1024}, {wv[0]}")
    if OPT["wvx"] == 2:
        e(f"v_and_b32 {t1}, 7, {vLane}"); e(f"v_lshrrev_b32 {t0}, 3, {vLane}"); e(f"v_lshlrev_b32 {t0}, 11, {t0}"); e(f"v_lshl_add_u32 {wv[0]}, {t1}, 4, {t0}")
        for m in range(1, 8): e(f"v_add_u32 {wv[m]}, {(m >> 1) * 16384 + (m & 1) * 128 - (m % 4) * 1024 + 4096}, {wv[0]}")
        e(f"v_add_u32 {wv[0]}, 4096, {wv[0]}")
    if OPT["wvx"] == 3:
        e(f"v_and_b32 {t1}, 15, {vLane}"); e(f"v_lshlrev_b32 {t0}, 11, {t2}"); e(f"v_lshl_add_u32 {wv[0]}, {t1}, 4, {t0}")
        for m in range(1, 8): e(f"v_add_u32 {wv[m]}, {m * 8192 - (m % 4) * 1024}, {wv[0]}")
    if OPT["wvx"] == 4:
        e(f"v_lshlrev_b32 {wv[0]}, 4, {vLane}"); e(f"s_mul_i32 {sT0}, {sCB}, {8192 - 256}"); e(f"v_add_u32 {wv[0]}, {sT0}, {wv[0]}")
        for m in range(1, 8): e(f"v_add_u32 {wv[m]}, {m * 1024 - (m % 4) * 1024}, {wv[0]}")
    e(f"s_mul_i32 {sM0}, {sW}, {REG}")
    e(f"s_lshl_b32 {sWOo}, {sW}, {20 if OPT['sig'] else 21}"); e(f"s_lshl_b32 {sOo}, {sW}, 15")
    def ovs():
        e(f"s_mul_i32 {sT0}, {sRB}, 786432"); e(f"v_lshlrev_b32 {vt[0]}, 4, {vLane}")
        e(f"v_add_u32 {ov[0]}, {sT0}, {vt[0]}")
        for j in range(1, 6): e(f"v_add_u32 {ov[j]}, {j * 131072}, {ov[0]}")
    if not fused:
        ovs()
        e("s_waitcnt lgkmcnt(0)")
        stamp(a, 0)
    e(f"s_lshl_b32 {sT0}, {sCB}, 8")
    e(f"s_add_u32 {SRDWO[0]}, s12, {sT0}"); e(f"s_addc_u32 {SRDWO[1]}, s13, 0")
    e(f"s_sub_u32 {SRDWO[2]}, 8388608, {sT0}"); e(f"s_mov_b32 {SRDWO[3]}, 0x20000")
    e(f"s_mov_b32 {SRDOW[0]}, s18"); e(f"s_mov_b32 {SRDOW[1]}, s19")
    e(f"s_mov_b32 {SRDOW[2]}, 25165824"); e(f"s_mov_b32 {SRDOW[3]}, 0x20000")
    if OPT["k2skip"] & 1: e(f"s_mov_b32 {SRDWO[2]}, 0")
    if OPT["k2skip"] & 2: e(f"s_mov_b32 {SRDOW[2]}, 0")
    def issue_w(slot):
        ops = []
        for h in range(2):
            ops.append(lambda h=h: e(f"s_add_u32 m0, {sM0}, {SLB[slot] + h * 4096}"))
            for m in range(4): ops.append(lambda m=m, h=h: a.dma(wv[4 * h + m], SRDWO, sWOo, m * 1024, " nt" if OPT["pnt"] & 8 else "", tag=("w", slot)))
        ops.append(lambda: e(f"s_add_u32 {sWOo}, {sWOo}, 65536"))
        return ops
    def issue_o(slot):
        ops = [(lambda j=j: a.bload(BF(slot, j), ov[j], SRDOW, sOo, 0, osc)) for j in range(6)]
        ops.append(lambda: e(f"s_add_u32 {sOo}, {sOo}, 1024"))
        return ops
    def run(ops):
        for o in ops:
            n = len(a.out); o()
            if "m0" in a.out[-1]: e("s_nop 0")
    def wa_setup():
        e(f"v_lshrrev_b32 {vg}, 4, {vLane}"); e(f"v_lshrrev_b32 {vr}, 2, {vLane}"); e(f"v_and_b32 {vc}, 3, {vLane}")
        e(f"v_and_b32 {u1}, 7, {vr}"); e(f"v_lshlrev_b32 {u0}, 8, {vr}")
        e(f"v_add_u32 {u0}, {sM0}, {u0}"); e(f"v_lshl_add_u32 {u0}, {vc}, 3, {u0}"); e(f"v_lshl_add_u32 {u0}, {u1}, 5, {u0}")
        if E3: e(f"v_add_u32 {u0}, 98304, {u0}")
        for d in range(4):
            e(f"s_add_u32 {sT0}, {sW}, {d}"); e(f"s_and_b32 {sT0}, {sT0}, 3"); e(f"s_lshl_b32 {sT0}, {sT0}, 6")
            e(f"v_xor_b32 {wa[2*d]}, {sT0}, {u0}"); e(f"v_xor_b32 {wa[2*d+1]}, 32, {wa[2*d]}")
    vg, vr, vc, u0, u1 = vt[3:8]
    if F4:
        ovs(); wa_setup()
        for i in range(4): e(f"v_mov_b32 v{252 + i}, 0")
        def scl():
            e(f"s_lshr_b32 {sT0}, {sRB}, 1"); e(f"s_lshl_b32 {sT0}, {sT0}, 4"); e(f"s_lshl_b32 {sT1}, {sCB}, 1"); e(f"s_add_u32 {sT0}, {sT0}, {sT1}")
            e(f"s_and_b32 {sT1}, {sRB}, 1"); e(f"s_add_u32 {sT0}, {sT0}, {sT1}"); e(f"s_lshl_b32 {sT0}, {sT0}, 8"); e(f"s_lshl_b32 {sT1}, {sW}, 4")
            e(f"s_add_u32 {sT0}, {sT0}, {sT1}"); e(f"s_add_u32 {sCL}, {sT0}, {FLOFF}")
        if E3: scl()
        lines = [t[1:] for t in a.out[mark0:]]; del a.out[mark0:]
        units = []
        for t in lines:
            if t.startswith(("s_addc", "s_cselect")): units[-1].append(t)
            else: units.append([t])
        yield units
        fills = issue_w(0) + issue_w(1) + issue_w(2) + issue_w(3)
        if E3: yield [[(lambda o=o: run([o])) for o in issue_w(k)] for k in range(4)]
        else:
            yield [(lambda o=o: run([o])) for o in fills]
            scl()
        e(f"v_and_b32 {vPA}, 3, {vLane}"); e(f"v_lshlrev_b32 {vPA}, 2, {vPA}"); e(f"v_mov_b32 {vTg}, v63")
        e(f"s_mov_b32 {sPC}, 0"); e(f"s_mov_b32 {sMK}, 1")
        if E3:
            for k in range(8): e(f"v_add_u32 {wl[k]}, 0xfffe8000, {wa[k]}")
            if TP: e(f"v_lshlrev_b32 v179, 8, {vLane}"); e("s_mov_b32 s93, 0")
            yield None
            if OPT["pj"] >= 2: e(f"buffer_load_dword {vPD}, {vPA}, {SRDF}, {sCL} offen sc1"); a.vm.append(vPD.regs())
        dump1 = yield None
        if TP:
            signal, w3ops, st5, dump1 = dump1
            if OPT["pj"] < 2: a.wait_for(V(61)); e(f"v_mov_b32 {vPD}, v61")
            else: a.wait_for(vPD)
            st5()
        a.k2 = 1; stamp(a, 0)
        if not E3: e(f"buffer_load_dword {vPD}, {vPA}, {SRDF}, {sCL} offen sc1")
        if OPT["fo"] == 1: run(fills)
    elif fused:
        yield None
        sB1, dump1 = yield issue_w(0) + issue_w(1) + issue_w(2) + issue_w(3)
        if OPT["fuse"] == 3:
            vTag, vPA, vPD = V(61), V(60), V(59)
            a.k2 = 1; stamp(a, 0)
            e(f"s_lshr_b32 {sT0}, {sRB}, 1"); e(f"s_lshl_b32 {sT0}, {sT0}, 4"); e(f"s_lshl_b32 {sT1}, {sCB}, 1"); e(f"s_add_u32 {sT0}, {sT0}, {sT1}")
            e(f"s_and_b32 {sT1}, {sRB}, 1"); e(f"s_add_u32 {sT0}, {sT0}, {sT1}"); e(f"s_lshl_b32 {sT0}, {sT0}, 8"); e(f"s_add_u32 s39, {sT0}, {FLOFF}")
            e(f"v_and_b32 {vPA}, 15, {vLane}"); e(f"v_lshlrev_b32 {vPA}, 2, {vPA}")
            e(f"s_cmp_lg_u32 {sW}, 0"); e("s_cbranch_scc1 L2_np0")
            e(f"buffer_load_dword {vPD}, {vPA}, {SRDDBG}, s39 offen sc1")
            a.label("L2_np0")
            run(sB1)
        ovs()
    else:
        run(issue_w(0)); run(issue_o(0)); run(issue_w(1)); run(issue_o(1))
        if OPT["codepf"]: code_prefetch(a, vLane, V(173), V(172), "mha_oproj_kernel", 16384, sW)
        run(issue_w(2)); run(issue_o(2)); run(issue_w(3))
    t0 = vt[0]
    mark1 = len(a.out)
    e(f"s_mov_b32 {SRDOUT[0]}, s14"); e(f"s_mov_b32 {SRDOUT[1]}, s15")
    e(f"s_mov_b32 {SRDOUT[2]}, 6291456"); e(f"s_mov_b32 {SRDOUT[3]}, 0x20000")
    e(f"v_add_u32 {vRW}, {sM0}, {t0}")
    RB = [0, 32768, 98304]
    if E3: e(f"v_add_u32 {rw[1]}, {RB[1]}, {vRW}"); e(f"v_add_u32 {rw[2]}, {RB[2]}, {vRW}"); rw[0] = vRW
    for d in range(1, 4):
        e(f"s_sub_u32 {sT0}, {sW}, {d}"); e(f"s_and_b32 {sT0}, {sT0}, 3"); e(f"s_mul_i32 {sT0}, {sT0}, {REG}")
        e(f"s_add_u32 {sT0}, {sT0}, {RB[d - 1] if E3 else (d - 1) * 12288}"); e(f"v_add_u32 {ra[d-1]}, {sT0}, {t0}")
    if not F4: wa_setup()
    e(f"s_mul_i32 {sT0}, {sRB}, 196608"); e(f"s_lshl_b32 {sT1}, {sCB}, 8"); e(f"s_add_u32 {sT0}, {sT0}, {sT1}")
    e(f"s_lshl_b32 {sT1}, {sW}, 6"); e(f"s_add_u32 {sT0}, {sT0}, {sT1}")
    e(f"v_and_b32 {u1}, 15, {vLane}"); e(f"v_lshlrev_b32 {vOut}, 11, {u1}"); e(f"v_add_u32 {vOut}, {sT0}, {vOut}")
    e(f"v_and_b32 {u1}, 1, {vg}"); e(f"v_lshl_add_u32 {vOut}, {u1}, 5, {vOut}")
    e(f"v_lshrrev_b32 {u1}, 1, {vg}"); e(f"v_lshl_add_u32 {vOut}, {u1}, 4, {vOut}")
    vZ = V(168, 4)
    if not F4:
        for i in range(4): e(f"v_mov_b32 {vZ[i]}, 0")
        e("s_nop 1")
        for k in range(12): e(f"v_mfma_f32_32x32x16_bf16 {A(16 * k, 16)}, {vZ}, {vZ}, 0")
    def rdA(slot, i):
        if E3: return [(lambda u=u: a.ds_read_tr(AF(i)[2 * u:2 * u + 2], (wl if slot & 1 else wa)[i], (32768 if slot < 2 else 0) + u * 4096)) for u in range(2)]
        return [(lambda u=u: a.ds_read_tr(AF(i)[2 * u:2 * u + 2], wa[i], slot * 8192 + u * 4096)) for u in range(2)]
    late2 = []
    if E3: late2 = a.out[mark1:]; del a.out[mark1:]
    def chk(n):
        e(f"v_cmp_ne_u32 vcc, {vPD}, {vTg}"); e(f"s_and_b32 {sT0}, vcc_lo, {sMK}"); e(f"s_cbranch_scc1 L2_slow{n}")
        a.label(f"L2_back{n}")
    if TP:
        chk(0)
        stamp(a, 1)
        run(issue_o(0)); run(issue_o(1)); run(issue_o(2))
        n3 = 8 if w3ops else 0
        for o in w3ops: o()
        for i in range(7):
            for r in rdA(0, i): r()
        a.out += late2
        e("s_cmp_lg_u32 s93, 0"); e("s_cbranch_scc1 L2_sigd")
        e(f"s_waitcnt vmcnt({18 + n3})"); signal("a")
        a.label("L2_sigd")
        a.wait(vm=6 + n3)
        stamp(a, 2)
    elif F4:
        if not E3: a.wait(vm=32 if OPT["fo"] == 1 else 0)
        chk(0)
        stamp(a, 1)
        run(issue_o(0)); run(issue_o(1)); run(issue_o(2))
        if not E3: a.wait(vm=18 + 24)
        for i in range(7):
            for r in rdA(0, i): r()
        a.out += late2
        a.wait(vm=6)
        stamp(a, 2)
    elif fused and OPT["fuse"] == 3:
        stamp(a, 1)
        e(f"s_mov_b32 {sIT}, 0")
        e(f"s_cmp_lg_u32 {sW}, 0"); e("s_cbranch_scc1 L2_skip")
        e("s_waitcnt vmcnt(32)")
        e("s_branch L2_chk")
        a.label("L2_poll")
        e(f"s_sleep {OPT['psleep']}")
        e(f"buffer_load_dword {vPD}, {vPA}, {SRDDBG}, s39 offen sc1")
        e("s_waitcnt vmcnt(0)")
        a.label("L2_chk")
        e(f"v_cmp_ne_u32 vcc, {vPD}, {vTag}"); e(f"s_add_u32 {sIT}, {sIT}, 1")
        e("s_cbranch_vccz L2_skip")
        e(f"s_cmp_lt_u32 {sIT}, 0x40000"); e("s_cbranch_scc1 L2_poll")
        a.label("L2_skip")
        e("s_barrier")
        stamp(a, 2)
        run(issue_o(0)); run(issue_o(1)); run(issue_o(2))
        a.wait_for(("w", 0))
        for i in range(7):
            for r in rdA(0, i): r()
        a.wait(vm=6)
        stamp(a, 3)
    elif fused:
        e(f"s_mov_b32 {SRDDBG[0]}, s16"); e(f"s_mov_b32 {SRDDBG[1]}, s17"); e(f"s_mov_b32 {SRDDBG[2]}, 256"); e(f"s_mov_b32 {SRDDBG[3]}, 0x20000")
        e(f"s_lshl_b32 {sT0}, {sB1}, 4"); e(f"s_lshr_b32 {sT1}, {sRB}, 1"); e(f"s_lshl_b32 {sT1}, {sT1}, 4")
        if OPT["fuse"] == 2: e(f"s_mov_b32 {sT0}, 0"); e(f"s_mov_b32 {sT1}, 0")
        e(f"v_mov_b32 {vt[0]}, 1"); e(f"v_mov_b32 {vt[1]}, 0"); e(f"s_mov_b32 {sIT}, 0")
        a.k2 = 1; stamp(a, 0)
        a.wait(vm=0); e("s_barrier")
        stamp(a, 1)
        e(f"s_cmp_lg_u32 {sW}, 0"); e("s_cbranch_scc1 L2_skip")
        e("s_mov_b64 exec, 1")
        e(f"buffer_atomic_add {vt[0]}, {vt[1]}, {SRDDBG}, {sT0} offen sc1")
        a.label("L2_poll")
        e(f"buffer_load_dword {vt[2]}, {vt[1]}, {SRDDBG}, {sT1} offen sc1")
        e("s_waitcnt vmcnt(0)")
        e(f"v_readfirstlane_b32 {sT2}, {vt[2]}"); e(f"s_add_u32 {sIT}, {sIT}, 1")
        e(f"s_cmp_ge_u32 {sT2}, {256 if OPT['fuse'] == 2 else 16}"); e("s_cbranch_scc1 L2_go")
        e(f"s_sleep {OPT['psleep']}")
        e(f"s_cmp_lt_u32 {sIT}, 0x40000"); e("s_cbranch_scc1 L2_poll")
        a.label("L2_go")
        e("s_mov_b64 exec, -1")
        a.label("L2_skip")
        for i in range(7):
            for r in rdA(0, i): r()
        e("s_barrier")
        stamp(a, 2)
        run(issue_o(0)); run(issue_o(1)); run(issue_o(2))
        a.wait(vm=0)
        stamp(a, 3)
    else:
        a.wait_for(("w", 0))
        stamp(a, 1)
        for i in range(7):
            for r in rdA(0, i): r()
    e(f"s_mov_b32 {sIT}, 0")
    PEEL = E3 and OPT["peel"]
    def red_w(i, j):
        d, b = i >> 1, i & 1
        c = (d - 1) * 12 + j * 2 + b
        a.ds_write_b128(rw[d - 1], AC(i, j), (c >> 3) * 32768 - RB[d - 1] + (c & 7) * 1024)
    def body(last=False):
        for u in range(4):
            G = Gaps()
            order = [(i, j) for i in ([2, 3, 4, 5, 6, 7, 0, 1] if last and u == 3 else range(8)) for j in range(6)]
            mf = [(lambda i=i, j=j: a.mfma16(AC(i, j), AF(i), BF(u, j), AC(i, j))) for i, j in order]
            m0_ = mf[0]; mf[0] = lambda m0_=m0_: (a.wait_for(BF(u, 5), lgkm=2), m0_())
            for k, r in enumerate(rdA(u, 7)): G.mem(k, r)
            if last and u == 3:
                G.mem(5, lambda: a.wait(lgkm=0))
                for k, (i, j) in enumerate(order[:36]): G.mem(k + OPT["pdl"], lambda i=i, j=j: red_w(i, j))
                G.run(mf)
                continue
            G.mem(5, lambda: a.wait_for(("w", (u + 1) % 4), lgkm=0))
            for i in range(7):
                for k, r in enumerate(rdA((u + 1) % 4, i)): G.mem(6 * i + 6 + k, r)
            ops = issue_w(u) + issue_o((u + 3) % 4)
            if last: ops = issue_o(3) if u == 0 else []
            if u == 0 and not PEEL: G.mem(3, lambda: (e(f"s_cmp_eq_u32 {sIT}, 7"), e(f"s_cselect_b32 {SRDWO[2]}, 0, {SRDWO[2]}")))
            if u == 1 and not PEEL: G.mem(3, lambda: (e(f"s_cmp_eq_u32 {sIT}, 7"), e(f"s_cselect_b32 {SRDOW[2]}, 0, {SRDOW[2]}")))
            if F4 and u == 0 and not last: G.mem(4, lambda: (e(f"s_add_u32 {sT1}, {sIT}, 3"), e(f"s_lshr_b32 {sT1}, {sT1}, 1"), e(f"s_bfm_b32 {sMK}, {sT1}, 0")))
            if F4 and u == 1 and not last: G.mem(4, lambda: (a.wait_for(vPD), chk(1)))
            if OPT["sig"] and u == 0 and not last: G.mem(2, lambda: (e(f"s_cmp_eq_u32 {sIT}, 3"), e(f"s_cselect_b32 {sT1}, {6 * 524288}, 0"), e(f"s_add_u32 {sWOo}, {sWOo}, {sT1}")))
            if F4 and u == OPT["pollu"] and not last: ops = ops + [lambda: a.bload(vPD, vPA, SRDF, sCL, 0, " sc1")]
            free = [g for i in range(1, 8) for g in range(6 * i + 2, 6 * i + 6)]
            if last: free = free[:12]
            for o, g in zip(ops, [free[(k * len(free)) // len(ops)] for k in range(len(ops))]): G.mem(g, o)
            G.run(mf)
    mark = len(a.out)
    body(); body(); sl, sv = list(a.lds), list(a.vm)
    del a.out[mark:]
    a.lds, a.vm = list(sl), list(sv)
    a.label("L2_loop")
    body()
    assert a.lds == sl and a.vm == sv, (a.vm, sv)
    e(f"s_add_u32 {sIT}, {sIT}, 1"); e(f"s_cmp_lt_u32 {sIT}, {7 if PEEL else 8}"); e("s_cbranch_scc1 L2_loop")
    if PEEL: body(True)
    else: a.wait(vm=0, lgkm=0)
    if not fused: stamp(a, 2); stamp(a, 3)
    if F4: stamp(a, 3)
    stamp(a, 4)
    if OPT["peel"] < 2: e("s_nop 7")
    for d in range(1, 4):
        for j in range(6):
            for b in range(2):
                c = (d - 1) * 12 + j * 2 + b
                if PEEL: continue
                if E3: a.ds_write_b128(rw[d - 1], AC(2 * d + b, j), (c >> 3) * 32768 - RB[d - 1] + (c & 7) * 1024)
                else: a.ds_write_b128(vRW, AC(2 * d + b, j), c * 1024)
    R = lambda b, j: V(40 + 8 * j + 4 * b, 4)
    def accr():
        for j in range(6):
            for b in range(2):
                for i in range(4): e(f"v_accvgpr_read_b32 {R(b, j)[i]}, {AC(b, j)[i]}")
    if OPT["peel"] < 2: accr()
    a.wait(lgkm=0); e("s_barrier")
    T = lambda d, b, j: V(96 + 48 * d + 8 * j + 4 * b, 4)
    for j in range(6):
        for d in range(3):
            for b in range(2):
                c = d * 12 + j * 2 + b
                a.ds_read_b128(T(d, b, j), ra[d], ((c >> 3) * 32768 - RB[d] + (c & 7) * 1024) if E3 else (j * 2 + b) * 1024)
    if OPT["peel"] >= 2: accr()
    for j in range(6):
        for d in range(3):
            for b in range(2):
                a.wait_for(T(d, b, j))
                for i in range(2): e(f"v_pk_add_f32 {R(b, j)[2*i:2*i+2]}, {R(b, j)[2*i:2*i+2]}, {T(d, b, j)[2*i:2*i+2]}")
        D = V(10 + 4 * j, 4)
        e(f"v_cvt_pk_bf16_f32 {D[0]}, {R(0, j)[0]}, {R(0, j)[1]}"); e(f"v_cvt_pk_bf16_f32 {D[1]}, {R(0, j)[2]}, {R(0, j)[3]}")
        e(f"v_cvt_pk_bf16_f32 {D[2]}, {R(1, j)[0]}, {R(1, j)[1]}"); e(f"v_cvt_pk_bf16_f32 {D[3]}, {R(1, j)[2]}, {R(1, j)[3]}")
        e(f"s_mov_b32 {sT0}, {j * 32768}"); e("s_nop 0")
        e(f"v_permlane16_swap_b32 {D[0]}, {D[2]}"); e(f"v_permlane16_swap_b32 {D[1]}, {D[3]}")
        a.bstore(D, vOut, SRDOUT, sT0, 0, (" " + OPT["ost2"].replace("+", " ")) if OPT["ost2"] else "")
    dump_stamps(a, 6, 0x4100000, sW, vt[0], vt[1])
    a.k2 = 0
    if OPT["leak"]:
        lk = OPT["leak"]
        if lk < 100:
            e(f"v_readfirstlane_b32 s93, v{241 + 2 * (lk % 10)}"); e(f"v_readfirstlane_b32 s94, v{241 + 2 * (lk // 10)}")
        elif lk < 200:
            e(f"s_mov_b32 s93, s{61 + 2 * (lk % 10)}"); e(f"s_mov_b32 s94, s{61 + 2 * ((lk // 10) % 10)}")
        else:
            e("v_readfirstlane_b32 s93, v251"); e("s_mov_b32 s94, s61")
        e("s_nop 4"); e("s_sub_u32 s93, s93, s94"); e("s_lshl_b32 s93, s93, 2"); e("s_min_u32 s93, s93, 100000")
        e("s_memrealtime s[98:99]"); e("s_waitcnt lgkmcnt(0)"); e("s_add_u32 s93, s93, s98")
        a.label("L2_spin")
        e("s_memrealtime s[98:99]"); e("s_waitcnt lgkmcnt(0)"); e("s_sub_u32 s94, s93, s98"); e("s_cmp_gt_i32 s94, 0"); e("s_cbranch_scc1 L2_spin")
    if fused:
        dump1()
        yield None
        for n in range(2):
            if TP and n == 0:
                a.label("L2_slow0")
                e("s_waitcnt vmcnt(0)"); signal("b"); e("s_mov_b32 s93, 1"); e("s_branch L2_slow0x")
                n = "0w"
            a.label(f"L2_slow{n}")
            e(f"s_sleep {OPT['psleep']}")
            if n == "0w": a.label("L2_slow0x")
            e(f"buffer_load_dword {vPD}, {vPA}, {SRDF}, {sCL} offen sc1"); e("s_waitcnt vmcnt(0)")
            e(f"s_add_u32 {sPC}, {sPC}, 1"); e(f"s_cmp_ge_u32 {sPC}, 0x40000"); e(f"s_cbranch_scc1 L2_back{str(n)[0]}")
            e(f"v_cmp_ne_u32 vcc, {vPD}, {vTg}"); e(f"s_and_b32 {sT0}, vcc_lo, {sMK}"); e(f"s_cbranch_scc1 L2_slow{n}")
            e(f"s_branch L2_back{str(n)[0]}")
        yield None
    else:
        a.label("L2_end")
        e("s_endpgm")
        yield a.text()


def kernel0():
    a = Asm(); e = a.e
    a.label("mha_pre_kernel")
    e("s_cmp_ge_u32 s2, 256"); e("s_cbranch_scc1 L0_end")
    e("s_load_dwordx16 s[4:19], s[0:1], 0"); e("s_waitcnt lgkmcnt(0)")
    e("s_mov_b32 s20, s4"); e("s_mov_b32 s21, s5"); e("s_mov_b32 s22, 6291456"); e("s_mov_b32 s23, 0x20000")
    e("s_mov_b32 s24, s10"); e("s_mov_b32 s25, s11"); e("s_mov_b32 s26, 8388608"); e("s_mov_b32 s27, 0x20000")
    e("v_lshlrev_b32 v1, 7, v0"); e("s_lshl_b32 s3, s2, 15")
    e("buffer_load_dword v2, v1, s[20:23], s3 offen"); e("buffer_load_dword v3, v1, s[24:27], s3 offen")
    e("s_waitcnt vmcnt(0)")
    a.label("L0_end"); e("s_endpgm")
    return a.text()

def main():
    launches = []
    if OPT["fuse"]:
        s = HEADER + "; @launch kernel=mha_qattn_kernel grid=(256,1,1) block=(256,1,1) lds=163840\n"
        s += '.amdgcn_target "amdgcn-amd-amdhsa--gfx950"\n.text\n'
        s += ".globl mha_qattn_kernel\n.p2align 8\n.type mha_qattn_kernel,@function\n" + kernel1() + "L_text_end:\n"
        s += kd("mha_qattn_kernel", 512, 256)
        open(sys.argv[1], "w").write(s)
        return
    if OPT["only"] in (None, "k1"): launches.append("; @launch kernel=mha_qattn_kernel grid=(256,1,1) block=(256,1,1) lds=163840")
    if OPT["only"] in (None, "k2"): launches.append("; @launch kernel=mha_oproj_kernel grid=(256,1,1) block=(256,1,1) lds=163840")
    s = HEADER + "\n".join(launches) + "\n"
    s += '.amdgcn_target "amdgcn-amd-amdhsa--gfx950"\n.text\n'
    s += ".globl mha_qattn_kernel\n.p2align 8\n.type mha_qattn_kernel,@function\n" + kernel1()
    s += ".globl mha_oproj_kernel\n.p2align 8\n.type mha_oproj_kernel,@function\n" + next(kernel2(None)) + "L_text_end:\n"
    s += kd("mha_qattn_kernel", 512, 256) + kd("mha_oproj_kernel", 512, 256)
    open(sys.argv[1], "w").write(s)
main()
```

```python
import sys, math, struct
from asmlib import *

OPT = dict(kv_nt=1, only=None, dbgQ=0, prof=0, kvskip=0, wo_touch=3, n2=0, rotH=0, p1end=26, ost="", codepf=0, k2skip=0, map2=1, pre=0, askip=0, p2nt=1, p2s=3, p2e=30, early=1, xw_touch=0, leak=0, rotW=0, krot=0, ost2="", itst=0, bwait=16, bdrop=0, qmode=0, tl=64, fuse=1, psleep=2, osc=1, bmap=0, evw=16, h16=0, dg0=20, verbose=0, d4=8, x5g=0, bnoc=0, xmap=0, only01=0, p2b=49152, pollu=2, fo=0, fint=4, hperm=0, cbrot=0, wvx=0, cbtab='0x76345210', e30=20, e31=20, pj=5, w3l=0, thr=0, thrp=0, tp=0, sig=0, rotp='1,1,2,4,3', tlbw=0, tlbg=64, tlbm=3, peel=0, pdl=8)
for a_ in sys.argv[2:]:
    k, v = a_.split("=")
    assert k in OPT, k
    OPT[k] = int(v) if v.lstrip("-").isdigit() else v

def f32bits(x): return struct.unpack("<I", struct.pack("<f", x))[0]
CSCALE = math.log2(math.e) / math.sqrt(128.0)
THRESH = 2.0 ** 30
FLOFF = 0x2000000

HEADER = """; Kernarg layout for this problem (64 bytes, ptrs only, base s[0:1]):
"""

def stamp(a, i, lvl=1):
    if not OPT["prof"]: return
    if OPT["prof"] == 2 and lvl == 1 and i >= 2 and not getattr(a, "k2", 0): return
    if OPT["prof"] == 1 and lvl == 2: return
    if OPT["prof"] == 3 and not (lvl == 1 and i == (5 if getattr(a, "k2", 0) else 0)): return
    a.e("s_memtime s[98:99]"); a.e("s_memrealtime s[100:101]")
    a.e("s_waitcnt lgkmcnt(0)"); a.lds = []
    if getattr(a, "k2", 0): a.e(f"v_mov_b32 v{240+2*i}, s98"); a.e(f"v_mov_b32 v{241+2*i}, s100")
    else: a.e(f"s_mov_b32 s{60+2*i}, s98"); a.e(f"s_mov_b32 s{61+2*i}, s100")
def dump_stamps(a, n, wsoff, sW, vtmp, vaddr, last=True):
    if not OPT["prof"]: return
    e = a.e
    e("s_waitcnt vmcnt(0)")
    if last: stamp(a, n - 1)
    e("s_mov_b32 s88, s18"); e("s_mov_b32 s89, s19"); e("s_mov_b32 s90, 0x10000000"); e("s_mov_b32 s91, 0x20000")
    e(f"s_lshl_b32 s92, s2, 2"); e(f"s_add_u32 s92, s92, {sW}"); e("s_lshl_b32 s92, s92, 6"); e(f"s_add_u32 s92, s92, {wsoff}")
    e(f"v_mov_b32 {vaddr}, 0")
    for i in range(2 * n):
        e(f"v_mov_b32 {vtmp}, " + (f"v{240+i}" if getattr(a, "k2", 0) else f"s{60+i}"))
        e(f"buffer_store_dword {vtmp}, {vaddr}, s[88:91], s92 offen offset:{4*i}")
    e("s_waitcnt vmcnt(0)")

def code_prefetch(a, vLane, vtmp, vdst, start_label, nbytes, sW):
    e = a.e
    e("s_getpc_b64 s[84:85]")
    a.label(f"{start_label}_pc")
    e(f"s_sub_u32 s84, s84, {start_label}_pc-{start_label}"); e("s_subb_u32 s85, s85, 0")
    e(f"s_mov_b32 s86, L_text_end-{start_label}"); e("s_mov_b32 s87, 0x20000")
    e(f"v_lshlrev_b32 {vtmp}, 7, {vLane}"); e(f"s_lshl_b32 s93, {sW}, 13")
    for blk in range((nbytes + 32767) // 32768):
        a.bload(vdst, vtmp, S(84, 4), "s93", 0)
        e("s_add_u32 s93, s93, 32768")

def kernel1():
    a = Asm(); e = a.e
    SRDX, SRDW, SRDKV, SRDO, SRDWO = S(20, 4), S(24, 4), S(28, 4), S(32, 4), S(80, 4)
    sW, sB, sHP, sQH, sHS = S(36), S(37), S(38), S(40), S(41)
    sT0, sT1, sT2, sIT = S(42), S(43), S(44), S(45)
    sXK, sWK = S(46), S(47)
    sM0X, sM0W = S(48), S(49)
    sKVO, sKVO2, sM0KV = S(50), S(51), S(52)
    sTHR, sC = S(53), S(54, 2)
    sOO, sCnt, sKV0, sPass, sP1 = S(56), S(57), S(58), S(59), S(39)
    sDL, sSL0, sS = S(79), S(78), S(72)
    vLane = V(1)
    vt = [V(i) for i in range(2, 10)]
    xa = [[V(10 + 2 * s + k) for k in range(2)] for s in range(2)]
    wa = [V(14 + k) for k in range(8)]
    xv = [V(22 + k) for k in range(6)]
    wv = [V(28 + k) for k in range(4)]
    ka = [V(32 + k) for k in range(8)]
    va = [V(40 + k) for k in range(8)]
    kvv = [V(48 + k) for k in range(4)]
    vl = [V(52 + k) for k in range(6)]
    vKW, vOS, vTA, vTD, vFL = V(58), V(59), V(60), V(61), V(62)
    vZ = V(10, 4)
    ACC = lambda i, j: V(64 + 64 * (j >> 1) + 8 * i + 4 * (j & 1), 4)
    QF = lambda j, ks: V(64 + 32 * (j >> 1) + 8 * ks + 4 * (j & 1), 4)
    NEG = lambda j: V(160 + 4 * j, 4)
    SB = lambda i: V(184 + 8 * i, 8)
    PB = lambda i: V(200 + 4 * i, 4)
    TMP = lambda j: V(184 + 4 * j, 4)
    X5 = lambda p: V(208 + 4 * p, 4)
    R2 = lambda j: V(232 + 2 * j, 2)
    OA = lambda db, j: A(4 * (8 * j + db), 4)
    KF = lambda n: A(192 + 4 * n, 4)
    VF = lambda db: A(224 + 4 * db, 4)
    AF = lambda i: A(128 + 4 * i, 4)
    BF = lambda st, j: A((160 if st == 0 else 224) + 4 * j, 4)
    P1R = lambda t, p: A(4 * (8 * t + p), 4)
    XBASE = 65536
    F4 = OPT["fuse"] == 4
    E3 = F4 and OPT["fo"] == 3
    SRDF, SRDD, sFLO, vTag, vZero, vZ4 = S(84, 4), S(88, 4), S(73), V(63), V(0), V(252, 4)
    nt = " nt" if OPT["kv_nt"] else ""

    a.label("mha_qattn_kernel")
    e("s_cmp_ge_u32 s2, 256"); e("s_cbranch_scc1 L1_end")
    e("s_load_dwordx16 s[4:19], s[0:1], 0")
    e(f"v_lshrrev_b32 {vt[0]}, 6, v0"); e(f"v_and_b32 {vLane}, 63, v0")
    e("s_and_b32 s3, s2, 7"); e(f"s_lshr_b32 {sT0}, s2, 3")
    e(f"v_readfirstlane_b32 {sW}, {vt[0]}")
    e(f"s_and_b32 {sT1}, s3, 1"); e(f"s_and_b32 {sT2}, {sT0}, 7")
    if OPT["bmap"] == 0: e(f"s_lshl_b32 {sT1}, {sT1}, 3")
    if OPT["bmap"] == 1: e(f"s_lshl_b32 {sT2}, {sT2}, 1")
    if OPT["bmap"] == 2: e(f"s_xor_b32 {sT1}, {sT1}, 1"); e(f"s_lshl_b32 {sT1}, {sT1}, 3")
    e(f"s_add_u32 {sB}, {sT1}, {sT2}")
    e(f"s_lshr_b32 {sT1}, s3, 1"); e(f"s_lshl_b32 {sT1}, {sT1}, 2"); e(f"s_lshr_b32 {sHP}, {sT0}, 3")
    if OPT["hperm"]:
        e(f"s_lshr_b32 {sT2}, {sHP}, 1"); e(f"s_not_b32 {sHP}, {sHP}"); e(f"s_and_b32 {sHP}, {sHP}, 1"); e(f"s_lshl_b32 {sHP}, {sHP}, 1"); e(f"s_add_u32 {sHP}, {sHP}, {sT2}")
    e(f"s_add_u32 {sHP}, {sHP}, {sT1}")
    if OPT["xmap"] == 1:
        e(f"s_lshr_b32 {sT1}, s3, 1"); e(f"s_lshl_b32 {sT1}, {sT1}, 2"); e(f"s_and_b32 {sT2}, {sT0}, 3"); e(f"s_add_u32 {sB}, {sT1}, {sT2}")
        e(f"s_and_b32 {sT1}, s3, 1"); e(f"s_lshl_b32 {sT1}, {sT1}, 3"); e(f"s_lshr_b32 {sHP}, {sT0}, 2"); e(f"s_add_u32 {sHP}, {sHP}, {sT1}")
    if OPT["xmap"] == 2:
        e(f"s_lshl_b32 {sT1}, s3, 1"); e(f"s_and_b32 {sT2}, {sT0}, 1"); e(f"s_add_u32 {sB}, {sT1}, {sT2}"); e(f"s_lshr_b32 {sHP}, {sT0}, 1")
    if OPT["xmap"] == 3:
        e(f"s_and_b32 {sB}, {sT0}, 15"); e(f"s_lshl_b32 {sT1}, s3, 1"); e(f"s_lshr_b32 {sHP}, {sT0}, 4"); e(f"s_add_u32 {sHP}, {sHP}, {sT1}")
    if OPT["xmap"] in (4, 5):
        e(f"s_lshr_b32 {sT1}, s3, 2"); e(f"s_lshl_b32 {sT1}, {sT1}, 3"); e(f"s_and_b32 {sT2}, {sT0}, 7"); e(f"s_add_u32 {sB}, {sT1}, {sT2}")
        e(f"s_and_b32 {sT1}, s3, 2"); e(f"s_lshl_b32 {sT1}, {sT1}, 2"); e(f"s_and_b32 {sT2}, s3, 1"); e(f"s_lshl1_add_u32 {sHP}, {sT2}, {sT1}")
        e(f"s_lshr_b32 {sT1}, {sT0}, 4"); e(f"s_lshl2_add_u32 {sHP}, {sT1}, {sHP}")
        e(f"s_bfe_u32 {sT1}, {sT0}, 0x10003")
        if OPT["xmap"] == 4: e(f"s_xor_b32 {sT1}, {sT1}, 1")
        e(f"s_add_u32 {sHP}, {sHP}, {sT1}")
    if OPT["xmap"] in (6, 7):
        e(f"s_lshr_b32 {sT1}, s3, 2"); e(f"s_lshl_b32 {sT1}, {sT1}, 3"); e(f"s_and_b32 {sT2}, {sT0}, 7"); e(f"s_add_u32 {sB}, {sT1}, {sT2}")
        e(f"s_and_b32 {sT1}, s3, 2"); e(f"s_lshl_b32 {sT1}, {sT1}, 1"); e(f"s_and_b32 {sT2}, s3, 1"); e(f"s_lshl3_add_u32 {sHP}, {sT2}, {sT1}")
        e(f"s_lshr_b32 {sT1}, {sT0}, 3")
        if OPT["xmap"] == 6: e(f"s_xor_b32 {sT1}, {sT1}, 1")
        e(f"s_add_u32 {sHP}, {sHP}, {sT1}")
    e(f"s_and_b32 {sQH}, {sW}, 1"); e(f"s_lshr_b32 {sHS}, {sW}, 1")
    t0, t1, t2, t3, t4, t5 = vt[:6]
    e(f"v_lshrrev_b32 {t2}, 4, {vLane}")
    e(f"v_and_b32 {t1}, 15, {vLane}")
    e(f"v_lshlrev_b32 {t3}, 1, {t2}"); e(f"v_xor_b32 {t1}, {t1}, {t3}")
    e(f"s_lshl_b32 {sT0}, {sQH}, 4"); e(f"v_add_u32 {t0}, {sT0}, {t2}")
    e(f"v_lshlrev_b32 {t0}, 13, {t0}")
    e(f"s_lshl_b32 {sT0}, {sHS}, 8"); e(f"v_add_u32 {t0}, {sT0}, {t0}")
    for m in range(4):
        e(f"v_xor_b32 {t3}, {8 * (m >> 1)}, {t1}"); e(f"v_lshl_add_u32 {t3}, {t3}, 4, {t0}")
        e(f"v_add_u32 {wv[m]}, {m * 32768 - m * 1024}, {t3}")
    e(f"v_lshrrev_b32 {t0}, 3, {vLane}")
    e(f"v_and_b32 {t1}, 7, {vLane}"); e(f"v_xor_b32 {t1}, {t1}, {t2}")
    e(f"s_mul_i32 {sT0}, {sW}, 48"); e(f"v_add_u32 {t0}, {sT0}, {t0}"); e(f"v_lshlrev_b32 {t0}, 11, {t0}")
    for m in range(6):
        e(f"v_xor_b32 {t3}, {4 * (m & 1)}, {t1}"); e(f"v_lshl_add_u32 {t3}, {t3}, 4, {t0}")
        e(f"v_add_u32 {xv[m]}, {m * 16384 - (m % 3) * 1024}, {t3}")
    e(f"s_mul_i32 {sM0X}, {sW}, 6144"); e(f"s_add_u32 {sM0X}, {sM0X}, {XBASE}")
    e(f"s_lshl_b32 {sM0W}, {sW}, 12")
    e("s_waitcnt lgkmcnt(0)")
    stamp(a, 0)
    e(f"s_lshl_b32 {sT0}, {sHP}, 9")
    e(f"s_add_u32 {SRDW[0]}, s10, {sT0}"); e(f"s_addc_u32 {SRDW[1]}, s11, 0")
    e(f"s_sub_u32 {SRDW[2]}, 8388608, {sT0}"); e(f"s_mov_b32 {SRDW[3]}, 0x20000")
    e(f"s_mul_i32 {sT0}, {sB}, 393216")
    e(f"s_add_u32 {SRDX[0]}, s4, {sT0}"); e(f"s_addc_u32 {SRDX[1]}, s5, 0")
    e(f"s_mov_b32 {SRDX[2]}, 393216"); e(f"s_mov_b32 {SRDX[3]}, 0x20000")

    if OPT["askip"]: e(f"s_mov_b32 {SRDX[2]}, 0"); e(f"s_mov_b32 {SRDW[2]}, 0")
    sKR, sKRW = S(76), S(77)
    if OPT["krot"]:
        e(f"s_lshr_b32 {sT0}, s2, 3"); e(f"s_and_b32 {sT1}, {sT0}, 7"); e(f"s_lshr_b32 {sT0}, {sT0}, 3"); e(f"s_lshl_b32 {sT0}, {sT0}, 1")
        e(f"s_add_u32 {sT0}, {sT0}, {sT1}"); e(f"s_and_b32 {sT0}, {sT0}, 7")
        if OPT["krot"] == 2: e(f"s_and_b32 {sT0}, {sT0}, 1"); e(f"s_lshl_b32 {sT0}, {sT0}, 2")
        if OPT["krot"] == 3: e(f"s_and_b32 {sT0}, {sT0}, 3"); e(f"s_lshl_b32 {sT0}, {sT0}, 1")
        e(f"s_lshl_b32 {sKR}, {sT0}, 8"); e(f"s_lshl_b32 {sKRW}, {sT0}, 20")
    def dma_x(c, part):
        if OPT["krot"]:
            ops = [lambda: (e(f"s_add_u32 m0, {sM0X}, {(c % 4) * 24576 + part * 3072}"), e(f"s_add_u32 {sXK}, {sKR}, {c * 128}"), e(f"s_and_b32 {sXK}, {sXK}, 2047"))]
        else:
            ops = [lambda: (e(f"s_add_u32 m0, {sM0X}, {(c % 4) * 24576 + part * 3072}"), e(f"s_movk_i32 {sXK}, {c * 128}"))]
        for m in range(3):
            ops.append(lambda m=m: a.dma(xv[3 * part + m], SRDX, sXK, m * 1024, tag=("x", c)))
        return ops
    def dma_w(s):
        if OPT["krot"]:
            ops = [lambda: (e(f"s_add_u32 m0, {sM0W}, {(s % 4) * 16384}"), e(f"s_add_u32 {sWK}, {sKRW}, {s * 262144}"), e(f"s_and_b32 {sWK}, {sWK}, 8388607"))]
        else:
            ops = [lambda: (e(f"s_add_u32 m0, {sM0W}, {(s % 4) * 16384}"), e(f"s_mov_b32 {sWK}, {s * 262144}"))]
        for m in range(4):
            ops.append(lambda m=m: a.dma(wv[m], SRDW, sWK, m * 1024, tag=("w", s)))
        return ops
    def run(ops):
        for o in ops: o()
    run(dma_w(0)); run(dma_x(0, 0)); run(dma_x(0, 1)); run(dma_w(1)); run(dma_w(2)); run(dma_x(1, 0)); run(dma_x(1, 1)); run(dma_w(3))
    if OPT["codepf"]: code_prefetch(a, vLane, vTA, vTD, "mha_qattn_kernel", OPT["codepf"] * 1024, sW)
    run(dma_x(2, 0)); run(dma_x(2, 1)); run(dma_x(3, 0)); run(dma_x(3, 1))
    e(f"s_lshl_b32 {sT0}, {sB}, 5"); e(f"s_lshl_b32 {sT1}, {sHP}, 1"); e(f"s_add_u32 {sT0}, {sT0}, {sT1}")
    e(f"s_add_u32 {sT0}, {sT0}, {sHS}"); e(f"s_lshl_b32 {sT0}, {sT0}, 18")
    e(f"s_cmp_eq_u32 {sQH}, 0"); e(f"s_cselect_b32 {sT1}, s6, s8"); e(f"s_cselect_b32 {sT2}, s7, s9")
    e(f"s_add_u32 {SRDKV[0]}, {sT1}, {sT0}"); e(f"s_addc_u32 {SRDKV[1]}, {sT2}, 0")
    NR = 0 if OPT["kvskip"] else 262144
    e(f"s_mov_b32 {SRDKV[2]}, {NR}"); e(f"s_mov_b32 {SRDKV[3]}, 0x20000")
    e(f"s_mov_b32 {SRDO[0]}, s18"); e(f"s_mov_b32 {SRDO[1]}, s19")
    e(f"s_mov_b32 {SRDO[2]}, 25165824"); e(f"s_mov_b32 {SRDO[3]}, 0x20000")
    e(f"s_mov_b32 {sTHR}, {f32bits(THRESH):#x}")
    e(f"s_mov_b32 {sC[0]}, {f32bits(CSCALE):#x}"); e(f"s_mov_b32 {sC[1]}, {f32bits(CSCALE):#x}")
    e(f"s_mul_i32 {sKV0}, {sHS}, {OPT['rotH'] * 8192}"); e(f"s_mov_b32 {sPass}, 0")
    if OPT["rotW"] == 1:
        e(f"s_lshr_b32 {sKV0}, s2, 3"); e(f"s_lshl_b32 {sT1}, {sHS}, 2"); e(f"s_add_u32 {sKV0}, {sKV0}, {sT1}")
        e(f"s_and_b32 {sKV0}, {sKV0}, 7"); e(f"s_lshl_b32 {sKV0}, {sKV0}, 15")
    if OPT["rotW"] == 2:
        e(f"s_lshr_b32 {sKV0}, s2, 5"); e(f"s_add_u32 {sKV0}, {sKV0}, s2"); e(f"s_lshl_b32 {sT1}, {sHS}, 2"); e(f"s_add_u32 {sKV0}, {sKV0}, {sT1}")
        e(f"s_and_b32 {sKV0}, {sKV0}, 7"); e(f"s_lshl_b32 {sKV0}, {sKV0}, 15")
    if OPT["rotW"] == 3:
        e(f"s_lshr_b32 {sKV0}, s2, 3"); e(f"s_add_u32 {sKV0}, {sKV0}, s2"); e(f"s_lshr_b32 {sT1}, s2, 6"); e(f"s_add_u32 {sKV0}, {sKV0}, {sT1}")
        e(f"s_lshl_b32 {sT1}, {sHS}, 2"); e(f"s_add_u32 {sKV0}, {sKV0}, {sT1}")
        e(f"s_and_b32 {sKV0}, {sKV0}, 7"); e(f"s_lshl_b32 {sKV0}, {sKV0}, 15")
    if OPT["rotW"] == 7:
        e(f"s_lshr_b32 {sKV0}, {sB}, 3"); e(f"s_add_u32 {sKV0}, {sKV0}, {sB}"); e(f"s_lshr_b32 {sT1}, {sHP}, 2"); e(f"s_lshl1_add_u32 {sKV0}, {sT1}, {sKV0}")
        e(f"s_and_b32 {sT1}, {sHP}, 3"); e(f"s_add_u32 {sKV0}, {sKV0}, {sT1}"); e(f"s_lshl2_add_u32 {sKV0}, {sHS}, {sKV0}")
        e(f"s_and_b32 {sKV0}, {sKV0}, 7"); e(f"s_lshl_b32 {sKV0}, {sKV0}, 15")
    if OPT["rotW"] == 9:
        ca, cb, sb, cc, n = [int(z) for z in OPT["rotp"].split(",")]
        e(f"s_and_b32 {sKV0}, s2, 7"); e(f"s_mul_i32 {sKV0}, {sKV0}, {ca}"); e(f"s_lshr_b32 {sT1}, s2, {3 + sb}"); e(f"s_mul_i32 {sT1}, {sT1}, {cb}")
        e(f"s_add_u32 {sKV0}, {sKV0}, {sT1}"); e(f"s_mul_i32 {sT1}, {sHS}, {cc}"); e(f"s_add_u32 {sKV0}, {sKV0}, {sT1}")
        e(f"s_and_b32 {sKV0}, {sKV0}, {(1 << n) - 1}"); e(f"s_lshl_b32 {sKV0}, {sKV0}, {18 - n}")
    if OPT["rotW"] == 4:
        e(f"s_mul_i32 {sKV0}, s2, 5"); e(f"s_lshr_b32 {sT1}, s2, 5"); e(f"s_add_u32 {sKV0}, {sKV0}, {sT1}")
        e(f"s_lshl_b32 {sT1}, {sHS}, 4"); e(f"s_add_u32 {sKV0}, {sKV0}, {sT1}")
        e(f"s_and_b32 {sKV0}, {sKV0}, 31"); e(f"s_lshl_b32 {sKV0}, {sKV0}, 13")
    if OPT["rotW"] == 5:
        e(f"s_lshr_b32 {sKV0}, s2, 3"); e(f"s_lshl_b32 {sT1}, s2, 2"); e(f"s_add_u32 {sKV0}, {sKV0}, {sT1}")
        e(f"s_lshl_b32 {sT1}, {sHS}, 4"); e(f"s_add_u32 {sKV0}, {sKV0}, {sT1}")
        e(f"s_and_b32 {sKV0}, {sKV0}, 31"); e(f"s_lshl_b32 {sKV0}, {sKV0}, 13")
    if OPT["rotW"] == 6:
        e(f"s_lshl_b32 {sKV0}, s2, 1"); e(f"s_add_u32 {sKV0}, {sKV0}, {sHS}"); e(f"s_mul_i32 {sKV0}, {sKV0}, 0x9e3779b1")
        e(f"s_lshr_b32 {sKV0}, {sKV0}, 27"); e(f"s_lshl_b32 {sKV0}, {sKV0}, 13")
    e(f"s_mul_i32 {sDL}, {sHS}, 49152"); e(f"s_sub_u32 {sDL}, 131072, {sDL}")
    e(f"v_lshlrev_b32 {vTA}, 7, {vLane}")
    vT2 = V(0)
    e(f"v_lshrrev_b32 {vT2}, {int(math.log2(64 // OPT['tl']))}, {vLane}"); e(f"v_lshlrev_b32 {vT2}, 7, {vT2}")
    if OPT["wo_touch"]:
        e(f"s_mov_b32 {SRDWO[0]}, s12"); e(f"s_mov_b32 {SRDWO[1]}, s13"); e(f"s_mov_b32 {SRDWO[2]}, 8388608"); e(f"s_mov_b32 {SRDWO[3]}, 0x20000")
    if OPT["xw_touch"]:
        e(f"s_lshl_b32 {sT2}, s2, 2"); e(f"s_add_u32 {sT2}, {sT2}, {sW}"); e(f"s_lshl_b32 {sT2}, {sT2}, 13")
        e("s_mov_b32 s84, s10"); e("s_mov_b32 s85, s11"); e("s_mov_b32 s86, 8388608"); e("s_mov_b32 s87, 0x20000")
        a.bload(vTD, vTA, S(84, 4), sT2, 0)
        e("s_mov_b32 s84, s4"); e("s_mov_b32 s85, s5"); e("s_mov_b32 s86, 6291456")
        a.bload(vTD, vTA, S(84, 4), sT2, 0)
    vh, vg, vr, vc1, vc0, vql, u0, u1 = vt
    e(f"v_lshrrev_b32 {vg}, 4, {vLane}"); e(f"v_bfe_u32 {vr}, {vLane}, 2, 2"); e(f"v_and_b32 {vc0}, 3, {vLane}")
    e(f"v_lshl_add_u32 {u0}, {vg}, 3, {vr}"); e(f"v_lshlrev_b32 {u0}, 8, {u0}")
    e(f"s_lshl_b32 {sT0}, {sHS}, 13"); e(f"v_add_u32 {u0}, {sT0}, {u0}")
    e(f"v_lshl_add_u32 {u0}, {vc0}, 3, {u0}"); e(f"v_lshl_add_u32 {u0}, {vr}, 5, {u0}")
    e(f"v_and_b32 {u1}, 1, {vg}"); e(f"v_lshl_add_u32 {wa[0]}, {u1}, 7, {u0}")
    for i in range(1, 8): e(f"v_xor_b32 {wa[i]}, {32 * i}, {wa[0]}")
    e(f"v_and_b32 {vql}, 15, {vLane}")
    e(f"s_mul_i32 {sT1}, {sQH}, 12288"); e(f"s_add_u32 {sT1}, {sT1}, {XBASE}")
    e(f"v_lshlrev_b32 {u0}, 7, {vql}"); e(f"v_add_u32 {u0}, {sT1}, {u0}")
    e(f"v_lshrrev_b32 {u1}, 1, {vql}"); e(f"v_xor_b32 {u1}, {u1}, {vg}")
    e(f"v_lshl_add_u32 {xa[0][0]}, {u1}, 4, {u0}"); e(f"v_xor_b32 {xa[0][1]}, 64, {xa[0][0]}")
    for k in range(2): e(f"v_add_u32 {xa[1][k]}, 49152, {xa[0][k]}")
    e(f"v_lshlrev_b32 {vh}, {sQH}, {vg}")
    e(f"v_xor_b32 {vh}, {vh}, {vql}"); e(f"v_lshlrev_b32 {u0}, 8, {vg}")
    e(f"v_lshl_add_u32 {kvv[0]}, {vh}, 4, {u0}")
    e(f"s_cmp_eq_u32 {sQH}, 0")
    for j in range(1, 4):
        e(f"s_cselect_b32 {sT1}, {4 * j}, {8 * (j & 1)}"); e(f"s_mul_i32 {sT1}, {sT1}, 16"); e(f"v_xor_b32 {kvv[j]}, {sT1}, {kvv[0]}")

    def late_setup():
        ops = []
        E = lambda s: ops.append(lambda: e(s))
        E(f"v_lshrrev_b32 {vg}, 4, {vLane}"); E(f"v_bfe_u32 {vr}, {vLane}, 2, 2"); E(f"v_and_b32 {vc0}, 3, {vLane}")
        E(f"v_and_b32 {vql}, 15, {vLane}"); E(f"v_lshrrev_b32 {vc1}, 2, {vLane}")
        E(f"s_lshl_b32 {sT0}, {sHS}, 16"); E(f"s_add_u32 {sT1}, {sT0}, 8192")
        E(f"v_lshlrev_b32 {u0}, 8, {vc1}"); E(f"v_add_u32 {u0}, {sT1}, {u0}"); E(f"v_lshl_add_u32 {u0}, {vc0}, 3, {u0}")
        E(f"v_and_b32 {u1}, 7, {vc1}"); E(f"v_lshl_add_u32 {va[0]}, {u1}, 5, {u0}")
        for db in range(1, 8): E(f"v_xor_b32 {va[db]}, {32 * db}, {va[0]}")
        E(f"v_lshlrev_b32 {u0}, 8, {vql}"); E(f"v_add_u32 {u0}, {sT0}, {u0}")
        E(f"v_and_b32 {u1}, 1, {vg}"); E(f"v_lshl_add_u32 {u0}, {u1}, 3, {u0}")
        E(f"v_lshrrev_b32 {u1}, 1, {vg}"); E(f"v_xor_b32 {u1}, {u1}, {vql}"); E(f"v_lshl_add_u32 {ka[0]}, {u1}, 4, {u0}")
        for s in range(1, 8): E(f"v_xor_b32 {ka[s]}, {32 * s}, {ka[0]}")
        E(f"s_lshl_b32 {sM0KV}, {sQH}, 13"); E(f"s_add_u32 {sM0KV}, {sM0KV}, {sT0}")
        E(f"v_lshlrev_b32 {vOS}, 4, {vLane}"); E(f"v_add_u32 {vKW}, {sM0KV}, {vOS}"); E(f"s_add_u32 {sS}, {sM0KV}, {sDL}")
        E(f"s_lshl_b32 {sOO}, {sB}, 1"); E(f"s_add_u32 {sOO}, {sOO}, {sQH}"); E(f"s_mul_i32 {sOO}, {sOO}, {6 * 131072}")
        sSG = sHP
        if OPT["sig"]:
            sSG = S(93)
            E(f"s_bfe_u32 {sT1}, {sHP}, 0x20001"); E(f"s_lshr_b32 {sSG}, {sHP}, 3"); E(f"s_lshl1_add_u32 {sT1}, {sT1}, {sSG}")
            E(f"s_and_b32 {sSG}, {sHP}, 1"); E(f"s_lshl1_add_u32 {sSG}, {sT1}, {sSG}")
        E(f"s_lshl_b32 {sT1}, {sSG}, 1"); E(f"s_add_u32 {sT1}, {sT1}, {sHS}"); E(f"s_lshl_b32 {sT1}, {sT1}, 12"); E(f"s_add_u32 {sOO}, {sOO}, {sT1}")
        E(f"s_lshl_b32 {sT1}, {sW}, 2"); E(f"s_add_u32 {sT1}, {sT1}, {65536 if E3 else 163776}"); E(f"v_mov_b32 {vFL}, {sT1}")
        for q in range(6): E(f"v_mov_b32 {vl[q]}, 0")
        if F4:
            E(f"v_mov_b32 {vZero}, 0")
            E(f"s_lshl_b32 {sT1}, {sB}, 12"); E(f"s_lshl_b32 {sFLO}, {sSG}, 2"); E(f"s_add_u32 {sT1}, {sT1}, {sFLO}"); E(f"s_add_u32 {sFLO}, {sT1}, {FLOFF}")
            ops.append(lambda: (e(f"s_or_b32 {sT1}, s2, {sW}"), e(f"s_cselect_b32 {SRDF[2]}, 0, {FLOFF + 65536}"), e(f"s_cselect_b32 {SRDD[2]}, 0, 4")))
            E(f"s_mov_b32 {SRDF[0]}, s18"); E(f"s_mov_b32 {SRDF[1]}, s19"); E(f"s_mov_b32 {SRDF[3]}, 0x20000")
            E(f"s_mov_b32 {SRDD[0]}, s16"); E(f"s_mov_b32 {SRDD[1]}, s17"); E(f"s_mov_b32 {SRDD[3]}, 0x20000")
        return ops
    def rdK(n, pi, slot): return lambda: a.ds_read_b64(KF(n)[2 * pi:2 * pi + 2], ka[2 * (n >> 1) + pi], slot * 16384 + (n & 1) * 4096)
    def rdV(db, uu, slot): return lambda: a.ds_read_tr(VF(db)[2 * uu:2 * uu + 2], va[db], slot * 16384 + uu * 4096)

    def rdA(s, i): return [(lambda u=u: a.ds_read_tr(AF(i)[2 * u:2 * u + 2], wa[i], (s % 4) * 16384 + u * 1024)) for u in range(2)]
    def rdB(s, j):
        xs = (s // 2) % 4
        return lambda: a.ds_read_b128(BF(s % 2, j), xa[xs // 2][s % 2], (xs % 2) * 24576 + j * 2048)
    p1list = [(t, p) for t in range(4) for p in range(8)]
    def p1_ops(k):
        t, p = p1list[k]
        ops = []
        if p % 4 == 0:
            ops.append(lambda: (e(f"s_add_u32 {sP1}, {sKV0}, {t * 8192 + (p // 4) * 4096}"), e(f"s_and_b32 {sP1}, {sP1}, 262143")))
        ops.append(lambda: a.bload(P1R(t, p), kvv[p % 4], SRDKV, sP1, (p % 4) * 1024, nt))
        return ops
    p1_at = {}
    for k in range(32): p1_at.setdefault(k * OPT["p1end"] // 32, []).append(k)
    p2_at = {}
    for k in range(OPT["n2"]): p2_at.setdefault(OPT["p2s"] + (k * (OPT["p2e"] - OPT["p2s"])) // OPT["n2"], []).append(k)
    conv = []
    for J in range(3):
        for ks in range(4):
            for jj in range(2):
                j = 2 * J + jj
                X, Y, D = ACC(2 * ks, j), ACC(2 * ks + 1, j), QF(j, ks)
                for R in (X, Y):
                    for k in range(4): conv.append((J, lambda r=R[k]: e(f"v_mul_f32 {r}, {sC[0]}, {r}")))
                conv.append((J, lambda X=X, D=D: e(f"v_cvt_pk_bf16_f32 {D[0]}, {X[0]}, {X[1]}")))
                conv.append((J, lambda X=X, D=D: e(f"v_cvt_pk_bf16_f32 {D[1]}, {X[2]}, {X[3]}")))
                conv.append((J, lambda Y=Y, D=D: e(f"v_cvt_pk_bf16_f32 {D[2]}, {Y[0]}, {Y[1]}")))
                conv.append((J, lambda Y=Y, D=D: e(f"v_cvt_pk_bf16_f32 {D[3]}, {Y[2]}, {Y[3]}")))

    a.wait_for(("w", 0), ("x", 0)); e("s_barrier")
    stamp(a, 1)
    for j in range(6):
        rdB(0, j)()
        for r in rdA(0, j): r()
    for r in rdA(0, 6): r()
    late = late_setup()
    free = [g for i in range(3, 8) for g in range(6 * i + 2, 6 * i + 6)]
    for s in range(32):
        if s in (8, 16, 24): stamp(a, 1 + s // 8, 2)
        G = Gaps()
        last = s == 31
        order = [(i, j) for j in range(6) for i in range(8)] if last else [(i, j) for i in range(8) for j in range(6)]
        mf = [(lambda i=i, j=j: a.mfma16(ACC(i, j), AF(i), BF(s % 2, j), ACC(i, j) if s else 0)) for i, j in order]
        if s:
            m0_ = mf[0]; mf[0] = lambda m0_=m0_: (a.wait_for(lgkm=2), m0_())
        for u, r in enumerate(rdA(s, 7)): G.mem(u, r)
        def bar(s=s):
            if s < 31: a.wait_for(("w", s + 1), ("x", (s + 1) // 2), lgkm=0)
            else: a.wait_for(lgkm=0)
            e("s_barrier")
        G.mem(7, bar)
        if not last:
            for u, r in enumerate(rdA(s + 1, 0)): G.mem(8 + u, r)
            for i in range(1, 7):
                for u, r in enumerate(rdA(s + 1, i)): G.mem(6 * i + 6 + u, r)
            for j, g in enumerate([10, 11, 14, 15, 16, 17]): G.mem(g, rdB(s + 1, j))
        ops = []
        if s + 4 < 32: ops += dma_w(s + 4)
        c = (s - 1) // 2 + 4
        if s >= 1 and c < 16: ops += dma_x(c, (s - 1) % 2)
        for k in p1_at.get(s, []): ops += p1_ops(k)
        for k in p2_at.get(s, []):
            ops.append(lambda k=k: (e(f"s_add_u32 {sT2}, {sKV0}, {OPT['p2b'] + k * OPT['tl'] * 128}"), e(f"s_and_b32 {sT2}, {sT2}, 262143")))
            ops.append(lambda: a.bload(vTD, vT2, SRDKV, sT2, 0, " nt" if OPT["p2nt"] else ""))
        if F4 and s == 2: ops.append(lambda: a.bload(vTag, vZero, SRDF, sFLO, 0, " sc1"))
        if F4 and s == 10:
            ops.append(lambda: (a.wait_for(vTag), e(f"v_add_u32 {vTag}, 0x9e3779b9, {vTag}"), e(f"v_or_b32 {vTag}, 1, {vTag}")))
            ops.append(lambda: a.bstore(vTag, vZero, SRDD, 0, 0, " sc1"))
        if F4 and s == 12:
            ops.append(lambda: (e(f"s_cmp_eq_u32 {sW}, 0"), e(f"s_cselect_b32 {SRDD[2]}, 4, 0"), e(f"s_mov_b32 {SRDF[2]}, {FLOFF + 65536}")))
        if s == 2 and OPT["wo_touch"] == 1:
            ops.append(lambda: (e(f"s_lshl_b32 {sT2}, s2, 2"), e(f"s_add_u32 {sT2}, {sT2}, {sW}"), e(f"s_lshl_b32 {sT2}, {sT2}, 13")))
            ops.append(lambda: a.bload(vTD, vTA, SRDWO, sT2, 0))
        if last:
            for half in range(2):
                ops.append(lambda half=half: (e(f"s_add_u32 {sP1}, {sKV0}, {32768 + half * 4096}"), e(f"s_and_b32 {sP1}, {sP1}, 262143"), e(f"s_add_u32 m0, {sS}, {half * 4096}")))
                for j in range(4): ops.append(lambda j=j: a.dma(kvv[j], SRDKV, sP1, j * 1024, nt))
        if s >= 28:
            t = s - 28
            ops += [(lambda p=p: a.ds_write_b128(vKW, P1R(t, p), t * 16384 + p * 1024)) for p in range(8)]
        if s >= 30:
            ops += [rdK(n, pi, 0) for n in range(4 * (s - 30), 4 * (s - 30) + 4) for pi in range(2)]
        if last:
            for i in range(4): G.valu(4 + i, lambda i=i: e(f"v_mov_b32 {vZ[i]}, 0"))
        fr = free if not last else list(range(OPT['d4'], OPT['d4'] + 28))
        assert len(ops) <= len(fr), (s, len(ops))
        for o, g in zip(ops, [fr[(k * len(fr)) // len(ops)] for k in range(len(ops))]): G.mem(g, o)
        if s == 0:
            for k, o in enumerate(late): G.valu(8 + k // 2, o)
        if last:
            g = 0
            n = 0
            while conv and g < 48:
                J = conv[0][0]
                g = max(g, 16 * J + 18)
                if g >= 48: break
                G.valu(g, conv.pop(0)[1]); n += 1
                if n % 2 == 0: g += 1
        G.run(mf)
    stamp(a, 2); stamp(a, 5, 2)
    if OPT["only01"]: e("s_waitcnt vmcnt(0) lgkmcnt(0)"); e(f"s_cmp_eq_u32 {sHS}, 1"); e("s_cbranch_scc1 L1_end")
    e("s_nop 3")
    def xlane(op, m, tmp):
        return [lambda: e(f"v_mov_b32 {tmp}, {m}"), lambda: e("s_nop 1"), lambda: e(f"v_permlane16_swap_b32 {m}, {tmp}"), lambda: e("s_nop 1"),
                lambda: e(f"{op} {m}, {m}, {tmp}"),
                lambda: e(f"v_mov_b32 {tmp}, {m}"), lambda: e("s_nop 1"), lambda: e(f"v_permlane32_swap_b32 {m}, {tmp}"), lambda: e("s_nop 1"),
                lambda: e(f"{op} {m}, {m}, {tmp}")]
    def rowmax_ops(j, m, tmp):
        X, Y = NEG(j), TMP(j)
        return [lambda: e(f"v_max3_f32 {m}, {X[0]}, {X[1]}, {X[2]}"), lambda: e(f"v_max3_f32 {m}, {m}, {X[3]}, {Y[0]}"),
                lambda: e(f"v_max3_f32 {m}, {m}, {Y[1]}, {Y[2]}"), lambda: e(f"v_max_f32 {m}, {m}, {Y[3]}")] + xlane("v_max_f32", m, tmp)
    def negfill_ops(j, m):
        return [(lambda i=i: e(f"v_sub_f32 {NEG(j)[i]}, 0, {m}")) for i in range(4)]
    a.wait_for(lgkm=0)
    zm = [(lambda k=k: a.e(f"v_mfma_f32_32x32x16_bf16 {A(16 * k, 16)}, {vZ}, {vZ}, 0")) for k in list(range(12)) + [14, 15]]
    zm4 = [(lambda k=k: a.e(f"v_mfma_f32_32x32x16_bf16 {A(16 * k, 16)}, {vZ4}, {vZ4}, 0")) for k in list(range(12)) + [14, 15]]
    G = Gaps()
    G.spread([(o, 4) for _, o in conv], list(range(14))); conv = []
    G.run(zm)
    e("s_nop 1")
    sm = [(lambda j=j, n=n: a.mfma16(TMP(j) if n & 1 else NEG(j), KF(n), QF(j, n >> 1), (TMP(j) if n & 1 else NEG(j)) if n > 1 else 0))
          for j in range(6) for n in range(8)]

    NS = 96
    used = [0] * NS
    memg = {}
    def M(g, it, cost=4): memg.setdefault(g % NS, []).append(it); used[g % NS] += cost
    M(5, ("kill",), 12); M(6, ("m0", 0)); M(7, ("bar",), 8)
    for db in range(8): M(8 + db, ("v", db, 0)); M(12 + db, ("v", db, 1))
    for n in range(8): M(80 + n, ("k", n, 0)); M(84 + n, ("k", n, 1))
    dg = OPT["dg0"]
    for k in range(4): M(dg + 2 * k, ("dma", 0, k)); M(dg + 10 + 2 * k, ("dma", 1, k))
    M(dg + 8, ("m0", 1)); M(dg + 19, ("adv",), 12)
    for g in (95, 3, 23, 27): used[g] += 4
    valg = {}
    def place(j, seq, lo, hi):
        for L in range(8, 41, 4):
            u2 = list(used); g = lo; out = []
            for op, c, mn in seq:
                g = max(g, mn)
                while g <= hi and u2[g % NS] + c > L: g += 1
                if g > hi: break
                u2[g % NS] += c; out.append((op, g))
            else:
                used[:] = u2
                for op, g in out: valg.setdefault(g, []).append((j, op))
                return dict(out)
        raise Exception("no fit")
    pos = {}
    for j in range(6):
        b = 16 * j
        crit = [("e0", 8, b + 8), ("e1", 8, 0), ("e2", 8, 0), ("c0", 4, 0), ("e3", 8, 0), ("e4", 8, b + 10), ("c1", 4, 0), ("e5", 8, 0), ("e6", 8, 0),
                ("c2", 4, 0), ("e7", 8, 0), ("a0", 4, 0), ("c3", 4, 0)]
        pos[j] = place(j, crit, b + 8, b + 22)
    for j in range(6):
        b = 16 * j
        place(j, [(f"a{k}", 4, pos[j][f"e{k}"] + 1) for k in range(1, 8)], b + 9, b + 30)
    if OPT["verbose"]: print("gap load", used, "over", sum(max(0, x - 12) for x in used))
    def sm_op(j, op):
        Sx, Px, k = SB(j % 2), PB(j % 2), int(op[1])
        if op[0] == "e": e(f"v_exp_f32 {Sx[k]}, {Sx[k]}")
        if op[0] == "a": e(f"v_add_f32 {vl[j]}, {vl[j]}, {Sx[k]}")
        if op[0] == "c": e(f"v_cvt_pk_bf16_f32 {Px[k]}, {Sx[2 * k]}, {Sx[2 * k + 1]}")
    tail = [(g, j, op) for g in sorted(valg) if g >= NS for j, op in valg[g]]
    tail_e = {(j, int(op[1])) for g, j, op in tail if op[0] == "e"}
    init = [(lambda j=j, k=k: e(f"v_mov_b32 {SB(j % 2)[k]}, {'0xf149f2ca' if (j, k) in tail_e else 0}")) for j in (4, 5) for k in range(8)]
    init += [(lambda k=k: e(f"v_mov_b32 {PB(1)[k]}, 0")) for k in range(4)]

    G = Gaps()
    for j in range(5):
        G.spread([(o, 4) for o in rowmax_ops(j, vt[0], vt[1]) + negfill_ops(j, vt[0])], list(range(8 * j + 9, min(48, 8 * j + 17))))
    G.spread([(o, 4) for o in init[0:8]], list(range(26, 34)))
    G.spread([(o, 4) for o in init[8:16]], list(range(42, 48)))
    sSL = [S(94 + u) for u in range(4)]
    def stream_init():
        e(f"s_sub_u32 {sCnt}, 0, {sQH}")
        e(f"s_lshl_b32 {sT0}, {sQH}, 13"); e(f"s_add_u32 {sKVO}, {sKV0}, 49152"); e(f"s_sub_u32 {sKVO}, {sKVO}, {sT0}"); e(f"s_and_b32 {sKVO}, {sKVO}, 262143")
        e(f"s_add_u32 {sKVO2}, {sKVO}, 4096"); e(f"s_mov_b32 {sIT}, 0")
    def x5_ops():
        ops = []
        for p in range(8):
            if p % 4 == 0: ops.append(lambda p=p: (e(f"s_add_u32 {sP1}, {sKV0}, {5 * 8192 + (p // 4) * 4096}"), e(f"s_and_b32 {sP1}, {sP1}, 262143")))
            ops.append(lambda p=p: e(f"buffer_load_dwordx4 {X5(p)}, {kvv[p % 4]}, {SRDKV}, {sP1} offen" + (f" offset:{(p % 4) * 1024}" if p % 4 else "") + nt))
        return ops
    for k, o in enumerate(x5_ops()): G.mem(OPT["x5g"] + k // 2, o)
    G.mem(6, stream_init)
    if OPT["wo_touch"] == 3:
        G.mem(7, lambda: (e(f"s_lshl_b32 {sT2}, s2, 2"), e(f"s_add_u32 {sT2}, {sT2}, {sW}"), e(f"s_lshl_b32 {sT2}, {sT2}, 13")))
        G.mem(8, lambda: a.bload(vTD, vTA, SRDWO, sT2, 0))
    for u in range(4):
        G.mem(9 + u, lambda u=u: (e(f"s_sub_u32 {sT0}, {u}, {sQH}"), e(f"s_and_b32 {sT0}, {sT0}, 3"), e(f"s_lshl_b32 {sT0}, {sT0}, 14"), e(f"s_add_u32 {sSL[u]}, {sM0KV}, {sT0}")))
    G.mem(13, lambda: (e(f"s_mov_b32 {sSL0}, {sSL[0]}"), e(f"s_cmp_lg_u32 {sQH}, 0"), e("s_cselect_b64 vcc, -1, 0")))
    G.valu(14, lambda: e(f"v_add_u32 {vKW}, {sDL}, {vKW}"))
    G.run(sm)
    e("s_nop 7")
    for o in rowmax_ops(5, vt[0], vt[1]) + negfill_ops(5, vt[0]) + init[16:]: o()
    e("s_nop 1")

    def dma_kv(slot):
        ops = []
        for half in range(2):
            ops.append(lambda half=half: (e(f"s_add_u32 m0, {slot}, {half * 4096}"), e("s_nop 0")))
            for j in range(4):
                ops.append(lambda j=j, half=half: a.dma(kvv[j], SRDKV, sKVO2 if half else sKVO, j * 1024, nt))
        ops.append(lambda: (e(f"s_add_u32 {sKVO}, {sKVO}, 8192"), e(f"s_and_b32 {sKVO}, {sKVO}, 262143"), e(f"s_add_u32 {sKVO2}, {sKVO}, 4096")))
        return ops
    PVg = lambda j: [(lambda db=db: a.mfma16(OA(db, j), VF(db), PB(j % 2), OA(db, j))) for db in range(8)]
    lblc = [0]
    def only(kind, f):
        lblc[0] += 1; L = f"L1_only{lblc[0]}"
        e(f"s_cbranch_vcc{'z' if kind else 'nz'} {L}"); f(); a.label(L)
    def dma_half(u, half):
        e(f"s_add_u32 m0, {sSL[u]}, {half * 4096}"); e("s_nop 0")
        for j in range(4): e(f"buffer_load_dwordx4 {kvv[j]}, {SRDKV}, {sKVO2 if half else sKVO} offen" + (f" offset:{j * 1024}" if j else "") + nt + " lds")
    def x5_write():
        for p in range(8): e(f"ds_write_b128 {vKW}, {X5(p)}" + (f" offset:{p * 1024}" if p else ""))
    def tileB(u, vs=None, ks=None, dma=True, adv=True, kill=False, vm=OPT["bwait"], extra={}, nok=False):
        vs = u if vs is None else vs
        ks = (u + 1) % 4 if ks is None else ks
        mf = []
        for j in range(6):
            for n in range(8):
                D = SB(j % 2)[4 * (n & 1):4 * (n & 1) + 4]
                mf.append(lambda n=n, D=D, j=j: a.mfma16(D, KF(n), QF(j, n >> 1), D if n > 1 else NEG(j)))
            mf += PVg((j + 5) % 6)
        for idx, regs in ((0, [KF(n) for n in range(4)]), (4, [KF(n) for n in range(8)]), (24, [VF(d) for d in range(4)]), (28, [VF(d) for d in range(8)])):
            mf[idx] = (lambda f=mf[idx], regs=regs: (a.wait_for(*regs), f()))
        for g in range(NS):
            if not OPT["bnoc"] & 1: mf[g]()
            for it in memg.get(g, []):
                k = it[0]
                if OPT["bnoc"] & 2 and k in "vk": continue
                if k == "kill" and kill: e(f"s_cmp_lt_u32 {sCnt}, 22"); e(f"s_cselect_b32 {SRDKV[2]}, {NR}, 0"); e(f"s_add_u32 {sCnt}, {sCnt}, 1")
                if k == "m0" and dma: e(f"s_add_u32 m0, {sSL[u]}, {it[1] * 4096}")
                if k == "bar":
                    if vm is not None: a.wait(vm=vm)
                    if kill and OPT["thr"]:
                        lblc[0] += 1
                        e(f"s_bitcmp1_b32 s2, 0"); e(f"s_cbranch_scc{OPT['thrp']} L1_thr{lblc[0]}"); e(f"s_waitcnt vmcnt({OPT['thr']})"); a.label(f"L1_thr{lblc[0]}")
                    e("s_barrier")
                if k == "v": rdV(it[1], it[2], vs)()
                if k == "k" and not nok: rdK(it[1], it[2], ks)()
                if k == "dma" and dma: a.dma(kvv[it[2]], SRDKV, sKVO2 if it[1] else sKVO, it[2] * 1024, nt)
                if k == "adv" and adv: e(f"s_add_u32 {sKVO}, {sKVO}, 8192"); e(f"s_and_b32 {sKVO}, {sKVO}, 262143"); e(f"s_add_u32 {sKVO2}, {sKVO}, 4096")
            for f in extra.get(g, []): f()
            for j, op in valg.get(g + NS, []) + valg.get(g, []):
                if not OPT["bnoc"] & 4: sm_op(j, op)
        if OPT["bnoc"] & 1: a.wait(lgkm=0)
    stamp(a, 3)
    shift = lambda op, g0: {g0 + k: [lambda r=r: e(f"{op} {r}, {r}, {sDL}" if op == "v_subrev_u32" else f"{op} {r}, {sDL}, {r}")] for k, r in enumerate(ka + va)}
    shift = lambda op, g0: {g0 + k: [lambda r=r: e(f"{op} {r}, {sDL}, {r}")] for k, r in enumerate(ka + va)}
    e("s_waitcnt lgkmcnt(0)"); a.lds = []
    a.label("L1_tile0")
    tileB(0, dma=False, vm=None, extra={dg: [lambda: only(0, lambda: dma_half(0, 0))], dg + 10: [lambda: only(0, lambda: dma_half(0, 1))]})
    K2 = kernel2(a) if OPT["fuse"] else None
    x1, x2 = {}, {}
    if F4:
        early = next(K2)
        x1 = {50: [lambda: e(f"buffer_load_dword {vTag}, {vZero}, {SRDD}, 0 offen sc1")]}
        gl = [(x1, g) for g in range(30, 94, 2)] + [(x2, g) for g in range(30, 94, 2)]
        for k, un in enumerate(early):
            x, g = gl[k * len(gl) // len(early)]
            x.setdefault(g, []).append(lambda un=un: [e(t) for t in un])
    tileB(1, vm=None, extra=x1)
    tileB(2, vm=None, extra=x2)
    tileB(3, ks=0, vm=32, extra=shift("v_add_u32", 44))
    tileB(0, vs=0, ks=0, dma=False, adv=False, vm=32,
          extra={29: [lambda: only(0, x5_write)], 45: [lambda: (a.wait(vm=24, lgkm=0), e("s_barrier"))], 46: [lambda: only(1, x5_write)],
                 50: [lambda: only(1, lambda: dma_half(0, 0))], 60: [lambda: only(1, lambda: dma_half(0, 1))],
                 62: [lambda: (e(f"s_cmp_eq_u32 {sQH}, 0"), e(f"s_cselect_b32 {sSL[0]}, {sSL0}, {sS}"))]})
    def tlb_ops(g0):
        d = {}
        if OPT["tlbm"] & 2:
            d[g0] = [lambda: (e(f"v_mul_u32_u24 {vTA}, 0xc00, {vLane}"), e(f"v_mov_b32 {vTD}, s46"), e(f"v_mul_u32_u24 {vTD}, 0x30000, {vTD}"), e(f"v_add_u32 {vTA}, {vTA}, {vTD}"))]
            d[g0 + 1] = [lambda: e(f"global_load_dword {vTD}, {vTA}, s[14:15]")]
        if OPT["tlbm"] & 1:
            d[g0 + 3] = [lambda: (e(f"v_and_b32 {vTA}, 7, {vLane}"), e(f"v_lshlrev_b32 {vTA}, 17, {vTA}"))]
            d[g0 + 4] = [lambda: e(f"buffer_load_dword {vTD}, {vTA}, {SRDO}, {sOO} offen")]
        return d
    x4 = shift("v_subrev_u32", 44)
    if OPT["tlbw"] == 2:
        for g, o in tlb_ops(OPT["tlbg"]).items(): x4.setdefault(g, []).extend(o)
    tileB(0, vs=0, ks=0, dma=False, adv=False, vm=24, extra=x4)
    def bodyB():
        for u in range(4): tileB(u, kill=True, extra={40: [lambda: e(f"s_mov_b32 {sSL[0]}, {sSL0}")]} if u == 1 else {})
    steady = list(a.lds)
    a.label("L1_loopB")
    bodyB()
    assert a.lds == steady
    e(f"s_add_u32 {sIT}, {sIT}, 1"); e(f"s_cmp_lt_u32 {sIT}, 6"); e("s_cbranch_scc1 L1_loopB")
    x30, x31 = {}, {}
    if E3:
        fl4 = next(K2)
        for k, o in enumerate(fl4[0]): x30.setdefault(OPT["e30"] + 2 * k, []).append(o)
        for k, o in enumerate(fl4[1] + fl4[2]): x31.setdefault(OPT["e31"] + 2 * k, []).append(o)
    if OPT["tlbw"] == 1:
        for g, o in tlb_ops(OPT["tlbg"]).items(): x30[g] = o + x30.get(g, [])
    tileB(0, dma=False, adv=False, vm=16, extra=x30)
    tileB(1, dma=False, adv=False, vm=8 if E3 else 0, nok=True, extra=x31)
    stamp(a, 4)
    for g, j, op in tail: sm_op(j, op)
    e("s_nop 1")
    def lsum_ops(j):
        sp = "s[98:99]" if j == 0 else "s[100:101]"
        ops = xlane("v_add_f32", vl[j], vt[1]) + [lambda: e(f"v_cmp_ngt_f32 {sp}, {sTHR}, {vl[j]}"), lambda: e(f"v_rcp_f32 {R2(j)[0]}, {vl[j]}"),
                                                  lambda: e(f"v_rcp_f32 {R2(j)[1]}, {vl[j]}")]
        if j: ops.append(lambda: e("s_or_b64 s[98:99], s[98:99], s[100:101]"))
        return ops
    G = Gaps()
    G.spread([(o, 4) for j in range(2) for o in lsum_ops(j)], list(range(0, 8)))
    G.run(PVg(5))
    for j in range(2, 6):
        for o in lsum_ops(j): o()
    e("s_cmp_lg_u64 s[98:99], 0"); e(f"s_cselect_b32 {sT0}, 1, 0"); e(f"s_andn2_b32 {sT0}, {sT0}, {sPass}")
    if OPT["bnoc"]: e(f"s_mov_b32 {sT0}, 0")
    e(f"v_mov_b32 {vt[1]}, {sT0}"); e(f"ds_write_b32 {vFL}, {vt[1]}"); a.lds.append(set())
    if F4:
        e(f"v_readfirstlane_b32 s93, {vTag}"); e(f"s_or_b32 s93, s93, {sW}"); e("s_cbranch_scc0 L1_tagslow")
        a.label("L1_tagok")
        e(f"ds_write_b32 {vFL}, {vTag} offset:16"); a.lds.append(set())
    ostf = (" " + OPT["ost"].replace("+", " ")) if OPT["ost"] else ""
    fill = []
    cnt = [0]
    def ev(t):
        e(t); cnt[0] += 1
        if fill and cnt[0] % (OPT["fint"] if F4 else 3) == 0: fill.pop(0)()
    for j in range(6):
        if j == 1:
            a.wait(lgkm=0, vm=None if E3 else 4); e("s_barrier")
            if F4: vZ = V(244, 4)
            e(f"v_and_b32 {vt[0]}, 0xfffffff0, {vFL}"); a.ds_read_b128(vZ, vt[0], 0)
            if F4: e(f"ds_read_b32 {vTag}, {vt[0]} offset:16"); a.lds.append(vTag.regs())
        if j == 2:
            a.wait(lgkm=0)
            e(f"v_or3_b32 {vt[0]}, {vZ[0]}, {vZ[1]}, {vZ[2]}"); e(f"v_or_b32 {vt[0]}, {vt[0]}, {vZ[3]}"); e("s_nop 0")
            e(f"v_readfirstlane_b32 {sT1}, {vt[0]}"); e(f"s_cmp_lg_u32 {sT1}, 0")
            if not (OPT["only01"] or OPT["bnoc"] or OPT["kvskip"] or OPT["askip"]): e("s_cbranch_scc1 L1_fallback")
            if K2 and OPT["fuse"] < 3: next(K2); fill = next(K2)
            if E3: next(K2); fill = [] if OPT["w3l"] else fl4[3]
            elif F4:
                fl4 = next(K2)
                if OPT["fo"] == 2: fill = fl4
            if OPT["fuse"] == 3:
                e(f"s_mov_b32 {SRDWO[0]}, s18"); e(f"s_mov_b32 {SRDWO[1]}, s19"); e(f"s_mov_b32 {SRDWO[2]}, {FLOFF + 65536}"); e(f"s_mov_b32 {SRDWO[3]}, 0x20000")
                e(f"s_lshl_b32 {sT1}, {sB}, 12"); e(f"s_lshl_b32 {sT2}, {sHP}, 2"); e(f"s_add_u32 {sT1}, {sT1}, {sT2}"); e(f"s_add_u32 {sP1}, {sT1}, {FLOFF}")
                e(f"v_lshlrev_b32 {vTA}, 8, {vLane}"); e(f"v_mov_b32 {vTD}, 0x5eedf1a6")
        if E3 and j == OPT["pj"]: next(K2)
        e(f"s_add_u32 {sT0}, {sOO}, {j * 131072}")
        for m in range(4):
            T = V(208 + 8 * (m % 2), 8); D = V(224 + 4 * (m % 2), 4)
            for i in range(8): ev(f"v_accvgpr_read_b32 {T[i]}, {OA(2 * m + (i >> 2), j)[i & 3]}")
            for i in range(4): ev(f"v_pk_mul_f32 {T[2*i:2*i+2]}, {T[2*i:2*i+2]}, {R2(j)}")
            for i in range(4): ev(f"v_cvt_pk_bf16_f32 {D[i]}, {T[2*i]}, {T[2*i+1]}")
            a.bstore(D, vOS, SRDO, sT0, m * 1024, ostf)
        if F4: zm4[2 * j](); zm4[2 * j + 1]()
    assert not fill
    if E3 and OPT["tp"]:
        def signal(t):
            e("s_barrier")
            e(f"s_cmp_lg_u32 {sW}, 0"); e(f"s_cbranch_scc1 L1_nosig{t}")
            e("s_mov_b64 exec, 0xffff")
            e(f"buffer_store_dword v38, v179, {SRDF}, {sFLO} offen sc1")
            e("s_mov_b64 exec, -1")
            a.label(f"L1_nosig{t}")
        K2.send((signal, fl4[3] if OPT["w3l"] else [], lambda: stamp(a, 5), lambda: dump_stamps(a, 6, 0x4000000, sW, vt[0], vt[1], last=False)))
    elif F4:
        e(f"v_lshlrev_b32 v179, 8, {vLane}")
        if OPT["fo"] == 0:
            for o in fl4: o()
        if not E3: next(K2)
        a.wait(vm=32 if OPT["fo"] == 0 else 0); e("s_barrier")
        stamp(a, 5)
        e(f"s_cmp_lg_u32 {sW}, 0"); e("s_cbranch_scc1 L1_nosig")
        e("s_mov_b64 exec, 0xffff")
        e(f"buffer_store_dword v38, v179, {SRDF}, {sFLO} offen sc1")
        e("s_mov_b64 exec, -1")
        a.label("L1_nosig")
        if E3 and OPT["pj"] == 6: next(K2)
        if E3 and OPT["w3l"]:
            for o in fl4[3]: o()
        if E3 and OPT["pj"] == 6: a.wait(vm=8 if OPT["w3l"] else 0)
        K2.send(lambda: dump_stamps(a, 6, 0x4000000, sW, vt[0], vt[1], last=False))
    if F4: pass
    elif OPT["fuse"] == 3:
        a.wait(vm=0); e("s_barrier")
        stamp(a, 5)
        e(f"s_cmp_lg_u32 {sW}, 0"); e("s_cbranch_scc1 L1_nosig")
        e("s_mov_b64 exec, 0xffff")
        e(f"buffer_store_dword {vTD}, {vTA}, {SRDWO}, {sP1} offen sc1")
        e("s_mov_b64 exec, -1")
        a.label("L1_nosig")
        next(K2); fill = next(K2)
        K2.send((fill, lambda: dump_stamps(a, 6, 0x4000000, sW, vt[0], vt[1], last=False)))
    elif K2:
        stamp(a, 5)
        K2.send((sB, lambda: dump_stamps(a, 6, 0x4000000, sW, vt[0], vt[1], last=False)))
    else:
        dump_stamps(a, 6, 0x4000000, sW, vt[0], vt[1])
    a.label("L1_end"); e("s_endpgm")
    if F4:
        next(K2)
        a.label("L1_tagslow")
        e("s_mov_b32 s75, 0")
        a.label("L1_tagloop")
        e("s_sleep 8"); e(f"buffer_load_dword {vTag}, {vZero}, {SRDD}, 0 offen sc1"); e("s_waitcnt vmcnt(0)")
        e(f"v_readfirstlane_b32 s93, {vTag}"); e("s_add_u32 s75, s75, 1"); e("s_cmp_lg_u32 s93, 0"); e("s_cbranch_scc1 L1_tagok")
        e("s_cmp_lt_u32 s75, 0x40000"); e("s_cbranch_scc1 L1_tagloop")
        e("s_branch L1_tagok")
    a.label("L1_fallback")
    a.lds = []; a.vm = []
    e("s_waitcnt vmcnt(0) lgkmcnt(0)"); e("s_barrier")
    e(f"s_mov_b32 {sPass}, 1"); e(f"s_mov_b32 {SRDKV[2]}, {NR}")
    for q in range(6): e(f"v_mov_b32 {vl[q]}, 0xff800000")
    e(f"s_mov_b32 {sKVO}, 0"); e(f"s_mov_b32 {sKVO2}, 4096"); e(f"s_mov_b32 {sIT}, 0")
    a.label("L1_fb_loop")
    for o in dma_kv(sM0KV): o()
    e("s_waitcnt vmcnt(0)"); e("s_barrier")
    for n in range(8):
        for pi in range(2): rdK(n, pi, 0)()
    for f in sm: f()
    e("s_nop 15")
    for j in range(6):
        for o in rowmax_ops(j, vt[0], vt[1]): o()
        e(f"v_max_f32 {vl[j]}, {vl[j]}, {vt[0]}")
    e("s_barrier")
    e(f"s_add_u32 {sIT}, {sIT}, 1"); e(f"s_cmp_lt_u32 {sIT}, 32"); e("s_cbranch_scc1 L1_fb_loop")
    e(f"s_mov_b32 {sKVO}, {sKV0}"); e(f"s_add_u32 {sKVO2}, {sKVO}, 4096")
    for t in range(4):
        e(f"s_add_u32 {sT0}, {sM0KV}, {t * 16384}")
        for o in dma_kv(sT0): o()
    for o in dma_kv(sS): o()
    for o in x5_ops(): o()
    e(f"s_mov_b32 {sSL[0]}, {sSL0}")
    for j in range(6):
        for o in negfill_ops(j, vl[j]): o()
        e(f"v_mov_b32 {vl[j]}, 0")
    if not F4:
        for i in range(4): e(f"v_mov_b32 {vZ[i]}, 0")
    for o in init: o()
    e("s_nop 1")
    for f in (zm4 if F4 else zm): f()
    stream_init()
    e("s_waitcnt vmcnt(0)"); e("s_barrier")
    for n in range(8):
        for pi in range(2): rdK(n, pi, 0)()
    e("s_waitcnt lgkmcnt(0)"); e("s_nop 15")
    e("s_branch L1_tile0")
    return a.text()

def kernel2(a):
    fused = a is not None
    if not fused: a = Asm()
    e = a.e
    SRDWO, SRDOW, SRDOUT, SRDDBG = S(20, 4), S(24, 4), S(28, 4), S(80, 4)
    sW, sRB, sCB, sT0, sT1, sT2, sIT = S(36), S(46), S(47), S(48), S(49), S(50), S(45)
    sWOo, sOo, sM0 = S(76), S(77), S(78)
    vLane = V(1); vt = [V(i) for i in range(2, 10)]
    wa = [V(10 + k) for k in range(8)]
    wv = [V(18 + k) for k in range(8)]
    ov = [V(26 + k) for k in range(6)]
    ra = [V(32 + k) for k in range(3)]
    vRW, vOut = V(35), V(36)
    AC = lambda i, j: A(4 * (j * 8 + i), 4)
    AF = lambda i: V(40 + 4 * i, 4)
    BF = lambda sl, j: V(72 + 24 * sl + 4 * j, 4)
    REG = 36864
    osc = " sc1" if (fused and OPT["osc"]) else ""
    F4 = fused and OPT["fuse"] == 4
    if F4:
        sT2, sM0 = S(75), S(74)
        vt[0] = V(4)
        SRDF, sCL, sMK, sPC, vPD, vTg, vPA = S(84, 4), S(79), S(50), S(75), V(37), V(38), V(39)
    E3 = F4 and OPT["fo"] == 3
    if E3: sCL = S(92); REG = 8192
    TP = E3 and OPT["tp"]
    SLB = [131072, 32768, 98304, 0] if E3 else [0, 8192, 16384, 24576]
    wl = [V(168 + k) for k in range(8)]; rw = [V(176 + k) for k in range(3)]
    mark0 = len(a.out)
    if not fused:
        a.k2 = 1
        a.label("mha_oproj_kernel")
        e("s_cmp_ge_u32 s2, 256"); e("s_cbranch_scc1 L2_end")
        e("s_load_dwordx16 s[4:19], s[0:1], 0")
        e(f"v_lshrrev_b32 {vt[0]}, 6, v0"); e(f"v_and_b32 {vLane}, 63, v0")
        e(f"v_readfirstlane_b32 {sW}, {vt[0]}")
    e(f"s_and_b32 {sT2}, s2, 7"); e(f"s_lshr_b32 {sT0}, s2, 3")
    if OPT["map2"] in (0, 2):
        e(f"s_lshr_b32 {sT1}, {sT2}, 1"); e(f"s_lshl_b32 {sT1}, {sT1}, 3"); e(f"s_and_b32 {sRB}, {sT0}, 7")
        e(f"s_add_u32 {sRB}, {sT1}, {sRB}")
        e(f"s_and_b32 {sT1}, {sT2}, 1"); e(f"s_lshl_b32 {sT1}, {sT1}, 2"); e(f"s_lshr_b32 {sCB}, {sT0}, 3"); e(f"s_add_u32 {sCB}, {sCB}, {sT1}")
        if OPT["map2"] == 2:
            e(f"s_lshl_b32 {sCB}, {sCB}, 2"); e(f"s_lshr_b32 {sCB}, {OPT['cbtab']}, {sCB}"); e(f"s_and_b32 {sCB}, {sCB}, 7")
    else:
        e(f"s_lshl_b32 {sT1}, {sT2}, 2"); e(f"s_and_b32 {sT2}, {sT0}, 3"); e(f"s_add_u32 {sRB}, {sT1}, {sT2}")
        e(f"s_lshr_b32 {sCB}, {sT0}, 2")
        if OPT["cbrot"]: e(f"s_add_u32 {sCB}, {sCB}, {OPT['cbrot']}"); e(f"s_and_b32 {sCB}, {sCB}, 7")
    t0, t1, t2, t3 = wa[:4]
    e(f"v_lshrrev_b32 {t2}, 4, {vLane}"); e(f"v_and_b32 {t1}, 15, {vLane}")
    e(f"v_lshlrev_b32 {t3}, 1, {t2}"); e(f"v_xor_b32 {t1}, {t1}, {t3}")
    e(f"v_lshlrev_b32 {t0}, 11, {t2}"); e(f"v_lshl_add_u32 {wv[0]}, {t1}, 4, {t0}")
    e(f"v_xor_b32 {t1}, 128, {wv[0]}")
    for m in range(1, 8): e(f"v_add_u32 {wv[m]}, {m * 8192 - (m % 4) * 1024}, {t1 if m & 1 else wv[0]}")
    if OPT["wvx"] == 1:
        e(f"v_and_b32 {t1}, 15, {vLane}"); e(f"v_lshlrev_b32 {t0}, 14, {t2}"); e(f"v_lshl_add_u32 {wv[0]}, {t1}, 4, {t0}")
        for m in range(1, 8): e(f"v_add_u32 {wv[m]}, {m * 2048 - (m % 4) * 1024}, {wv[0]}")
    if OPT["wvx"] == 5:
        e(f"v_and_b32 {t1}, 15, {vLane}"); e(f"v_lshlrev_b32 {t0}, 12, {t2}"); e(f"v_lshl_add_u32 {wv[0]}, {t1}, 4, {t0}")
        for m in range(1, 8): e(f"v_add_u32 {wv[m]}, {((m & 1) + 8 * (m >> 1)) * 2048 - (m % 4) * 1024}, {wv[0]}")
    if OPT["wvx"] == 6:
        e(f"v_and_b32 {t1}, 15, {vLane}"); e(f"v_lshlrev_b32 {t0}, 13, {t2}"); e(f"v_lshl_add_u32 {wv[0]}, {t1}, 4, {t0}")
        for m in range(1, 8): e(f"v_add_u32 {wv[m]}, {((m & 3) + 16 * (m >> 2)) * 2048 - (m % 4) * 1024}, {wv[0]}")
    if OPT["wvx"] in (7, 8, 9):
        r_ = {7: 0, 8: 2, 9: 2}[OPT["wvx"]]
        e(f"s_add_u32 {sT0}, {sCB}, {r_}"); e(f"s_and_b32 {sT0}, {sT0}, 7"); e(f"s_add_u32 {sT0}, {sT0}, 8"); e(f"s_sub_u32 {sT0}, {sT0}, {sCB}"); e(f"s_lshl_b32 {sT0}, {sT0}, 7")
        e(f"v_bfe_u32 {t1}, {vLane}, 3, 1"); e(f"v_mul_lo_u32 {t1}, {t1}, {sT0}"); e(f"v_and_b32 {t3}, 7, {vLane}"); e(f"v_lshl_add_u32 {t1}, {t3}, 4, {t1}")
        e(f"s_lshl_b32 {sT0}, {sCB}, 7"); e(f"s_sub_u32 {sT0}, 4096, {sT0}"); e(f"v_add_u32 {t1}, {sT0}, {t1}")
        e(f"v_lshlrev_b32 {t0}, {14 if OPT['wvx'] == 9 else 11}, {t2}"); e(f"v_add_u32 {wv[0]}, {t1}, {t0}")
        for m in range(1, 8): e(f"v_add_u32 {wv[m]}, {m * (2048 if OPT['wvx'] == 9 else 8192) - (m % 4) * 1024}, {wv[0]}")
    if OPT["wvx"] == 2:
        e(f"v_and_b32 {t1}, 7, {vLane}"); e(f"v_lshrrev_b32 {t0}, 3, {vLane}"); e(f"v_lshlrev_b32 {t0}, 11, {t0}"); e(f"v_lshl_add_u32 {wv[0]}, {t1}, 4, {t0}")
        for m in range(1, 8): e(f"v_add_u32 {wv[m]}, {(m >> 1) * 16384 + (m & 1) * 128 - (m % 4) * 1024 + 4096}, {wv[0]}")
        e(f"v_add_u32 {wv[0]}, 4096, {wv[0]}")
    if OPT["wvx"] == 3:
        e(f"v_and_b32 {t1}, 15, {vLane}"); e(f"v_lshlrev_b32 {t0}, 11, {t2}"); e(f"v_lshl_add_u32 {wv[0]}, {t1}, 4, {t0}")
        for m in range(1, 8): e(f"v_add_u32 {wv[m]}, {m * 8192 - (m % 4) * 1024}, {wv[0]}")
    if OPT["wvx"] == 4:
        e(f"v_lshlrev_b32 {wv[0]}, 4, {vLane}"); e(f"s_mul_i32 {sT0}, {sCB}, {8192 - 256}"); e(f"v_add_u32 {wv[0]}, {sT0}, {wv[0]}")
        for m in range(1, 8): e(f"v_add_u32 {wv[m]}, {m * 1024 - (m % 4) * 1024}, {wv[0]}")
    e(f"s_mul_i32 {sM0}, {sW}, {REG}")
    e(f"s_lshl_b32 {sWOo}, {sW}, {20 if OPT['sig'] else 21}"); e(f"s_lshl_b32 {sOo}, {sW}, 15")
    def ovs():
        e(f"s_mul_i32 {sT0}, {sRB}, 786432"); e(f"v_lshlrev_b32 {vt[0]}, 4, {vLane}")
        e(f"v_add_u32 {ov[0]}, {sT0}, {vt[0]}")
        for j in range(1, 6): e(f"v_add_u32 {ov[j]}, {j * 131072}, {ov[0]}")
    if not fused:
        ovs()
        e("s_waitcnt lgkmcnt(0)")
        stamp(a, 0)
    e(f"s_lshl_b32 {sT0}, {sCB}, 8")
    e(f"s_add_u32 {SRDWO[0]}, s12, {sT0}"); e(f"s_addc_u32 {SRDWO[1]}, s13, 0")
    e(f"s_sub_u32 {SRDWO[2]}, 8388608, {sT0}"); e(f"s_mov_b32 {SRDWO[3]}, 0x20000")
    e(f"s_mov_b32 {SRDOW[0]}, s18"); e(f"s_mov_b32 {SRDOW[1]}, s19")
    e(f"s_mov_b32 {SRDOW[2]}, 25165824"); e(f"s_mov_b32 {SRDOW[3]}, 0x20000")
    if OPT["k2skip"] & 1: e(f"s_mov_b32 {SRDWO[2]}, 0")
    if OPT["k2skip"] & 2: e(f"s_mov_b32 {SRDOW[2]}, 0")
    def issue_w(slot):
        ops = []
        for h in range(2):
            ops.append(lambda h=h: e(f"s_add_u32 m0, {sM0}, {SLB[slot] + h * 4096}"))
            for m in range(4): ops.append(lambda m=m, h=h: a.dma(wv[4 * h + m], SRDWO, sWOo, m * 1024, tag=("w", slot)))
        ops.append(lambda: e(f"s_add_u32 {sWOo}, {sWOo}, 65536"))
        return ops
    def issue_o(slot):
        ops = [(lambda j=j: a.bload(BF(slot, j), ov[j], SRDOW, sOo, 0, osc)) for j in range(6)]
        ops.append(lambda: e(f"s_add_u32 {sOo}, {sOo}, 1024"))
        return ops
    def run(ops):
        for o in ops:
            n = len(a.out); o()
            if "m0" in a.out[-1]: e("s_nop 0")
    def wa_setup():
        e(f"v_lshrrev_b32 {vg}, 4, {vLane}"); e(f"v_lshrrev_b32 {vr}, 2, {vLane}"); e(f"v_and_b32 {vc}, 3, {vLane}")
        e(f"v_and_b32 {u1}, 7, {vr}"); e(f"v_lshlrev_b32 {u0}, 8, {vr}")
        e(f"v_add_u32 {u0}, {sM0}, {u0}"); e(f"v_lshl_add_u32 {u0}, {vc}, 3, {u0}"); e(f"v_lshl_add_u32 {u0}, {u1}, 5, {u0}")
        if E3: e(f"v_add_u32 {u0}, 98304, {u0}")
        for d in range(4):
            e(f"s_add_u32 {sT0}, {sW}, {d}"); e(f"s_and_b32 {sT0}, {sT0}, 3"); e(f"s_lshl_b32 {sT0}, {sT0}, 6")
            e(f"v_xor_b32 {wa[2*d]}, {sT0}, {u0}"); e(f"v_xor_b32 {wa[2*d+1]}, 32, {wa[2*d]}")
    vg, vr, vc, u0, u1 = vt[3:8]
    if F4:
        ovs(); wa_setup()
        for i in range(4): e(f"v_mov_b32 v{252 + i}, 0")
        def scl():
            e(f"s_lshr_b32 {sT0}, {sRB}, 1"); e(f"s_lshl_b32 {sT0}, {sT0}, 4"); e(f"s_lshl_b32 {sT1}, {sCB}, 1"); e(f"s_add_u32 {sT0}, {sT0}, {sT1}")
            e(f"s_and_b32 {sT1}, {sRB}, 1"); e(f"s_add_u32 {sT0}, {sT0}, {sT1}"); e(f"s_lshl_b32 {sT0}, {sT0}, 8"); e(f"s_lshl_b32 {sT1}, {sW}, 4")
            e(f"s_add_u32 {sT0}, {sT0}, {sT1}"); e(f"s_add_u32 {sCL}, {sT0}, {FLOFF}")
        if E3: scl()
        lines = [t[1:] for t in a.out[mark0:]]; del a.out[mark0:]
        units = []
        for t in lines:
            if t.startswith(("s_addc", "s_cselect")): units[-1].append(t)
            else: units.append([t])
        yield units
        fills = issue_w(0) + issue_w(1) + issue_w(2) + issue_w(3)
        if E3: yield [[(lambda o=o: run([o])) for o in issue_w(k)] for k in range(4)]
        else:
            yield [(lambda o=o: run([o])) for o in fills]
            scl()
        e(f"v_and_b32 {vPA}, 3, {vLane}"); e(f"v_lshlrev_b32 {vPA}, 2, {vPA}"); e(f"v_mov_b32 {vTg}, v63")
        e(f"s_mov_b32 {sPC}, 0"); e(f"s_mov_b32 {sMK}, 1")
        if E3:
            for k in range(8): e(f"v_add_u32 {wl[k]}, 0xfffe8000, {wa[k]}")
            if TP: e(f"v_lshlrev_b32 v179, 8, {vLane}"); e("s_mov_b32 s93, 0")
            yield None
            e(f"buffer_load_dword {vPD}, {vPA}, {SRDF}, {sCL} offen sc1"); a.vm.append(vPD.regs())
        dump1 = yield None
        if TP:
            signal, w3ops, st5, dump1 = dump1
            a.wait_for(vPD); st5()
        a.k2 = 1; stamp(a, 0)
        if not E3: e(f"buffer_load_dword {vPD}, {vPA}, {SRDF}, {sCL} offen sc1")
        if OPT["fo"] == 1: run(fills)
    elif fused:
        yield None
        sB1, dump1 = yield issue_w(0) + issue_w(1) + issue_w(2) + issue_w(3)
        if OPT["fuse"] == 3:
            vTag, vPA, vPD = V(61), V(60), V(59)
            a.k2 = 1; stamp(a, 0)
            e(f"s_lshr_b32 {sT0}, {sRB}, 1"); e(f"s_lshl_b32 {sT0}, {sT0}, 4"); e(f"s_lshl_b32 {sT1}, {sCB}, 1"); e(f"s_add_u32 {sT0}, {sT0}, {sT1}")
            e(f"s_and_b32 {sT1}, {sRB}, 1"); e(f"s_add_u32 {sT0}, {sT0}, {sT1}"); e(f"s_lshl_b32 {sT0}, {sT0}, 8"); e(f"s_add_u32 s39, {sT0}, {FLOFF}")
            e(f"v_and_b32 {vPA}, 15, {vLane}"); e(f"v_lshlrev_b32 {vPA}, 2, {vPA}")
            e(f"s_cmp_lg_u32 {sW}, 0"); e("s_cbranch_scc1 L2_np0")
            e(f"buffer_load_dword {vPD}, {vPA}, {SRDDBG}, s39 offen sc1")
            a.label("L2_np0")
            run(sB1)
        ovs()
    else:
        run(issue_w(0)); run(issue_o(0)); run(issue_w(1)); run(issue_o(1))
        if OPT["codepf"]: code_prefetch(a, vLane, V(173), V(172), "mha_oproj_kernel", 16384, sW)
        run(issue_w(2)); run(issue_o(2)); run(issue_w(3))
    t0 = vt[0]
    mark1 = len(a.out)
    e(f"s_mov_b32 {SRDOUT[0]}, s14"); e(f"s_mov_b32 {SRDOUT[1]}, s15")
    e(f"s_mov_b32 {SRDOUT[2]}, 6291456"); e(f"s_mov_b32 {SRDOUT[3]}, 0x20000")
    e(f"v_add_u32 {vRW}, {sM0}, {t0}")
    RB = [0, 32768, 98304]
    if E3: e(f"v_add_u32 {rw[1]}, {RB[1]}, {vRW}"); e(f"v_add_u32 {rw[2]}, {RB[2]}, {vRW}"); rw[0] = vRW
    for d in range(1, 4):
        e(f"s_sub_u32 {sT0}, {sW}, {d}"); e(f"s_and_b32 {sT0}, {sT0}, 3"); e(f"s_mul_i32 {sT0}, {sT0}, {REG}")
        e(f"s_add_u32 {sT0}, {sT0}, {RB[d - 1] if E3 else (d - 1) * 12288}"); e(f"v_add_u32 {ra[d-1]}, {sT0}, {t0}")
    if not F4: wa_setup()
    e(f"s_mul_i32 {sT0}, {sRB}, 196608"); e(f"s_lshl_b32 {sT1}, {sCB}, 8"); e(f"s_add_u32 {sT0}, {sT0}, {sT1}")
    e(f"s_lshl_b32 {sT1}, {sW}, 6"); e(f"s_add_u32 {sT0}, {sT0}, {sT1}")
    e(f"v_and_b32 {u1}, 15, {vLane}"); e(f"v_lshlrev_b32 {vOut}, 11, {u1}"); e(f"v_add_u32 {vOut}, {sT0}, {vOut}")
    e(f"v_and_b32 {u1}, 1, {vg}"); e(f"v_lshl_add_u32 {vOut}, {u1}, 5, {vOut}")
    e(f"v_lshrrev_b32 {u1}, 1, {vg}"); e(f"v_lshl_add_u32 {vOut}, {u1}, 4, {vOut}")
    vZ = V(168, 4)
    if not F4:
        for i in range(4): e(f"v_mov_b32 {vZ[i]}, 0")
        e("s_nop 1")
        for k in range(12): e(f"v_mfma_f32_32x32x16_bf16 {A(16 * k, 16)}, {vZ}, {vZ}, 0")
    def rdA(slot, i):
        if E3: return [(lambda u=u: a.ds_read_tr(AF(i)[2 * u:2 * u + 2], (wl if slot & 1 else wa)[i], (32768 if slot < 2 else 0) + u * 4096)) for u in range(2)]
        return [(lambda u=u: a.ds_read_tr(AF(i)[2 * u:2 * u + 2], wa[i], slot * 8192 + u * 4096)) for u in range(2)]
    late2 = []
    if E3: late2 = a.out[mark1:]; del a.out[mark1:]
    def chk(n):
        e(f"v_cmp_ne_u32 vcc, {vPD}, {vTg}"); e(f"s_and_b32 {sT0}, vcc_lo, {sMK}"); e(f"s_cbranch_scc1 L2_slow{n}")
        a.label(f"L2_back{n}")
    if TP:
        chk(0)
        stamp(a, 1)
        run(issue_o(0)); run(issue_o(1)); run(issue_o(2))
        n3 = 8 if w3ops else 0
        for o in w3ops: o()
        for i in range(7):
            for r in rdA(0, i): r()
        a.out += late2
        e("s_cmp_lg_u32 s93, 0"); e("s_cbranch_scc1 L2_sigd")
        e(f"s_waitcnt vmcnt({18 + n3})"); signal("a")
        a.label("L2_sigd")
        a.wait(vm=6 + n3)
        stamp(a, 2)
    elif F4:
        if not E3: a.wait(vm=32 if OPT["fo"] == 1 else 0)
        chk(0)
        stamp(a, 1)
        run(issue_o(0)); run(issue_o(1)); run(issue_o(2))
        if not E3: a.wait(vm=18 + 24)
        for i in range(7):
            for r in rdA(0, i): r()
        a.out += late2
        a.wait(vm=6)
        stamp(a, 2)
    elif fused and OPT["fuse"] == 3:
        stamp(a, 1)
        e(f"s_mov_b32 {sIT}, 0")
        e(f"s_cmp_lg_u32 {sW}, 0"); e("s_cbranch_scc1 L2_skip")
        e("s_waitcnt vmcnt(32)")
        e("s_branch L2_chk")
        a.label("L2_poll")
        e(f"s_sleep {OPT['psleep']}")
        e(f"buffer_load_dword {vPD}, {vPA}, {SRDDBG}, s39 offen sc1")
        e("s_waitcnt vmcnt(0)")
        a.label("L2_chk")
        e(f"v_cmp_ne_u32 vcc, {vPD}, {vTag}"); e(f"s_add_u32 {sIT}, {sIT}, 1")
        e("s_cbranch_vccz L2_skip")
        e(f"s_cmp_lt_u32 {sIT}, 0x40000"); e("s_cbranch_scc1 L2_poll")
        a.label("L2_skip")
        e("s_barrier")
        stamp(a, 2)
        run(issue_o(0)); run(issue_o(1)); run(issue_o(2))
        a.wait_for(("w", 0))
        for i in range(7):
            for r in rdA(0, i): r()
        a.wait(vm=6)
        stamp(a, 3)
    elif fused:
        e(f"s_mov_b32 {SRDDBG[0]}, s16"); e(f"s_mov_b32 {SRDDBG[1]}, s17"); e(f"s_mov_b32 {SRDDBG[2]}, 256"); e(f"s_mov_b32 {SRDDBG[3]}, 0x20000")
        e(f"s_lshl_b32 {sT0}, {sB1}, 4"); e(f"s_lshr_b32 {sT1}, {sRB}, 1"); e(f"s_lshl_b32 {sT1}, {sT1}, 4")
        if OPT["fuse"] == 2: e(f"s_mov_b32 {sT0}, 0"); e(f"s_mov_b32 {sT1}, 0")
        e(f"v_mov_b32 {vt[0]}, 1"); e(f"v_mov_b32 {vt[1]}, 0"); e(f"s_mov_b32 {sIT}, 0")
        a.k2 = 1; stamp(a, 0)
        a.wait(vm=0); e("s_barrier")
        stamp(a, 1)
        e(f"s_cmp_lg_u32 {sW}, 0"); e("s_cbranch_scc1 L2_skip")
        e("s_mov_b64 exec, 1")
        e(f"buffer_atomic_add {vt[0]}, {vt[1]}, {SRDDBG}, {sT0} offen sc1")
        a.label("L2_poll")
        e(f"buffer_load_dword {vt[2]}, {vt[1]}, {SRDDBG}, {sT1} offen sc1")
        e("s_waitcnt vmcnt(0)")
        e(f"v_readfirstlane_b32 {sT2}, {vt[2]}"); e(f"s_add_u32 {sIT}, {sIT}, 1")
        e(f"s_cmp_ge_u32 {sT2}, {256 if OPT['fuse'] == 2 else 16}"); e("s_cbranch_scc1 L2_go")
        e(f"s_sleep {OPT['psleep']}")
        e(f"s_cmp_lt_u32 {sIT}, 0x40000"); e("s_cbranch_scc1 L2_poll")
        a.label("L2_go")
        e("s_mov_b64 exec, -1")
        a.label("L2_skip")
        for i in range(7):
            for r in rdA(0, i): r()
        e("s_barrier")
        stamp(a, 2)
        run(issue_o(0)); run(issue_o(1)); run(issue_o(2))
        a.wait(vm=0)
        stamp(a, 3)
    else:
        a.wait_for(("w", 0))
        stamp(a, 1)
        for i in range(7):
            for r in rdA(0, i): r()
    e(f"s_mov_b32 {sIT}, 0")
    PEEL = E3 and OPT["peel"]
    def red_w(i, j):
        d, b = i >> 1, i & 1
        c = (d - 1) * 12 + j * 2 + b
        a.ds_write_b128(rw[d - 1], AC(i, j), (c >> 3) * 32768 - RB[d - 1] + (c & 7) * 1024)
    def body(last=False):
        for u in range(4):
            G = Gaps()
            order = [(i, j) for i in ([2, 3, 4, 5, 6, 7, 0, 1] if last and u == 3 else range(8)) for j in range(6)]
            mf = [(lambda i=i, j=j: a.mfma16(AC(i, j), AF(i), BF(u, j), AC(i, j))) for i, j in order]
            m0_ = mf[0]; mf[0] = lambda m0_=m0_: (a.wait_for(BF(u, 5), lgkm=2), m0_())
            for k, r in enumerate(rdA(u, 7)): G.mem(k, r)
            if last and u == 3:
                G.mem(5, lambda: a.wait(lgkm=0))
                for k, (i, j) in enumerate(order[:36]): G.mem(k + OPT["pdl"], lambda i=i, j=j: red_w(i, j))
                G.run(mf)
                continue
            G.mem(5, lambda: a.wait_for(("w", (u + 1) % 4), lgkm=0))
            for i in range(7):
                for k, r in enumerate(rdA((u + 1) % 4, i)): G.mem(6 * i + 6 + k, r)
            ops = issue_w(u) + issue_o((u + 3) % 4)
            if last: ops = issue_o(3) if u == 0 else []
            if u == 0 and not PEEL: G.mem(3, lambda: (e(f"s_cmp_eq_u32 {sIT}, 7"), e(f"s_cselect_b32 {SRDWO[2]}, 0, {SRDWO[2]}")))
            if u == 1 and not PEEL: G.mem(3, lambda: (e(f"s_cmp_eq_u32 {sIT}, 7"), e(f"s_cselect_b32 {SRDOW[2]}, 0, {SRDOW[2]}")))
            if F4 and u == 0 and not last: G.mem(4, lambda: (e(f"s_add_u32 {sT1}, {sIT}, 3"), e(f"s_lshr_b32 {sT1}, {sT1}, 1"), e(f"s_bfm_b32 {sMK}, {sT1}, 0")))
            if F4 and u == 1 and not last: G.mem(4, lambda: (a.wait_for(vPD), chk(1)))
            if OPT["sig"] and u == 0 and not last: G.mem(2, lambda: (e(f"s_cmp_eq_u32 {sIT}, 3"), e(f"s_cselect_b32 {sT1}, {6 * 524288}, 0"), e(f"s_add_u32 {sWOo}, {sWOo}, {sT1}")))
            if F4 and u == OPT["pollu"] and not last: ops = ops + [lambda: a.bload(vPD, vPA, SRDF, sCL, 0, " sc1")]
            free = [g for i in range(1, 8) for g in range(6 * i + 2, 6 * i + 6)]
            if last: free = free[:12]
            for o, g in zip(ops, [free[(k * len(free)) // len(ops)] for k in range(len(ops))]): G.mem(g, o)
            G.run(mf)
    mark = len(a.out)
    body(); body(); sl, sv = list(a.lds), list(a.vm)
    del a.out[mark:]
    a.lds, a.vm = list(sl), list(sv)
    a.label("L2_loop")
    body()
    assert a.lds == sl and a.vm == sv, (a.vm, sv)
    e(f"s_add_u32 {sIT}, {sIT}, 1"); e(f"s_cmp_lt_u32 {sIT}, {7 if PEEL else 8}"); e("s_cbranch_scc1 L2_loop")
    if PEEL: body(True)
    else: a.wait(vm=0, lgkm=0)
    if not fused: stamp(a, 2); stamp(a, 3)
    if F4: stamp(a, 3)
    stamp(a, 4)
    if OPT["peel"] < 2: e("s_nop 7")
    for d in range(1, 4):
        for j in range(6):
            for b in range(2):
                c = (d - 1) * 12 + j * 2 + b
                if PEEL: continue
                if E3: a.ds_write_b128(rw[d - 1], AC(2 * d + b, j), (c >> 3) * 32768 - RB[d - 1] + (c & 7) * 1024)
                else: a.ds_write_b128(vRW, AC(2 * d + b, j), c * 1024)
    R = lambda b, j: V(40 + 8 * j + 4 * b, 4)
    def accr():
        for j in range(6):
            for b in range(2):
                for i in range(4): e(f"v_accvgpr_read_b32 {R(b, j)[i]}, {AC(b, j)[i]}")
    if OPT["peel"] < 2: accr()
    a.wait(lgkm=0); e("s_barrier")
    T = lambda d, b, j: V(96 + 48 * d + 8 * j + 4 * b, 4)
    for j in range(6):
        for d in range(3):
            for b in range(2):
                c = d * 12 + j * 2 + b
                a.ds_read_b128(T(d, b, j), ra[d], ((c >> 3) * 32768 - RB[d] + (c & 7) * 1024) if E3 else (j * 2 + b) * 1024)
    if OPT["peel"] >= 2: accr()
    for j in range(6):
        for d in range(3):
            for b in range(2):
                a.wait_for(T(d, b, j))
                for i in range(2): e(f"v_pk_add_f32 {R(b, j)[2*i:2*i+2]}, {R(b, j)[2*i:2*i+2]}, {T(d, b, j)[2*i:2*i+2]}")
        D = V(10 + 4 * j, 4)
        e(f"v_cvt_pk_bf16_f32 {D[0]}, {R(0, j)[0]}, {R(0, j)[1]}"); e(f"v_cvt_pk_bf16_f32 {D[1]}, {R(0, j)[2]}, {R(0, j)[3]}")
        e(f"v_cvt_pk_bf16_f32 {D[2]}, {R(1, j)[0]}, {R(1, j)[1]}"); e(f"v_cvt_pk_bf16_f32 {D[3]}, {R(1, j)[2]}, {R(1, j)[3]}")
        e(f"s_mov_b32 {sT0}, {j * 32768}"); e("s_nop 0")
        e(f"v_permlane16_swap_b32 {D[0]}, {D[2]}"); e(f"v_permlane16_swap_b32 {D[1]}, {D[3]}")
        a.bstore(D, vOut, SRDOUT, sT0, 0, (" " + OPT["ost2"].replace("+", " ")) if OPT["ost2"] else "")
    dump_stamps(a, 6, 0x4100000, sW, vt[0], vt[1])
    a.k2 = 0
    if OPT["leak"]:
        lk = OPT["leak"]
        if lk < 100:
            e(f"v_readfirstlane_b32 s93, v{241 + 2 * (lk % 10)}"); e(f"v_readfirstlane_b32 s94, v{241 + 2 * (lk // 10)}")
        elif lk < 200:
            e(f"s_mov_b32 s93, s{61 + 2 * (lk % 10)}"); e(f"s_mov_b32 s94, s{61 + 2 * ((lk // 10) % 10)}")
        else:
            e("v_readfirstlane_b32 s93, v251"); e("s_mov_b32 s94, s61")
        e("s_nop 4"); e("s_sub_u32 s93, s93, s94"); e("s_lshl_b32 s93, s93, 2"); e("s_min_u32 s93, s93, 100000")
        e("s_memrealtime s[98:99]"); e("s_waitcnt lgkmcnt(0)"); e("s_add_u32 s93, s93, s98")
        a.label("L2_spin")
        e("s_memrealtime s[98:99]"); e("s_waitcnt lgkmcnt(0)"); e("s_sub_u32 s94, s93, s98"); e("s_cmp_gt_i32 s94, 0"); e("s_cbranch_scc1 L2_spin")
    if fused:
        dump1()
        yield None
        for n in range(2):
            if TP and n == 0:
                a.label("L2_slow0")
                e("s_waitcnt vmcnt(0)"); signal("b"); e("s_mov_b32 s93, 1"); e("s_branch L2_slow0x")
                n = "0w"
            a.label(f"L2_slow{n}")
            e(f"s_sleep {OPT['psleep']}")
            if n == "0w": a.label("L2_slow0x")
            e(f"buffer_load_dword {vPD}, {vPA}, {SRDF}, {sCL} offen sc1"); e("s_waitcnt vmcnt(0)")
            e(f"s_add_u32 {sPC}, {sPC}, 1"); e(f"s_cmp_ge_u32 {sPC}, 0x40000"); e(f"s_cbranch_scc1 L2_back{str(n)[0]}")
            e(f"v_cmp_ne_u32 vcc, {vPD}, {vTg}"); e(f"s_and_b32 {sT0}, vcc_lo, {sMK}"); e(f"s_cbranch_scc1 L2_slow{n}")
            e(f"s_branch L2_back{str(n)[0]}")
        yield None
    else:
        a.label("L2_end")
        e("s_endpgm")
        yield a.text()


def kernel0():
    a = Asm(); e = a.e
    a.label("mha_pre_kernel")
    e("s_cmp_ge_u32 s2, 256"); e("s_cbranch_scc1 L0_end")
    e("s_load_dwordx16 s[4:19], s[0:1], 0"); e("s_waitcnt lgkmcnt(0)")
    e("s_mov_b32 s20, s4"); e("s_mov_b32 s21, s5"); e("s_mov_b32 s22, 6291456"); e("s_mov_b32 s23, 0x20000")
    e("s_mov_b32 s24, s10"); e("s_mov_b32 s25, s11"); e("s_mov_b32 s26, 8388608"); e("s_mov_b32 s27, 0x20000")
    e("v_lshlrev_b32 v1, 7, v0"); e("s_lshl_b32 s3, s2, 15")
    e("buffer_load_dword v2, v1, s[20:23], s3 offen"); e("buffer_load_dword v3, v1, s[24:27], s3 offen")
    e("s_waitcnt vmcnt(0)")
    a.label("L0_end"); e("s_endpgm")
    return a.text()

def main():
    launches = []
    if OPT["fuse"]:
        s = HEADER + "; @launch kernel=mha_qattn_kernel grid=(256,1,1) block=(256,1,1) lds=163840\n"
        s += '.amdgcn_target "amdgcn-amd-amdhsa--gfx950"\n.text\n'
        s += ".globl mha_qattn_kernel\n.p2align 8\n.type mha_qattn_kernel,@function\n" + kernel1() + "L_text_end:\n"
        s += kd("mha_qattn_kernel", 512, 256)
        open(sys.argv[1], "w").write(s)
        return
    if OPT["only"] in (None, "k1"): launches.append("; @launch kernel=mha_qattn_kernel grid=(256,1,1) block=(256,1,1) lds=163840")
    if OPT["only"] in (None, "k2"): launches.append("; @launch kernel=mha_oproj_kernel grid=(256,1,1) block=(256,1,1) lds=163840")
    s = HEADER + "\n".join(launches) + "\n"
    s += '.amdgcn_target "amdgcn-amd-amdhsa--gfx950"\n.text\n'
    s += ".globl mha_qattn_kernel\n.p2align 8\n.type mha_qattn_kernel,@function\n" + kernel1()
    s += ".globl mha_oproj_kernel\n.p2align 8\n.type mha_oproj_kernel,@function\n" + next(kernel2(None)) + "L_text_end:\n"
    s += kd("mha_qattn_kernel", 512, 256) + kd("mha_oproj_kernel", 512, 256)
    open(sys.argv[1], "w").write(s)
main()
```

```python
import sys, math, struct
from asmlib import *

OPT = dict(kv_nt=1, only=None, dbgQ=0, prof=0, kvskip=0, wo_touch=3, n2=0, rotH=0, p1end=26, ost="", codepf=0, k2skip=0, map2=1, pre=0, askip=0, p2nt=1, p2s=3, p2e=30, early=1, xw_touch=0, leak=0, rotW=0, krot=0, ost2="", itst=0, bwait=16, bdrop=0, qmode=0, tl=64, fuse=1, psleep=2, osc=1, bmap=0, evw=16, h16=0, dg0=20, verbose=0, d4=8, x5g=0, bnoc=0, xmap=0, only01=0, p2b=49152, pollu=2, fo=0, fint=4, hperm=0, cbrot=0, wvx=0, cbtab='0x76345210', e30=20, e31=20, pj=5, w3l=0, thr=0, thrp=0, tp=0, sig=0)
for a_ in sys.argv[2:]:
    k, v = a_.split("=")
    assert k in OPT, k
    OPT[k] = int(v) if v.lstrip("-").isdigit() else v

def f32bits(x): return struct.unpack("<I", struct.pack("<f", x))[0]
CSCALE = math.log2(math.e) / math.sqrt(128.0)
THRESH = 2.0 ** 30
FLOFF = 0x2000000

HEADER = """; Kernarg layout for this problem (64 bytes, ptrs only, base s[0:1]):
"""

def stamp(a, i, lvl=1):
    if not OPT["prof"]: return
    if OPT["prof"] == 2 and lvl == 1 and i >= 2 and not getattr(a, "k2", 0): return
    if OPT["prof"] == 1 and lvl == 2: return
    if OPT["prof"] == 3 and not (lvl == 1 and i == (5 if getattr(a, "k2", 0) else 0)): return
    a.e("s_memtime s[98:99]"); a.e("s_memrealtime s[100:101]")
    a.e("s_waitcnt lgkmcnt(0)"); a.lds = []
    if getattr(a, "k2", 0): a.e(f"v_mov_b32 v{240+2*i}, s98"); a.e(f"v_mov_b32 v{241+2*i}, s100")
    else: a.e(f"s_mov_b32 s{60+2*i}, s98"); a.e(f"s_mov_b32 s{61+2*i}, s100")
def dump_stamps(a, n, wsoff, sW, vtmp, vaddr, last=True):
    if not OPT["prof"]: return
    e = a.e
    e("s_waitcnt vmcnt(0)")
    if last: stamp(a, n - 1)
    e("s_mov_b32 s88, s18"); e("s_mov_b32 s89, s19"); e("s_mov_b32 s90, 0x10000000"); e("s_mov_b32 s91, 0x20000")
    e(f"s_lshl_b32 s92, s2, 2"); e(f"s_add_u32 s92, s92, {sW}"); e("s_lshl_b32 s92, s92, 6"); e(f"s_add_u32 s92, s92, {wsoff}")
    e(f"v_mov_b32 {vaddr}, 0")
    for i in range(2 * n):
        e(f"v_mov_b32 {vtmp}, " + (f"v{240+i}" if getattr(a, "k2", 0) else f"s{60+i}"))
        e(f"buffer_store_dword {vtmp}, {vaddr}, s[88:91], s92 offen offset:{4*i}")
    e("s_waitcnt vmcnt(0)")

def code_prefetch(a, vLane, vtmp, vdst, start_label, nbytes, sW):
    e = a.e
    e("s_getpc_b64 s[84:85]")
    a.label(f"{start_label}_pc")
    e(f"s_sub_u32 s84, s84, {start_label}_pc-{start_label}"); e("s_subb_u32 s85, s85, 0")
    e(f"s_mov_b32 s86, L_text_end-{start_label}"); e("s_mov_b32 s87, 0x20000")
    e(f"v_lshlrev_b32 {vtmp}, 7, {vLane}"); e(f"s_lshl_b32 s93, {sW}, 13")
    for blk in range((nbytes + 32767) // 32768):
        a.bload(vdst, vtmp, S(84, 4), "s93", 0)
        e("s_add_u32 s93, s93, 32768")

def kernel1():
    a = Asm(); e = a.e
    SRDX, SRDW, SRDKV, SRDO, SRDWO = S(20, 4), S(24, 4), S(28, 4), S(32, 4), S(80, 4)
    sW, sB, sHP, sQH, sHS = S(36), S(37), S(38), S(40), S(41)
    sT0, sT1, sT2, sIT = S(42), S(43), S(44), S(45)
    sXK, sWK = S(46), S(47)
    sM0X, sM0W = S(48), S(49)
    sKVO, sKVO2, sM0KV = S(50), S(51), S(52)
    sTHR, sC = S(53), S(54, 2)
    sOO, sCnt, sKV0, sPass, sP1 = S(56), S(57), S(58), S(59), S(39)
    sDL, sSL0, sS = S(79), S(78), S(72)
    vLane = V(1)
    vt = [V(i) for i in range(2, 10)]
    xa = [[V(10 + 2 * s + k) for k in range(2)] for s in range(2)]
    wa = [V(14 + k) for k in range(8)]
    xv = [V(22 + k) for k in range(6)]
    wv = [V(28 + k) for k in range(4)]
    ka = [V(32 + k) for k in range(8)]
    va = [V(40 + k) for k in range(8)]
    kvv = [V(48 + k) for k in range(4)]
    vl = [V(52 + k) for k in range(6)]
    vKW, vOS, vTA, vTD, vFL = V(58), V(59), V(60), V(61), V(62)
    vZ = V(10, 4)
    ACC = lambda i, j: V(64 + 64 * (j >> 1) + 8 * i + 4 * (j & 1), 4)
    QF = lambda j, ks: V(64 + 32 * (j >> 1) + 8 * ks + 4 * (j & 1), 4)
    NEG = lambda j: V(160 + 4 * j, 4)
    SB = lambda i: V(184 + 8 * i, 8)
    PB = lambda i: V(200 + 4 * i, 4)
    TMP = lambda j: V(184 + 4 * j, 4)
    X5 = lambda p: V(208 + 4 * p, 4)
    R2 = lambda j: V(232 + 2 * j, 2)
    OA = lambda db, j: A(4 * (8 * j + db), 4)
    KF = lambda n: A(192 + 4 * n, 4)
    VF = lambda db: A(224 + 4 * db, 4)
    AF = lambda i: A(128 + 4 * i, 4)
    BF = lambda st, j: A((160 if st == 0 else 224) + 4 * j, 4)
    P1R = lambda t, p: A(4 * (8 * t + p), 4)
    XBASE = 65536
    F4 = OPT["fuse"] == 4
    E3 = F4 and OPT["fo"] == 3
    SRDF, SRDD, sFLO, vTag, vZero, vZ4 = S(84, 4), S(88, 4), S(73), V(63), V(0), V(252, 4)
    nt = " nt" if OPT["kv_nt"] else ""

    a.label("mha_qattn_kernel")
    e("s_cmp_ge_u32 s2, 256"); e("s_cbranch_scc1 L1_end")
    e("s_load_dwordx16 s[4:19], s[0:1], 0")
    e(f"v_lshrrev_b32 {vt[0]}, 6, v0"); e(f"v_and_b32 {vLane}, 63, v0")
    e("s_and_b32 s3, s2, 7"); e(f"s_lshr_b32 {sT0}, s2, 3")
    e(f"v_readfirstlane_b32 {sW}, {vt[0]}")
    e(f"s_and_b32 {sT1}, s3, 1"); e(f"s_and_b32 {sT2}, {sT0}, 7")
    if OPT["bmap"] == 0: e(f"s_lshl_b32 {sT1}, {sT1}, 3")
    if OPT["bmap"] == 1: e(f"s_lshl_b32 {sT2}, {sT2}, 1")
    if OPT["bmap"] == 2: e(f"s_xor_b32 {sT1}, {sT1}, 1"); e(f"s_lshl_b32 {sT1}, {sT1}, 3")
    e(f"s_add_u32 {sB}, {sT1}, {sT2}")
    e(f"s_lshr_b32 {sT1}, s3, 1"); e(f"s_lshl_b32 {sT1}, {sT1}, 2"); e(f"s_lshr_b32 {sHP}, {sT0}, 3")
    if OPT["hperm"]:
        e(f"s_lshr_b32 {sT2}, {sHP}, 1"); e(f"s_not_b32 {sHP}, {sHP}"); e(f"s_and_b32 {sHP}, {sHP}, 1"); e(f"s_lshl_b32 {sHP}, {sHP}, 1"); e(f"s_add_u32 {sHP}, {sHP}, {sT2}")
    e(f"s_add_u32 {sHP}, {sHP}, {sT1}")
    if OPT["xmap"] == 1:
        e(f"s_lshr_b32 {sT1}, s3, 1"); e(f"s_lshl_b32 {sT1}, {sT1}, 2"); e(f"s_and_b32 {sT2}, {sT0}, 3"); e(f"s_add_u32 {sB}, {sT1}, {sT2}")
        e(f"s_and_b32 {sT1}, s3, 1"); e(f"s_lshl_b32 {sT1}, {sT1}, 3"); e(f"s_lshr_b32 {sHP}, {sT0}, 2"); e(f"s_add_u32 {sHP}, {sHP}, {sT1}")
    if OPT["xmap"] == 2:
        e(f"s_lshl_b32 {sT1}, s3, 1"); e(f"s_and_b32 {sT2}, {sT0}, 1"); e(f"s_add_u32 {sB}, {sT1}, {sT2}"); e(f"s_lshr_b32 {sHP}, {sT0}, 1")
    if OPT["xmap"] == 3:
        e(f"s_and_b32 {sB}, {sT0}, 15"); e(f"s_lshl_b32 {sT1}, s3, 1"); e(f"s_lshr_b32 {sHP}, {sT0}, 4"); e(f"s_add_u32 {sHP}, {sHP}, {sT1}")
    if OPT["xmap"] in (4, 5):
        e(f"s_lshr_b32 {sT1}, s3, 2"); e(f"s_lshl_b32 {sT1}, {sT1}, 3"); e(f"s_and_b32 {sT2}, {sT0}, 7"); e(f"s_add_u32 {sB}, {sT1}, {sT2}")
        e(f"s_and_b32 {sT1}, s3, 2"); e(f"s_lshl_b32 {sT1}, {sT1}, 2"); e(f"s_and_b32 {sT2}, s3, 1"); e(f"s_lshl1_add_u32 {sHP}, {sT2}, {sT1}")
        e(f"s_lshr_b32 {sT1}, {sT0}, 4"); e(f"s_lshl2_add_u32 {sHP}, {sT1}, {sHP}")
        e(f"s_bfe_u32 {sT1}, {sT0}, 0x10003")
        if OPT["xmap"] == 4: e(f"s_xor_b32 {sT1}, {sT1}, 1")
        e(f"s_add_u32 {sHP}, {sHP}, {sT1}")
    if OPT["xmap"] in (6, 7):
        e(f"s_lshr_b32 {sT1}, s3, 2"); e(f"s_lshl_b32 {sT1}, {sT1}, 3"); e(f"s_and_b32 {sT2}, {sT0}, 7"); e(f"s_add_u32 {sB}, {sT1}, {sT2}")
        e(f"s_and_b32 {sT1}, s3, 2"); e(f"s_lshl_b32 {sT1}, {sT1}, 1"); e(f"s_and_b32 {sT2}, s3, 1"); e(f"s_lshl3_add_u32 {sHP}, {sT2}, {sT1}")
        e(f"s_lshr_b32 {sT1}, {sT0}, 3")
        if OPT["xmap"] == 6: e(f"s_xor_b32 {sT1}, {sT1}, 1")
        e(f"s_add_u32 {sHP}, {sHP}, {sT1}")
    e(f"s_and_b32 {sQH}, {sW}, 1"); e(f"s_lshr_b32 {sHS}, {sW}, 1")
    t0, t1, t2, t3, t4, t5 = vt[:6]
    e(f"v_lshrrev_b32 {t2}, 4, {vLane}")
    e(f"v_and_b32 {t1}, 15, {vLane}")
    e(f"v_lshlrev_b32 {t3}, 1, {t2}"); e(f"v_xor_b32 {t1}, {t1}, {t3}")
    e(f"s_lshl_b32 {sT0}, {sQH}, 4"); e(f"v_add_u32 {t0}, {sT0}, {t2}")
    e(f"v_lshlrev_b32 {t0}, 13, {t0}")
    e(f"s_lshl_b32 {sT0}, {sHS}, 8"); e(f"v_add_u32 {t0}, {sT0}, {t0}")
    for m in range(4):
        e(f"v_xor_b32 {t3}, {8 * (m >> 1)}, {t1}"); e(f"v_lshl_add_u32 {t3}, {t3}, 4, {t0}")
        e(f"v_add_u32 {wv[m]}, {m * 32768 - m * 1024}, {t3}")
    e(f"v_lshrrev_b32 {t0}, 3, {vLane}")
    e(f"v_and_b32 {t1}, 7, {vLane}"); e(f"v_xor_b32 {t1}, {t1}, {t2}")
    e(f"s_mul_i32 {sT0}, {sW}, 48"); e(f"v_add_u32 {t0}, {sT0}, {t0}"); e(f"v_lshlrev_b32 {t0}, 11, {t0}")
    for m in range(6):
        e(f"v_xor_b32 {t3}, {4 * (m & 1)}, {t1}"); e(f"v_lshl_add_u32 {t3}, {t3}, 4, {t0}")
        e(f"v_add_u32 {xv[m]}, {m * 16384 - (m % 3) * 1024}, {t3}")
    e(f"s_mul_i32 {sM0X}, {sW}, 6144"); e(f"s_add_u32 {sM0X}, {sM0X}, {XBASE}")
    e(f"s_lshl_b32 {sM0W}, {sW}, 12")
    e("s_waitcnt lgkmcnt(0)")
    stamp(a, 0)
    e(f"s_lshl_b32 {sT0}, {sHP}, 9")
    e(f"s_add_u32 {SRDW[0]}, s10, {sT0}"); e(f"s_addc_u32 {SRDW[1]}, s11, 0")
    e(f"s_sub_u32 {SRDW[2]}, 8388608, {sT0}"); e(f"s_mov_b32 {SRDW[3]}, 0x20000")
    e(f"s_mul_i32 {sT0}, {sB}, 393216")
    e(f"s_add_u32 {SRDX[0]}, s4, {sT0}"); e(f"s_addc_u32 {SRDX[1]}, s5, 0")
    e(f"s_mov_b32 {SRDX[2]}, 393216"); e(f"s_mov_b32 {SRDX[3]}, 0x20000")

    if OPT["askip"]: e(f"s_mov_b32 {SRDX[2]}, 0"); e(f"s_mov_b32 {SRDW[2]}, 0")
    sKR, sKRW = S(76), S(77)
    if OPT["krot"]:
        e(f"s_lshr_b32 {sT0}, s2, 3"); e(f"s_and_b32 {sT1}, {sT0}, 7"); e(f"s_lshr_b32 {sT0}, {sT0}, 3"); e(f"s_lshl_b32 {sT0}, {sT0}, 1")
        e(f"s_add_u32 {sT0}, {sT0}, {sT1}"); e(f"s_and_b32 {sT0}, {sT0}, 7")
        if OPT["krot"] == 2: e(f"s_and_b32 {sT0}, {sT0}, 1"); e(f"s_lshl_b32 {sT0}, {sT0}, 2")
        if OPT["krot"] == 3: e(f"s_and_b32 {sT0}, {sT0}, 3"); e(f"s_lshl_b32 {sT0}, {sT0}, 1")
        e(f"s_lshl_b32 {sKR}, {sT0}, 8"); e(f"s_lshl_b32 {sKRW}, {sT0}, 20")
    def dma_x(c, part):
        if OPT["krot"]:
            ops = [lambda: (e(f"s_add_u32 m0, {sM0X}, {(c % 4) * 24576 + part * 3072}"), e(f"s_add_u32 {sXK}, {sKR}, {c * 128}"), e(f"s_and_b32 {sXK}, {sXK}, 2047"))]
        else:
            ops = [lambda: (e(f"s_add_u32 m0, {sM0X}, {(c % 4) * 24576 + part * 3072}"), e(f"s_movk_i32 {sXK}, {c * 128}"))]
        for m in range(3):
            ops.append(lambda m=m: a.dma(xv[3 * part + m], SRDX, sXK, m * 1024, tag=("x", c)))
        return ops
    def dma_w(s):
        if OPT["krot"]:
            ops = [lambda: (e(f"s_add_u32 m0, {sM0W}, {(s % 4) * 16384}"), e(f"s_add_u32 {sWK}, {sKRW}, {s * 262144}"), e(f"s_and_b32 {sWK}, {sWK}, 8388607"))]
        else:
            ops = [lambda: (e(f"s_add_u32 m0, {sM0W}, {(s % 4) * 16384}"), e(f"s_mov_b32 {sWK}, {s * 262144}"))]
        for m in range(4):
            ops.append(lambda m=m: a.dma(wv[m], SRDW, sWK, m * 1024, tag=("w", s)))
        return ops
    def run(ops):
        for o in ops: o()
    run(dma_w(0)); run(dma_x(0, 0)); run(dma_x(0, 1)); run(dma_w(1)); run(dma_w(2)); run(dma_x(1, 0)); run(dma_x(1, 1)); run(dma_w(3))
    if OPT["codepf"]: code_prefetch(a, vLane, vTA, vTD, "mha_qattn_kernel", OPT["codepf"] * 1024, sW)
    run(dma_x(2, 0)); run(dma_x(2, 1)); run(dma_x(3, 0)); run(dma_x(3, 1))
    e(f"s_lshl_b32 {sT0}, {sB}, 5"); e(f"s_lshl_b32 {sT1}, {sHP}, 1"); e(f"s_add_u32 {sT0}, {sT0}, {sT1}")
    e(f"s_add_u32 {sT0}, {sT0}, {sHS}"); e(f"s_lshl_b32 {sT0}, {sT0}, 18")
    e(f"s_cmp_eq_u32 {sQH}, 0"); e(f"s_cselect_b32 {sT1}, s6, s8"); e(f"s_cselect_b32 {sT2}, s7, s9")
    e(f"s_add_u32 {SRDKV[0]}, {sT1}, {sT0}"); e(f"s_addc_u32 {SRDKV[1]}, {sT2}, 0")
    NR = 0 if OPT["kvskip"] else 262144
    e(f"s_mov_b32 {SRDKV[2]}, {NR}"); e(f"s_mov_b32 {SRDKV[3]}, 0x20000")
    e(f"s_mov_b32 {SRDO[0]}, s18"); e(f"s_mov_b32 {SRDO[1]}, s19")
    e(f"s_mov_b32 {SRDO[2]}, 25165824"); e(f"s_mov_b32 {SRDO[3]}, 0x20000")
    e(f"s_mov_b32 {sTHR}, {f32bits(THRESH):#x}")
    e(f"s_mov_b32 {sC[0]}, {f32bits(CSCALE):#x}"); e(f"s_mov_b32 {sC[1]}, {f32bits(CSCALE):#x}")
    e(f"s_mul_i32 {sKV0}, {sHS}, {OPT['rotH'] * 8192}"); e(f"s_mov_b32 {sPass}, 0")
    if OPT["rotW"] == 1:
        e(f"s_lshr_b32 {sKV0}, s2, 3"); e(f"s_lshl_b32 {sT1}, {sHS}, 2"); e(f"s_add_u32 {sKV0}, {sKV0}, {sT1}")
        e(f"s_and_b32 {sKV0}, {sKV0}, 7"); e(f"s_lshl_b32 {sKV0}, {sKV0}, 15")
    if OPT["rotW"] == 2:
        e(f"s_lshr_b32 {sKV0}, s2, 5"); e(f"s_add_u32 {sKV0}, {sKV0}, s2"); e(f"s_lshl_b32 {sT1}, {sHS}, 2"); e(f"s_add_u32 {sKV0}, {sKV0}, {sT1}")
        e(f"s_and_b32 {sKV0}, {sKV0}, 7"); e(f"s_lshl_b32 {sKV0}, {sKV0}, 15")
    if OPT["rotW"] == 3:
        e(f"s_lshr_b32 {sKV0}, s2, 3"); e(f"s_add_u32 {sKV0}, {sKV0}, s2"); e(f"s_lshr_b32 {sT1}, s2, 6"); e(f"s_add_u32 {sKV0}, {sKV0}, {sT1}")
        e(f"s_lshl_b32 {sT1}, {sHS}, 2"); e(f"s_add_u32 {sKV0}, {sKV0}, {sT1}")
        e(f"s_and_b32 {sKV0}, {sKV0}, 7"); e(f"s_lshl_b32 {sKV0}, {sKV0}, 15")
    if OPT["rotW"] == 7:
        e(f"s_lshr_b32 {sKV0}, {sB}, 3"); e(f"s_add_u32 {sKV0}, {sKV0}, {sB}"); e(f"s_lshr_b32 {sT1}, {sHP}, 2"); e(f"s_lshl1_add_u32 {sKV0}, {sT1}, {sKV0}")
        e(f"s_and_b32 {sT1}, {sHP}, 3"); e(f"s_add_u32 {sKV0}, {sKV0}, {sT1}"); e(f"s_lshl2_add_u32 {sKV0}, {sHS}, {sKV0}")
        e(f"s_and_b32 {sKV0}, {sKV0}, 7"); e(f"s_lshl_b32 {sKV0}, {sKV0}, 15")
    if OPT["rotW"] == 4:
        e(f"s_mul_i32 {sKV0}, s2, 5"); e(f"s_lshr_b32 {sT1}, s2, 5"); e(f"s_add_u32 {sKV0}, {sKV0}, {sT1}")
        e(f"s_lshl_b32 {sT1}, {sHS}, 4"); e(f"s_add_u32 {sKV0}, {sKV0}, {sT1}")
        e(f"s_and_b32 {sKV0}, {sKV0}, 31"); e(f"s_lshl_b32 {sKV0}, {sKV0}, 13")
    if OPT["rotW"] == 5:
        e(f"s_lshr_b32 {sKV0}, s2, 3"); e(f"s_lshl_b32 {sT1}, s2, 2"); e(f"s_add_u32 {sKV0}, {sKV0}, {sT1}")
        e(f"s_lshl_b32 {sT1}, {sHS}, 4"); e(f"s_add_u32 {sKV0}, {sKV0}, {sT1}")
        e(f"s_and_b32 {sKV0}, {sKV0}, 31"); e(f"s_lshl_b32 {sKV0}, {sKV0}, 13")
    if OPT["rotW"] == 6:
        e(f"s_lshl_b32 {sKV0}, s2, 1"); e(f"s_add_u32 {sKV0}, {sKV0}, {sHS}"); e(f"s_mul_i32 {sKV0}, {sKV0}, 0x9e3779b1")
        e(f"s_lshr_b32 {sKV0}, {sKV0}, 27"); e(f"s_lshl_b32 {sKV0}, {sKV0}, 13")
    e(f"s_mul_i32 {sDL}, {sHS}, 49152"); e(f"s_sub_u32 {sDL}, 131072, {sDL}")
    e(f"v_lshlrev_b32 {vTA}, 7, {vLane}")
    vT2 = V(0)
    e(f"v_lshrrev_b32 {vT2}, {int(math.log2(64 // OPT['tl']))}, {vLane}"); e(f"v_lshlrev_b32 {vT2}, 7, {vT2}")
    if OPT["wo_touch"]:
        e(f"s_mov_b32 {SRDWO[0]}, s12"); e(f"s_mov_b32 {SRDWO[1]}, s13"); e(f"s_mov_b32 {SRDWO[2]}, 8388608"); e(f"s_mov_b32 {SRDWO[3]}, 0x20000")
    if OPT["xw_touch"]:
        e(f"s_lshl_b32 {sT2}, s2, 2"); e(f"s_add_u32 {sT2}, {sT2}, {sW}"); e(f"s_lshl_b32 {sT2}, {sT2}, 13")
        e("s_mov_b32 s84, s10"); e("s_mov_b32 s85, s11"); e("s_mov_b32 s86, 8388608"); e("s_mov_b32 s87, 0x20000")
        a.bload(vTD, vTA, S(84, 4), sT2, 0)
        e("s_mov_b32 s84, s4"); e("s_mov_b32 s85, s5"); e("s_mov_b32 s86, 6291456")
        a.bload(vTD, vTA, S(84, 4), sT2, 0)
    vh, vg, vr, vc1, vc0, vql, u0, u1 = vt
    e(f"v_lshrrev_b32 {vg}, 4, {vLane}"); e(f"v_bfe_u32 {vr}, {vLane}, 2, 2"); e(f"v_and_b32 {vc0}, 3, {vLane}")
    e(f"v_lshl_add_u32 {u0}, {vg}, 3, {vr}"); e(f"v_lshlrev_b32 {u0}, 8, {u0}")
    e(f"s_lshl_b32 {sT0}, {sHS}, 13"); e(f"v_add_u32 {u0}, {sT0}, {u0}")
    e(f"v_lshl_add_u32 {u0}, {vc0}, 3, {u0}"); e(f"v_lshl_add_u32 {u0}, {vr}, 5, {u0}")
    e(f"v_and_b32 {u1}, 1, {vg}"); e(f"v_lshl_add_u32 {wa[0]}, {u1}, 7, {u0}")
    for i in range(1, 8): e(f"v_xor_b32 {wa[i]}, {32 * i}, {wa[0]}")
    e(f"v_and_b32 {vql}, 15, {vLane}")
    e(f"s_mul_i32 {sT1}, {sQH}, 12288"); e(f"s_add_u32 {sT1}, {sT1}, {XBASE}")
    e(f"v_lshlrev_b32 {u0}, 7, {vql}"); e(f"v_add_u32 {u0}, {sT1}, {u0}")
    e(f"v_lshrrev_b32 {u1}, 1, {vql}"); e(f"v_xor_b32 {u1}, {u1}, {vg}")
    e(f"v_lshl_add_u32 {xa[0][0]}, {u1}, 4, {u0}"); e(f"v_xor_b32 {xa[0][1]}, 64, {xa[0][0]}")
    for k in range(2): e(f"v_add_u32 {xa[1][k]}, 49152, {xa[0][k]}")
    e(f"v_lshlrev_b32 {vh}, {sQH}, {vg}")
    e(f"v_xor_b32 {vh}, {vh}, {vql}"); e(f"v_lshlrev_b32 {u0}, 8, {vg}")
    e(f"v_lshl_add_u32 {kvv[0]}, {vh}, 4, {u0}")
    e(f"s_cmp_eq_u32 {sQH}, 0")
    for j in range(1, 4):
        e(f"s_cselect_b32 {sT1}, {4 * j}, {8 * (j & 1)}"); e(f"s_mul_i32 {sT1}, {sT1}, 16"); e(f"v_xor_b32 {kvv[j]}, {sT1}, {kvv[0]}")

    def late_setup():
        ops = []
        E = lambda s: ops.append(lambda: e(s))
        E(f"v_lshrrev_b32 {vg}, 4, {vLane}"); E(f"v_bfe_u32 {vr}, {vLane}, 2, 2"); E(f"v_and_b32 {vc0}, 3, {vLane}")
        E(f"v_and_b32 {vql}, 15, {vLane}"); E(f"v_lshrrev_b32 {vc1}, 2, {vLane}")
        E(f"s_lshl_b32 {sT0}, {sHS}, 16"); E(f"s_add_u32 {sT1}, {sT0}, 8192")
        E(f"v_lshlrev_b32 {u0}, 8, {vc1}"); E(f"v_add_u32 {u0}, {sT1}, {u0}"); E(f"v_lshl_add_u32 {u0}, {vc0}, 3, {u0}")
        E(f"v_and_b32 {u1}, 7, {vc1}"); E(f"v_lshl_add_u32 {va[0]}, {u1}, 5, {u0}")
        for db in range(1, 8): E(f"v_xor_b32 {va[db]}, {32 * db}, {va[0]}")
        E(f"v_lshlrev_b32 {u0}, 8, {vql}"); E(f"v_add_u32 {u0}, {sT0}, {u0}")
        E(f"v_and_b32 {u1}, 1, {vg}"); E(f"v_lshl_add_u32 {u0}, {u1}, 3, {u0}")
        E(f"v_lshrrev_b32 {u1}, 1, {vg}"); E(f"v_xor_b32 {u1}, {u1}, {vql}"); E(f"v_lshl_add_u32 {ka[0]}, {u1}, 4, {u0}")
        for s in range(1, 8): E(f"v_xor_b32 {ka[s]}, {32 * s}, {ka[0]}")
        E(f"s_lshl_b32 {sM0KV}, {sQH}, 13"); E(f"s_add_u32 {sM0KV}, {sM0KV}, {sT0}")
        E(f"v_lshlrev_b32 {vOS}, 4, {vLane}"); E(f"v_add_u32 {vKW}, {sM0KV}, {vOS}"); E(f"s_add_u32 {sS}, {sM0KV}, {sDL}")
        E(f"s_lshl_b32 {sOO}, {sB}, 1"); E(f"s_add_u32 {sOO}, {sOO}, {sQH}"); E(f"s_mul_i32 {sOO}, {sOO}, {6 * 131072}")
        sSG = sHP
        if OPT["sig"]:
            sSG = S(93)
            E(f"s_bfe_u32 {sT1}, {sHP}, 0x20001"); E(f"s_lshr_b32 {sSG}, {sHP}, 3"); E(f"s_lshl1_add_u32 {sT1}, {sT1}, {sSG}")
            E(f"s_and_b32 {sSG}, {sHP}, 1"); E(f"s_lshl1_add_u32 {sSG}, {sT1}, {sSG}")
        E(f"s_lshl_b32 {sT1}, {sSG}, 1"); E(f"s_add_u32 {sT1}, {sT1}, {sHS}"); E(f"s_lshl_b32 {sT1}, {sT1}, 12"); E(f"s_add_u32 {sOO}, {sOO}, {sT1}")
        E(f"s_lshl_b32 {sT1}, {sW}, 2"); E(f"s_add_u32 {sT1}, {sT1}, {65536 if E3 else 163776}"); E(f"v_mov_b32 {vFL}, {sT1}")
        for q in range(6): E(f"v_mov_b32 {vl[q]}, 0")
        if F4:
            E(f"v_mov_b32 {vZero}, 0")
            E(f"s_lshl_b32 {sT1}, {sB}, 12"); E(f"s_lshl_b32 {sFLO}, {sSG}, 2"); E(f"s_add_u32 {sT1}, {sT1}, {sFLO}"); E(f"s_add_u32 {sFLO}, {sT1}, {FLOFF}")
            ops.append(lambda: (e(f"s_or_b32 {sT1}, s2, {sW}"), e(f"s_cselect_b32 {SRDF[2]}, 0, {FLOFF + 65536}"), e(f"s_cselect_b32 {SRDD[2]}, 0, 4")))
            E(f"s_mov_b32 {SRDF[0]}, s18"); E(f"s_mov_b32 {SRDF[1]}, s19"); E(f"s_mov_b32 {SRDF[3]}, 0x20000")
            E(f"s_mov_b32 {SRDD[0]}, s16"); E(f"s_mov_b32 {SRDD[1]}, s17"); E(f"s_mov_b32 {SRDD[3]}, 0x20000")
        return ops
    def rdK(n, pi, slot): return lambda: a.ds_read_b64(KF(n)[2 * pi:2 * pi + 2], ka[2 * (n >> 1) + pi], slot * 16384 + (n & 1) * 4096)
    def rdV(db, uu, slot): return lambda: a.ds_read_tr(VF(db)[2 * uu:2 * uu + 2], va[db], slot * 16384 + uu * 4096)

    def rdA(s, i): return [(lambda u=u: a.ds_read_tr(AF(i)[2 * u:2 * u + 2], wa[i], (s % 4) * 16384 + u * 1024)) for u in range(2)]
    def rdB(s, j):
        xs = (s // 2) % 4
        return lambda: a.ds_read_b128(BF(s % 2, j), xa[xs // 2][s % 2], (xs % 2) * 24576 + j * 2048)
    p1list = [(t, p) for t in range(4) for p in range(8)]
    def p1_ops(k):
        t, p = p1list[k]
        ops = []
        if p % 4 == 0:
            ops.append(lambda: (e(f"s_add_u32 {sP1}, {sKV0}, {t * 8192 + (p // 4) * 4096}"), e(f"s_and_b32 {sP1}, {sP1}, 262143")))
        ops.append(lambda: a.bload(P1R(t, p), kvv[p % 4], SRDKV, sP1, (p % 4) * 1024, nt))
        return ops
    p1_at = {}
    for k in range(32): p1_at.setdefault(k * OPT["p1end"] // 32, []).append(k)
    p2_at = {}
    for k in range(OPT["n2"]): p2_at.setdefault(OPT["p2s"] + (k * (OPT["p2e"] - OPT["p2s"])) // OPT["n2"], []).append(k)
    conv = []
    for J in range(3):
        for ks in range(4):
            for jj in range(2):
                j = 2 * J + jj
                X, Y, D = ACC(2 * ks, j), ACC(2 * ks + 1, j), QF(j, ks)
                for R in (X, Y):
                    for k in range(4): conv.append((J, lambda r=R[k]: e(f"v_mul_f32 {r}, {sC[0]}, {r}")))
                conv.append((J, lambda X=X, D=D: e(f"v_cvt_pk_bf16_f32 {D[0]}, {X[0]}, {X[1]}")))
                conv.append((J, lambda X=X, D=D: e(f"v_cvt_pk_bf16_f32 {D[1]}, {X[2]}, {X[3]}")))
                conv.append((J, lambda Y=Y, D=D: e(f"v_cvt_pk_bf16_f32 {D[2]}, {Y[0]}, {Y[1]}")))
                conv.append((J, lambda Y=Y, D=D: e(f"v_cvt_pk_bf16_f32 {D[3]}, {Y[2]}, {Y[3]}")))

    a.wait_for(("w", 0), ("x", 0)); e("s_barrier")
    stamp(a, 1)
    for j in range(6):
        rdB(0, j)()
        for r in rdA(0, j): r()
    for r in rdA(0, 6): r()
    late = late_setup()
    free = [g for i in range(3, 8) for g in range(6 * i + 2, 6 * i + 6)]
    for s in range(32):
        if s in (8, 16, 24): stamp(a, 1 + s // 8, 2)
        G = Gaps()
        last = s == 31
        order = [(i, j) for j in range(6) for i in range(8)] if last else [(i, j) for i in range(8) for j in range(6)]
        mf = [(lambda i=i, j=j: a.mfma16(ACC(i, j), AF(i), BF(s % 2, j), ACC(i, j) if s else 0)) for i, j in order]
        if s:
            m0_ = mf[0]; mf[0] = lambda m0_=m0_: (a.wait_for(lgkm=2), m0_())
        for u, r in enumerate(rdA(s, 7)): G.mem(u, r)
        def bar(s=s):
            if s < 31: a.wait_for(("w", s + 1), ("x", (s + 1) // 2), lgkm=0)
            else: a.wait_for(lgkm=0)
            e("s_barrier")
        G.mem(7, bar)
        if not last:
            for u, r in enumerate(rdA(s + 1, 0)): G.mem(8 + u, r)
            for i in range(1, 7):
                for u, r in enumerate(rdA(s + 1, i)): G.mem(6 * i + 6 + u, r)
            for j, g in enumerate([10, 11, 14, 15, 16, 17]): G.mem(g, rdB(s + 1, j))
        ops = []
        if s + 4 < 32: ops += dma_w(s + 4)
        c = (s - 1) // 2 + 4
        if s >= 1 and c < 16: ops += dma_x(c, (s - 1) % 2)
        for k in p1_at.get(s, []): ops += p1_ops(k)
        for k in p2_at.get(s, []):
            ops.append(lambda k=k: (e(f"s_add_u32 {sT2}, {sKV0}, {OPT['p2b'] + k * OPT['tl'] * 128}"), e(f"s_and_b32 {sT2}, {sT2}, 262143")))
            ops.append(lambda: a.bload(vTD, vT2, SRDKV, sT2, 0, " nt" if OPT["p2nt"] else ""))
        if F4 and s == 2: ops.append(lambda: a.bload(vTag, vZero, SRDF, sFLO, 0, " sc1"))
        if F4 and s == 10:
            ops.append(lambda: (a.wait_for(vTag), e(f"v_add_u32 {vTag}, 0x9e3779b9, {vTag}"), e(f"v_or_b32 {vTag}, 1, {vTag}")))
            ops.append(lambda: a.bstore(vTag, vZero, SRDD, 0, 0, " sc1"))
        if F4 and s == 12:
            ops.append(lambda: (e(f"s_cmp_eq_u32 {sW}, 0"), e(f"s_cselect_b32 {SRDD[2]}, 4, 0"), e(f"s_mov_b32 {SRDF[2]}, {FLOFF + 65536}")))
        if s == 2 and OPT["wo_touch"] == 1:
            ops.append(lambda: (e(f"s_lshl_b32 {sT2}, s2, 2"), e(f"s_add_u32 {sT2}, {sT2}, {sW}"), e(f"s_lshl_b32 {sT2}, {sT2}, 13")))
            ops.append(lambda: a.bload(vTD, vTA, SRDWO, sT2, 0))
        if last:
            for half in range(2):
                ops.append(lambda half=half: (e(f"s_add_u32 {sP1}, {sKV0}, {32768 + half * 4096}"), e(f"s_and_b32 {sP1}, {sP1}, 262143"), e(f"s_add_u32 m0, {sS}, {half * 4096}")))
                for j in range(4): ops.append(lambda j=j: a.dma(kvv[j], SRDKV, sP1, j * 1024, nt))
        if s >= 28:
            t = s - 28
            ops += [(lambda p=p: a.ds_write_b128(vKW, P1R(t, p), t * 16384 + p * 1024)) for p in range(8)]
        if s >= 30:
            ops += [rdK(n, pi, 0) for n in range(4 * (s - 30), 4 * (s - 30) + 4) for pi in range(2)]
        if last:
            for i in range(4): G.valu(4 + i, lambda i=i: e(f"v_mov_b32 {vZ[i]}, 0"))
        fr = free if not last else list(range(OPT['d4'], OPT['d4'] + 28))
        assert len(ops) <= len(fr), (s, len(ops))
        for o, g in zip(ops, [fr[(k * len(fr)) // len(ops)] for k in range(len(ops))]): G.mem(g, o)
        if s == 0:
            for k, o in enumerate(late): G.valu(8 + k // 2, o)
        if last:
            g = 0
            n = 0
            while conv and g < 48:
                J = conv[0][0]
                g = max(g, 16 * J + 18)
                if g >= 48: break
                G.valu(g, conv.pop(0)[1]); n += 1
                if n % 2 == 0: g += 1
        G.run(mf)
    stamp(a, 2); stamp(a, 5, 2)
    if OPT["only01"]: e("s_waitcnt vmcnt(0) lgkmcnt(0)"); e(f"s_cmp_eq_u32 {sHS}, 1"); e("s_cbranch_scc1 L1_end")
    e("s_nop 3")
    def xlane(op, m, tmp):
        return [lambda: e(f"v_mov_b32 {tmp}, {m}"), lambda: e("s_nop 1"), lambda: e(f"v_permlane16_swap_b32 {m}, {tmp}"), lambda: e("s_nop 1"),
                lambda: e(f"{op} {m}, {m}, {tmp}"),
                lambda: e(f"v_mov_b32 {tmp}, {m}"), lambda: e("s_nop 1"), lambda: e(f"v_permlane32_swap_b32 {m}, {tmp}"), lambda: e("s_nop 1"),
                lambda: e(f"{op} {m}, {m}, {tmp}")]
    def rowmax_ops(j, m, tmp):
        X, Y = NEG(j), TMP(j)
        return [lambda: e(f"v_max3_f32 {m}, {X[0]}, {X[1]}, {X[2]}"), lambda: e(f"v_max3_f32 {m}, {m}, {X[3]}, {Y[0]}"),
                lambda: e(f"v_max3_f32 {m}, {m}, {Y[1]}, {Y[2]}"), lambda: e(f"v_max_f32 {m}, {m}, {Y[3]}")] + xlane("v_max_f32", m, tmp)
    def negfill_ops(j, m):
        return [(lambda i=i: e(f"v_sub_f32 {NEG(j)[i]}, 0, {m}")) for i in range(4)]
    a.wait_for(lgkm=0)
    zm = [(lambda k=k: a.e(f"v_mfma_f32_32x32x16_bf16 {A(16 * k, 16)}, {vZ}, {vZ}, 0")) for k in list(range(12)) + [14, 15]]
    zm4 = [(lambda k=k: a.e(f"v_mfma_f32_32x32x16_bf16 {A(16 * k, 16)}, {vZ4}, {vZ4}, 0")) for k in list(range(12)) + [14, 15]]
    G = Gaps()
    G.spread([(o, 4) for _, o in conv], list(range(14))); conv = []
    G.run(zm)
    e("s_nop 1")
    sm = [(lambda j=j, n=n: a.mfma16(TMP(j) if n & 1 else NEG(j), KF(n), QF(j, n >> 1), (TMP(j) if n & 1 else NEG(j)) if n > 1 else 0))
          for j in range(6) for n in range(8)]

    NS = 96
    used = [0] * NS
    memg = {}
    def M(g, it, cost=4): memg.setdefault(g % NS, []).append(it); used[g % NS] += cost
    M(5, ("kill",), 12); M(6, ("m0", 0)); M(7, ("bar",), 8)
    for db in range(8): M(8 + db, ("v", db, 0)); M(12 + db, ("v", db, 1))
    for n in range(8): M(80 + n, ("k", n, 0)); M(84 + n, ("k", n, 1))
    dg = OPT["dg0"]
    for k in range(4): M(dg + 2 * k, ("dma", 0, k)); M(dg + 10 + 2 * k, ("dma", 1, k))
    M(dg + 8, ("m0", 1)); M(dg + 19, ("adv",), 12)
    for g in (95, 3, 23, 27): used[g] += 4
    valg = {}
    def place(j, seq, lo, hi):
        for L in range(8, 41, 4):
            u2 = list(used); g = lo; out = []
            for op, c, mn in seq:
                g = max(g, mn)
                while g <= hi and u2[g % NS] + c > L: g += 1
                if g > hi: break
                u2[g % NS] += c; out.append((op, g))
            else:
                used[:] = u2
                for op, g in out: valg.setdefault(g, []).append((j, op))
                return dict(out)
        raise Exception("no fit")
    pos = {}
    for j in range(6):
        b = 16 * j
        crit = [("e0", 8, b + 8), ("e1", 8, 0), ("e2", 8, 0), ("c0", 4, 0), ("e3", 8, 0), ("e4", 8, b + 10), ("c1", 4, 0), ("e5", 8, 0), ("e6", 8, 0),
                ("c2", 4, 0), ("e7", 8, 0), ("a0", 4, 0), ("c3", 4, 0)]
        pos[j] = place(j, crit, b + 8, b + 22)
    for j in range(6):
        b = 16 * j
        place(j, [(f"a{k}", 4, pos[j][f"e{k}"] + 1) for k in range(1, 8)], b + 9, b + 30)
    if OPT["verbose"]: print("gap load", used, "over", sum(max(0, x - 12) for x in used))
    def sm_op(j, op):
        Sx, Px, k = SB(j % 2), PB(j % 2), int(op[1])
        if op[0] == "e": e(f"v_exp_f32 {Sx[k]}, {Sx[k]}")
        if op[0] == "a": e(f"v_add_f32 {vl[j]}, {vl[j]}, {Sx[k]}")
        if op[0] == "c": e(f"v_cvt_pk_bf16_f32 {Px[k]}, {Sx[2 * k]}, {Sx[2 * k + 1]}")
    tail = [(g, j, op) for g in sorted(valg) if g >= NS for j, op in valg[g]]
    tail_e = {(j, int(op[1])) for g, j, op in tail if op[0] == "e"}
    init = [(lambda j=j, k=k: e(f"v_mov_b32 {SB(j % 2)[k]}, {'0xf149f2ca' if (j, k) in tail_e else 0}")) for j in (4, 5) for k in range(8)]
    init += [(lambda k=k: e(f"v_mov_b32 {PB(1)[k]}, 0")) for k in range(4)]

    G = Gaps()
    for j in range(5):
        G.spread([(o, 4) for o in rowmax_ops(j, vt[0], vt[1]) + negfill_ops(j, vt[0])], list(range(8 * j + 9, min(48, 8 * j + 17))))
    G.spread([(o, 4) for o in init[0:8]], list(range(26, 34)))
    G.spread([(o, 4) for o in init[8:16]], list(range(42, 48)))
    sSL = [S(94 + u) for u in range(4)]
    def stream_init():
        e(f"s_sub_u32 {sCnt}, 0, {sQH}")
        e(f"s_lshl_b32 {sT0}, {sQH}, 13"); e(f"s_add_u32 {sKVO}, {sKV0}, 49152"); e(f"s_sub_u32 {sKVO}, {sKVO}, {sT0}"); e(f"s_and_b32 {sKVO}, {sKVO}, 262143")
        e(f"s_add_u32 {sKVO2}, {sKVO}, 4096"); e(f"s_mov_b32 {sIT}, 0")
    def x5_ops():
        ops = []
        for p in range(8):
            if p % 4 == 0: ops.append(lambda p=p: (e(f"s_add_u32 {sP1}, {sKV0}, {5 * 8192 + (p // 4) * 4096}"), e(f"s_and_b32 {sP1}, {sP1}, 262143")))
            ops.append(lambda p=p: e(f"buffer_load_dwordx4 {X5(p)}, {kvv[p % 4]}, {SRDKV}, {sP1} offen" + (f" offset:{(p % 4) * 1024}" if p % 4 else "") + nt))
        return ops
    for k, o in enumerate(x5_ops()): G.mem(OPT["x5g"] + k // 2, o)
    G.mem(6, stream_init)
    if OPT["wo_touch"] == 3:
        G.mem(7, lambda: (e(f"s_lshl_b32 {sT2}, s2, 2"), e(f"s_add_u32 {sT2}, {sT2}, {sW}"), e(f"s_lshl_b32 {sT2}, {sT2}, 13")))
        G.mem(8, lambda: a.bload(vTD, vTA, SRDWO, sT2, 0))
    for u in range(4):
        G.mem(9 + u, lambda u=u: (e(f"s_sub_u32 {sT0}, {u}, {sQH}"), e(f"s_and_b32 {sT0}, {sT0}, 3"), e(f"s_lshl_b32 {sT0}, {sT0}, 14"), e(f"s_add_u32 {sSL[u]}, {sM0KV}, {sT0}")))
    G.mem(13, lambda: (e(f"s_mov_b32 {sSL0}, {sSL[0]}"), e(f"s_cmp_lg_u32 {sQH}, 0"), e("s_cselect_b64 vcc, -1, 0")))
    G.valu(14, lambda: e(f"v_add_u32 {vKW}, {sDL}, {vKW}"))
    G.run(sm)
    e("s_nop 7")
    for o in rowmax_ops(5, vt[0], vt[1]) + negfill_ops(5, vt[0]) + init[16:]: o()
    e("s_nop 1")

    def dma_kv(slot):
        ops = []
        for half in range(2):
            ops.append(lambda half=half: (e(f"s_add_u32 m0, {slot}, {half * 4096}"), e("s_nop 0")))
            for j in range(4):
                ops.append(lambda j=j, half=half: a.dma(kvv[j], SRDKV, sKVO2 if half else sKVO, j * 1024, nt))
        ops.append(lambda: (e(f"s_add_u32 {sKVO}, {sKVO}, 8192"), e(f"s_and_b32 {sKVO}, {sKVO}, 262143"), e(f"s_add_u32 {sKVO2}, {sKVO}, 4096")))
        return ops
    PVg = lambda j: [(lambda db=db: a.mfma16(OA(db, j), VF(db), PB(j % 2), OA(db, j))) for db in range(8)]
    lblc = [0]
    def only(kind, f):
        lblc[0] += 1; L = f"L1_only{lblc[0]}"
        e(f"s_cbranch_vcc{'z' if kind else 'nz'} {L}"); f(); a.label(L)
    def dma_half(u, half):
        e(f"s_add_u32 m0, {sSL[u]}, {half * 4096}"); e("s_nop 0")
        for j in range(4): e(f"buffer_load_dwordx4 {kvv[j]}, {SRDKV}, {sKVO2 if half else sKVO} offen" + (f" offset:{j * 1024}" if j else "") + nt + " lds")
    def x5_write():
        for p in range(8): e(f"ds_write_b128 {vKW}, {X5(p)}" + (f" offset:{p * 1024}" if p else ""))
    def tileB(u, vs=None, ks=None, dma=True, adv=True, kill=False, vm=OPT["bwait"], extra={}, nok=False):
        vs = u if vs is None else vs
        ks = (u + 1) % 4 if ks is None else ks
        mf = []
        for j in range(6):
            for n in range(8):
                D = SB(j % 2)[4 * (n & 1):4 * (n & 1) + 4]
                mf.append(lambda n=n, D=D, j=j: a.mfma16(D, KF(n), QF(j, n >> 1), D if n > 1 else NEG(j)))
            mf += PVg((j + 5) % 6)
        for idx, regs in ((0, [KF(n) for n in range(4)]), (4, [KF(n) for n in range(8)]), (24, [VF(d) for d in range(4)]), (28, [VF(d) for d in range(8)])):
            mf[idx] = (lambda f=mf[idx], regs=regs: (a.wait_for(*regs), f()))
        for g in range(NS):
            if not OPT["bnoc"] & 1: mf[g]()
            for it in memg.get(g, []):
                k = it[0]
                if OPT["bnoc"] & 2 and k in "vk": continue
                if k == "kill" and kill: e(f"s_cmp_lt_u32 {sCnt}, 22"); e(f"s_cselect_b32 {SRDKV[2]}, {NR}, 0"); e(f"s_add_u32 {sCnt}, {sCnt}, 1")
                if k == "m0" and dma: e(f"s_add_u32 m0, {sSL[u]}, {it[1] * 4096}")
                if k == "bar":
                    if vm is not None: a.wait(vm=vm)
                    if kill and OPT["thr"]:
                        lblc[0] += 1
                        e(f"s_bitcmp1_b32 s2, 0"); e(f"s_cbranch_scc{OPT['thrp']} L1_thr{lblc[0]}"); e(f"s_waitcnt vmcnt({OPT['thr']})"); a.label(f"L1_thr{lblc[0]}")
                    e("s_barrier")
                if k == "v": rdV(it[1], it[2], vs)()
                if k == "k" and not nok: rdK(it[1], it[2], ks)()
                if k == "dma" and dma: a.dma(kvv[it[2]], SRDKV, sKVO2 if it[1] else sKVO, it[2] * 1024, nt)
                if k == "adv" and adv: e(f"s_add_u32 {sKVO}, {sKVO}, 8192"); e(f"s_and_b32 {sKVO}, {sKVO}, 262143"); e(f"s_add_u32 {sKVO2}, {sKVO}, 4096")
            for f in extra.get(g, []): f()
            for j, op in valg.get(g + NS, []) + valg.get(g, []):
                if not OPT["bnoc"] & 4: sm_op(j, op)
        if OPT["bnoc"] & 1: a.wait(lgkm=0)
    stamp(a, 3)
    shift = lambda op, g0: {g0 + k: [lambda r=r: e(f"{op} {r}, {r}, {sDL}" if op == "v_subrev_u32" else f"{op} {r}, {sDL}, {r}")] for k, r in enumerate(ka + va)}
    shift = lambda op, g0: {g0 + k: [lambda r=r: e(f"{op} {r}, {sDL}, {r}")] for k, r in enumerate(ka + va)}
    e("s_waitcnt lgkmcnt(0)"); a.lds = []
    a.label("L1_tile0")
    tileB(0, dma=False, vm=None, extra={dg: [lambda: only(0, lambda: dma_half(0, 0))], dg + 10: [lambda: only(0, lambda: dma_half(0, 1))]})
    K2 = kernel2(a) if OPT["fuse"] else None
    x1, x2 = {}, {}
    if F4:
        early = next(K2)
        x1 = {50: [lambda: e(f"buffer_load_dword {vTag}, {vZero}, {SRDD}, 0 offen sc1")]}
        gl = [(x1, g) for g in range(30, 94, 2)] + [(x2, g) for g in range(30, 94, 2)]
        for k, un in enumerate(early):
            x, g = gl[k * len(gl) // len(early)]
            x.setdefault(g, []).append(lambda un=un: [e(t) for t in un])
    tileB(1, vm=None, extra=x1)
    tileB(2, vm=None, extra=x2)
    tileB(3, ks=0, vm=32, extra=shift("v_add_u32", 44))
    tileB(0, vs=0, ks=0, dma=False, adv=False, vm=32,
          extra={29: [lambda: only(0, x5_write)], 45: [lambda: (a.wait(vm=24, lgkm=0), e("s_barrier"))], 46: [lambda: only(1, x5_write)],
                 50: [lambda: only(1, lambda: dma_half(0, 0))], 60: [lambda: only(1, lambda: dma_half(0, 1))],
                 62: [lambda: (e(f"s_cmp_eq_u32 {sQH}, 0"), e(f"s_cselect_b32 {sSL[0]}, {sSL0}, {sS}"))]})
    tileB(0, vs=0, ks=0, dma=False, adv=False, vm=24, extra=shift("v_subrev_u32", 44))
    def bodyB():
        for u in range(4): tileB(u, kill=True, extra={40: [lambda: e(f"s_mov_b32 {sSL[0]}, {sSL0}")]} if u == 1 else {})
    steady = list(a.lds)
    a.label("L1_loopB")
    bodyB()
    assert a.lds == steady
    e(f"s_add_u32 {sIT}, {sIT}, 1"); e(f"s_cmp_lt_u32 {sIT}, 6"); e("s_cbranch_scc1 L1_loopB")
    x30, x31 = {}, {}
    if E3:
        fl4 = next(K2)
        for k, o in enumerate(fl4[0]): x30.setdefault(OPT["e30"] + 2 * k, []).append(o)
        for k, o in enumerate(fl4[1] + fl4[2]): x31.setdefault(OPT["e31"] + 2 * k, []).append(o)
    tileB(0, dma=False, adv=False, vm=16, extra=x30)
    tileB(1, dma=False, adv=False, vm=8 if E3 else 0, nok=True, extra=x31)
    stamp(a, 4)
    for g, j, op in tail: sm_op(j, op)
    e("s_nop 1")
    def lsum_ops(j):
        sp = "s[98:99]" if j == 0 else "s[100:101]"
        ops = xlane("v_add_f32", vl[j], vt[1]) + [lambda: e(f"v_cmp_ngt_f32 {sp}, {sTHR}, {vl[j]}"), lambda: e(f"v_rcp_f32 {R2(j)[0]}, {vl[j]}"),
                                                  lambda: e(f"v_rcp_f32 {R2(j)[1]}, {vl[j]}")]
        if j: ops.append(lambda: e("s_or_b64 s[98:99], s[98:99], s[100:101]"))
        return ops
    G = Gaps()
    G.spread([(o, 4) for j in range(2) for o in lsum_ops(j)], list(range(0, 8)))
    G.run(PVg(5))
    for j in range(2, 6):
        for o in lsum_ops(j): o()
    e("s_cmp_lg_u64 s[98:99], 0"); e(f"s_cselect_b32 {sT0}, 1, 0"); e(f"s_andn2_b32 {sT0}, {sT0}, {sPass}")
    if OPT["bnoc"]: e(f"s_mov_b32 {sT0}, 0")
    e(f"v_mov_b32 {vt[1]}, {sT0}"); e(f"ds_write_b32 {vFL}, {vt[1]}"); a.lds.append(set())
    if F4:
        e(f"v_readfirstlane_b32 s93, {vTag}"); e(f"s_or_b32 s93, s93, {sW}"); e("s_cbranch_scc0 L1_tagslow")
        a.label("L1_tagok")
        e(f"ds_write_b32 {vFL}, {vTag} offset:16"); a.lds.append(set())
    ostf = (" " + OPT["ost"].replace("+", " ")) if OPT["ost"] else ""
    fill = []
    cnt = [0]
    def ev(t):
        e(t); cnt[0] += 1
        if fill and cnt[0] % (OPT["fint"] if F4 else 3) == 0: fill.pop(0)()
    for j in range(6):
        if j == 1:
            a.wait(lgkm=0, vm=None if E3 else 4); e("s_barrier")
            if F4: vZ = V(244, 4)
            e(f"v_and_b32 {vt[0]}, 0xfffffff0, {vFL}"); a.ds_read_b128(vZ, vt[0], 0)
            if F4: e(f"ds_read_b32 {vTag}, {vt[0]} offset:16"); a.lds.append(vTag.regs())
        if j == 2:
            a.wait(lgkm=0)
            e(f"v_or3_b32 {vt[0]}, {vZ[0]}, {vZ[1]}, {vZ[2]}"); e(f"v_or_b32 {vt[0]}, {vt[0]}, {vZ[3]}"); e("s_nop 0")
            e(f"v_readfirstlane_b32 {sT1}, {vt[0]}"); e(f"s_cmp_lg_u32 {sT1}, 0")
            if not (OPT["only01"] or OPT["bnoc"] or OPT["kvskip"] or OPT["askip"]): e("s_cbranch_scc1 L1_fallback")
            if K2 and OPT["fuse"] < 3: next(K2); fill = next(K2)
            if E3: next(K2); fill = [] if OPT["w3l"] else fl4[3]
            elif F4:
                fl4 = next(K2)
                if OPT["fo"] == 2: fill = fl4
            if OPT["fuse"] == 3:
                e(f"s_mov_b32 {SRDWO[0]}, s18"); e(f"s_mov_b32 {SRDWO[1]}, s19"); e(f"s_mov_b32 {SRDWO[2]}, {FLOFF + 65536}"); e(f"s_mov_b32 {SRDWO[3]}, 0x20000")
                e(f"s_lshl_b32 {sT1}, {sB}, 12"); e(f"s_lshl_b32 {sT2}, {sHP}, 2"); e(f"s_add_u32 {sT1}, {sT1}, {sT2}"); e(f"s_add_u32 {sP1}, {sT1}, {FLOFF}")
                e(f"v_lshlrev_b32 {vTA}, 8, {vLane}"); e(f"v_mov_b32 {vTD}, 0x5eedf1a6")
        if E3 and j == OPT["pj"]: next(K2)
        e(f"s_add_u32 {sT0}, {sOO}, {j * 131072}")
        for m in range(4):
            T = V(208 + 8 * (m % 2), 8); D = V(224 + 4 * (m % 2), 4)
            for i in range(8): ev(f"v_accvgpr_read_b32 {T[i]}, {OA(2 * m + (i >> 2), j)[i & 3]}")
            for i in range(4): ev(f"v_pk_mul_f32 {T[2*i:2*i+2]}, {T[2*i:2*i+2]}, {R2(j)}")
            for i in range(4): ev(f"v_cvt_pk_bf16_f32 {D[i]}, {T[2*i]}, {T[2*i+1]}")
            a.bstore(D, vOS, SRDO, sT0, m * 1024, ostf)
        if F4: zm4[2 * j](); zm4[2 * j + 1]()
    assert not fill
    if E3 and OPT["tp"]:
        def signal(t):
            e("s_barrier")
            e(f"s_cmp_lg_u32 {sW}, 0"); e(f"s_cbranch_scc1 L1_nosig{t}")
            e("s_mov_b64 exec, 0xffff")
            e(f"buffer_store_dword v38, v179, {SRDF}, {sFLO} offen sc1")
            e("s_mov_b64 exec, -1")
            a.label(f"L1_nosig{t}")
        K2.send((signal, fl4[3] if OPT["w3l"] else [], lambda: stamp(a, 5), lambda: dump_stamps(a, 6, 0x4000000, sW, vt[0], vt[1], last=False)))
    elif F4:
        e(f"v_lshlrev_b32 v179, 8, {vLane}")
        if OPT["fo"] == 0:
            for o in fl4: o()
        if not E3: next(K2)
        a.wait(vm=32 if OPT["fo"] == 0 else 0); e("s_barrier")
        stamp(a, 5)
        e(f"s_cmp_lg_u32 {sW}, 0"); e("s_cbranch_scc1 L1_nosig")
        e("s_mov_b64 exec, 0xffff")
        e(f"buffer_store_dword v38, v179, {SRDF}, {sFLO} offen sc1")
        e("s_mov_b64 exec, -1")
        a.label("L1_nosig")
        if E3 and OPT["pj"] == 6: next(K2)
        if E3 and OPT["w3l"]:
            for o in fl4[3]: o()
        if E3 and OPT["pj"] == 6: a.wait(vm=8 if OPT["w3l"] else 0)
        K2.send(lambda: dump_stamps(a, 6, 0x4000000, sW, vt[0], vt[1], last=False))
    if F4: pass
    elif OPT["fuse"] == 3:
        a.wait(vm=0); e("s_barrier")
        stamp(a, 5)
        e(f"s_cmp_lg_u32 {sW}, 0"); e("s_cbranch_scc1 L1_nosig")
        e("s_mov_b64 exec, 0xffff")
        e(f"buffer_store_dword {vTD}, {vTA}, {SRDWO}, {sP1} offen sc1")
        e("s_mov_b64 exec, -1")
        a.label("L1_nosig")
        next(K2); fill = next(K2)
        K2.send((fill, lambda: dump_stamps(a, 6, 0x4000000, sW, vt[0], vt[1], last=False)))
    elif K2:
        stamp(a, 5)
        K2.send((sB, lambda: dump_stamps(a, 6, 0x4000000, sW, vt[0], vt[1], last=False)))
    else:
        dump_stamps(a, 6, 0x4000000, sW, vt[0], vt[1])
    a.label("L1_end"); e("s_endpgm")
    if F4:
        next(K2)
        a.label("L1_tagslow")
        e("s_mov_b32 s75, 0")
        a.label("L1_tagloop")
        e("s_sleep 8"); e(f"buffer_load_dword {vTag}, {vZero}, {SRDD}, 0 offen sc1"); e("s_waitcnt vmcnt(0)")
        e(f"v_readfirstlane_b32 s93, {vTag}"); e("s_add_u32 s75, s75, 1"); e("s_cmp_lg_u32 s93, 0"); e("s_cbranch_scc1 L1_tagok")
        e("s_cmp_lt_u32 s75, 0x40000"); e("s_cbranch_scc1 L1_tagloop")
        e("s_branch L1_tagok")
    a.label("L1_fallback")
    a.lds = []; a.vm = []
    e("s_waitcnt vmcnt(0) lgkmcnt(0)"); e("s_barrier")
    e(f"s_mov_b32 {sPass}, 1"); e(f"s_mov_b32 {SRDKV[2]}, {NR}")
    for q in range(6): e(f"v_mov_b32 {vl[q]}, 0xff800000")
    e(f"s_mov_b32 {sKVO}, 0"); e(f"s_mov_b32 {sKVO2}, 4096"); e(f"s_mov_b32 {sIT}, 0")
    a.label("L1_fb_loop")
    for o in dma_kv(sM0KV): o()
    e("s_waitcnt vmcnt(0)"); e("s_barrier")
    for n in range(8):
        for pi in range(2): rdK(n, pi, 0)()
    for f in sm: f()
    e("s_nop 15")
    for j in range(6):
        for o in rowmax_ops(j, vt[0], vt[1]): o()
        e(f"v_max_f32 {vl[j]}, {vl[j]}, {vt[0]}")
    e("s_barrier")
    e(f"s_add_u32 {sIT}, {sIT}, 1"); e(f"s_cmp_lt_u32 {sIT}, 32"); e("s_cbranch_scc1 L1_fb_loop")
    e(f"s_mov_b32 {sKVO}, {sKV0}"); e(f"s_add_u32 {sKVO2}, {sKVO}, 4096")
    for t in range(4):
        e(f"s_add_u32 {sT0}, {sM0KV}, {t * 16384}")
        for o in dma_kv(sT0): o()
    for o in dma_kv(sS): o()
    for o in x5_ops(): o()
    e(f"s_mov_b32 {sSL[0]}, {sSL0}")
    for j in range(6):
        for o in negfill_ops(j, vl[j]): o()
        e(f"v_mov_b32 {vl[j]}, 0")
    if not F4:
        for i in range(4): e(f"v_mov_b32 {vZ[i]}, 0")
    for o in init: o()
    e("s_nop 1")
    for f in (zm4 if F4 else zm): f()
    stream_init()
    e("s_waitcnt vmcnt(0)"); e("s_barrier")
    for n in range(8):
        for pi in range(2): rdK(n, pi, 0)()
    e("s_waitcnt lgkmcnt(0)"); e("s_nop 15")
    e("s_branch L1_tile0")
    return a.text()

def kernel2(a):
    fused = a is not None
    if not fused: a = Asm()
    e = a.e
    SRDWO, SRDOW, SRDOUT, SRDDBG = S(20, 4), S(24, 4), S(28, 4), S(80, 4)
    sW, sRB, sCB, sT0, sT1, sT2, sIT = S(36), S(46), S(47), S(48), S(49), S(50), S(45)
    sWOo, sOo, sM0 = S(76), S(77), S(78)
    vLane = V(1); vt = [V(i) for i in range(2, 10)]
    wa = [V(10 + k) for k in range(8)]
    wv = [V(18 + k) for k in range(8)]
    ov = [V(26 + k) for k in range(6)]
    ra = [V(32 + k) for k in range(3)]
    vRW, vOut = V(35), V(36)
    AC = lambda i, j: A(4 * (j * 8 + i), 4)
    AF = lambda i: V(40 + 4 * i, 4)
    BF = lambda sl, j: V(72 + 24 * sl + 4 * j, 4)
    REG = 36864
    osc = " sc1" if (fused and OPT["osc"]) else ""
    F4 = fused and OPT["fuse"] == 4
    if F4:
        sT2, sM0 = S(75), S(74)
        vt[0] = V(4)
        SRDF, sCL, sMK, sPC, vPD, vTg, vPA = S(84, 4), S(79), S(50), S(75), V(37), V(38), V(39)
    E3 = F4 and OPT["fo"] == 3
    if E3: sCL = S(92); REG = 8192
    TP = E3 and OPT["tp"]
    SLB = [131072, 32768, 98304, 0] if E3 else [0, 8192, 16384, 24576]
    wl = [V(168 + k) for k in range(8)]; rw = [V(176 + k) for k in range(3)]
    mark0 = len(a.out)
    if not fused:
        a.k2 = 1
        a.label("mha_oproj_kernel")
        e("s_cmp_ge_u32 s2, 256"); e("s_cbranch_scc1 L2_end")
        e("s_load_dwordx16 s[4:19], s[0:1], 0")
        e(f"v_lshrrev_b32 {vt[0]}, 6, v0"); e(f"v_and_b32 {vLane}, 63, v0")
        e(f"v_readfirstlane_b32 {sW}, {vt[0]}")
    e(f"s_and_b32 {sT2}, s2, 7"); e(f"s_lshr_b32 {sT0}, s2, 3")
    if OPT["map2"] in (0, 2):
        e(f"s_lshr_b32 {sT1}, {sT2}, 1"); e(f"s_lshl_b32 {sT1}, {sT1}, 3"); e(f"s_and_b32 {sRB}, {sT0}, 7")
        e(f"s_add_u32 {sRB}, {sT1}, {sRB}")
        e(f"s_and_b32 {sT1}, {sT2}, 1"); e(f"s_lshl_b32 {sT1}, {sT1}, 2"); e(f"s_lshr_b32 {sCB}, {sT0}, 3"); e(f"s_add_u32 {sCB}, {sCB}, {sT1}")
        if OPT["map2"] == 2:
            e(f"s_lshl_b32 {sCB}, {sCB}, 2"); e(f"s_lshr_b32 {sCB}, {OPT['cbtab']}, {sCB}"); e(f"s_and_b32 {sCB}, {sCB}, 7")
    else:
        e(f"s_lshl_b32 {sT1}, {sT2}, 2"); e(f"s_and_b32 {sT2}, {sT0}, 3"); e(f"s_add_u32 {sRB}, {sT1}, {sT2}")
        e(f"s_lshr_b32 {sCB}, {sT0}, 2")
        if OPT["cbrot"]: e(f"s_add_u32 {sCB}, {sCB}, {OPT['cbrot']}"); e(f"s_and_b32 {sCB}, {sCB}, 7")
    t0, t1, t2, t3 = wa[:4]
    e(f"v_lshrrev_b32 {t2}, 4, {vLane}"); e(f"v_and_b32 {t1}, 15, {vLane}")
    e(f"v_lshlrev_b32 {t3}, 1, {t2}"); e(f"v_xor_b32 {t1}, {t1}, {t3}")
    e(f"v_lshlrev_b32 {t0}, 11, {t2}"); e(f"v_lshl_add_u32 {wv[0]}, {t1}, 4, {t0}")
    e(f"v_xor_b32 {t1}, 128, {wv[0]}")
    for m in range(1, 8): e(f"v_add_u32 {wv[m]}, {m * 8192 - (m % 4) * 1024}, {t1 if m & 1 else wv[0]}")
    if OPT["wvx"] == 1:
        e(f"v_and_b32 {t1}, 15, {vLane}"); e(f"v_lshlrev_b32 {t0}, 14, {t2}"); e(f"v_lshl_add_u32 {wv[0]}, {t1}, 4, {t0}")
        for m in range(1, 8): e(f"v_add_u32 {wv[m]}, {m * 2048 - (m % 4) * 1024}, {wv[0]}")
    if OPT["wvx"] == 5:
        e(f"v_and_b32 {t1}, 15, {vLane}"); e(f"v_lshlrev_b32 {t0}, 12, {t2}"); e(f"v_lshl_add_u32 {wv[0]}, {t1}, 4, {t0}")
        for m in range(1, 8): e(f"v_add_u32 {wv[m]}, {((m & 1) + 8 * (m >> 1)) * 2048 - (m % 4) * 1024}, {wv[0]}")
    if OPT["wvx"] == 6:
        e(f"v_and_b32 {t1}, 15, {vLane}"); e(f"v_lshlrev_b32 {t0}, 13, {t2}"); e(f"v_lshl_add_u32 {wv[0]}, {t1}, 4, {t0}")
        for m in range(1, 8): e(f"v_add_u32 {wv[m]}, {((m & 3) + 16 * (m >> 2)) * 2048 - (m % 4) * 1024}, {wv[0]}")
    if OPT["wvx"] in (7, 8, 9):
        r_ = {7: 0, 8: 2, 9: 2}[OPT["wvx"]]
        e(f"s_add_u32 {sT0}, {sCB}, {r_}"); e(f"s_and_b32 {sT0}, {sT0}, 7"); e(f"s_add_u32 {sT0}, {sT0}, 8"); e(f"s_sub_u32 {sT0}, {sT0}, {sCB}"); e(f"s_lshl_b32 {sT0}, {sT0}, 7")
        e(f"v_bfe_u32 {t1}, {vLane}, 3, 1"); e(f"v_mul_lo_u32 {t1}, {t1}, {sT0}"); e(f"v_and_b32 {t3}, 7, {vLane}"); e(f"v_lshl_add_u32 {t1}, {t3}, 4, {t1}")
        e(f"s_lshl_b32 {sT0}, {sCB}, 7"); e(f"s_sub_u32 {sT0}, 4096, {sT0}"); e(f"v_add_u32 {t1}, {sT0}, {t1}")
        e(f"v_lshlrev_b32 {t0}, {14 if OPT['wvx'] == 9 else 11}, {t2}"); e(f"v_add_u32 {wv[0]}, {t1}, {t0}")
        for m in range(1, 8): e(f"v_add_u32 {wv[m]}, {m * (2048 if OPT['wvx'] == 9 else 8192) - (m % 4) * 1024}, {wv[0]}")
    if OPT["wvx"] == 2:
        e(f"v_and_b32 {t1}, 7, {vLane}"); e(f"v_lshrrev_b32 {t0}, 3, {vLane}"); e(f"v_lshlrev_b32 {t0}, 11, {t0}"); e(f"v_lshl_add_u32 {wv[0]}, {t1}, 4, {t0}")
        for m in range(1, 8): e(f"v_add_u32 {wv[m]}, {(m >> 1) * 16384 + (m & 1) * 128 - (m % 4) * 1024 + 4096}, {wv[0]}")
        e(f"v_add_u32 {wv[0]}, 4096, {wv[0]}")
    if OPT["wvx"] == 3:
        e(f"v_and_b32 {t1}, 15, {vLane}"); e(f"v_lshlrev_b32 {t0}, 11, {t2}"); e(f"v_lshl_add_u32 {wv[0]}, {t1}, 4, {t0}")
        for m in range(1, 8): e(f"v_add_u32 {wv[m]}, {m * 8192 - (m % 4) * 1024}, {wv[0]}")
    if OPT["wvx"] == 4:
        e(f"v_lshlrev_b32 {wv[0]}, 4, {vLane}"); e(f"s_mul_i32 {sT0}, {sCB}, {8192 - 256}"); e(f"v_add_u32 {wv[0]}, {sT0}, {wv[0]}")
        for m in range(1, 8): e(f"v_add_u32 {wv[m]}, {m * 1024 - (m % 4) * 1024}, {wv[0]}")
    e(f"s_mul_i32 {sM0}, {sW}, {REG}")
    e(f"s_lshl_b32 {sWOo}, {sW}, {20 if OPT['sig'] else 21}"); e(f"s_lshl_b32 {sOo}, {sW}, 15")
    def ovs():
        e(f"s_mul_i32 {sT0}, {sRB}, 786432"); e(f"v_lshlrev_b32 {vt[0]}, 4, {vLane}")
        e(f"v_add_u32 {ov[0]}, {sT0}, {vt[0]}")
        for j in range(1, 6): e(f"v_add_u32 {ov[j]}, {j * 131072}, {ov[0]}")
    if not fused:
        ovs()
        e("s_waitcnt lgkmcnt(0)")
        stamp(a, 0)
    e(f"s_lshl_b32 {sT0}, {sCB}, 8")
    e(f"s_add_u32 {SRDWO[0]}, s12, {sT0}"); e(f"s_addc_u32 {SRDWO[1]}, s13, 0")
    e(f"s_sub_u32 {SRDWO[2]}, 8388608, {sT0}"); e(f"s_mov_b32 {SRDWO[3]}, 0x20000")
    e(f"s_mov_b32 {SRDOW[0]}, s18"); e(f"s_mov_b32 {SRDOW[1]}, s19")
    e(f"s_mov_b32 {SRDOW[2]}, 25165824"); e(f"s_mov_b32 {SRDOW[3]}, 0x20000")
    if OPT["k2skip"] & 1: e(f"s_mov_b32 {SRDWO[2]}, 0")
    if OPT["k2skip"] & 2: e(f"s_mov_b32 {SRDOW[2]}, 0")
    def issue_w(slot):
        ops = []
        for h in range(2):
            ops.append(lambda h=h: e(f"s_add_u32 m0, {sM0}, {SLB[slot] + h * 4096}"))
            for m in range(4): ops.append(lambda m=m, h=h: a.dma(wv[4 * h + m], SRDWO, sWOo, m * 1024, tag=("w", slot)))
        ops.append(lambda: e(f"s_add_u32 {sWOo}, {sWOo}, 65536"))
        return ops
    def issue_o(slot):
        ops = [(lambda j=j: a.bload(BF(slot, j), ov[j], SRDOW, sOo, 0, osc)) for j in range(6)]
        ops.append(lambda: e(f"s_add_u32 {sOo}, {sOo}, 1024"))
        return ops
    def run(ops):
        for o in ops:
            n = len(a.out); o()
            if "m0" in a.out[-1]: e("s_nop 0")
    def wa_setup():
        e(f"v_lshrrev_b32 {vg}, 4, {vLane}"); e(f"v_lshrrev_b32 {vr}, 2, {vLane}"); e(f"v_and_b32 {vc}, 3, {vLane}")
        e(f"v_and_b32 {u1}, 7, {vr}"); e(f"v_lshlrev_b32 {u0}, 8, {vr}")
        e(f"v_add_u32 {u0}, {sM0}, {u0}"); e(f"v_lshl_add_u32 {u0}, {vc}, 3, {u0}"); e(f"v_lshl_add_u32 {u0}, {u1}, 5, {u0}")
        if E3: e(f"v_add_u32 {u0}, 98304, {u0}")
        for d in range(4):
            e(f"s_add_u32 {sT0}, {sW}, {d}"); e(f"s_and_b32 {sT0}, {sT0}, 3"); e(f"s_lshl_b32 {sT0}, {sT0}, 6")
            e(f"v_xor_b32 {wa[2*d]}, {sT0}, {u0}"); e(f"v_xor_b32 {wa[2*d+1]}, 32, {wa[2*d]}")
    vg, vr, vc, u0, u1 = vt[3:8]
    if F4:
        ovs(); wa_setup()
        for i in range(4): e(f"v_mov_b32 v{252 + i}, 0")
        def scl():
            e(f"s_lshr_b32 {sT0}, {sRB}, 1"); e(f"s_lshl_b32 {sT0}, {sT0}, 4"); e(f"s_lshl_b32 {sT1}, {sCB}, 1"); e(f"s_add_u32 {sT0}, {sT0}, {sT1}")
            e(f"s_and_b32 {sT1}, {sRB}, 1"); e(f"s_add_u32 {sT0}, {sT0}, {sT1}"); e(f"s_lshl_b32 {sT0}, {sT0}, 8"); e(f"s_lshl_b32 {sT1}, {sW}, 4")
            e(f"s_add_u32 {sT0}, {sT0}, {sT1}"); e(f"s_add_u32 {sCL}, {sT0}, {FLOFF}")
        if E3: scl()
        lines = [t[1:] for t in a.out[mark0:]]; del a.out[mark0:]
        units = []
        for t in lines:
            if t.startswith(("s_addc", "s_cselect")): units[-1].append(t)
            else: units.append([t])
        yield units
        fills = issue_w(0) + issue_w(1) + issue_w(2) + issue_w(3)
        if E3: yield [[(lambda o=o: run([o])) for o in issue_w(k)] for k in range(4)]
        else:
            yield [(lambda o=o: run([o])) for o in fills]
            scl()
        e(f"v_and_b32 {vPA}, 3, {vLane}"); e(f"v_lshlrev_b32 {vPA}, 2, {vPA}"); e(f"v_mov_b32 {vTg}, v63")
        e(f"s_mov_b32 {sPC}, 0"); e(f"s_mov_b32 {sMK}, 1")
        if E3:
            for k in range(8): e(f"v_add_u32 {wl[k]}, 0xfffe8000, {wa[k]}")
            if TP: e(f"v_lshlrev_b32 v179, 8, {vLane}"); e("s_mov_b32 s93, 0")
            yield None
            e(f"buffer_load_dword {vPD}, {vPA}, {SRDF}, {sCL} offen sc1"); a.vm.append(vPD.regs())
        dump1 = yield None
        if TP:
            signal, w3ops, st5, dump1 = dump1
            a.wait_for(vPD); st5()
        a.k2 = 1; stamp(a, 0)
        if not E3: e(f"buffer_load_dword {vPD}, {vPA}, {SRDF}, {sCL} offen sc1")
        if OPT["fo"] == 1: run(fills)
    elif fused:
        yield None
        sB1, dump1 = yield issue_w(0) + issue_w(1) + issue_w(2) + issue_w(3)
        if OPT["fuse"] == 3:
            vTag, vPA, vPD = V(61), V(60), V(59)
            a.k2 = 1; stamp(a, 0)
            e(f"s_lshr_b32 {sT0}, {sRB}, 1"); e(f"s_lshl_b32 {sT0}, {sT0}, 4"); e(f"s_lshl_b32 {sT1}, {sCB}, 1"); e(f"s_add_u32 {sT0}, {sT0}, {sT1}")
            e(f"s_and_b32 {sT1}, {sRB}, 1"); e(f"s_add_u32 {sT0}, {sT0}, {sT1}"); e(f"s_lshl_b32 {sT0}, {sT0}, 8"); e(f"s_add_u32 s39, {sT0}, {FLOFF}")
            e(f"v_and_b32 {vPA}, 15, {vLane}"); e(f"v_lshlrev_b32 {vPA}, 2, {vPA}")
            e(f"s_cmp_lg_u32 {sW}, 0"); e("s_cbranch_scc1 L2_np0")
            e(f"buffer_load_dword {vPD}, {vPA}, {SRDDBG}, s39 offen sc1")
            a.label("L2_np0")
            run(sB1)
        ovs()
    else:
        run(issue_w(0)); run(issue_o(0)); run(issue_w(1)); run(issue_o(1))
        if OPT["codepf"]: code_prefetch(a, vLane, V(173), V(172), "mha_oproj_kernel", 16384, sW)
        run(issue_w(2)); run(issue_o(2)); run(issue_w(3))
    t0 = vt[0]
    mark1 = len(a.out)
    e(f"s_mov_b32 {SRDOUT[0]}, s14"); e(f"s_mov_b32 {SRDOUT[1]}, s15")
    e(f"s_mov_b32 {SRDOUT[2]}, 6291456"); e(f"s_mov_b32 {SRDOUT[3]}, 0x20000")
    e(f"v_add_u32 {vRW}, {sM0}, {t0}")
    RB = [0, 32768, 98304]
    if E3: e(f"v_add_u32 {rw[1]}, {RB[1]}, {vRW}"); e(f"v_add_u32 {rw[2]}, {RB[2]}, {vRW}"); rw[0] = vRW
    for d in range(1, 4):
        e(f"s_sub_u32 {sT0}, {sW}, {d}"); e(f"s_and_b32 {sT0}, {sT0}, 3"); e(f"s_mul_i32 {sT0}, {sT0}, {REG}")
        e(f"s_add_u32 {sT0}, {sT0}, {RB[d - 1] if E3 else (d - 1) * 12288}"); e(f"v_add_u32 {ra[d-1]}, {sT0}, {t0}")
    if not F4: wa_setup()
    e(f"s_mul_i32 {sT0}, {sRB}, 196608"); e(f"s_lshl_b32 {sT1}, {sCB}, 8"); e(f"s_add_u32 {sT0}, {sT0}, {sT1}")
    e(f"s_lshl_b32 {sT1}, {sW}, 6"); e(f"s_add_u32 {sT0}, {sT0}, {sT1}")
    e(f"v_and_b32 {u1}, 15, {vLane}"); e(f"v_lshlrev_b32 {vOut}, 11, {u1}"); e(f"v_add_u32 {vOut}, {sT0}, {vOut}")
    e(f"v_and_b32 {u1}, 1, {vg}"); e(f"v_lshl_add_u32 {vOut}, {u1}, 5, {vOut}")
    e(f"v_lshrrev_b32 {u1}, 1, {vg}"); e(f"v_lshl_add_u32 {vOut}, {u1}, 4, {vOut}")
    vZ = V(168, 4)
    if not F4:
        for i in range(4): e(f"v_mov_b32 {vZ[i]}, 0")
        e("s_nop 1")
        for k in range(12): e(f"v_mfma_f32_32x32x16_bf16 {A(16 * k, 16)}, {vZ}, {vZ}, 0")
    def rdA(slot, i):
        if E3: return [(lambda u=u: a.ds_read_tr(AF(i)[2 * u:2 * u + 2], (wl if slot & 1 else wa)[i], (32768 if slot < 2 else 0) + u * 4096)) for u in range(2)]
        return [(lambda u=u: a.ds_read_tr(AF(i)[2 * u:2 * u + 2], wa[i], slot * 8192 + u * 4096)) for u in range(2)]
    late2 = []
    if E3: late2 = a.out[mark1:]; del a.out[mark1:]
    def chk(n):
        e(f"v_cmp_ne_u32 vcc, {vPD}, {vTg}"); e(f"s_and_b32 {sT0}, vcc_lo, {sMK}"); e(f"s_cbranch_scc1 L2_slow{n}")
        a.label(f"L2_back{n}")
    if TP:
        chk(0)
        stamp(a, 1)
        run(issue_o(0)); run(issue_o(1)); run(issue_o(2))
        n3 = 8 if w3ops else 0
        for o in w3ops: o()
        for i in range(7):
            for r in rdA(0, i): r()
        a.out += late2
        e("s_cmp_lg_u32 s93, 0"); e("s_cbranch_scc1 L2_sigd")
        e(f"s_waitcnt vmcnt({18 + n3})"); signal("a")
        a.label("L2_sigd")
        a.wait(vm=6 + n3)
        stamp(a, 2)
    elif F4:
        if not E3: a.wait(vm=32 if OPT["fo"] == 1 else 0)
        chk(0)
        stamp(a, 1)
        run(issue_o(0)); run(issue_o(1)); run(issue_o(2))
        if not E3: a.wait(vm=18 + 24)
        for i in range(7):
            for r in rdA(0, i): r()
        a.out += late2
        a.wait(vm=6)
        stamp(a, 2)
    elif fused and OPT["fuse"] == 3:
        stamp(a, 1)
        e(f"s_mov_b32 {sIT}, 0")
        e(f"s_cmp_lg_u32 {sW}, 0"); e("s_cbranch_scc1 L2_skip")
        e("s_waitcnt vmcnt(32)")
        e("s_branch L2_chk")
        a.label("L2_poll")
        e(f"s_sleep {OPT['psleep']}")
        e(f"buffer_load_dword {vPD}, {vPA}, {SRDDBG}, s39 offen sc1")
        e("s_waitcnt vmcnt(0)")
        a.label("L2_chk")
        e(f"v_cmp_ne_u32 vcc, {vPD}, {vTag}"); e(f"s_add_u32 {sIT}, {sIT}, 1")
        e("s_cbranch_vccz L2_skip")
        e(f"s_cmp_lt_u32 {sIT}, 0x40000"); e("s_cbranch_scc1 L2_poll")
        a.label("L2_skip")
        e("s_barrier")
        stamp(a, 2)
        run(issue_o(0)); run(issue_o(1)); run(issue_o(2))
        a.wait_for(("w", 0))
        for i in range(7):
            for r in rdA(0, i): r()
        a.wait(vm=6)
        stamp(a, 3)
    elif fused:
        e(f"s_mov_b32 {SRDDBG[0]}, s16"); e(f"s_mov_b32 {SRDDBG[1]}, s17"); e(f"s_mov_b32 {SRDDBG[2]}, 256"); e(f"s_mov_b32 {SRDDBG[3]}, 0x20000")
        e(f"s_lshl_b32 {sT0}, {sB1}, 4"); e(f"s_lshr_b32 {sT1}, {sRB}, 1"); e(f"s_lshl_b32 {sT1}, {sT1}, 4")
        if OPT["fuse"] == 2: e(f"s_mov_b32 {sT0}, 0"); e(f"s_mov_b32 {sT1}, 0")
        e(f"v_mov_b32 {vt[0]}, 1"); e(f"v_mov_b32 {vt[1]}, 0"); e(f"s_mov_b32 {sIT}, 0")
        a.k2 = 1; stamp(a, 0)
        a.wait(vm=0); e("s_barrier")
        stamp(a, 1)
        e(f"s_cmp_lg_u32 {sW}, 0"); e("s_cbranch_scc1 L2_skip")
        e("s_mov_b64 exec, 1")
        e(f"buffer_atomic_add {vt[0]}, {vt[1]}, {SRDDBG}, {sT0} offen sc1")
        a.label("L2_poll")
        e(f"buffer_load_dword {vt[2]}, {vt[1]}, {SRDDBG}, {sT1} offen sc1")
        e("s_waitcnt vmcnt(0)")
        e(f"v_readfirstlane_b32 {sT2}, {vt[2]}"); e(f"s_add_u32 {sIT}, {sIT}, 1")
        e(f"s_cmp_ge_u32 {sT2}, {256 if OPT['fuse'] == 2 else 16}"); e("s_cbranch_scc1 L2_go")
        e(f"s_sleep {OPT['psleep']}")
        e(f"s_cmp_lt_u32 {sIT}, 0x40000"); e("s_cbranch_scc1 L2_poll")
        a.label("L2_go")
        e("s_mov_b64 exec, -1")
        a.label("L2_skip")
        for i in range(7):
            for r in rdA(0, i): r()
        e("s_barrier")
        stamp(a, 2)
        run(issue_o(0)); run(issue_o(1)); run(issue_o(2))
        a.wait(vm=0)
        stamp(a, 3)
    else:
        a.wait_for(("w", 0))
        stamp(a, 1)
        for i in range(7):
            for r in rdA(0, i): r()
    e(f"s_mov_b32 {sIT}, 0")
    def body():
        for u in range(4):
            G = Gaps()
            mf = [(lambda i=i, j=j: a.mfma16(AC(i, j), AF(i), BF(u, j), AC(i, j))) for i in range(8) for j in range(6)]
            m0_ = mf[0]; mf[0] = lambda m0_=m0_: (a.wait_for(BF(u, 5), lgkm=2), m0_())
            for k, r in enumerate(rdA(u, 7)): G.mem(k, r)
            G.mem(5, lambda: a.wait_for(("w", (u + 1) % 4), lgkm=0))
            for i in range(7):
                for k, r in enumerate(rdA((u + 1) % 4, i)): G.mem(6 * i + 6 + k, r)
            ops = issue_w(u) + issue_o((u + 3) % 4)
            if u == 0: G.mem(3, lambda: (e(f"s_cmp_eq_u32 {sIT}, 7"), e(f"s_cselect_b32 {SRDWO[2]}, 0, {SRDWO[2]}")))
            if u == 1: G.mem(3, lambda: (e(f"s_cmp_eq_u32 {sIT}, 7"), e(f"s_cselect_b32 {SRDOW[2]}, 0, {SRDOW[2]}")))
            if F4 and u == 0: G.mem(4, lambda: (e(f"s_add_u32 {sT1}, {sIT}, 3"), e(f"s_lshr_b32 {sT1}, {sT1}, 1"), e(f"s_bfm_b32 {sMK}, {sT1}, 0")))
            if F4 and u == 1: G.mem(4, lambda: (a.wait_for(vPD), chk(1)))
            if OPT["sig"] and u == 0: G.mem(2, lambda: (e(f"s_cmp_eq_u32 {sIT}, 3"), e(f"s_cselect_b32 {sT1}, {6 * 524288}, 0"), e(f"s_add_u32 {sWOo}, {sWOo}, {sT1}")))
            if F4 and u == OPT["pollu"]: ops = ops + [lambda: a.bload(vPD, vPA, SRDF, sCL, 0, " sc1")]
            free = [g for i in range(1, 8) for g in range(6 * i + 2, 6 * i + 6)]
            for o, g in zip(ops, [free[(k * len(free)) // len(ops)] for k in range(len(ops))]): G.mem(g, o)
            G.run(mf)
    mark = len(a.out)
    body(); body(); sl, sv = list(a.lds), list(a.vm)
    del a.out[mark:]
    a.lds, a.vm = list(sl), list(sv)
    a.label("L2_loop")
    body()
    assert a.lds == sl and a.vm == sv, (a.vm, sv)
    e(f"s_add_u32 {sIT}, {sIT}, 1"); e(f"s_cmp_lt_u32 {sIT}, 8"); e("s_cbranch_scc1 L2_loop")
    a.wait(vm=0, lgkm=0)
    if not fused: stamp(a, 2); stamp(a, 3)
    if F4: stamp(a, 3)
    stamp(a, 4)
    e("s_nop 7")
    for d in range(1, 4):
        for j in range(6):
            for b in range(2):
                c = (d - 1) * 12 + j * 2 + b
                if E3: a.ds_write_b128(rw[d - 1], AC(2 * d + b, j), (c >> 3) * 32768 - RB[d - 1] + (c & 7) * 1024)
                else: a.ds_write_b128(vRW, AC(2 * d + b, j), c * 1024)
    R = lambda b, j: V(40 + 8 * j + 4 * b, 4)
    for j in range(6):
        for b in range(2):
            for i in range(4): e(f"v_accvgpr_read_b32 {R(b, j)[i]}, {AC(b, j)[i]}")
    a.wait(lgkm=0); e("s_barrier")
    T = lambda d, b, j: V(96 + 48 * d + 8 * j + 4 * b, 4)
    for j in range(6):
        for d in range(3):
            for b in range(2):
                c = d * 12 + j * 2 + b
                a.ds_read_b128(T(d, b, j), ra[d], ((c >> 3) * 32768 - RB[d] + (c & 7) * 1024) if E3 else (j * 2 + b) * 1024)
    for j in range(6):
        for d in range(3):
            for b in range(2):
                a.wait_for(T(d, b, j))
                for i in range(2): e(f"v_pk_add_f32 {R(b, j)[2*i:2*i+2]}, {R(b, j)[2*i:2*i+2]}, {T(d, b, j)[2*i:2*i+2]}")
        D = V(10 + 4 * j, 4)
        e(f"v_cvt_pk_bf16_f32 {D[0]}, {R(0, j)[0]}, {R(0, j)[1]}"); e(f"v_cvt_pk_bf16_f32 {D[1]}, {R(0, j)[2]}, {R(0, j)[3]}")
        e(f"v_cvt_pk_bf16_f32 {D[2]}, {R(1, j)[0]}, {R(1, j)[1]}"); e(f"v_cvt_pk_bf16_f32 {D[3]}, {R(1, j)[2]}, {R(1, j)[3]}")
        e(f"s_mov_b32 {sT0}, {j * 32768}"); e("s_nop 0")
        e(f"v_permlane16_swap_b32 {D[0]}, {D[2]}"); e(f"v_permlane16_swap_b32 {D[1]}, {D[3]}")
        a.bstore(D, vOut, SRDOUT, sT0, 0, (" " + OPT["ost2"].replace("+", " ")) if OPT["ost2"] else "")
    dump_stamps(a, 6, 0x4100000, sW, vt[0], vt[1])
    a.k2 = 0
    if OPT["leak"]:
        lk = OPT["leak"]
        if lk < 100:
            e(f"v_readfirstlane_b32 s93, v{241 + 2 * (lk % 10)}"); e(f"v_readfirstlane_b32 s94, v{241 + 2 * (lk // 10)}")
        elif lk < 200:
            e(f"s_mov_b32 s93, s{61 + 2 * (lk % 10)}"); e(f"s_mov_b32 s94, s{61 + 2 * ((lk // 10) % 10)}")
        else:
            e("v_readfirstlane_b32 s93, v251"); e("s_mov_b32 s94, s61")
        e("s_nop 4"); e("s_sub_u32 s93, s93, s94"); e("s_lshl_b32 s93, s93, 2"); e("s_min_u32 s93, s93, 100000")
        e("s_memrealtime s[98:99]"); e("s_waitcnt lgkmcnt(0)"); e("s_add_u32 s93, s93, s98")
        a.label("L2_spin")
        e("s_memrealtime s[98:99]"); e("s_waitcnt lgkmcnt(0)"); e("s_sub_u32 s94, s93, s98"); e("s_cmp_gt_i32 s94, 0"); e("s_cbranch_scc1 L2_spin")
    if fused:
        dump1()
        yield None
        for n in range(2):
            if TP and n == 0:
                a.label("L2_slow0")
                e("s_waitcnt vmcnt(0)"); signal("b"); e("s_mov_b32 s93, 1"); e("s_branch L2_slow0x")
                n = "0w"
            a.label(f"L2_slow{n}")
            e(f"s_sleep {OPT['psleep']}")
            if n == "0w": a.label("L2_slow0x")
            e(f"buffer_load_dword {vPD}, {vPA}, {SRDF}, {sCL} offen sc1"); e("s_waitcnt vmcnt(0)")
            e(f"s_add_u32 {sPC}, {sPC}, 1"); e(f"s_cmp_ge_u32 {sPC}, 0x40000"); e(f"s_cbranch_scc1 L2_back{str(n)[0]}")
            e(f"v_cmp_ne_u32 vcc, {vPD}, {vTg}"); e(f"s_and_b32 {sT0}, vcc_lo, {sMK}"); e(f"s_cbranch_scc1 L2_slow{n}")
            e(f"s_branch L2_back{str(n)[0]}")
        yield None
    else:
        a.label("L2_end")
        e("s_endpgm")
        yield a.text()


def kernel0():
    a = Asm(); e = a.e
    a.label("mha_pre_kernel")
    e("s_cmp_ge_u32 s2, 256"); e("s_cbranch_scc1 L0_end")
    e("s_load_dwordx16 s[4:19], s[0:1], 0"); e("s_waitcnt lgkmcnt(0)")
    e("s_mov_b32 s20, s4"); e("s_mov_b32 s21, s5"); e("s_mov_b32 s22, 6291456"); e("s_mov_b32 s23, 0x20000")
    e("s_mov_b32 s24, s10"); e("s_mov_b32 s25, s11"); e("s_mov_b32 s26, 8388608"); e("s_mov_b32 s27, 0x20000")
    e("v_lshlrev_b32 v1, 7, v0"); e("s_lshl_b32 s3, s2, 15")
    e("buffer_load_dword v2, v1, s[20:23], s3 offen"); e("buffer_load_dword v3, v1, s[24:27], s3 offen")
    e("s_waitcnt vmcnt(0)")
    a.label("L0_end"); e("s_endpgm")
    return a.text()

def main():
    launches = []
    if OPT["fuse"]:
        s = HEADER + "; @launch kernel=mha_qattn_kernel grid=(256,1,1) block=(256,1,1) lds=163840\n"
        s += '.amdgcn_target "amdgcn-amd-amdhsa--gfx950"\n.text\n'
        s += ".globl mha_qattn_kernel\n.p2align 8\n.type mha_qattn_kernel,@function\n" + kernel1() + "L_text_end:\n"
        s += kd("mha_qattn_kernel", 512, 256)
        open(sys.argv[1], "w").write(s)
        return
    if OPT["only"] in (None, "k1"): launches.append("; @launch kernel=mha_qattn_kernel grid=(256,1,1) block=(256,1,1) lds=163840")
    if OPT["only"] in (None, "k2"): launches.append("; @launch kernel=mha_oproj_kernel grid=(256,1,1) block=(256,1,1) lds=163840")
    s = HEADER + "\n".join(launches) + "\n"
    s += '.amdgcn_target "amdgcn-amd-amdhsa--gfx950"\n.text\n'
    s += ".globl mha_qattn_kernel\n.p2align 8\n.type mha_qattn_kernel,@function\n" + kernel1()
    s += ".globl mha_oproj_kernel\n.p2align 8\n.type mha_oproj_kernel,@function\n" + next(kernel2(None)) + "L_text_end:\n"
    s += kd("mha_qattn_kernel", 512, 256) + kd("mha_oproj_kernel", 512, 256)
    open(sys.argv[1], "w").write(s)
main()
```
